```python
import torch

def _softmax(x, axis=-1):
    return torch.softmax(x, dim=axis)
def _gelu(x):
    return torch.nn.functional.gelu(x, approximate="tanh")
def _silu(x):
    return torch.nn.functional.silu(x)
def _sigmoid(x):
    return torch.sigmoid(x)
def _layernorm(x, axis=-1, eps=1e-5):
    m = x.mean(dim=axis, keepdim=True)
    v = x.var(dim=axis, keepdim=True, unbiased=False)
    return (x - m) / torch.sqrt(v + eps)
def _scatter_add(tgt, idx, src, axis=0):
    return tgt.clone().index_add_(axis, idx, src)
def _segment_sum(src, seg, n):
    out = torch.zeros((n,) + src.shape[1:], dtype=src.dtype)
    return out.index_add_(0, seg, src)
def _pad(x, pw):
    flat = tuple(v for pair in reversed(pw) for v in pair)
    return torch.nn.functional.pad(x, flat)

kernel_name = 'recurrent_scan__linear_kernel_hedgehog__moe_arch_mod__prompt'

def setup_inputs():

    _w = (lambda a: (lambda t: t.to(torch.bfloat16) if t.is_floating_point() else t)(torch.as_tensor(a)))
    def _A_setup():
        B, S, D, H = 1, 2048, 1024, 32
        Dh = D // H
        return {
            "x": _w((lambda *s: torch.randn(*s, dtype=torch.bfloat16) * 0.05)(B, S, D)),
            "wqkv": _w((lambda *s: torch.randn(*s, dtype=torch.bfloat16) * 0.2)(D, 3 * D)),
            "w_phi": _w((lambda *s: torch.randn(*s, dtype=torch.bfloat16) * 0.2)(H, Dh, Dh) * (Dh ** -0.5)),
            "wo": _w((lambda *s: torch.randn(*s, dtype=torch.bfloat16) * 0.05)(D, D)),
        }
    _A_in = _A_setup()

    def _B_setup():
        B, S, D, F, C = 1, 2048, 1024, 3584, 1
        return {
            "x": _w((lambda *s: torch.randn(*s, dtype=torch.bfloat16) * 0.05)(B, S, D)),
            "w_r": _w((lambda *s: torch.randn(*s, dtype=torch.bfloat16) * 0.05)(D)),
            "w_gate": _w((lambda *s: torch.randn(*s, dtype=torch.bfloat16) * 0.05)(D, F)),
            "w_up": _w((lambda *s: torch.randn(*s, dtype=torch.bfloat16) * 0.05)(D, F)),
            "w_down": _w((lambda *s: torch.randn(*s, dtype=torch.bfloat16) * 0.05)(F, D)),
        }
    _B_in = _B_setup()

    return {
        "A_x": _A_in["x"],
        "A_wqkv": _A_in["wqkv"],
        "A_w_phi": _A_in["w_phi"],
        "A_wo": _A_in["wo"],
        "B_x": _B_in["x"],
        "B_w_r": _B_in["w_r"],
        "B_w_gate": _B_in["w_gate"],
        "B_w_up": _B_in["w_up"],
        "B_w_down": _B_in["w_down"],
    }

def reference(A_x, A_wqkv, A_w_phi, A_wo, B_x, B_w_r, B_w_gate, B_w_up, B_w_down):
    def _A_ref(x, wqkv, w_phi, wo):
        B, S, D = x.shape
        H = 32; Dh = D // H
        qkv = (lambda x, *d: x.permute(*d))((x @ wqkv).reshape(B, S, 3, H, Dh), 2, 0, 3, 1, 4)
        q, k, v = qkv[0], qkv[1], qkv[2]
        pq = torch.einsum("bhsd,hdf->bhsf", q, w_phi)
        pk = torch.einsum("bhsd,hdf->bhsf", k, w_phi)
        phi_q = torch.concatenate([_softmax(pq, axis=-1), _softmax(-pq, axis=-1)], axis=-1)
        phi_k = torch.concatenate([_softmax(pk, axis=-1), _softmax(-pk, axis=-1)], axis=-1)
        kv = torch.einsum("bhsf,bhsd->bhfd", phi_k, v)
        z  = torch.einsum("bhsf->bhf", phi_k)
        num = torch.einsum("bhqf,bhfd->bhqd", phi_q, kv)
        den = torch.einsum("bhqf,bhf->bhq", phi_q, z)[..., None] + 1e-6
        o = num / den
        return (lambda x, *d: x.permute(*d))(o, 0, 2, 1, 3).reshape(B, S, D) @ wo

    def _B_ref(x, w_r, w_gate, w_up, w_down):
        B, S, D = x.shape
        C = 1
        r = x @ w_r
        idx = torch.argsort(-r, axis=-1)[:, :C]
        idx_e = (lambda x, n, axis: torch.repeat_interleave(x, n, dim=axis))(idx.reshape(B, C, 1), D, axis=2)
        x_sel = (lambda x, i, axis: torch.take_along_dim(x, i, dim=axis))(x, idx_e, axis=1)
        g = _silu(x_sel @ w_gate)
        u = x_sel @ w_up
        y = (g * u) @ w_down
        r_sel = _sigmoid((lambda x, i, axis: torch.take_along_dim(x, i, dim=axis))(r, idx, axis=1))
        y = y * r_sel.reshape(B, C, 1)
        b_off = (torch.arange(B) * S).reshape(B, 1)
        flat_idx = (idx + b_off).reshape(B * C)
        zero = (x * 0.0).reshape(B * S, D)
        upd = _scatter_add(zero, flat_idx, y.reshape(B * C, D), axis=0)
        return x + upd.reshape(B, S, D)

    x = A_x
    xn = _layernorm(x, axis=-1)
    s = _A_ref(xn, A_wqkv, A_w_phi, A_wo)
    g = _silu(_B_ref(xn, B_w_r, B_w_gate, B_w_up, B_w_down))
    return x + s * g
```

```python
import re

TRANS = ("v_exp_f32","v_log_f32","v_rcp_f32","v_rsq_f32","v_sqrt_f32","v_sin_f32","v_cos_f32","v_rcp_iflag_f32")
NO_DST_S = ("s_cmp","s_waitcnt","s_barrier","s_nop","s_branch","s_cbranch","s_endpgm","s_setprio","s_sleep","s_bitcmp")

def regs_of(tok):
    t = tok.strip()
    t = t.lstrip('-').strip('|')
    if t.startswith('abs(') or t.startswith('neg('): t = t[4:-1]
    m = re.fullmatch(r'([vsa])(\d+)', t)
    if m: return {(m.group(1), int(m.group(2)))}
    m = re.fullmatch(r'([vsa])\[(\d+):(\d+)\]', t)
    if m: return {(m.group(1), i) for i in range(int(m.group(2)), int(m.group(3))+1)}
    if t in ('vcc','vcc_lo','vcc_hi'): return {('vcc',0)}
    if t in ('exec','exec_lo','exec_hi'): return {('exec',0)}
    if t == 'm0': return {('m0',0)}
    return set()

def split_ops(s):
    out=[]; depth=0; cur=''
    for ch in s:
        if ch in '[(': depth+=1
        if ch in '])': depth-=1
        if ch==',' and depth==0: out.append(cur); cur=''
        else: cur+=ch
    if cur.strip(): out.append(cur)
    return [o.strip() for o in out]

class Ins:
    def __init__(self, text):
        self.text = text
        body = text.split(';')[0].strip()
        parts = body.split(None,1)
        self.mn = parts[0]
        rest = parts[1] if len(parts)>1 else ''
        ops = split_ops(rest)
        self.mods = ''
        toks=[]
        for o in ops:
            p = o.split(None,1)
            toks.append(p[0])
            if len(p)>1: self.mods += ' '+p[1]
        self.ops = toks
        mn = self.mn
        self.kind='other'; self.w=set(); self.r=set(); self.srcc=set(); self.srcab=set()
        R = [regs_of(t) for t in toks]
        if mn.startswith('v_mfma'):
            self.kind='mfma'; self.w=R[0]; self.srcab=R[1]|R[2]; self.srcc=R[3]; self.r=self.srcab|self.srcc
            self.passes = 8 if '32x32x16' in mn else 4 if '16x16x32' in mn else 16
        elif mn.startswith('v_'):
            self.kind='valu'
            if (mn.startswith('v_permlane') and 'swap' in mn) or mn.startswith('v_swap'):
                self.w=R[0]|R[1]; self.r=R[0]|R[1]
            elif mn.startswith('v_cmp'):
                self.w=R[0]; self.r=set().union(*R[1:])
            elif '_co_' in mn:
                self.w=R[0]|R[1]; self.r=set().union(*R[2:])
            else:
                self.w=R[0]; self.r=set().union(*R[1:]) if len(R)>1 else set()
                if mn.startswith(('v_fmac','v_pk_fmac','v_dot2c','v_fmamk','v_fmaak')): self.r|=R[0]
                if mn.startswith('v_cndmask') and len(R)==3: self.r|={('vcc',0)}
            self.trans = mn.replace('_e32','').replace('_e64','') in TRANS
            self.dpp = ('row_' in self.mods) or ('quad_perm' in self.mods) or ('wave_' in self.mods)
            self.permlane = mn.startswith('v_permlane')
            self.readlane = mn.startswith(('v_readlane','v_readfirstlane'))
            if self.dpp: self.r |= R[0]
        elif mn.startswith('s_'):
            self.kind='salu'
            if mn.startswith('s_load') or mn.startswith('s_buffer_load'):
                self.kind='smem'; self.w=R[0]; self.r=set().union(*R[1:])
            elif mn.startswith(NO_DST_S):
                self.r=set().union(*R) if R else set()
            else:
                self.w=R[0]; self.r=set().union(*R[1:]) if len(R)>1 else set()
                if 'saveexec' in mn: self.w|={('exec',0)}
        elif mn.startswith(('buffer_','global_')):
            self.kind='vmem'
            self.lds = bool(re.search(r'\blds\b', self.mods)) or 'load_lds' in mn
            if 'store' in mn or ('atomic' in mn):
                self.r=set().union(*R)
                self.store=True
                if mn.startswith('buffer_'): self.data=R[0]
                else: self.data=R[1]
                if 'atomic' in mn and 'sc0' in self.mods: self.w = R[0]
                self.wide = ('x3' in mn or 'x4' in mn)
            else:
                self.store=False
                if self.lds: self.r=set().union(*R)|{('m0',0)}
                else: self.w=R[0]; self.r=set().union(*R[1:])
        elif mn.startswith('ds_'):
            self.kind='ds'
            if mn.startswith(('ds_read','ds_bpermute','ds_permute','ds_swizzle')) or '_rtn' in mn:
                self.w=R[0]; self.r=set().union(*R[1:])
            else:
                self.r=set().union(*R)

def need(p, c):
    n=0
    vw = {x for x in p.w if x[0] in 'va'}
    sw = {x for x in p.w if x[0] in ('s','vcc')}
    if p.kind=='valu':
        if c.kind=='mfma' and vw & c.r: n=max(n,2)
        if c.kind=='valu':
            if getattr(p,'trans',False) and not c.trans and (vw & (c.r|c.w)): n=max(n,1)
            if (c.dpp or c.permlane) and vw & c.r: n=max(n,2)
            if c.readlane and vw & c.r: n=max(n,1)
            if sw & c.r: n=max(n, 4 if c.readlane else 2)
        if c.kind=='vmem' and sw & c.r: n=max(n,5)
        if ('exec',0) in p.w: n=max(n,5)
        if c.kind in('salu','smem') and sw & c.r: n=max(n,1)
    if p.kind=='valu' and p.mn.startswith('v_dot') and (vw & (c.r|c.w)):
        same_c = (c.mn==p.mn and len(c.ops)==4 and regs_of(c.ops[3])==vw and not (vw & (regs_of(c.ops[1])|regs_of(c.ops[2]))))
        if not same_c: n=max(n,3)
    if p.kind=='mfma':
        P={4:(8,6,3),8:(12,10,7),16:(20,18,15)}[p.passes]
        if c.kind=='mfma':
            if p.w & c.srcab: n=max(n,P[0])
            if p.w & c.srcc and not (p.w==c.srcc and p.passes==c.passes): n=max(n,P[1])
            if p.w & c.w and not (p.w==c.srcc): n=max(n,P[1])
        else:
            if p.w & (c.r|c.w): n=max(n,P[0])
            if c.kind=='valu' and p.srcc & c.w: n=max(n,P[2])
    if p.kind=='salu' and ('m0',0) in p.w and ('m0',0) in c.r: n=max(n,1)
    if p.kind=='vmem' and getattr(p,'store',False) and p.wide and p.data & c.w: n=max(n,2)
    if p.kind=='ds' and p.mn.startswith('ds_write') and ('128' in p.mn or '96' in p.mn) and c.kind=='valu' and (p.r & c.w): n=max(n,2)
    return n

class Asm:
    def __init__(self):
        self.lines=[]
        self.hist=[]
        self.pos=0
        self.nops=0
    def raw(self, text):
        self.lines.append(text)
    def label(self, name):
        self.lines.append(name+':')
    def comment(self, t): self.lines.append('    ; '+t)
    def __call__(self, text):
        for t in text.strip().split('\n'):
            t=t.strip()
            if not t: continue
            if t.startswith(';'): self.lines.append('    '+t); continue
            if t.endswith(':') and ' ' not in t: self.label(t[:-1]); continue
            self.emit(t)
    def emit(self, text):
        ins=Ins(text)
        req=0
        for (p,pp) in self.hist:
            n=need(p,ins)
            if n:
                have=self.pos-pp-1
                req=max(req,n-have)
        while req>0:
            k=min(req,16)
            self.lines.append(f'    s_nop {k-1}')
            self.pos+=k; req-=k; self.nops+=1
        self.lines.append('    '+text)
        if ins.mn=='s_nop':
            self.pos+=int(ins.ops[0],0)+1
        else:
            self.hist.append((ins,self.pos)); self.pos+=1
        self.hist=[(p,pp) for (p,pp) in self.hist if self.pos-pp<24]
    def pad(self, n=20):
        while n>0:
            k=min(n,16); self.emit(f's_nop {k-1}'); n-=k
    def text(self): return '\n'.join(self.lines)+'\n'

def kernel_header(a, name):
    a.raw(f'.globl {name}\n.p2align 8\n.type {name},@function\n{name}:')
    a.hist=[]
def kernel_desc(name, vgpr, sgpr=102, accum=None):
    accum = accum or ((vgpr+3)//4*4)
    return f'''.amdhsa_kernel {name}
  .amdhsa_next_free_vgpr {vgpr}
  .amdhsa_next_free_sgpr {sgpr}
  .amdhsa_accum_offset {accum}
  .amdhsa_group_segment_fixed_size 0
  .amdhsa_kernarg_size 96
  .amdhsa_user_sgpr_count 2
  .amdhsa_user_sgpr_kernarg_segment_ptr 1
  .amdhsa_system_sgpr_workgroup_id_x 1
.end_amdhsa_kernel
'''
```

```python
import sys, os
from asmgen import Asm, kernel_header, kernel_desc
NAME = "recurrent_scan__linear_kernel_hedgehog__moe_arch_mod__prompt"
EXP = os.environ.get('EXP','').split(',')
STAMPS = 'st' in EXP
def opt(name, default):
    for e in EXP:
        if e.startswith(name+'='): return int(e.split('=')[1])
    return default
WS_SIZE = 0x10000000
WS_REC  = 0x000000
WS_EPO  = 0x004000
WS_RDY  = 0x008000
KVS     = 4224
WS_FILL = 0x100000
WS_CSP  = WS_FILL
WS_KVR  = WS_CSP + 256*768
WS_GU   = WS_KVR + 32*KVS
WS_Y    = WS_GU + 16*3584*4
assert WS_Y + 16*64*256 <= WS_FILL + 0x100000
WS_O    = 0x400000
WS_KVP  = 0x800000
WS_DBG  = 0x3000000
SLOT = 40960
L_WR   = 122880
L_STG  = 131072
LM     = 147456
L_PHI  = LM+256
L_M    = LM+4096+512
L_R    = L_M+1024
L_RC   = L_R+1024
L_SQ   = L_RC+512
L_CS   = L_SQ+256
L_PHQ  = LM+8192+256
L_KEY  = LM+8192+256+6144
L_FLG  = L_KEY+64
assert L_CS+768 <= LM+8192 and L_FLG+16 <= 163840
NT = opt('nt',1)
PLC = {}
for it_ in os.environ.get('PLC','i1:k0,k1,k2,k3,k4;i4:g2;i12:o0,o1;i13:o2,o3;j14:g0;j15:g1;x1:w3,w4;h1:w5,w6;c2:w7,w0;co:w1,w2').split(';'):
    PLC[it_.split(':')[0]] = it_.split(':')[1].split(',')
QX = opt('qx',4)
LNP = opt('lnp',2)
DPPM = "row_mask:0xf bank_mask:0xf"
LOG2E = 0x3fb8aa3b
SPIN = 200000
SX, SW, SWS, SA, SB, SC = 40, 44, 48, 52, 56, 60
VST = 255
LNX = 192

def srd(a, d, base, size):
    a(f"s_mov_b32 s{d}, s{base}\ns_mov_b32 s{d+1}, s{base+1}\ns_mov_b32 s{d+2}, {size}\ns_mov_b32 s{d+3}, 0x00020000")
def stamp(a, i):
    if STAMPS: a(f"s_memrealtime s[100:101]\ns_waitcnt lgkmcnt(0)\nv_writelane_b32 v{VST}, s100, {i}")
def stamp2(a, i):
    if STAMPS: a(f"s_memrealtime s[100:101]\ns_memtime s[98:99]\ns_waitcnt lgkmcnt(0)\nv_writelane_b32 v{VST}, s100, {i}\nv_writelane_b32 v{VST-1}, s98, {i}")
def dump(a):
    if STAMPS: a(f"s_lshl_b32 s3, s2, 3\ns_add_u32 s3, s3, s39\ns_lshl_b32 s3, s3, 9\ns_add_u32 s3, s3, {WS_DBG}\nv_lshlrev_b32 v2, 3, v1\nbuffer_store_dwordx2 v[{VST-1}:{VST}], v2, s[{SWS}:{SWS+3}], s3 offen")
def rne(a, dst, src):
    a(f"v_cvt_pk_bf16_f32 v{dst}, v{src}, v{src}\nv_lshlrev_b32 v{dst}, 16, v{dst}")
def R(b, n): return f"v[{b}:{b+n-1}]"
def unpack(a, dst, src):
    a(f"v_lshlrev_b32 v{dst}, 16, v{src}\nv_and_b32 v{dst+1}, 0xffff0000, v{src}")
def mfma(a, d, A, B, c=None):
    a(f"v_mfma_f32_16x16x32_bf16 {R(d,4)}, {R(A,4)}, {R(B,4)}, {'0' if c is None else R(c,4)}")

class VM:
    def __init__(self, a, nt=1): self.a=a; self.nt=nt; self.q=[[] for _ in range(nt)]; self.only=None; self.nl=0
    def issue(self, tag, n=1):
        for c in range(self.nt):
            if self.only is None or c in self.only: self.q[c] += [tag]*n
    def wait(self, tag):
        need={}
        for c in range(self.nt):
            q=self.q[c]
            if tag in q and (self.only is None or c in self.only):
                idx=max(i for i,t in enumerate(q) if t==tag); need[c]=len(q)-1-idx; self.q[c]=q[idx+1:]
        if not need: return
        allc=[c for c in range(self.nt) if self.only is None or c in self.only]
        base=max(need.values()) if len(need)==len(allc) else None
        if base is not None: self.a(f"s_waitcnt vmcnt({min(base,63)})")
        for c,n in need.items():
            if n!=base:
                self.nl+=1
                self.a(f"s_cmp_lg_u32 s85, {c}\ns_cbranch_scc1 L_vw{self.nl}\ns_waitcnt vmcnt({min(n,63)})\nL_vw{self.nl}:")
    def drain(self): self.a("s_waitcnt vmcnt(0)"); self.q=[[] for _ in range(self.nt)]
    def cond(self, classes, f):
        classes=set(classes)
        if not classes: return
        if len(classes)==self.nt: f(); return
        self.nl+=1; l=f"L_vc{self.nl}"
        if len(classes)==1: self.a(f"s_cmp_lg_u32 s85, {list(classes)[0]}\ns_cbranch_scc1 {l}")
        else:
            for c in set(range(self.nt))-classes: self.a(f"s_cmp_eq_u32 s85, {c}\ns_cbranch_scc1 {l}")
        self.only=classes; f(); self.only=None
        self.a(f"{l}:")

def maxu(a, dst, regs):
    regs=list(regs)
    if len(regs)==1: a(f"v_mov_b32 v{dst}, v{regs[0]}"); return
    if len(regs)==2: a(f"v_max_u32 v{dst}, v{regs[0]}, v{regs[1]}"); return
    a(f"v_max3_u32 v{dst}, v{regs[0]}, v{regs[1]}, v{regs[2]}"); regs=regs[3:]
    while len(regs)>=2: a(f"v_max3_u32 v{dst}, v{dst}, v{regs[0]}, v{regs[1]}"); regs=regs[2:]
    if regs: a(f"v_max_u32 v{dst}, v{dst}, v{regs[0]}")

def checked(a, lbl, regs, reload, t=2, sleep=1):
    a(f"s_mov_b32 s29, 0\n{lbl}:")
    maxu(a, t, regs)
    a(f"v_cmp_eq_u32 vcc, -1, v{t}\ns_cbranch_vccz {lbl}k\ns_add_u32 s29, s29, 1\ns_cmp_ge_u32 s29, {SPIN}\ns_cbranch_scc1 {lbl}k")
    if sleep: a(f"s_sleep {sleep}")
    reload()
    a(f"s_waitcnt vmcnt(0)\ns_branch {lbl}\n{lbl}k:")
    if STAMPS: a(f"v_writelane_b32 v{VST-1}, s29, {50+int(lbl[3:])}")

def red8(a, e):
    for i in range(4): a(f"v_permlane32_swap_b32 v{e+i}, v{e+4+i}")
    for i in range(4): a(f"v_add_f32 v{e+i}, v{e+i}, v{e+4+i}")
    for i in range(2): a(f"v_permlane16_swap_b32 v{e+i}, v{e+2+i}")
    for i in range(2): a(f"v_add_f32 v{e+i}, v{e+i}, v{e+2+i}")
    for i in range(2): a(f"v_add_f32 v{e+i}, v{e+i}, v{e+i} row_ror:8 {DPPM}")

def silu_prep(a, PG, PX, vm_, vr, T):
    a(f"v_mul_f32 v{T}, v{vm_}, v{vr}\nv_mul_f32 v{T+2}, 0xbfb8aa3b, v{vr}\nv_mul_f32 v{T+3}, {LOG2E}, v{T}\nv_mov_b32 v{T+1}, v{vr}")
    E=T+4
    for d in range(8): unpack(a, PG+2*d, PX+d)
    for i in range(0,16,2): a(f"v_pk_fma_f32 {R(E+i,2)}, {R(PG+i,2)}, {R(T+2,2)}, {R(T+2,2)} op_sel:[0,0,1] op_sel_hi:[1,0,1]")
    for i in range(0,16,2): a(f"v_pk_fma_f32 {R(PG+i,2)}, {R(PG+i,2)}, {R(T,2)}, {R(T,2)} op_sel:[0,1,0] op_sel_hi:[1,1,0] neg_lo:[0,0,1] neg_hi:[0,0,1]")
    for i in range(16): a(f"v_exp_f32 v{E+i}, v{E+i}")
    for i in range(0,16,2): a(f"v_pk_add_f32 {R(E+i,2)}, {R(E+i,2)}, 1.0 op_sel_hi:[1,0]")
    for i in range(16): a(f"v_rcp_f32 v{E+i}, v{E+i}")
    for i in range(0,16,2): a(f"v_pk_mul_f32 {R(PG+i,2)}, {R(PG+i,2)}, {R(E+i,2)}")

PG, PX = 224, 240
def xaddr(a, dst):
    a(f"s_lshl_b32 s3, s38, 1\ns_lshr_b32 s28, s39, 2\ns_add_u32 s3, s3, s28\ns_lshl_b32 s69, s3, 4\ns_lshl_b32 s3, s34, 7\ns_add_u32 s3, s3, s69")
    a(f"v_and_b32 v2, 15, v1\nv_add_u32 v{dst}, s3, v2\nv_lshlrev_b32 v{dst}, 11, v{dst}\nv_lshrrev_b32 v2, 4, v1\nv_lshl_add_u32 v{dst}, v2, 3, v{dst}\ns_lshl_b32 s3, s35, 7\nv_add_u32 v{dst}, s3, v{dst}")
def xload(a, v):
    for ct in range(4): a(f"buffer_load_dwordx2 {R(PX+2*ct,2)}, v{v}, s[{SX}:{SX+3}], 0 offen offset:{32*ct}")
def stat3(a, vm_, vr):
    a(f"v_and_b32 v2, 15, v1\nv_add_u32 v2, s69, v2\nv_lshlrev_b32 v2, 2, v2\nv_add_u32 v2, {L_M+512}, v2\nds_read_b32 v{vm_}, v2\nds_read_b32 v{vr}, v2 offset:1024")

def key_rd(a, v):
    a(f"v_mov_b32 v2, {L_KEY}\nds_read_b32 v{v}, v2")
def key_fin(a, v):
    a(f"s_waitcnt lgkmcnt(0)\nv_readfirstlane_b32 s70, v{v}\ns_and_b32 s68, s70, 0x7ff\ns_sub_u32 s68, 2047, s68")

def h_waves(a):
    vm = VM(a, NT)
    vA=8; vW=12; vCS=18; vF=21; vD=22; vXo=23
    CSA=24; CSL=32; XF=80
    FW=128; DW=192; FA=120; SENT=248; vL16=252; vP64=253
    a("L_H:")
    a("v_and_b32 v4, 7, v1\ns_lshl_b32 s33, s37, 7\ns_add_u32 s85, s36, s37\ns_and_b32 s85, s85, 3\ns_lshl_b32 s87, s85, 7")
    a("s_lshl_b32 s3, s36, 7\ns_lshl_b32 s28, s38, 5\ns_add_u32 s3, s3, s28")
    a("v_lshrrev_b32 v7, 3, v1\nv_add_u32 v3, s3, v7\nv_lshlrev_b32 v3, 11, v3")
    a("v_lshrrev_b32 v5, 4, v1\nv_xor_b32 v6, v4, v5\nv_xor_b32 v5, 4, v6")
    a("v_lshl_add_u32 v6, v6, 4, v3\nv_lshl_add_u32 v5, v5, 4, v3")
    for j in range(4): a(f"v_add_u32 v{vA+j}, {j*16384 - j*1024}, v{5 if j&1 else 6}")
    a("s_lshl_b32 s3, s38, 4\nv_add_u32 v7, s3, v7\nv_mul_u32_u24 v7, 6144, v7")
    a("v_bfe_u32 v6, v1, 4, 1\nv_lshlrev_b32 v6, 1, v6\nv_xor_b32 v5, v4, v6\nv_add_u32 v7, s33, v7\nv_xor_b32 v6, 4, v5\nv_lshl_add_u32 v6, v6, 4, v7\nv_lshl_add_u32 v7, v5, 4, v7")
    for e in range(6): a(f"v_add_u32 v{vW+e}, {(e>>1)*2048 + (e&1)*(8*6144-1024)}, v{6 if e&1 else 7}")
    for e in range(2): a(f"v_xor_b32 v{vW+e}, {QX*128}, v{vW+e}")
    a(f"s_lshl_b32 s30, s38, 12\ns_lshl_b32 s31, s38, 11\ns_add_u32 s31, s31, 16384")
    a("s_waitcnt lgkmcnt(0)")
    srd(a, SW, 6, 1024*3072*2); srd(a, SX, 4, 2048*2048)
    def tiles(s, wfirst=False):
        sl=(s%3)*SLOT
        def A_():
            a(f"s_add_u32 m0, s30, {sl}")
            for j in range(4): a(f"buffer_load_dwordx4 v{vA+j}, s[{SX}:{SX+3}], s3 offen offset:{j*1024} lds")
        def W_():
            for e in range(6):
                if e%2==0: a(f"s_add_u32 m0, s31, {sl+(e>>1)*8192}")
                a(f"buffer_load_dwordx4 v{vW+e}, s[{SW}:{SW+3}], s28 offen offset:{(e&1)*1024} lds")
        a(f"s_add_u32 s3, s87, {(s&3)*128}\ns_and_b32 s3, s3, 511\ns_or_b32 s3, s3, {(s>>2)*512}\ns_mul_i32 s28, s3, 3072")
        if wfirst: W_(); A_()
        else: A_(); W_()
        vm.issue(('t',s),10)
    def fill_addr():
        a(f"s_lshr_b32 s3, s38, 1\ns_lshl_b32 s28, s37, 1\ns_add_u32 s28, s28, s3\ns_and_b32 s29, s38, 1\ns_lshl_b32 s3, s36, 1\ns_add_u32 s29, s29, s3")
        a(f"s_lshl_b32 s3, s28, 5\ns_add_u32 s3, s3, s29\ns_mul_i32 s3, s3, {KVS}\ns_add_u32 s78, s3, {WS_KVP}")
        a(f"s_xor_b32 s28, s28, {2*QX}\ns_lshl_b32 s3, s29, 7\ns_add_u32 s3, s3, s28\ns_lshl_b32 s3, s3, 10\ns_add_u32 s79, s3, {WS_O}")
    def fillk(i0_,i1_):
        if 'nofill' in EXP: return
        for i in range(i0_,i1_):
            if i<4: a(f"buffer_store_dwordx4 {R(SENT,4)}, v{vL16}, s[{SWS}:{SWS+3}], s78 offen offset:{i*1024} sc1")
            else: a(f"s_add_u32 s3, s78, 4096\ns_mov_b64 exec, 0xff\nbuffer_store_dwordx4 {R(SENT,4)}, v{vL16}, s[{SWS}:{SWS+3}], s3 offen sc1\ns_mov_b64 exec, -1")
            vm.issue('own',1)
    def fillo(i):
        if 'nofill' in EXP: return
        a(f"s_add_u32 s3, s79, {i*32768}\nbuffer_store_dwordx4 {R(SENT,4)}, v{vL16}, s[{SWS}:{SWS+3}], s3 offen sc1")
        vm.issue('of',1)
    PRO=os.environ.get('PRO','t0,e,t1').split(',')
    for p in PRO:
        if p=='e':
            if STAMPS: a(f"v_mov_b32 v{VST-1}, 0\nv_writelane_b32 v{VST}, s96, 0")
            srd(a, SWS, 26, WS_SIZE)
            a(f"v_mov_b32 v19, {WS_EPO}\nbuffer_load_dword v19, v19, s[{SWS}:{SWS+3}], 0 offen sc1"); vm.issue('epo',1)
            stamp(a,1)
        else: tiles(int(p[1]), 'wf' in EXP)
    for i in range(4): a(f"v_mov_b32 v{SENT+i}, -1")
    a(f"v_lshlrev_b32 v{vL16}, 4, v1\ns_and_b32 s85, s85, {NT-1}")
    a(f"s_lshl_b32 s3, s37, 4\ns_add_u32 s3, s3, s36\ns_mul_i32 s67, s3, 768\ns_add_u32 s67, s67, {WS_CSP}\ns_lshl_b32 s3, s38, 8\ns_add_u32 s67, s67, s3\ns_cmp_eq_u32 s38, 3\ns_cselect_b32 s67, {WS_SIZE}, s67")
    for i in range(8): a(f"v_mov_b32 v{CSA+i}, 0")
    a(f"v_lshlrev_b32 v{vP64}, 2, v1")
    KY=64; ST=72; CG=80; PW=224
    a("s_cmp_gt_u32 s37, 3\ns_subb_u32 s77, s37, 0\ns_cmp_gt_u32 s37, 11\ns_subb_u32 s77, s77, 0\ns_lshl_b32 s77, s77, 4\ns_add_u32 s77, s77, s36\ns_and_b32 s3, s37, 7\ns_cmp_eq_u32 s3, 3\ns_cselect_b32 s77, 224, s77")
    a(f"s_bitcmp1_b32 s38, 0\ns_cselect_b32 s{SA}, s18, s16\ns_cselect_b32 s{SA+1}, s19, s17\ns_cmp_lt_u32 s77, 224\ns_cselect_b32 s{SA+2}, {1024*3584*2}, 0\ns_mov_b32 s{SA+3}, 0x00020000")
    srd(a, SB, 20, 3584*1024*2)
    a("s_and_b32 s3, s77, 3\ns_lshl_b32 s3, s3, 8\ns_lshr_b32 s28, s38, 1\ns_lshl_b32 s28, s28, 7\ns_add_u32 s3, s3, s28\nv_lshrrev_b32 v5, 3, v1\nv_lshl_add_u32 v6, v5, 4, s3")
    a(f"v_mul_u32_u24 v6, 7168, v6\nv_lshl_add_u32 v6, v4, 4, v6\ns_lshr_b32 s3, s77, 2\ns_lshl_b32 s3, s3, 7\nv_add_u32 v{vF}, s3, v6")
    a("s_lshr_b32 s3, s2, 4\ns_mul_i32 s3, s3, 224\ns_mul_i32 s28, s38, 56\ns_add_u32 s71, s3, s28")
    a(f"v_lshlrev_b32 v6, 14, v5\nv_lshl_add_u32 v6, v4, 4, v6\ns_and_b32 s3, s2, 15\ns_lshl_b32 s3, s3, 7\nv_add_u32 v{vD}, s3, v6")

    def cs_addr():
        a(f"v_bfe_u32 v5, v1, 4, 1\nv_lshlrev_b32 v5, 5, v5\nv_xor_b32 v5, v5, v{vL16}\ns_min_u32 s3, s38, 2\ns_lshl_b32 s3, s3, 13\ns_lshr_b32 s80, s36, 2\ns_lshl_b32 s28, s80, 11\ns_add_u32 s3, s3, s28\ns_add_u32 s3, s3, 16384\nv_add_u32 v{vCS}, s3, v5")
    def cs_rd(s_):
        a(f"v_add_u32 v2, {(s_%3)*SLOT}, v{vCS}\nv_xor_b32 v3, 64, v2")
        for i in range(2): a(f"ds_read_b128 {R(CSL+8*(s_>>2)+4*i,4)}, v{2+i} offset:{1024*i}")
    def cs_ld3():
        a(f"v_lshrrev_b32 v2, 3, v1\nv_mul_u32_u24 v2, 6144, v2\nv_and_b32 v3, 7, v1\nv_lshl_add_u32 v2, v3, 4, v2")
        a(f"s_lshr_b32 s3, s87, 1\ns_lshl_b32 s28, s80, 4\ns_add_u32 s3, s3, s28\ns_add_u32 s3, s3, 768\ns_mul_i32 s3, s3, 6144\ns_lshl_b32 s28, s38, 11\ns_add_u32 s3, s3, s28\ns_add_u32 s3, s3, s33")
        a(f"s_xor_b32 s28, s3, {QX*128}\ns_cmp_eq_u32 s38, 0\ns_cselect_b32 s3, s28, s3\ns_cmp_eq_u32 s38, 3\ns_cselect_b32 s3, 0x7000000, s3\ns_add_u32 s28, s3, {8*6144}")
        for i in range(2): a(f"buffer_load_dwordx4 {R(CSL+24+4*i,4)}, v2, s[{SW}:{SW+3}], s{28 if i else 3} offen")
        vm.issue('c3',2)
    def colsum(q):
        if q==3: vm.wait('c3')
        for j in range(2):
            for d in range(4):
                t=2+2*(d&1)
                unpack(a, t, CSL+8*q+4*j+d)
                a(f"v_add_f32 v{CSA+2*d}, v{CSA+2*d}, v{t}\nv_add_f32 v{CSA+2*d+1}, v{CSA+2*d+1}, v{t+1}")
    def cs_pub():
        red8(a, CSA)
        a(f"v_and_b32 v2, 8, v1\nv_cmp_eq_u32 vcc, 0, v2\nv_cndmask_b32 v{CSA}, v{CSA+1}, v{CSA}, vcc")
        a(f"buffer_store_dword v{CSA}, v{vP64}, s[{SWS}:{SWS+3}], s67 offen sc1")
        vm.issue('pub',1)
    RDY=118
    def nonce():
        vm.wait('epo')
        a("v_readfirstlane_b32 s86, v19\ns_add_u32 s86, s86, 1")
    def ready_st():
        vm.wait('of')
        a(f"s_lshl_b32 s3, s36, 4\ns_add_u32 s3, s3, s37\ns_lshl_b32 s3, s3, 2\ns_add_u32 s3, s3, s38\ns_lshl_b32 s3, s3, 5\ns_add_u32 s3, s3, {WS_RDY}\nv_mov_b32 v2, s86\ns_mov_b64 exec, 1\nbuffer_store_dword v2, v{vL16}, s[{SWS}:{SWS+3}], s3 offen sc1\ns_mov_b64 exec, -1")
        vm.issue('rs',1)
    def ld_rdy(): a(f"s_lshl_b32 s3, s34, 11\ns_add_u32 s3, s3, {WS_RDY}\nv_lshlrev_b32 v3, 5, v1\nbuffer_load_dword v{RDY}, v3, s[{SWS}:{SWS+3}], s3 offen sc1")
    def ready_ld(): ld_rdy(); vm.issue('rl',1)
    def tagged(l, regs, reload, after=None):
        a(f"s_mov_b32 s29, 0\n{l}:\nv_cmp_ne_u32 vcc, s86, v{regs[0]}")
        for r in regs[1:]: a(f"v_cmp_ne_u32 s[92:93], s86, v{r}\ns_or_b64 vcc, vcc, s[92:93]")
        a(f"s_cbranch_vccz {l}k\ns_add_u32 s29, s29, 1\ns_cmp_ge_u32 s29, {SPIN}\ns_cbranch_scc1 {l}k\ns_sleep 2")
        reload()
        a("s_waitcnt vmcnt(0)")
        if after: after()
        a(f"s_branch {l}\n{l}k:")
        if STAMPS: a(f"v_writelane_b32 v{VST-1}, s29, {51 if l=='L_k1' else 50}")
    def ready_ck():
        vm.wait('rl'); tagged("L_rdy", [RDY], ld_rdy)
    def epoch_st():
        a(f"s_or_b32 s3, s2, s38\ns_cmp_lg_u32 s3, 0\ns_cselect_b32 s3, {WS_SIZE}, {WS_EPO}" if 0 else f"s_or_b32 s3, s2, s38\ns_mov_b32 s28, {WS_EPO}\ns_cmp_lg_u32 s3, 0\ns_cselect_b32 s3, {WS_SIZE}, s28")
        a(f"v_mov_b32 v2, s86\ns_mov_b64 exec, 1\nbuffer_store_dword v2, v{vL16}, s[{SWS}:{SWS+3}], s3 offen sc1\ns_mov_b64 exec, -1")
        vm.issue('es',1)
    def ld_f1():
        a(f"s_lshl_b32 s3, s38, 12\ns_add_u32 m0, s3, {L_STG}")
        for k in range(4): a(f"buffer_load_dwordx4 v{vL16}, s[{SWS}:{SWS+3}], s3 offen offset:{1024*k} sc1 lds")
    def fetch1(): ld_f1(); vm.issue('f1',4)
    def rd_tags():
        a(f"ds_read2st64_b32 {R(KY,2)}, v{PW+5} offset0:0 offset1:4\nds_read2st64_b32 {R(KY+2,2)}, v{PW+5} offset0:8 offset1:12\ns_waitcnt lgkmcnt(0)")
    def val1():
        vm.wait('f1'); rd_tags()
        tagged("L_k1", [KY,KY+1,KY+2,KY+3], ld_f1, rd_tags)
    def keys_rd():
        for k in range(16): a(f"ds_read_b64 {R(80+2*k,2)}, v{PW+8} offset:{1024*k}")
        a(f"ds_read_b32 v{ST}, v{PW+13}")
    def ld_cs():
        a(f"s_mul_i32 s3, s37, {16*768}\ns_mul_i32 s28, s38, 192\ns_add_u32 s3, s3, s28\ns_add_u32 s3, s3, {WS_CSP}\ns_add_u32 s28, s3, {8*768}")
        for k in range(4): a(f"buffer_load_dwordx4 {R(CG+4*k,4)}, v{PW+11}, s[{SWS}:{SWS+3}], s{28 if k>=2 else 3} offen offset:{3072*(k&1)} sc1")
    def fetch2():
        ld_cs(); vm.issue('f2',4)
    def proc1():
        a(f"v_and_b32 v{PW+4}, 0xffff0000, v{ST}\nv_lshlrev_b32 v{PW+1}, 16, v{ST}\nv_rcp_f32 v{PW+2}, v{PW+4}\nv_mov_b32 v{PW}, s70\nv_mul_f32 v{PW+3}, {LOG2E}, v{PW+2}")
    def addr1():
        a(f"s_lshl_b32 s3, s38, 12\ns_add_u32 s3, s3, {L_STG+12}\nv_add_u32 v{PW+5}, s3, v{vL16}\nv_add_u32 v{PW+8}, {L_STG+8}, v{vL16}")
        a(f"v_lshrrev_b32 v2, 5, v1\nv_and_b32 v3, 31, v1\nv_lshl_add_u32 v2, v2, 7, v3\ns_lshl_b32 s3, s38, 7\ns_add_u32 s3, s3, {L_M}\nv_lshl_add_u32 v{PW+6}, v2, 2, s3")
        a(f"v_bfe_u32 v4, v1, 2, 2\nv_lshlrev_b32 v4, 3, v4\nv_bfe_u32 v7, v1, 4, 1\nv_lshl_add_u32 v4, v7, 2, v4\nv_and_b32 v7, 3, v1\nv_add_u32 v4, v4, v7\ns_lshl_b32 s3, s38, 6\ns_add_u32 s3, s3, {L_SQ}\nv_lshl_add_u32 v{PW+7}, v4, 1, s3")
    def addr2():
        a(f"s_lshl_b32 s3, s36, 7\ns_lshl_b32 s28, s34, 7\nv_mov_b32 v2, s3\nv_mov_b32 v4, s28\nv_cmp_gt_u32 vcc, 32, v1\ns_lshl_b32 s3, s38, 5\nv_and_b32 v3, 30, v1\nv_cndmask_b32 v2, v4, v2, vcc\nv_add3_u32 v2, v2, v3, s3\nv_and_b32 v3, 1, v1\nv_lshl_add_u32 v2, v2, 1, v3\nv_lshlrev_b32 v2, 2, v2\nv_add_u32 v{PW+13}, {L_STG}, v2")
        a(f"s_mul_i32 s3, s38, 48\nv_and_b32 v2, 15, v1\nv_min_u32 v2, 11, v2\nv_lshrrev_b32 v3, 4, v1\nv_lshlrev_b32 v4, 4, v2\nv_lshl_add_u32 v2, v2, 2, v3\nv_add_u32 v2, s3, v2")
        a(f"v_and_b32 v5, 7, v2\nv_bfe_u32 v6, v2, 3, 3\nv_lshl_add_u32 v5, v5, 3, v6\nv_and_b32 v2, 0xc0, v2\nv_add_u32 v2, v2, v5\nv_lshlrev_b32 v2, 2, v2\nv_add_u32 v{PW+9}, {L_CS}, v2\nv_mul_u32_u24 v3, 768, v3\nv_add_u32 v{PW+11}, v3, v4\nv_mov_b32 v{PW+10}, {L_KEY}")
    def all_w():
        a(f"ds_write_b32 v{PW+10}, v{PW}\nds_write_b32 v{PW+6}, v{PW+1}\nds_write_b32 v{PW+6}, v{PW+2} offset:1024\nds_write_b32 v{PW+9}, v{CG}")
        a(f"s_mov_b32 exec_hi, 0\nds_write_b32 v{PW+6}, v{PW+3} offset:2048\nds_write_b16_d16_hi v{PW+7}, v{PW+4}\ns_mov_b64 exec, -1\ns_waitcnt lgkmcnt(0)")
    XR=64; IS=116; XSF=96
    def idx_xs():
        a("s_waitcnt lgkmcnt(0)")
        maxu(a, 2, range(80,112,2))
        for m in ("quad_perm:[1,0,3,2]", "quad_perm:[2,3,0,1]", "row_half_mirror", "row_mirror"): a(f"v_max_u32 v2, v2, v2 {m} {DPPM}")
        a("v_readlane_b32 s70, v2, 0\nv_readlane_b32 s3, v2, 16\nv_readlane_b32 s28, v2, 32\nv_readlane_b32 s29, v2, 48\ns_max_u32 s70, s70, s3\ns_max_u32 s28, s28, s29\ns_max_u32 s70, s70, s28\ns_and_b32 s68, s70, 0x7ff\ns_sub_u32 s68, 2047, s68")
        a(f"s_lshl_b32 s3, s68, 11\ns_and_b32 s28, s77, 3\ns_lshl_b32 s28, s28, 9\ns_add_u32 s3, s3, s28\ns_lshr_b32 s28, s38, 1\ns_lshl_b32 s28, s28, 8\ns_add_u32 s3, s3, s28")
        a(f"v_lshrrev_b32 v3, 3, v1\nv_lshlrev_b32 v3, 5, v3\nbuffer_load_dwordx4 {R(XR,4)}, v3, s[{SX}:{SX+3}], s3 offen\nbuffer_load_dwordx4 {R(XR+4,4)}, v3, s[{SX}:{SX+3}], s3 offen offset:16")
        a(f"s_lshr_b32 s3, s68, 1\ns_lshl_b32 s3, s3, 4\ns_and_b32 s28, s68, 1\ns_lshl_b32 s28, s28, 2\ns_add_u32 s3, s3, s28\ns_add_u32 s3, s3, {L_STG}\nv_mov_b32 v3, s3\nds_read_b32 v{IS}, v3")
        vm.issue('xs',2)
    def proc2():
        vm.wait('f2')
        checked(a, "L_k2", range(CG,CG+16), ld_cs)
        for k in (2,1):
            for i in range(4*k): a(f"v_add_f32 v{CG+i}, v{CG+i}, v{CG+4*k+i}")
        for i in range(2): a(f"v_permlane32_swap_b32 v{CG+i}, v{CG+2+i}")
        for i in range(2): a(f"v_add_f32 v{CG+i}, v{CG+i}, v{CG+2+i}")
        a(f"v_permlane16_swap_b32 v{CG}, v{CG+1}\nv_add_f32 v{CG}, v{CG}, v{CG+1}")
    def xs_norm(part):
        if part==0:
            vm.wait('xs')
            a(f"v_and_b32 v5, 0xffff0000, v{IS}\nv_lshlrev_b32 v{IS}, 16, v{IS}\nv_rcp_f32 v{IS+1}, v5")
            for d in range(8): unpack(a, XSF+2*d, XR+d)
            a(f"v_mul_f32 v119, v{IS}, v{IS+1}")
        else:
            for i in range(16): a(f"v_fma_f32 v{XSF+i}, v{XSF+i}, v{IS+1}, -v119")
            for i in range(8): a(f"v_mov_b32 v{FA+i}, 0")
    def ffn_ld(i0,i1):
        if 'noffn' in EXP: return
        for i in range(i0,i1):
            if i<16: a(f"s_mov_b32 s3, {i*7168}\nbuffer_load_dwordx4 {R(FW+4*i,4)}, v{vF}, s[{SA}:{SA+3}], s3 offen nt")
            else: a(f"s_lshr_b32 s3, s71, 3\ns_add_u32 s3, s3, {i-16}\ns_and_b32 s28, s3, 7\ns_lshr_b32 s3, s3, 3\ns_lshl_b32 s3, s3, 6\ns_add_u32 s3, s3, s28\ns_lshl_b32 s3, s3, 11\nbuffer_load_dwordx4 {R(FW+4*i,4)}, v{vD}, s[{SB}:{SB+3}], s3 offen nt")
            vm.issue(('g',i),1)
    def ffn_mac(i0,i1,pk=False):
        if i1<=i0: return
        vm.wait(('g',i1-1))
        for i in range(i0,i1):
            for d in range(4):
                t=2+2*(d&1)
                unpack(a, t, FW+4*i+d)
                if pk:
                    sel = "op_sel_hi:[1,0,1]" if i%2==0 else "op_sel:[0,1,0]"
                    a(f"v_pk_fma_f32 {R(FA+2*d,2)}, {R(t,2)}, {R(XSF+(i&~1),2)}, {R(FA+2*d,2)} {sel}")
                else:
                    a(f"v_fmac_f32 v{FA+2*d}, v{t}, v{XSF+i}\nv_fmac_f32 v{FA+2*d+1}, v{t+1}, v{XSF+i}")
    def misc_ld():
        srd(a, 88, 8, 65536)
        a(f"s_lshl_b32 s3, s38, 10\ns_add_u32 m0, s3, {L_PHI}\ns_lshl_b32 s28, s37, 12\ns_add_u32 s3, s3, s28\nbuffer_load_dwordx4 v{vL16}, s[88:91], s3 offen lds")
        a(f"s_add_u32 m0, m0, {L_PHQ-L_PHI}\ns_xor_b32 s3, s3, {QX*4096}\nbuffer_load_dwordx4 v{vL16}, s[88:91], s3 offen lds")
        srd(a, 88, 10, 1024*1024*2)
        a(f"s_lshl_b32 s3, s2, 13\ns_lshl_b32 s28, s38, 11\ns_add_u32 s3, s3, s28\nv_lshlrev_b32 v3, 7, v1\ns_mov_b64 exec, 0xffff\nbuffer_load_dword v117, v3, s[88:91], s3 offen\ns_mov_b64 exec, -1")
        vm.issue('phi',3)
    def xrows():
        a(f"s_lshl_b32 s3, s36, 7\ns_lshl_b32 s28, s37, 3\ns_add_u32 s3, s3, s28\ns_lshl_b32 s3, s3, 11\ns_add_u32 s3, s3, s30\ns_add_u32 m0, s30, {L_STG}")
        for i in range(4): a(f"buffer_load_dwordx4 v{vL16}, s[{SX}:{SX+3}], s3 offen offset:{1024*i} lds")
        srd(a, 88, 14, 2048)
        a(f"s_lshl_b32 s3, s38, 9\ns_add_u32 m0, s3, {L_WR}\ns_mov_b32 exec_hi, 0\nbuffer_load_dwordx4 v{vL16}, s[88:91], s3 offen lds\ns_mov_b64 exec, -1")
        vm.issue('xr',5)
    def lnbar():
        vm.wait('xr'); nonce(); a("s_barrier")
    def x3_ld():
        xaddr(a, vXo); xload(a, vXo); vm.issue('x3',4)
    vWo=220
    def wo_setup():
        a("v_lshrrev_b32 v5, 3, v1\nv_lshlrev_b32 v6, 11, v5\nv_bfe_u32 v5, v1, 4, 2\nv_lshlrev_b32 v5, 1, v5\nv_and_b32 v7, 7, v1\nv_xor_b32 v5, v5, v7\nv_lshl_add_u32 v6, v5, 4, v6\ns_lshl_b32 s3, s35, 7\nv_add_u32 v6, s3, v6")
        for e in range(4): a(f"v_add_u32 v{vWo+e}, {e*15360}, v6")
        a("s_lshl_b32 s72, s38, 12\ns_lshl_b32 s73, s38, 16")
        srd(a, 88, 10, 1024*1024*2)
    def wo(c):
        a(f"s_add_u32 m0, s72, {c*16384}\ns_add_u32 s3, s73, {c*262144}")
        for e in range(4): a(f"buffer_load_dwordx4 v{vWo+e}, s[88:91], s3 offen offset:{e*1024} lds")
        vm.issue(('wo',c),4)
    T='T'
    M15=opt('m15',4)
    HL=48; HZ=32
    def post_setup():
        a(f"s_lshl_b32 s3, s36, 2\ns_add_u32 s3, s3, s38\ns_lshr_b32 s28, s3, 5\ns_and_b32 s3, s3, 31\ns_lshl_b32 s74, s3, 7\ns_lshl_b32 s3, s37, 1\ns_add_u32 s75, s3, s28")
        a(f"v_lshrrev_b32 v5, 3, v1\nv_mul_u32_u24 v5, {KVS}, v5\nv_and_b32 v7, 7, v1\nv_lshl_add_u32 v112, v7, 4, v5")
        a(f"s_mul_i32 s76, s75, {32*KVS}\ns_add_u32 s76, s76, s74\ns_add_u32 s76, s76, {WS_KVP}\ns_mul_i32 s3, s75, {KVS}\ns_add_u32 s3, s3, s74\ns_add_u32 s74, s3, {WS_KVR}")
        a(f"s_lshl_b32 s75, s37, 1\ns_add_u32 s75, s75, s36\ns_mul_i32 s81, s75, {32*KVS}\ns_add_u32 s81, s81, {WS_KVP+4096}\ns_mul_i32 s82, s75, {KVS}\ns_add_u32 s82, s82, {WS_KVR+4096}")
        a(f"s_lshr_b32 s3, s36, 1\ns_or_b32 s83, s3, s38")
        a(f"s_and_b32 s3, s38, 1\ns_lshl_b32 s3, s3, 3\ns_and_b32 s28, s77, 3\ns_lshl_b32 s28, s28, 1\ns_add_u32 s3, s3, s28\ns_lshr_b32 s28, s38, 1\ns_add_u32 s3, s3, s28\ns_mul_i32 s3, s3, 14336\ns_lshr_b32 s28, s77, 2\ns_lshl_b32 s28, s28, 8\ns_add_u32 s3, s3, s28\ns_add_u32 s3, s3, {WS_GU}")
        a(f"s_cmp_lt_u32 s77, 224\ns_cselect_b32 s84, s3, {WS_SIZE}")
    P=lambda pos: (lambda: place(pos))
    def place(pos):
        for w in PLC.get(pos,[]):
            if w[0]=='w': wo(int(w[1]))
            elif w[0]=='k': fillk(int(w[1]),int(w[1])+1)
            elif w[0]=='o': fillo(int(w[1]))
            elif w[0]=='g': ffn_ld(8*int(w[1]), min(23,8*int(w[1])+8))
    sched = {
        0: [xrows, lambda: cs_rd(0), addr1, addr2],
        1: [lambda: tiles(2), lnbar, T, lambda: colsum(0)],
        2: [T, misc_ld],
        3: [wo_setup, post_setup, T],
        4: [lambda: cs_rd(4), T, fetch1],
        5: [T, lambda: colsum(1)],
        6: [val1, T, cs_ld3],
        7: [keys_rd, idx_xs, T],
        8: [lambda: cs_rd(8), T, lambda: colsum(3), epoch_st],
        9: [T, lambda: colsum(2), lambda: vm.wait('own')],
        10:[cs_pub, T, proc1],
        11:[lambda: xs_norm(0), lambda: xs_norm(1), T],
        12:[T],
        13:[fetch2, T],
        14:[P('j14'), proc2, all_w],
        15:[P('j15'), lambda: ffn_mac(0,M15)],
    }
    cs_addr(); fill_addr()
    for k in range(16): sched[k].append(P(f"i{k}"))
    CL=[]; nx=16
    for item in filter(None,os.environ.get('CL','').split(';')):
        b,what=item.split(':'); fs=[]
        for w in what.split(','):
            if w=='m': fs.append(misc_ld)
            else:
                n=int(w[1:]); fs.append(lambda i0=nx,i1=nx+n: ffn_ld(i0,i1)); nx+=n
        CL.append((int(b.rstrip('s')), b.endswith('s'), fs))
    NLOOP=nx
    DEF='defer' in EXP
    def at(s):
        return [(c,fs) for b,same,fs in CL for c in range(NT) if b+(0 if same else c)==s]
    for s in range(16):
        vm.wait(('t',s))
        a("s_waitcnt lgkmcnt(0)")
        if s==0: stamp(a,2)
        a("s_barrier")
        if 'hst2' in EXP: stamp(a,33+s)
        late={c for c,_ in at(s-2)} if DEF and s+1<16 else set()
        skip={c for c,_ in at(s-1)} if DEF else set()
        if T not in sched[s]: vm.cond(late, lambda: tiles(s+1))
        for f in sched[s]:
            if f==T:
                vm.cond(late, lambda: tiles(s+1))
                vm.cond(set(range(NT))-skip, lambda: tiles(s+2))
            else: f()
        grp={}
        for c,fs in at(s): grp.setdefault(id(fs),(fs,[]))[1].append(c)
        for fs,cs_ in grp.values(): vm.cond(cs_, lambda: [f() for f in fs])
        if 'hst' in EXP: stamp(a,6+s)
    a("s_barrier")
    stamp(a,24)
    place('x0')
    ffn_mac(M15,8,True)
    vm.wait(('g',15))
    ready_st()
    place('x1')
    x3_ld()
    ffn_mac(8,16,True)
    red8(a, FA)
    a(f"v_and_b32 v2, 8, v1\nv_cmp_eq_u32 vcc, 0, v2\nv_cndmask_b32 v{FA}, v{FA+1}, v{FA}, vcc")
    a(f"buffer_store_dword v{FA}, v{vP64}, s[{SWS}:{SWS+3}], s84 offen sc1")
    vm.issue('gu',1)
    stamp(a,25)
    a(f"v_mov_b32 v3, {L_FLG}\nL_fw:\nds_read_b128 v[4:7], v3\ns_waitcnt lgkmcnt(0)\nv_and_b32 v4, v4, v5\nv_and_b32 v6, v6, v7\nv_and_b32 v4, v4, v6\nv_readfirstlane_b32 s3, v4\ns_bitcmp1_b32 s3, 0\ns_cbranch_scc1 L_fk\ns_sleep 1\ns_branch L_fw\nL_fk:")
    stamp(a,26)
    a("s_setprio 3")
    place('k')
    if opt('h1d',0): a(f"s_sleep {opt('h1d',0)}")
    stamp(a,49)
    def ld_h1():
        for j in range(4): a(f"s_add_u32 s3, s76, {8*j*KVS}\nbuffer_load_dwordx4 {R(HL+4*j,4)}, v112, s[{SWS}:{SWS+3}], s3 offen sc1")
    def ld_hz():
        for j in range(4): a(f"s_add_u32 s3, s81, {8*j*KVS}\nbuffer_load_dwordx4 {R(HZ+4*j,4)}, v112, s[{SWS}:{SWS+3}], s3 offen sc1")
    ld_h1()
    a("s_cmp_lg_u32 s83, 0\ns_cbranch_scc1 L_nz")
    ld_hz()
    a("L_nz:")
    vm.drain()
    stamp(a,50)
    a("L_h1:")
    checked(a, "L_k4", range(HL,HL+16), ld_h1)
    if PLC.get('h1'):
        a(f"s_cmp_eq_u32 s76, s81\ns_cbranch_scc1 L_nw1")
        place('h1')
        a("L_nw1:")
    E=64
    for d in range(4): unpack(a, E+2*d, HL+d)
    for j in range(1,4):
        for d in range(4):
            unpack(a, E+8+2*d, HL+4*j+d)
            a(f"v_pk_add_f32 {R(E+2*d,2)}, {R(E+2*d,2)}, {R(E+8+2*d,2)}")
    red8(a, E)
    a(f"v_cvt_pk_bf16_f32 v{E}, v{E}, v{E+1}\nv_mov_b32 v{E+1}, v{E}\nv_permlane16_swap_b32 v{E}, v{E+1}\nv_mov_b32 v{E+2}, v{E}\nv_mov_b32 v{E+3}, v{E+1}")
    a(f"v_permlane32_swap_b32 v{E}, v{E+2}\nv_permlane32_swap_b32 v{E+1}, v{E+3}\ns_mov_b64 exec, 0xff")
    a(f"buffer_store_dwordx4 {R(E,4)}, v{vL16}, s[{SWS}:{SWS+3}], s74 offen sc1\ns_mov_b64 exec, -1")
    a(f"s_cmp_lg_u32 s83, 0\ns_cbranch_scc1 L_h1e\ns_mov_b32 s83, 1\ns_mov_b32 s76, s81\ns_mov_b32 s74, s82")
    for i in range(0,16,2): a(f"v_mov_b64 {R(HL+i,2)}, {R(HZ+i,2)}")
    a(f"s_branch L_h1\nL_h1e:")
    a(f"s_lshl_b32 s3, s38, 2\ns_add_u32 s3, s3, {L_FLG}\nv_mov_b32 v4, s3\nv_mov_b32 v5, 3\nds_write_b32 v4, v5\ns_setprio 0")
    vm.issue('h1',2)
    if PLC.get('h1s'): a("s_waitcnt lgkmcnt(0)")
    place('h1s')
    stamp(a,27)
    GL=48
    a(f"v_and_b32 v2, 15, v1\nv_min_u32 v2, 13, v2\nv_lshrrev_b32 v3, 4, v1\nv_mul_u32_u24 v3, 14336, v3\nv_lshl_add_u32 v13, v2, 4, v3\ns_lshl_b32 s76, s71, 2\ns_add_u32 s76, s76, {WS_GU}")
    def ld_gu():
        for j in range(4): a(f"s_add_u32 s3, s76, {4*j*14336}\nbuffer_load_dwordx4 {R(GL+4*j,4)}, v13, s[{SWS}:{SWS+3}], s3 offen sc1")
    ld_gu(); vm.issue('gl',4)
    stat3(a, 8, 9)
    a("s_waitcnt lgkmcnt(0)")
    silu_prep(a, PG, PX, 8, 9, 28)
    vm.wait('gl')
    stamp(a,51)
    checked(a, "L_k5", range(GL,GL+16), ld_gu)
    stamp(a,52)
    for b in (GL,GL+8):
        for i in (0,2): a(f"v_pk_add_f32 {R(b+i,2)}, {R(b+i,2)}, {R(b+4+i,2)}")
    for i in range(4): a(f"v_permlane32_swap_b32 v{GL+i}, v{GL+8+i}")
    for i in range(4): a(f"v_add_f32 v{GL+i}, v{GL+i}, v{GL+8+i}")
    for i in (0,2): a(f"v_permlane16_swap_b32 v{GL+i}, v{GL+i+1}")
    for i in (0,2): a(f"v_add_f32 v{GL+i}, v{GL+i}, v{GL+i+1}")
    a(f"v_permlane32_swap_b32 v{GL}, v{GL+2}")
    g,u=GL,GL+2
    rne(a,g,g); rne(a,u,u)
    a(f"v_mul_f32 v2, 0xbfb8aa3b, v{g}\nv_exp_f32 v2, v2\nv_add_f32 v2, 1.0, v2\nv_rcp_f32 v2, v2\nv_mul_f32 v{g}, v{g}, v2")
    rne(a,g,g)
    a(f"v_mul_f32 v{g}, v{g}, v{u}")
    rne(a,g,g)
    a(f"v_bfe_u32 v2, v1, 3, 2\nv_lshlrev_b32 v2, 6, v2\nv_lshrrev_b32 v3, 5, v1\nv_lshl_add_u32 v2, v3, 2, v2")
    HB=56
    for i in range(7): a(f"ds_bpermute_b32 v{HB+i}, v2, v{g} offset:{8*i}")
    for i in range(0,8,2): a(f"v_mov_b64 {R(FA+i,2)}, 0")
    a("s_waitcnt lgkmcnt(0)")
    place('gu')
    for i in range(7):
        for d in range(4):
            t=2+2*(d&1)
            unpack(a, t, DW+4*i+d)
            sel = "op_sel_hi:[1,0,1]" if i%2==0 else "op_sel:[0,1,0]"
            a(f"v_pk_fma_f32 {R(FA+2*d,2)}, {R(t,2)}, {R(HB+(i&~1),2)}, {R(FA+2*d,2)} {sel}")
    red8(a, FA)
    a(f"v_and_b32 v2, 8, v1\nv_cmp_eq_u32 vcc, 0, v2\ns_and_b32 s3, s2, 15\ns_lshl_b32 s3, s3, 4\ns_lshr_b32 s28, s2, 4\ns_add_u32 s3, s3, s28\ns_lshl_b32 s3, s3, 2\ns_add_u32 s3, s3, s38\ns_lshl_b32 s3, s3, 8\ns_add_u32 s3, s3, {WS_Y}")
    a(f"v_cndmask_b32 v{FA}, v{FA+1}, v{FA}, vcc\nbuffer_store_dword v{FA}, v{vP64}, s[{SWS}:{SWS+3}], s3 offen sc1")
    vm.issue('ys',1)
    ready_ld()
    place('y')
    ready_ck()
    stamp(a,28)
    a(f"s_lshr_b32 s3, s68, 7\ns_cmp_lg_u32 s3, s34\ns_cbranch_scc1 L_nofix\ns_cmp_lg_u32 s38, 3\ns_cbranch_scc1 L_nofix")
    YL=128
    a(f"v_lshlrev_b32 v13, 4, v1\ns_lshl_b32 s76, s35, 14\ns_add_u32 s76, s76, {WS_Y}")
    a(f"v_and_b32 v2, 15, v1\nv_lshrrev_b32 v3, 4, v1\nv_lshl_add_u32 v14, v2, 2, v3\nv_and_b32 v2, 7, v14\nv_lshrrev_b32 v14, 3, v14\nv_lshl_add_u32 v14, v2, 3, v14\nv_lshlrev_b32 v2, 1, v14\ns_lshl_b32 s3, s68, 11\ns_lshl_b32 s28, s35, 7\ns_add_u32 s3, s3, s28\nbuffer_load_ushort v15, v2, s[{SX}:{SX+3}], s3 offen")
    def ld_y():
        for j in range(16):
            if j%4==0: a(f"s_add_u32 s3, s76, {j*1024}")
            a(f"buffer_load_dwordx4 {R(YL+4*j,4)}, v13, s[{SWS}:{SWS+3}], s3 offen offset:{(j%4)*1024} sc1")
    ld_y()
    a("s_and_b32 s3, s70, 0xffff0000\ns_xor_b32 s28, s3, 0x80000000\ns_not_b32 s29, s3\ns_and_b32 s29, s29, 0xffff0000\ns_bitcmp1_b32 s3, 31\ns_cselect_b32 s3, s28, s29")
    a(f"v_mov_b32 v16, s3\nv_mul_f32 v16, 0xbfb8aa3b, v16\nv_exp_f32 v16, v16\nv_add_f32 v16, 1.0, v16\nv_rcp_f32 v16, v16")
    rne(a,16,16)
    a("s_waitcnt vmcnt(0)")
    checked(a, "L_k6", range(YL,YL+64), ld_y, sleep=4)
    for k in (8,4,2,1):
        for i in range(0,4*k,2): a(f"v_pk_add_f32 {R(YL+i,2)}, {R(YL+i,2)}, {R(YL+4*k+i,2)}")
    for i in range(2): a(f"v_permlane32_swap_b32 v{YL+i}, v{YL+2+i}")
    for i in range(2): a(f"v_add_f32 v{YL+i}, v{YL+i}, v{YL+2+i}")
    a(f"v_permlane16_swap_b32 v{YL}, v{YL+1}\nv_add_f32 v{YL}, v{YL}, v{YL+1}")
    rne(a,YL,YL)
    a(f"v_mul_f32 v{YL}, v{YL}, v16\nv_lshlrev_b32 v15, 16, v15\nv_sub_f32 v15, v15, v{IS}")
    rne(a,YL,YL)
    a(f"v_fmac_f32 v{YL}, v15, v{IS+1}")
    a(f"v_mul_f32 v2, 0xbfb8aa3b, v{YL}\nv_exp_f32 v2, v2\nv_add_f32 v2, 1.0, v2\nv_rcp_f32 v2, v2\nv_mul_f32 v2, v{YL}, v2")
    a(f"s_bfe_u32 s3, s68, 0x20005\ns_bfe_u32 s28, s68, 0x10004\ns_lshl_b32 s28, s28, 2\ns_add_u32 s3, s3, s28\ns_lshl_b32 s3, s3, 12\ns_add_u32 s3, s3, {L_STG}\nv_lshl_add_u32 v3, v14, 2, s3\nds_write_b32 v3, v2")
    a("L_nofix:")
    a("s_waitcnt vmcnt(0)")
    stamp(a,29)
    a("s_branch L_p3")

ACC=8
def acc(g,c6): return ACC+24*g+4*c6
ML,CC,CCP,RLP,CSK,CSQ,CSV,PHI,MV,SQF = 192,196,200,201,204,212,220,224,104,120
def feature(a, B, c0, isK, mid1=None, mid2=None):
    P=144; T=176
    EP=[P+8*g for g in range(4)]; EM=[acc(g,c0) for g in range(4)]
    for g in range(4):
        for ft in range(2): mfma(a, EP[g]+4*ft, PHI+4*ft, B+4*g)
    if mid1: mid1()
    MX=[T+g for g in range(4)]; NM=[T+4+g for g in range(4)]
    for k in range(4):
        for g in range(4):
            p=EP[g]
            if k==0: a(f"v_max3_f32 v{MX[g]}, v{p}, v{p+1}, v{p+2}\nv_max3_f32 v{NM[g]}, -v{p}, -v{p+1}, -v{p+2}")
            elif k<3: a(f"v_max3_f32 v{MX[g]}, v{MX[g]}, v{p+2*k+1}, v{p+2*k+2}\nv_max3_f32 v{NM[g]}, v{NM[g]}, -v{p+2*k+1}, -v{p+2*k+2}")
            else: a(f"v_max_f32 v{MX[g]}, v{MX[g]}, v{p+7}\nv_max_f32_e64 v{NM[g]}, v{NM[g]}, -v{p+7}")
    def xl(A, Bq, op, fin):
        for q_ in (A,Bq): a(f"v_permlane32_swap_b32 v{q_[0]}, v{q_[1]}\nv_permlane32_swap_b32 v{q_[2]}, v{q_[3]}")
        for q_ in (A,Bq): a(f"{op} v{q_[0]}, v{q_[0]}, v{q_[1]}\n{op} v{q_[2]}, v{q_[2]}, v{q_[3]}")
        for q_ in (A,Bq): a(f"v_permlane16_swap_b32 v{q_[0]}, v{q_[2]}")
        for q_ in (A,Bq): a(f"{op} v{q_[0]}, v{q_[0]}, v{q_[2]}")
        fin(A[0],Bq[0])
        for q_ in (A,Bq): a(f"v_mov_b32 v{q_[2]}, v{q_[0]}")
        for q_ in (A,Bq): a(f"v_permlane16_swap_b32 v{q_[0]}, v{q_[2]}")
        for q_ in (A,Bq): a(f"v_mov_b32 v{q_[1]}, v{q_[0]}\nv_mov_b32 v{q_[3]}, v{q_[2]}")
        for q_ in (A,Bq): a(f"v_permlane32_swap_b32 v{q_[0]}, v{q_[1]}\nv_permlane32_swap_b32 v{q_[2]}, v{q_[3]}")
    xl(MX, NM, "v_max_f32", lambda x,y: a(f"v_mul_f32 v{x}, v{x}, v{CCP}\nv_mul_f32 v{y}, v{y}, v{CCP}"))
    for g in range(4):
        s=g&1; sel=f"op_sel:[0,{s},{s}] op_sel_hi:[1,{s},{s}]"
        for i in range(0,8,2):
            a(f"v_pk_fma_f32 {R(EM[g]+i,2)}, {R(EP[g]+i,2)}, {R(CC+(g&2),2)}, {R(NM[g&2],2)} {sel} neg_lo:[1,0,1] neg_hi:[1,0,1]")
            a(f"v_pk_fma_f32 {R(EP[g]+i,2)}, {R(EP[g]+i,2)}, {R(CC+(g&2),2)}, {R(MX[g&2],2)} {sel} neg_lo:[0,0,1] neg_hi:[0,0,1]")
    for g in range(4):
        for i in range(8): a(f"v_exp_f32 v{EM[g]+i}, v{EM[g]+i}\nv_exp_f32 v{EP[g]+i}, v{EP[g]+i}")
    if mid2: mid2()
    U=128
    for k in range(3):
        for g in range(4):
            for sg,Eb in ((0,EP[g]),(1,EM[g])):
                t=U+4*g+2*sg
                if k==0: a(f"v_pk_add_f32 {R(t,2)}, {R(Eb,2)}, {R(Eb+2,2)}")
                else: a(f"v_pk_add_f32 {R(t,2)}, {R(t,2)}, {R(Eb+2*k+2,2)}")
    for g in range(4):
        a(f"v_add_f32 v{MX[g]}, v{U+4*g}, v{U+4*g+1}\nv_add_f32 v{NM[g]}, v{U+4*g+2}, v{U+4*g+3}")
    def fin(x,y):
        a(f"v_rcp_f32 v{x}, v{x}\nv_rcp_f32 v{y}, v{y}")
        if isK: a(f"v_mul_f32 v{x}, v{x}, v{RLP}\nv_mul_f32 v{y}, v{y}, v{RLP}")
    xl(MX, NM, "v_add_f32", fin)
    for g in range(4):
        s=g&1; sel=f"op_sel:[0,{s}] op_sel_hi:[1,{s}]"
        for Eb,Q in ((EP[g],MX),(EM[g],NM)):
            for i in range(0,8,2): a(f"v_pk_mul_f32 {R(Eb+i,2)}, {R(Eb+i,2)}, {R(Q[g&2],2)} {sel}")
            for i in range(4): a(f"v_cvt_pk_bf16_f32 v{Eb+i}, v{Eb+2*i}, v{Eb+2*i+1}")
    return EP, EM
def corrT(a, c0, CS, B):
    for g in range(4):
        s=g&1
        for i in range(0,8,2):
            r=acc(g,c0)+i
            a(f"v_pk_fma_f32 {R(r,2)}, {R(ML+(g&2),2)}, {R(CS+i,2)}, {R(r,2)} op_sel:[{s},0,0] op_sel_hi:[{s},1,1] neg_lo:[1,0,0] neg_hi:[1,0,0]")
        for i in range(4): a(f"v_cvt_pk_bf16_f32 v{B+4*g+i}, v{acc(g,c0)+2*i}, v{acc(g,c0)+2*i+1}")

def ln_code(a):
    X=LNX; WR=LNX+16; XF=104; WF=216; S1=232; S2=236
    a(f"L_ln:\ns_lshl_b32 s3, s38, 12\ns_add_u32 s3, s3, {L_STG}\nv_lshlrev_b32 v2, 4, v1\nv_add_u32 v3, s3, v2\nv_add_u32 v2, {L_WR}, v2\ns_barrier")
    for i in range(4): a(f"ds_read_b128 {R(X+4*i,4)}, v3 offset:{1024*i}")
    for i in range(2): a(f"ds_read_b128 {R(WR+4*i,4)}, v2 offset:{1024*i}")
    stamp(a,3)
    a("s_waitcnt lgkmcnt(0)")
    for d in range(16): unpack(a, XF+2*d, X+d)
    for r in range(2):
        a(f"v_pk_add_f32 {R(S1+2*r,2)}, {R(XF+16*r,2)}, {R(XF+16*r+2,2)}")
        for i in range(4,16,2): a(f"v_pk_add_f32 {R(S1+2*r,2)}, {R(S1+2*r,2)}, {R(XF+16*r+i,2)}")
    def red64(regs):
        for v in regs: a(f"v_add_f32 v{v}, v{v}, v{v+1}\nv_add_f32 v{v+2}, v{v+2}, v{v+3}")
        for v in regs: a(f"v_permlane32_swap_b32 v{v}, v{v+2}")
        for v in regs: a(f"v_add_f32 v{v}, v{v}, v{v+2}")
        for m in ("quad_perm:[1,0,3,2]", "quad_perm:[2,3,0,1]", "row_half_mirror", "row_mirror"):
            for v in regs: a(f"v_add_f32 v{v}, v{v}, v{v} {m} {DPPM}")
        for v in regs: a(f"v_mov_b32 v{v+1}, v{v}")
        for v in regs: a(f"v_permlane16_swap_b32 v{v}, v{v+1}")
        for v in regs: a(f"v_add_f32 v{v}, v{v}, v{v+1}")
    red64([S1])
    a(f"v_mul_f32 v{S1}, 0x3a800000, v{S1}")
    rne(a, S1+1, S1)
    a(f"v_mov_b32 v{S1+2}, v{S1+1}\nv_mov_b32 v{S1+3}, v{S1+1}\nv_sub_f32 v{S1}, v{S1}, v{S1+1}\ns_waitcnt vmcnt(0)")
    a(f"v_permlane32_swap_b32 v{S1+2}, v{S1+3}")
    for d in range(8): unpack(a, WF+2*d, WR+d)
    S3=S2+8
    for r in range(2):
        for i in range(0,16,2): a(f"v_pk_add_f32 {R(XF+16*r+i,2)}, {R(XF+16*r+i,2)}, {R(S1+2,2)} op_sel:[0,{r}] op_sel_hi:[1,{r}] neg_lo:[0,1] neg_hi:[0,1]")
        for i in range(0,16,2):
            x=R(XF+16*r+i,2)
            if i==0: a(f"v_pk_mul_f32 {R(S2+2*r,2)}, {x}, {x}\nv_pk_mul_f32 {R(S3+2*r,2)}, {x}, {R(WF+i,2)}")
            else: a(f"v_pk_fma_f32 {R(S2+2*r,2)}, {x}, {x}, {R(S2+2*r,2)}\nv_pk_fma_f32 {R(S3+2*r,2)}, {x}, {R(WF+i,2)}, {R(S3+2*r,2)}")
    red64([S2,S3])
    a(f"v_mul_f32 v{S2}, 0x3a800000, v{S2}\nv_fma_f32 v{S2}, -v{S1}, v{S1}, v{S2}\nv_max_f32 v{S2}, 0, v{S2}")
    rne(a, S2, S2)
    a(f"v_add_f32 v{S2}, 0x3727c5ac, v{S2}")
    rne(a, S2, S2)
    a(f"v_sqrt_f32 v{S2}, v{S2}")
    rne(a, S2, S2)
    a(f"v_rcp_f32 v2, v{S2}\nv_lshrrev_b32 v3, 16, v{S1+1}\nv_or_b32 v4, v3, v{S2}\nv_mul_f32 v{S3}, v{S3}, v2")
    rne(a, S3, S3)
    a(f"v_ashrrev_i32 v2, 31, v{S3}\nv_or_b32 v2, 0x80000000, v2\nv_xor_b32 v2, v{S3}, v2\nv_and_b32 v2, 0xffff0000, v2")
    a(f"v_lshrrev_b32 v3, 5, v1\nv_add_u32 v5, s69, v3\nv_sub_u32 v5, 2047, v5\nv_or_b32 v6, v2, v5\nv_mov_b32 v2, v6\nv_mov_b32 v5, v4\nv_add_u32 v7, 1, v248\nv_mov_b32 v3, 0")
    a(f"v_permlane32_swap_b32 v6, v2\nv_permlane32_swap_b32 v4, v5\nv_max_u32 v6, v6, v2\ns_lshl_b32 s3, s69, 3")
    a(f"s_mov_b64 exec, 1\nbuffer_store_dwordx4 v[4:7], v3, s[{SWS}:{SWS+3}], s3 offen sc1\ns_mov_b64 exec, -1")
    stamp(a,4)
    a("s_branch L_lnr")

def c_wo(a, pos):
    for w in PLC.get(pos,[]):
        c=int(w[1])
        a(f"s_add_u32 m0, s72, {c*16384}\ns_add_u32 s3, s73, {c*262144}")
        for e in range(4): a(f"buffer_load_dwordx4 v{216+e}, s[88:91], s3 offen offset:{e*1024} lds")
def c_waves(a):
    a("L_C:")
    a("s_and_b32 s64, s38, 1\ns_lshr_b32 s65, s38, 1")
    F=[104,144]; vA=184; vW=186
    a("v_and_b32 v3, 15, v1\nv_lshlrev_b32 v3, 7, v3\ns_lshl_b32 s3, s64, 13\nv_add_u32 v3, s3, v3\nv_bfe_u32 v5, v1, 1, 3\nv_lshrrev_b32 v6, 4, v1\nv_xor_b32 v6, v6, v5")
    a(f"v_lshl_add_u32 v{vA}, v6, 4, v3\nv_xor_b32 v{vA+1}, 64, v{vA}")
    a("v_lshrrev_b32 v6, 4, v1\nv_lshlrev_b32 v6, 3, v6\nv_bfe_u32 v7, v1, 2, 2\nv_add_u32 v6, v6, v7\nv_lshlrev_b32 v6, 7, v6\nv_and_b32 v7, 3, v1\nv_lshl_add_u32 v6, v7, 3, v6\nv_add_u32 v6, 16384, v6")
    a("v_bfe_u32 v7, v1, 3, 2\ns_lshl_b32 s3, s65, 1\nv_xor_b32 v7, s3, v7")
    a(f"v_lshl_add_u32 v{vW}, v7, 5, v6\nv_xor_b32 v{vW+1}, 32, v{vW}")
    for i in range(4): a(f"v_add_u32 v{vA+4+i}, {2*SLOT}, v{vA+i}")
    a("s_waitcnt lgkmcnt(0)")
    srd(a, SWS, 26, WS_SIZE); srd(a, SX, 4, 2048*2048); srd(a, 88, 10, 1024*1024*2)
    a(f"s_lshl_b32 s3, s36, 7\ns_lshl_b32 s28, s37, 3\ns_add_u32 s3, s3, s28\ns_lshl_b32 s28, s38, 1\ns_add_u32 s69, s3, s28\nv_lshlrev_b32 v2, 4, v1\nv_mov_b32 v248, {WS_EPO}")
    for i in range(4): a(f"v_mov_b32 v{4+i}, -1")
    a(f"s_lshl_b32 s28, s2, 2\ns_add_u32 s28, s28, s38\ns_lshl_b32 s28, s28, 10\ns_add_u32 s28, s28, {WS_FILL}")
    a(f"buffer_store_dwordx4 v[4:7], v2, s[{SWS}:{SWS+3}], s28 offen sc1\nbuffer_load_dword v248, v248, s[{SWS}:{SWS+3}], 0 offen sc1")
    if STAMPS: a(f"v_mov_b32 v{VST-1}, 0\nv_writelane_b32 v{VST}, s96, 0")
    if 'nocpf' not in EXP:
        a("s_getpc_b64 s[92:93]")
        a.raw("L_pc:")
        a("s_sub_u32 s92, s92, L_pc-fused_kernel\ns_subb_u32 s93, s93, 0\ns_lshr_b32 s3, s2, 3\ns_lshl_b32 s3, s3, 2\ns_add_u32 s3, s3, s38\ns_lshl_b32 s3, s3, 8\nv_lshlrev_b32 v2, 7, v1\nv_add_u32 v2, s3, v2\ns_mov_b64 exec, 3")
        a("global_load_dword v249, v2, s[92:93]\ns_mov_b64 exec, -1")
    for i in range(0,96,2): a(f"v_mov_b64 {R(ACC+i,2)}, 0")
    def reads(sl, t2, fs):
        f=F[fs]; L=[]; b=4 if sl==2 else 0; o=SLOT if sl==1 else 0
        L.append(f"ds_read_b128 {R(f,4)}, v{vA+b+t2} offset:{o}")
        for c6 in range(6):
            for u in range(2):
                L.append(f"ds_read_b64_tr_b16 {R(f+16+4*c6+2*u,2)}, v{vW+b+(c6&1)} offset:{o+(32*t2+4*u)*128+(c6>>1)*8192}")
        for g in range(1,4): L.append(f"ds_read_b128 {R(f+4*g,4)}, v{vA+b+t2} offset:{o+g*2048}")
        return L
    def step(fs, rd, order=None):
        f=F[fs]; i=0
        for g,c6 in (order or [(g,c6) for g in range(4) for c6 in range(6)]):
            d=acc(g,c6)
            if c6<4: mfma(a, d, f+16+4*c6, f+4*g, d)
            else: mfma(a, d, f+4*g, f+16+4*c6, d)
            if rd is not None and i<len(rd): a(rd[i])
            i+=1
            if 'rd2' in EXP and rd is not None and i<len(rd) and i%3==0: a(rd[i]); i+=1
    a(f"s_lshl_b32 s3, s38, 2\ns_add_u32 s3, s3, {L_FLG}\nv_mov_b32 v2, s3\nv_mov_b32 v3, 0\nds_write_b32 v2, v3")
    a("s_mov_b32 s66, 0\ns_setprio 2\ns_waitcnt lgkmcnt(0)")
    stamp(a,1)
    a("s_barrier")
    stamp2(a,8)
    for r in reads(0,0,0): a(r)
    a("s_branch L_cmid")
    a.raw(".p2align 6")
    a("L_cloop:")
    for sl in range(3):
        if sl==LNP%3:
            if sl==0: a("s_cmp_eq_u32 s66, 1")
            a("s_cbranch_scc1 L_ln\nL_lnr:")
        a("s_waitcnt lgkmcnt(0)\ns_barrier")
        step(1, reads(sl,0,0))
        if sl==0: a("L_cmid:")
        a("s_waitcnt lgkmcnt(0)\ns_nop 0")
        step(0, reads(sl,1,1)+(["s_add_u32 s66, s66, 1\ns_cmp_lt_u32 s66, 5"] if sl==2 else ["s_cmp_eq_u32 s66, 0"] if sl==LNP-1 else []))
    a("s_cbranch_scc1 L_cloop")
    a("s_nop 0\ns_waitcnt lgkmcnt(0)\ns_barrier")
    step(1, reads(0,0,0))
    a("s_waitcnt lgkmcnt(0)\ns_nop 0")
    step(0, reads(0,1,1))
    a(f"v_and_b32 v2, 15, v1\nv_lshrrev_b32 v3, 4, v1\ns_lshl_b32 s3, s64, 8\ns_add_u32 s3, s3, {L_M}\nv_lshl_add_u32 v4, v2, 2, s3\nv_lshl_add_u32 v5, v3, 4, s3")
    a(f"v_bfe_u32 v6, v1, 4, 1\nv_lshl_add_u32 v6, v6, 7, v4\nv_lshrrev_b32 v7, 5, v1\nv_lshl_add_u32 v6, v7, 6, v6")
    a(f"s_lshl_b32 s3, s65, 7\ns_add_u32 s3, s3, {L_CS}\nv_lshl_add_u32 v7, v3, 4, s3\nv_lshl_add_u32 v248, v2, 2, s3")
    a(f"s_lshl_b32 s3, s64, 7\ns_add_u32 s3, s3, {L_SQ}\nv_lshl_add_u32 v249, v3, 4, s3")
    a(f"v_lshrrev_b32 v250, 2, v1\nv_lshlrev_b32 v250, 6, v250\nv_and_b32 v251, 3, v1\nv_lshl_add_u32 v250, v251, 3, v250\ns_lshl_b32 s3, s65, 11\ns_add_u32 s3, s3, {L_PHI}\nv_add_u32 v250, s3, v250\nv_mov_b32 v252, v250")
    rd=["s_barrier"]
    rd.append(f"ds_read2_b32 {R(ML,2)}, v4 offset0:0 offset1:16"); rd.append(f"ds_read2_b32 {R(ML+2,2)}, v4 offset0:32 offset1:48")
    for c in range(2): rd.append(f"ds_read_b128 {R(CSK+4*c,4)}, v7 offset:{256+64*c}")
    for ft in range(2):
        for v in range(2): rd.append(f"ds_read_b64_tr_b16 {R(PHI+4*ft+2*v,2)}, v250 offset:{1024*v+32*ft}")
    for g in range(4): rd.append(f"ds_read_b128 {R(MV+4*g,4)}, v5 offset:{64*g}")
    rd.append(f"ds_read2_b32 {R(CSV,2)}, v248 offset0:128 offset1:144")
    for g in range(4): rd.append(f"ds_read_b32 v{CC+g}, v4 offset:{2048+64*g}")
    rd.append(f"ds_read_b32 v{CCP}, v6 offset:2048"); rd.append(f"ds_read_b32 v{RLP}, v6 offset:1024")
    for ks in range(2): rd.append(f"ds_read_b128 {R(SQF+4*ks,4)}, v249 offset:{64*ks}")
    for c in range(2): rd.append(f"ds_read_b128 {R(CSQ+4*c,4)}, v7 offset:{64*c}")
    a("s_waitcnt lgkmcnt(0)")
    step(1, rd, [(g,c6) for cs in ((2,3),(4,5),(0,1)) for g in range(4) for c6 in cs])
    a("s_waitcnt lgkmcnt(0)")
    stamp2(a,24)
    BK=232
    corrT(a, 2, CSK, BK)
    def vcorr():
        for g in range(4):
            for dt in range(2):
                for i in (0,2):
                    r=acc(g,4+dt)+i
                    a(f"v_pk_fma_f32 {R(r,2)}, {R(MV+4*g+i,2)}, {R(CSV,2)}, {R(r,2)} op_sel:[0,{dt},0] op_sel_hi:[1,{dt},1] neg_lo:[1,0,0] neg_hi:[1,0,0]")
        for ks in range(2):
            for dt in range(2):
                d=acc(2*ks,4+dt); e=acc(2*ks+1,4+dt)
                a(f"v_cvt_pk_bf16_f32 v{d}, v{d}, v{d+1}\nv_cvt_pk_bf16_f32 v{d+1}, v{d+2}, v{d+3}\nv_cvt_pk_bf16_f32 v{d+2}, v{e}, v{e+1}\nv_cvt_pk_bf16_f32 v{d+3}, v{e+2}, v{e+3}")
        a(f"v_and_b32 v2, 15, v1\nv_bfe_u32 v3, v1, 1, 2\nv_lshlrev_b32 v3, 2, v3\nv_bfe_u32 v4, v1, 3, 1\nv_lshl_add_u32 v3, v4, 1, v3\nv_and_b32 v4, 1, v1\nv_add_u32 v3, v3, v4\nv_lshrrev_b32 v4, 4, v1\nv_xor_b32 v3, v3, v4")
        a(f"s_lshl_b32 s3, s38, 12\ns_add_u32 s3, s3, {L_STG}\nv_lshl_add_u32 v2, v2, 7, s3\nv_lshl_add_u32 v4, v3, 3, v2")
        for k in range(1,4): a(f"v_xor_b32 v{4+k}, {32*k}, v4")
        a(f"v_bfe_u32 v2, v1, 3, 2\nv_lshlrev_b32 v2, 2, v2\nv_lshrrev_b32 v3, 5, v1\nv_lshl_add_u32 v2, v3, 1, v2\nv_bfe_u32 v3, v1, 2, 1\nv_add_u32 v2, v2, v3\nv_and_b32 v3, 3, v1\nv_xor_b32 v2, v2, v3")
        a(f"v_lshrrev_b32 v3, 2, v1\nv_lshl_add_u32 v3, v3, 7, s3\nv_lshl_add_u32 v248, v2, 3, v3")
        for k in range(1,4): a(f"v_xor_b32 v{248+k}, {32*k}, v248")
    EP,EM = feature(a, BK, 2, True, mid1=vcorr)
    AF=[232,176]
    stamp(a,34)
    for ks in range(2):
        for v in range(2):
            g=2*ks+v
            for pm,Eb in ((0,EP[g]),(1,EM[g])):
                for ft in range(2): a(f"ds_write_b64 v{4+2*pm+ft}, {R(Eb+2*ft,2)} offset:{2048*v}")
        for k in range(4):
            for v in range(2): a(f"ds_read_b64_tr_b16 {R(AF[ks]+4*k+2*v,2)}, v{248+k} offset:{2048*v}")
    KV=128
    a(f"s_lshl_b32 s3, s37, 1\ns_add_u32 s67, s3, s65\ns_lshl_b32 s3, s67, 5\ns_lshl_b32 s28, s36, 1\ns_add_u32 s3, s3, s28\ns_add_u32 s3, s3, s64\ns_mul_i32 s3, s3, {KVS}\ns_add_u32 s3, s3, {WS_KVP}")
    a("v_lshlrev_b32 v2, 4, v1\nv_and_b32 v3, 1, v1\nv_cmp_eq_u32 vcc, 1, v3\nv_lshrrev_b32 v253, 4, v1\nv_lshl_add_u32 v3, v253, 1, v3\nv_lshlrev_b32 v3, 4, v3\nv_add_u32 v3, 4096, v3")
    for ks in range(2):
        for k in range(4):
            pm,ft=k>>1,k&1
            if ks==0:
                if k==0: a("s_waitcnt lgkmcnt(8)")
            else: a(f"s_waitcnt lgkmcnt({6-2*k})")
            for dt in range(2):
                d=KV+16*pm+8*dt+4*ft; mfma(a, d, AF[ks]+4*k, acc(2*ks,4+dt), d if ks else None)
            d=KV+32+8*pm+4*ft; mfma(a, d, AF[ks]+4*k, SQF+4*ks, d if ks else None)
    stamp(a,33)
    for j in range(6):
        b=KV+8*j
        for i in range(4): a(f"v_cvt_pk_bf16_f32 v{b+i}, v{b+2*i}, v{b+2*i+1}")
        if j<4: a(f"buffer_store_dwordx4 {R(b,4)}, v2, s[{SWS}:{SWS+3}], s3 offen offset:{1024*j} sc1")
    for i in range(4): a(f"v_cndmask_b32 v{KV+32+i}, v{KV+32+i}, v{KV+40+i}, vcc")
    a("s_mov_b32 exec_lo, 0x00030003\ns_mov_b32 exec_hi, 0x00030003")
    a(f"buffer_store_dwordx4 {R(KV+32,4)}, v3, s[{SWS}:{SWS+3}], s3 offen sc1")
    a("s_mov_b64 exec, -1")
    for ft in range(2):
        for v in range(2): a(f"ds_read_b64_tr_b16 {R(PHI+4*ft+2*v,2)}, v252 offset:{L_PHQ-L_PHI+1024*v+32*ft}")
    a(f"s_xor_b32 s67, s67, {2*QX}\ns_lshl_b32 s3, s38, 2\ns_add_u32 s3, s3, {L_FLG}\nv_mov_b32 v4, s3\nv_mov_b32 v5, 1\nds_write_b32 v4, v5")
    stamp(a,25)
    a("s_setprio 0")
    corrT(a, 0, CSQ, BK)
    a("s_waitcnt lgkmcnt(1)")
    EP,EM = feature(a, BK, 0, False)
    stamp(a,26)
    KF=104; ZF=120
    xaddr(a, 4); xload(a, 4)
    key_rd(a, 248)
    a("v_lshrrev_b32 v5, 3, v1\nv_lshlrev_b32 v6, 11, v5\nv_bfe_u32 v5, v1, 4, 2\nv_lshlrev_b32 v5, 1, v5\nv_and_b32 v7, 7, v1\nv_xor_b32 v5, v5, v7\nv_lshl_add_u32 v6, v5, 4, v6\ns_lshl_b32 s3, s35, 7\nv_add_u32 v6, s3, v6")
    for e in range(4): a(f"v_add_u32 v{216+e}, {e*15360}, v6")
    a("s_lshl_b32 s72, s38, 12\ns_lshl_b32 s73, s38, 16")
    stat3(a, 192, 193)
    a(f"s_mul_i32 s76, s67, {KVS}\ns_add_u32 s76, s76, {WS_KVR}\nv_lshlrev_b32 v5, 4, v1\nv_and_b32 v6, 48, v1\nv_lshlrev_b32 v6, 1, v6\nv_add_u32 v6, 4096, v6")
    a(f"s_lshl_b32 s3, s38, 2\ns_add_u32 s3, s3, {L_FLG}\nv_mov_b32 v3, s3\nL_gw:\nds_read_b32 v2, v3\ns_waitcnt lgkmcnt(0)\nv_readfirstlane_b32 s3, v2\ns_cmp_eq_u32 s3, 3\ns_cbranch_scc1 L_gk\ns_sleep 1\ns_branch L_gw\nL_gk:")
    stamp(a,35)
    if opt('h2d',0): a(f"s_sleep {opt('h2d',0)}")
    def ld_h2():
        for j in range(4): a(f"buffer_load_dwordx4 {R(KF+4*j,4)}, v5, s[{SWS}:{SWS+3}], s76 offen offset:{1024*j} sc1")
        for pm in range(2): a(f"buffer_load_dwordx4 {R(ZF+4*pm,4)}, v6, s[{SWS}:{SWS+3}], s76 offen offset:{16*pm} sc1")
    ld_h2()
    key_fin(a, 248)
    a(f"s_lshl_b32 s3, s36, 3\ns_lshl_b32 s28, s64, 2\ns_add_u32 s3, s3, s28\ns_lshl_b32 s3, s3, 5\ns_add_u32 s3, s3, s67\ns_lshl_b32 s77, s3, 10\ns_add_u32 s77, s77, {WS_O}")
    a("s_waitcnt vmcnt(0)")
    stamp(a,36)
    checked(a, "L_k7", range(KF,KF+24), ld_h2)
    a("s_setprio 2")
    c_wo(a,'c2')
    stamp(a,27)
    for g in range(4):
        N=acc(g,2)
        for pm,Eb in ((0,EP[g]),(1,EM[g])):
            mfma(a, N+8, ZF+4*pm, Eb, N+8 if pm else None)
            for dt in range(2): mfma(a, N+4*dt, KF+8*pm+4*dt, Eb, N+4*dt if pm else None)
    for g in range(4): a(f"v_add_f32 v{acc(g,2)+8}, 0x358637bd, v{acc(g,2)+8}")
    for g in range(4): a(f"v_rcp_f32 v{acc(g,2)+8}, v{acc(g,2)+8}")
    for g in range(4):
        N=acc(g,2)
        for i in range(0,8,2): a(f"v_pk_mul_f32 {R(N+i,2)}, {R(N+i,2)}, {R(N+8,2)} op_sel_hi:[1,0]")
        for i in range(4): a(f"v_cvt_pk_bf16_f32 v{N+i}, v{N+2*i}, v{N+2*i+1}")
        a(f"buffer_store_dwordx4 {R(N,4)}, v5, s[{SWS}:{SWS+3}], s77 offen sc1")
        if g<3: a("s_add_u32 s77, s77, 32768")
    c_wo(a,'co')
    stamp(a,28)
    a("s_setprio 0")
    silu_prep(a, PG, PX, 192, 193, 196)
    if PLC.get('co'): a("s_waitcnt vmcnt(0)")
    elif PLC.get('c2'): a("s_waitcnt vmcnt(4)")
    stamp(a,29)

def p3(a):
    a("L_p3:")
    a.pad(4)
    D=opt('d3',4)
    PA=8; PB=40; PW=PB+8*D; vW=PW+32; vB=vW+4
    srd(a, SB, 22, 2048*2048)
    a(f"s_lshr_b32 s64, s39, 2\ns_lshl_b32 s3, s34, 2\ns_add_u32 s3, s3, s38\ns_lshl_b32 s3, s3, 16\ns_lshl_b32 s28, s64, 14\ns_add_u32 s3, s3, s28\ns_add_u32 s76, s3, {WS_O}")
    a(f"s_lshl_b32 s3, s64, 15\nv_lshlrev_b32 v2, 4, v1\nv_add_u32 v{vB}, s3, v2\nv_xor_b32 v{vB+1}, 0x8000, v{vB}")
    a(f"v_lshrrev_b32 v2, 2, v1\nv_lshlrev_b32 v2, 7, v2\nv_bfe_u32 v3, v1, 3, 2\nv_lshl_add_u32 v2, v3, 5, v2\nv_and_b32 v3, 3, v1\nv_lshl_add_u32 v2, v3, 3, v2\ns_lshl_b32 s3, s64, 16\nv_add_u32 v{vW}, s3, v2")
    for ct in range(1,4): a(f"v_xor_b32 v{vW+ct}, {32*ct}, v{vW}")
    def ld(j):
        b=PB+8*(j%D)
        if j%4==0: a(f"s_add_u32 s77, s76, {j*1024}")
        for e in range(2): a(f"buffer_load_dwordx4 {R(b+4*e,4)}, v{vB+e}, s[{SWS}:{SWS+3}], s77 offen offset:{(j%4)*1024} sc1")
    def wr(j):
        b=PW+16*(j%2)
        return [f"ds_read_b64_tr_b16 {R(b+4*ct+2*v,2)}, v{vW+ct} offset:{j*4096+v*2048}" for ct in range(4) for v in range(2)]
    early = False
    if early:
        for j in range(D-1): ld(j)
    a("s_waitcnt lgkmcnt(0)\ns_barrier")
    stamp(a,30)
    if not early:
        for j in range(D-1): ld(j)
    a(f"s_lshl_b32 s3, s34, 7\ns_add_u32 s3, s3, s69\ns_andn2_b32 s28, s68, 15\ns_cmp_lg_u32 s3, s28\ns_cbranch_scc1 L_nov")
    a(f"s_lshl_b32 s3, s39, 12\ns_add_u32 s3, s3, {L_STG}\nv_and_b32 v2, 48, v1\nv_add_u32 v2, s3, v2\ns_and_b32 s3, s68, 15\ns_lshl_b32 exec_lo, 0x00010001, s3\ns_mov_b32 exec_hi, exec_lo")
    for ct in range(4): a(f"ds_read_b128 {R(PG+4*ct,4)}, v2 offset:{64*ct}")
    a("s_mov_b64 exec, -1\nL_nov:")
    for r in wr(0): a(r)
    a("s_mov_b32 s29, 0")
    for j in range(16):
        b=PB+8*(j%D); w=PW+16*(j%2)
        if j+D-1<16: ld(j+D-1)
        a(f"s_waitcnt vmcnt({2*min(D-1,15-j)})\nL_c{j}:")
        maxu(a, 2, range(b,b+8))
        a(f"v_cmp_eq_u32 vcc, -1, v2\ns_cbranch_vccnz L_r{j}\nL_g{j}:\ns_waitcnt lgkmcnt(0)")
        rd = wr(j+1) if j<15 else []
        i=0
        for ct in range(4):
            for e in range(2):
                d=PA+16*e+4*ct
                mfma(a, d, w+4*ct, b+4*e, d if j else None)
                if rd: a(rd[i])
                i+=1
    stamp(a,31)
    if STAMPS: a(f"v_writelane_b32 v{VST-1}, s29, 58")
    a(f"s_lshl_b32 s3, s39, 12\ns_add_u32 s3, s3, {L_STG}\nv_lshlrev_b32 v2, 4, v1\nv_add_u32 v2, s3, v2\nv_xor_b32 v3, 0x4000, v2\ns_xor_b32 s28, s3, 0x4000")
    for ct in range(4): a(f"ds_write_b128 v2, {R(PA+16+4*ct,4)} offset:{1024*ct}")
    XF=40
    for d in range(8): unpack(a, XF+2*d, PX+d)
    a(f"v_and_b32 v4, 15, v1\nv_lshrrev_b32 v5, 4, v1\nv_lshlrev_b32 v6, 1, v4\nv_and_b32 v6, 14, v6\nv_xor_b32 v5, v5, v6\nv_lshl_add_u32 v4, v4, 7, s28\nv_lshl_add_u32 v4, v5, 3, v4")
    a(f"v_lshrrev_b32 v5, 3, v1\nv_and_b32 v6, 7, v1\nv_xor_b32 v7, v6, v5\nv_lshl_add_u32 v7, v7, 4, s28\nv_lshl_add_u32 v7, v5, 7, v7")
    a(f"s_lshl_b32 s3, s34, 7\ns_add_u32 s3, s3, s69\nv_add_u32 v5, s3, v5\nv_lshlrev_b32 v5, 11, v5\nv_lshl_add_u32 v5, v6, 4, v5\ns_lshl_b32 s3, s35, 7\ns_add_u32 s28, s3, 16384")
    a("s_waitcnt lgkmcnt(0)\ns_barrier")
    for ct in range(4): a(f"ds_read_b128 {R(PA+16+4*ct,4)}, v3 offset:{1024*ct}")
    for ct in range(4):
        a(f"s_waitcnt lgkmcnt({3-ct})")
        for i in (0,2): a(f"v_pk_add_f32 {R(PA+4*ct+i,2)}, {R(PA+4*ct+i,2)}, {R(PA+16+4*ct+i,2)}")
        for i in (0,2): a(f"v_pk_fma_f32 {R(XF+4*ct+i,2)}, {R(PA+4*ct+i,2)}, {R(PG+4*ct+i,2)}, {R(XF+4*ct+i,2)}")
        for i in (0,1): a(f"v_cvt_pk_bf16_f32 v{PA+2*ct+i}, v{XF+4*ct+2*i}, v{XF+4*ct+2*i+1}")
    for ct in range(4):
        if ct: a(f"v_xor_b32 v6, {32*ct}, v4")
        a(f"ds_write_b64 v{6 if ct else 4}, {R(PA+2*ct,2)}")
    for e in range(2): a(f"ds_read_b128 {R(PA+16+4*e,4)}, v7 offset:{1024*e}")
    OM = '' if 'outplain' in EXP else ' nt'
    for e in range(2):
        a(f"s_waitcnt lgkmcnt({1-e})\nbuffer_store_dwordx4 {R(PA+16+4*e,4)}, v5, s[{SB}:{SB+3}], s{28 if e else 3} offen{OM}")
    if STAMPS: a("s_waitcnt vmcnt(0)")
    stamp(a,32)
    dump(a)
    a("L_done:\ns_endpgm")
    ln_code(a)
    for j in range(16):
        b=PB+8*(j%D)
        a(f"L_r{j}:\ns_add_u32 s29, s29, 1\ns_cmp_ge_u32 s29, {SPIN}\ns_cbranch_scc1 L_g{j}\ns_add_u32 s3, s76, {j*1024}")
        for e in range(2): a(f"buffer_load_dwordx4 {R(b+4*e,4)}, v{vB+e}, s[{SWS}:{SWS+3}], s3 offen sc1")
        a(f"s_waitcnt vmcnt(0)\ns_branch L_c{j}")

def kern(a):
    kernel_header(a, "fused_kernel")
    a("s_cmp_ge_u32 s2, 256\ns_cbranch_scc1 L_done")
    a("s_load_dwordx16 s[4:19], s[0:1], 0\ns_load_dwordx8 s[20:27], s[0:1], 64")
    if STAMPS: a("s_memrealtime s[96:97]")
    a("v_and_b32 v1, 63, v0\nv_lshrrev_b32 v2, 6, v0")
    a("v_readfirstlane_b32 s39, v2")
    a("s_and_b32 s34, s2, 1\ns_lshl_b32 s34, s34, 3\ns_bfe_u32 s3, s2, 0x30003\ns_add_u32 s36, s34, s3")
    a("s_bfe_u32 s37, s2, 0x20001\ns_lshl_b32 s37, s37, 2\ns_lshr_b32 s28, s2, 6\ns_add_u32 s37, s37, s28")
    a("s_and_b32 s3, s3, 1\ns_add_u32 s34, s34, s3\ns_and_b32 s3, s2, 6\ns_add_u32 s34, s34, s3\ns_lshr_b32 s35, s2, 4")
    a("s_and_b32 s38, s39, 3")
    a("s_cmp_lt_u32 s39, 4\ns_cbranch_scc1 L_C")
    h_waves(a)
    c_waves(a)
    p3(a)
    return kernel_desc("fused_kernel", 256, 102)

if __name__ == "__main__":
    a=Asm()
    head = open('/code/%s.s.ref'%NAME).read().split('\n')
    hdr = [l for l in head if l.startswith(';') and '@launch' not in l and 'Override launch' not in l and 'grid=ceil' not in l]
    out='\n'.join(hdr)+"\n; @launch kernel=fused_kernel grid=(256,1,1) block=(512,1,1) lds=163840\n"
    out+='.amdgcn_target "amdgcn-amd-amdhsa--gfx950"\n.text\n'
    d=kern(a)
    out+=a.text()+".p2align 8\n.fill 4096, 4, 0xbf800000\n"+'.section .rodata,"a"\n.p2align 6\n'+d
    if 'official' in EXP:
        out = out.replace("; @launch kernel=fused_kernel grid=", "; @launch grid=").replace("fused_kernel", NAME+"_kernel")
    open(sys.argv[1],"w").write(out)
```

```python
import sys, os
from asmgen import Asm, kernel_header, kernel_desc
NAME = "recurrent_scan__linear_kernel_hedgehog__moe_arch_mod__prompt"
EXP = os.environ.get('EXP','').split(',')
STAMPS = 'st' in EXP
def opt(name, default):
    for e in EXP:
        if e.startswith(name+'='): return int(e.split('=')[1])
    return default
WS_SIZE = 0x10000000
WS_REC  = 0x000000
WS_EPO  = 0x004000
WS_RDY  = 0x008000
KVS     = 4224
WS_FILL = 0x100000
WS_CSP  = WS_FILL
WS_KVR  = WS_CSP + 256*768
WS_GU   = WS_KVR + 32*KVS
WS_Y    = WS_GU + 16*3584*4
assert WS_Y + 16*64*256 <= WS_FILL + 0x100000
WS_O    = 0x400000
WS_KVP  = 0x800000
WS_DBG  = 0x3000000
SLOT = 40960
L_PHS  = 98304
L_WR   = 122880
L_STG  = 131072
LM     = 147456
L_PHI  = LM+256
L_M    = LM+4096+512
L_R    = L_M+1024
L_RC   = L_R+1024
L_SQ   = L_RC+512
L_CS   = L_SQ+256
L_PHQ  = LM+8192+256
L_KEY  = LM+8192+256+6144
L_FLG  = L_KEY+64
assert L_CS+768 <= LM+8192 and L_FLG+32 <= 163840
NT = opt('nt',1)
PLC = {}
for it_ in os.environ.get('PLC','i1:x0,x1;i2:c,p,t;i4:k0,k1,k2;i8:o0,o1;i9:o2,o3;i11:g0;j14:g1;x0:w0,w1,w4,y,g2;h1s:w5,w2;co:w3,w6,w7').split(';'):
    PLC[it_.split(':')[0]] = it_.split(':')[1].split(',')
FNT = '' if 'fplain' in EXP else ' nt'
TNT = ' nt' if 'tnt' in EXP else ''
ARR = opt('arr',8)
QX = opt('qx',4)
LNP = 3
DPPM = "row_mask:0xf bank_mask:0xf"
LOG2E = 0x3fb8aa3b
SPIN = 200000
SX, SW, SWS, SA, SB, SC = 40, 44, 48, 52, 56, 60
VST = 255
LNX = 192

def srd(a, d, base, size):
    a(f"s_mov_b32 s{d}, s{base}\ns_mov_b32 s{d+1}, s{base+1}\ns_mov_b32 s{d+2}, {size}\ns_mov_b32 s{d+3}, 0x00020000")
def stamp(a, i):
    if STAMPS: a(f"s_memrealtime s[100:101]\ns_waitcnt lgkmcnt(0)\nv_writelane_b32 v{VST}, s100, {i}")
def stamp2(a, i):
    if STAMPS: a(f"s_memrealtime s[100:101]\ns_memtime s[98:99]\ns_waitcnt lgkmcnt(0)\nv_writelane_b32 v{VST}, s100, {i}\nv_writelane_b32 v{VST-1}, s98, {i}")
def dump(a):
    if STAMPS: a(f"s_lshl_b32 s3, s2, 3\ns_add_u32 s3, s3, s39\ns_lshl_b32 s3, s3, 9\ns_add_u32 s3, s3, {WS_DBG}\nv_lshlrev_b32 v2, 3, v1\nbuffer_store_dwordx2 v[{VST-1}:{VST}], v2, s[{SWS}:{SWS+3}], s3 offen")
def rne(a, dst, src):
    a(f"v_cvt_pk_bf16_f32 v{dst}, v{src}, v{src}\nv_lshlrev_b32 v{dst}, 16, v{dst}")
def R(b, n): return f"v[{b}:{b+n-1}]"
def unpack(a, dst, src):
    a(f"v_lshlrev_b32 v{dst}, 16, v{src}\nv_and_b32 v{dst+1}, 0xffff0000, v{src}")
def mfma(a, d, A, B, c=None):
    a(f"v_mfma_f32_16x16x32_bf16 {R(d,4)}, {R(A,4)}, {R(B,4)}, {'0' if c is None else R(c,4)}")

class VM:
    def __init__(self, a, nt=1): self.a=a; self.nt=nt; self.q=[[] for _ in range(nt)]; self.only=None; self.nl=0
    def issue(self, tag, n=1):
        for c in range(self.nt):
            if self.only is None or c in self.only: self.q[c] += [tag]*n
    def wait(self, tag):
        need={}
        for c in range(self.nt):
            q=self.q[c]
            if tag in q and (self.only is None or c in self.only):
                idx=max(i for i,t in enumerate(q) if t==tag); need[c]=len(q)-1-idx; self.q[c]=q[idx+1:]
        if not need: return
        allc=[c for c in range(self.nt) if self.only is None or c in self.only]
        base=max(need.values()) if len(need)==len(allc) else None
        if base is not None: self.a(f"s_waitcnt vmcnt({min(base,63)})")
        for c,n in need.items():
            if n!=base:
                self.nl+=1
                self.a(f"s_cmp_lg_u32 s85, {c}\ns_cbranch_scc1 L_vw{self.nl}\ns_waitcnt vmcnt({min(n,63)})\nL_vw{self.nl}:")
    def drain(self): self.a("s_waitcnt vmcnt(0)"); self.q=[[] for _ in range(self.nt)]
    def cond(self, classes, f):
        classes=set(classes)
        if not classes: return
        if len(classes)==self.nt: f(); return
        self.nl+=1; l=f"L_vc{self.nl}"
        if len(classes)==1: self.a(f"s_cmp_lg_u32 s85, {list(classes)[0]}\ns_cbranch_scc1 {l}")
        else:
            for c in set(range(self.nt))-classes: self.a(f"s_cmp_eq_u32 s85, {c}\ns_cbranch_scc1 {l}")
        self.only=classes; f(); self.only=None
        self.a(f"{l}:")

def maxu(a, dst, regs):
    regs=list(regs)
    if len(regs)==1: a(f"v_mov_b32 v{dst}, v{regs[0]}"); return
    if len(regs)==2: a(f"v_max_u32 v{dst}, v{regs[0]}, v{regs[1]}"); return
    a(f"v_max3_u32 v{dst}, v{regs[0]}, v{regs[1]}, v{regs[2]}"); regs=regs[3:]
    while len(regs)>=2: a(f"v_max3_u32 v{dst}, v{dst}, v{regs[0]}, v{regs[1]}"); regs=regs[2:]
    if regs: a(f"v_max_u32 v{dst}, v{dst}, v{regs[0]}")

def checked(a, lbl, regs, reload, t=2, sleep=1):
    a(f"s_mov_b32 s29, 0\n{lbl}:")
    maxu(a, t, regs)
    a(f"v_cmp_eq_u32 vcc, -1, v{t}\ns_cbranch_vccz {lbl}k\ns_add_u32 s29, s29, 1\ns_cmp_ge_u32 s29, {SPIN}\ns_cbranch_scc1 {lbl}k")
    if sleep: a(f"s_sleep {sleep}")
    reload()
    a(f"s_waitcnt vmcnt(0)\ns_branch {lbl}\n{lbl}k:")
    if STAMPS: a(f"v_writelane_b32 v{VST-1}, s29, {50+int(lbl[3:])}")

def red8(a, e):
    for i in range(4): a(f"v_permlane32_swap_b32 v{e+i}, v{e+4+i}")
    for i in range(4): a(f"v_add_f32 v{e+i}, v{e+i}, v{e+4+i}")
    for i in range(2): a(f"v_permlane16_swap_b32 v{e+i}, v{e+2+i}")
    for i in range(2): a(f"v_add_f32 v{e+i}, v{e+i}, v{e+2+i}")
    for i in range(2): a(f"v_add_f32 v{e+i}, v{e+i}, v{e+i} row_ror:8 {DPPM}")

def silu_prep(a, PG, PX, vm_, vr, T):
    assert vr%2==0 and T%2==0
    a(f"v_mul_f32 v{T}, v{vm_}, v{vr}\nv_mov_b32 v{T+2}, 0xbfb8aa3b")
    E=T+4
    for d in range(8): unpack(a, PG+2*d, PX+d)
    for i in range(0,16,2): a(f"v_pk_fma_f32 {R(PG+i,2)}, {R(PG+i,2)}, {R(vr,2)}, {R(T,2)} op_sel_hi:[1,0,0] neg_lo:[0,0,1] neg_hi:[0,0,1]")
    for i in range(0,16,2): a(f"v_pk_mul_f32 {R(E+i,2)}, {R(PG+i,2)}, {R(T+2,2)} op_sel_hi:[1,0]")
    for i in range(16): a(f"v_exp_f32 v{E+i}, v{E+i}")
    for i in range(0,16,2): a(f"v_pk_add_f32 {R(E+i,2)}, {R(E+i,2)}, 1.0 op_sel_hi:[1,0]")
    for i in range(16): a(f"v_rcp_f32 v{E+i}, v{E+i}")
    for i in range(0,16,2): a(f"v_pk_mul_f32 {R(PG+i,2)}, {R(PG+i,2)}, {R(E+i,2)}")

PG, PX = 224, 240
def xaddr(a, dst):
    a(f"s_lshl_b32 s3, s38, 1\ns_lshr_b32 s28, s39, 2\ns_add_u32 s3, s3, s28\ns_lshl_b32 s69, s3, 4\ns_lshl_b32 s3, s34, 7\ns_add_u32 s3, s3, s69")
    a(f"v_and_b32 v2, 15, v1\nv_add_u32 v{dst}, s3, v2\nv_lshlrev_b32 v{dst}, 11, v{dst}\nv_lshrrev_b32 v2, 4, v1\nv_lshl_add_u32 v{dst}, v2, 3, v{dst}\ns_lshl_b32 s3, s35, 7\nv_add_u32 v{dst}, s3, v{dst}")
def xload(a, v):
    for ct in range(4): a(f"buffer_load_dwordx2 {R(PX+2*ct,2)}, v{v}, s[{SX}:{SX+3}], 0 offen offset:{32*ct}")
def stat3(a, vm_, vr):
    a(f"v_and_b32 v2, 15, v1\nv_add_u32 v2, s69, v2\nv_lshlrev_b32 v2, 2, v2\nv_add_u32 v2, {L_M+512}, v2\nds_read_b32 v{vm_}, v2\nds_read_b32 v{vr}, v2 offset:1024")

def wait7(a, l):
    a(f"v_and_b32 v3, 3, v1\nv_lshlrev_b32 v3, 2, v3\nv_add_u32 v3, {L_FLG}, v3\n{l}:\nds_read_b32 v2, v3\ns_waitcnt lgkmcnt(0)\nv_cmp_ne_u32 vcc, 7, v2\ns_cbranch_vccz {l}k\ns_sleep 1\ns_branch {l}\n{l}k:")
def key_rd(a, v):
    a(f"v_mov_b32 v2, {L_KEY}\nds_read_b32 v{v}, v2")
def key_fin(a, v):
    a(f"s_waitcnt lgkmcnt(0)\nv_readfirstlane_b32 s70, v{v}\ns_and_b32 s68, s70, 0x7ff\ns_sub_u32 s68, 2047, s68")

def h_waves(a):
    vm = VM(a, NT)
    vA=8; vW=12; vCS=18; vF=21; vD=22; vXo=23
    CSA=24; CSL=32; XF=80
    FW=128; DW=192; FA=120; SENT=248; vL16=252; vP64=253
    a("L_H:")
    a("v_and_b32 v4, 7, v1\ns_lshl_b32 s33, s37, 7\ns_add_u32 s85, s36, s37\ns_and_b32 s85, s85, 3\ns_lshl_b32 s87, s85, 7")
    a("s_lshl_b32 s3, s36, 7\ns_lshl_b32 s28, s38, 5\ns_add_u32 s3, s3, s28")
    a("v_lshrrev_b32 v7, 3, v1\nv_add_u32 v3, s3, v7\nv_lshlrev_b32 v3, 11, v3")
    a("v_lshrrev_b32 v5, 4, v1\nv_xor_b32 v6, v4, v5\nv_xor_b32 v5, 4, v6")
    a("v_lshl_add_u32 v6, v6, 4, v3\nv_lshl_add_u32 v5, v5, 4, v3")
    for j in range(4): a(f"v_add_u32 v{vA+j}, {j*16384 - j*1024}, v{5 if j&1 else 6}")
    a("s_lshr_b32 s32, s36, 1\ns_and_b32 s32, s32, 2\ns_xor_b32 s32, s32, s38" if 'nowx' not in EXP else "s_mov_b32 s32, s38")
    a("s_lshl_b32 s3, s32, 4\nv_add_u32 v7, s3, v7\nv_mul_u32_u24 v7, 6144, v7")
    a("v_bfe_u32 v6, v1, 4, 1\nv_lshlrev_b32 v6, 1, v6\nv_xor_b32 v5, v4, v6\nv_add_u32 v7, s33, v7\nv_xor_b32 v6, 4, v5\nv_lshl_add_u32 v6, v6, 4, v7\nv_lshl_add_u32 v7, v5, 4, v7")
    for e in range(6): a(f"v_add_u32 v{vW+e}, {(e>>1)*2048 + (e&1)*(8*6144-1024)}, v{6 if e&1 else 7}")
    for e in range(2): a(f"v_xor_b32 v{vW+e}, {QX*128}, v{vW+e}")
    a(f"s_lshl_b32 s30, s38, 12\ns_lshl_b32 s31, s32, 11\ns_add_u32 s31, s31, 16384")
    a("s_waitcnt lgkmcnt(0)")
    srd(a, SW, 6, 1024*3072*2); srd(a, SX, 4, 2048*2048)
    def tiles(s, wfirst=False):
        sl=(s%3)*SLOT
        def A_():
            a(f"s_add_u32 m0, s30, {sl}")
            for j in range(4): a(f"buffer_load_dwordx4 v{vA+j}, s[{SX}:{SX+3}], s3 offen offset:{j*1024}{TNT if s%4==0 else ''} lds")
        def W_():
            for e in range(6):
                if e%2==0: a(f"s_add_u32 m0, s31, {sl+(e>>1)*8192}")
                a(f"buffer_load_dwordx4 v{vW+e}, s[{SW}:{SW+3}], s28 offen offset:{(e&1)*1024}{TNT if s%4==0 else ''} lds")
        a(f"s_add_u32 s3, s87, {(s&3)*128}\ns_and_b32 s3, s3, 511\ns_or_b32 s3, s3, {(s>>2)*512}\ns_mul_i32 s28, s3, 3072")
        if wfirst: W_(); A_()
        else: A_(); W_()
        vm.issue(('t',s),10)
    def fill_addr():
        a(f"s_lshr_b32 s3, s38, 1\ns_lshl_b32 s28, s37, 1\ns_add_u32 s28, s28, s3\ns_and_b32 s29, s38, 1")
        a(f"s_lshl_b32 s3, s28, 4\ns_add_u32 s3, s3, s36\ns_mul_i32 s3, s3, {KVS}\ns_mul_i32 s78, s29, {KVS//2}\ns_add_u32 s78, s78, s3\ns_add_u32 s78, s78, {WS_KVP}")
        a(f"s_lshl_b32 s3, s36, 1\ns_add_u32 s29, s29, s3\ns_xor_b32 s28, s28, {2*QX}\ns_lshl_b32 s3, s29, 7\ns_add_u32 s3, s3, s28\ns_lshl_b32 s3, s3, 10\ns_add_u32 s79, s3, {WS_O}")
    def fillk(i0_,i1_):
        if 'nofill' in EXP: return
        for i in range(i0_,i1_):
            if i<2: a(f"buffer_store_dwordx4 {R(SENT,4)}, v{vL16}, s[{SWS}:{SWS+3}], s78 offen offset:{i*1024} sc1")
            else: a(f"s_mov_b64 exec, 15\nbuffer_store_dwordx4 {R(SENT,4)}, v{vL16}, s[{SWS}:{SWS+3}], s78 offen offset:2048 sc1\ns_mov_b64 exec, -1")
            vm.issue('own',1)
    def fillo(i):
        if 'nofill' in EXP: return
        a(f"s_add_u32 s3, s79, {i*32768}\nbuffer_store_dwordx4 {R(SENT,4)}, v{vL16}, s[{SWS}:{SWS+3}], s3 offen sc1")
        vm.issue('own',1)
    PRO=os.environ.get('PRO','t0,e,t1').split(',')
    for p in PRO:
        if p=='e':
            if STAMPS: a(f"v_mov_b32 v{VST-1}, 0\nv_writelane_b32 v{VST}, s96, 0")
            srd(a, SWS, 26, WS_SIZE)
            a(f"v_mov_b32 v19, {WS_EPO}\nbuffer_load_dword v19, v19, s[{SWS}:{SWS+3}], 0 offen sc1"); vm.issue('epo',1)
            stamp(a,1)
        else: tiles(int(p[1]), 'wf' in EXP)
    for i in range(4): a(f"v_mov_b32 v{SENT+i}, -1")
    a(f"v_lshlrev_b32 v{vL16}, 4, v1\ns_and_b32 s85, s85, {NT-1}")
    a(f"s_lshl_b32 s3, s37, 4\ns_add_u32 s3, s3, s36\ns_mul_i32 s67, s3, 768\ns_add_u32 s67, s67, {WS_CSP}\ns_lshl_b32 s3, s38, 8\ns_add_u32 s67, s67, s3\ns_cmp_eq_u32 s38, 3\ns_cselect_b32 s67, {WS_SIZE}, s67")
    for i in range(8): a(f"v_mov_b32 v{CSA+i}, 0")
    a(f"v_lshlrev_b32 v{vP64}, 2, v1")
    KY=64; ST=72; CG=80; PW=224
    a("s_cmp_gt_u32 s37, 3\ns_subb_u32 s77, s37, 0\ns_cmp_gt_u32 s37, 11\ns_subb_u32 s77, s77, 0\ns_lshl_b32 s77, s77, 4\ns_add_u32 s77, s77, s36\ns_and_b32 s3, s37, 7\ns_cmp_eq_u32 s3, 3\ns_cselect_b32 s77, 224, s77")
    a(f"s_bitcmp1_b32 s38, 0\ns_cselect_b32 s{SA}, s18, s16\ns_cselect_b32 s{SA+1}, s19, s17\ns_cmp_lt_u32 s77, 224\ns_cselect_b32 s{SA+2}, {1024*3584*2}, 0\ns_mov_b32 s{SA+3}, 0x00020000")
    srd(a, SB, 20, 3584*1024*2)
    a("s_and_b32 s3, s77, 3\ns_lshl_b32 s3, s3, 8\ns_lshr_b32 s28, s38, 1\ns_lshl_b32 s28, s28, 7\ns_add_u32 s3, s3, s28\nv_lshrrev_b32 v5, 3, v1\nv_lshl_add_u32 v6, v5, 4, s3")
    a(f"v_mul_u32_u24 v6, 7168, v6\nv_lshl_add_u32 v6, v4, 4, v6\ns_lshr_b32 s3, s77, 2\ns_lshl_b32 s3, s3, 7\nv_add_u32 v{vF}, s3, v6")
    a("s_lshr_b32 s3, s2, 4\ns_mul_i32 s3, s3, 224\ns_mul_i32 s28, s38, 56\ns_add_u32 s71, s3, s28")
    a(f"v_lshlrev_b32 v6, 14, v5\nv_lshl_add_u32 v6, v4, 4, v6\ns_and_b32 s3, s2, 15\ns_lshl_b32 s3, s3, 7\nv_add_u32 v{vD}, s3, v6")

    def cs_addr():
        a(f"v_bfe_u32 v5, v1, 4, 1\nv_lshlrev_b32 v5, 5, v5\nv_xor_b32 v5, v5, v{vL16}\ns_min_u32 s3, s38, 2\ns_lshl_b32 s3, s3, 13\ns_lshr_b32 s80, s36, 2\ns_lshl_b32 s28, s80, 11\ns_add_u32 s3, s3, s28\ns_add_u32 s3, s3, 16384\nv_add_u32 v{vCS}, s3, v5")
    def cs_rd(s_):
        a(f"v_add_u32 v2, {(s_%3)*SLOT}, v{vCS}\nv_xor_b32 v3, 64, v2")
        for i in range(2): a(f"ds_read_b128 {R(CSL+8*(s_>>2)+4*i,4)}, v{2+i} offset:{1024*i}")
    def cs_ld3():
        a(f"v_lshrrev_b32 v2, 3, v1\nv_mul_u32_u24 v2, 6144, v2\nv_and_b32 v3, 7, v1\nv_lshl_add_u32 v2, v3, 4, v2")
        a(f"s_lshr_b32 s3, s87, 1\ns_lshl_b32 s28, s80, 4\ns_add_u32 s3, s3, s28\ns_add_u32 s3, s3, 768\ns_mul_i32 s3, s3, 6144\ns_lshl_b32 s28, s38, 11\ns_add_u32 s3, s3, s28\ns_add_u32 s3, s3, s33")
        a(f"s_xor_b32 s28, s3, {QX*128}\ns_cmp_eq_u32 s38, 0\ns_cselect_b32 s3, s28, s3\ns_cmp_eq_u32 s38, 3\ns_cselect_b32 s3, 0x7000000, s3\ns_add_u32 s28, s3, {8*6144}")
        for i in range(2): a(f"buffer_load_dwordx4 {R(CSL+24+4*i,4)}, v2, s[{SW}:{SW+3}], s{28 if i else 3} offen")
        vm.issue('c3',2)
    def colsum(q):
        if q==3: vm.wait('c3')
        for j in range(2):
            for d in range(4):
                t=2+2*(d&1)
                unpack(a, t, CSL+8*q+4*j+d)
                a(f"v_add_f32 v{CSA+2*d}, v{CSA+2*d}, v{t}\nv_add_f32 v{CSA+2*d+1}, v{CSA+2*d+1}, v{t+1}")
    def cs_pub():
        red8(a, CSA)
        a(f"v_and_b32 v2, 8, v1\nv_cmp_eq_u32 vcc, 0, v2\nv_cndmask_b32 v{CSA}, v{CSA+1}, v{CSA}, vcc")
        a(f"buffer_store_dword v{CSA}, v{vP64}, s[{SWS}:{SWS+3}], s67 offen sc1")
        vm.issue('pub',1)
    RDY=118
    def nonce():
        vm.wait('epo')
        a("v_readfirstlane_b32 s86, v19\ns_add_u32 s86, s86, 1")
    def ready_st():
        a(f"s_lshl_b32 s3, s37, 4\ns_add_u32 s3, s3, s36\ns_lshl_b32 s3, s3, 7\ns_add_u32 s3, s3, {WS_RDY}\ns_cmp_lg_u32 s38, 0\ns_cselect_b32 s3, {WS_SIZE}, s3\nv_mov_b32 v2, s86\ns_mov_b64 exec, 1\nbuffer_store_dword v2, v{vL16}, s[{SWS}:{SWS+3}], s3 offen sc1\ns_mov_b64 exec, -1")
        vm.issue('rs',1)
    def rdy_addr():
        a(f"v_and_b32 v2, 15, v1\nv_bfe_u32 v3, v1, 4, 1\nv_mul_u32_u24 v3, {QX}, v3\nv_xor_b32 v3, s37, v3\nv_lshl_add_u32 v3, v3, 4, v2\nv_lshl_add_u32 v2, v2, 4, s34\nv_cmp_gt_u32 vcc, 32, v1\nv_cndmask_b32 v2, v2, v3, vcc\nv_lshlrev_b32 v113, 7, v2")
    def ready_poll(l, lo, hi):
        a(f"s_mov_b32 s3, {WS_RDY}\ns_mov_b32 s29, 0\ns_mov_b32 exec_lo, {lo}\ns_mov_b32 exec_hi, {hi}\n{l}:\nbuffer_load_dword v{RDY}, v113, s[{SWS}:{SWS+3}], s3 offen sc1\ns_waitcnt vmcnt(0)")
        a(f"v_cmp_ne_u32 vcc, s86, v{RDY}\ns_cbranch_vccz {l}k\ns_mov_b64 exec, vcc\ns_add_u32 s29, s29, 1\ns_cmp_lt_u32 s29, {SPIN}\ns_cbranch_scc1 {l}\n{l}k:\ns_mov_b64 exec, -1")
        if STAMPS and lo: a(f"v_writelane_b32 v{VST-1}, s29, 50")
    def tagged(l, regs, reload, after=None):
        a(f"s_mov_b32 s29, 0\n{l}:\nv_cmp_ne_u32 vcc, s86, v{regs[0]}")
        for r in regs[1:]: a(f"v_cmp_ne_u32 s[92:93], s86, v{r}\ns_or_b64 vcc, vcc, s[92:93]")
        a(f"s_cbranch_vccz {l}k\ns_add_u32 s29, s29, 1\ns_cmp_ge_u32 s29, {SPIN}\ns_cbranch_scc1 {l}k\ns_sleep 2")
        reload()
        a("s_waitcnt vmcnt(0)")
        if after: after()
        a(f"s_branch {l}\n{l}k:")
        if STAMPS: a(f"v_writelane_b32 v{VST-1}, s29, {51 if l=='L_k1' else 50}")
    def epoch_st():
        a(f"s_or_b32 s3, s2, s38\ns_cmp_lg_u32 s3, 0\ns_cselect_b32 s3, {WS_SIZE}, {WS_EPO}" if 0 else f"s_or_b32 s3, s2, s38\ns_mov_b32 s28, {WS_EPO}\ns_cmp_lg_u32 s3, 0\ns_cselect_b32 s3, {WS_SIZE}, s28")
        a(f"v_mov_b32 v2, s86\ns_mov_b64 exec, 1\nbuffer_store_dword v2, v{vL16}, s[{SWS}:{SWS+3}], s3 offen sc1\ns_mov_b64 exec, -1")
        vm.issue('es',1)
    def ld_f1():
        a(f"s_lshl_b32 s3, s38, 12\ns_add_u32 m0, s3, {L_STG}")
        for k in range(4): a(f"buffer_load_dwordx4 v{vL16}, s[{SWS}:{SWS+3}], s3 offen offset:{1024*k} sc1 lds")
    def fetch1(): ld_f1(); vm.issue('f1',4)
    def keys_rd():
        for k in range(16): a(f"ds_read_b64 {R(80+2*k,2)}, v{PW+8} offset:{1024*k}")
        a(f"ds_read_b32 v{ST}, v{PW+13}\ns_waitcnt lgkmcnt(0)")
        a(f"v_min3_u32 v4, v81, v83, v85\nv_max3_u32 v5, v81, v83, v85")
        for k in range(3,15,2): a(f"v_min3_u32 v4, v4, v{81+2*k}, v{83+2*k}\nv_max3_u32 v5, v5, v{81+2*k}, v{83+2*k}")
    def ld_all():
        for q in range(4):
            a(f"s_mov_b32 m0, {L_STG+4096*q}\ns_movk_i32 s3, {4096*q}")
            for k in range(4): a(f"buffer_load_dwordx4 v{vL16}, s[{SWS}:{SWS+3}], s3 offen offset:{1024*k} sc1 lds")
    def keys():
        keys_rd()
        tagged("L_k1", [4,5,111], ld_all, keys_rd)
    def ld_cs():
        a(f"s_mul_i32 s3, s37, {16*768}\ns_mul_i32 s28, s38, 192\ns_add_u32 s3, s3, s28\ns_add_u32 s3, s3, {WS_CSP}\ns_add_u32 s28, s3, {8*768}")
        for k in range(4): a(f"buffer_load_dwordx4 {R(CG+4*k,4)}, v{PW+11}, s[{SWS}:{SWS+3}], s{28 if k>=2 else 3} offen offset:{3072*(k&1)} sc1")
    def fetch2():
        ld_cs(); vm.issue('f2',4)
    def proc1():
        a(f"v_and_b32 v{PW+4}, 0xffff0000, v{ST}\nv_lshlrev_b32 v{PW+1}, 16, v{ST}\nv_rcp_f32 v{PW+2}, v{PW+4}\nv_mov_b32 v{PW}, s70\nv_mul_f32 v{PW+3}, {LOG2E}, v{PW+2}")
    def addr1():
        a(f"v_add_u32 v{PW+8}, {L_STG+8}, v{vL16}")
        a(f"v_lshrrev_b32 v2, 5, v1\nv_and_b32 v3, 31, v1\nv_lshl_add_u32 v2, v2, 7, v3\ns_lshl_b32 s3, s38, 7\ns_add_u32 s3, s3, {L_M}\nv_lshl_add_u32 v{PW+6}, v2, 2, s3")
        a(f"v_bfe_u32 v4, v1, 2, 2\nv_lshlrev_b32 v4, 3, v4\nv_bfe_u32 v7, v1, 4, 1\nv_lshl_add_u32 v4, v7, 2, v4\nv_and_b32 v7, 3, v1\nv_add_u32 v4, v4, v7\ns_lshl_b32 s3, s38, 6\ns_add_u32 s3, s3, {L_SQ}\nv_lshl_add_u32 v{PW+7}, v4, 1, s3")
    def addr2():
        a(f"s_lshl_b32 s3, s36, 7\ns_lshl_b32 s28, s34, 7\nv_mov_b32 v2, s3\nv_mov_b32 v4, s28\nv_cmp_gt_u32 vcc, 32, v1\ns_lshl_b32 s3, s38, 5\nv_and_b32 v3, 30, v1\nv_cndmask_b32 v2, v4, v2, vcc\nv_add3_u32 v2, v2, v3, s3\nv_and_b32 v3, 1, v1\nv_lshl_add_u32 v2, v2, 1, v3\nv_lshlrev_b32 v2, 2, v2\nv_add_u32 v{PW+13}, {L_STG}, v2")
        a(f"s_mul_i32 s3, s38, 48\nv_and_b32 v2, 15, v1\nv_min_u32 v2, 11, v2\nv_lshrrev_b32 v3, 4, v1\nv_lshlrev_b32 v4, 4, v2\nv_lshl_add_u32 v2, v2, 2, v3\nv_add_u32 v2, s3, v2")
        a(f"v_and_b32 v5, 7, v2\nv_bfe_u32 v6, v2, 3, 3\nv_lshl_add_u32 v5, v5, 3, v6\nv_and_b32 v2, 0xc0, v2\nv_add_u32 v2, v2, v5\nv_lshlrev_b32 v2, 2, v2\nv_add_u32 v{PW+9}, {L_CS}, v2\nv_mul_u32_u24 v3, 768, v3\nv_add_u32 v{PW+11}, v3, v4\nv_mov_b32 v{PW+10}, {L_KEY}")
    def all_w():
        a(f"ds_write_b32 v{PW+10}, v{PW}\nds_write_b32 v{PW+6}, v{PW+1}\nds_write_b32 v{PW+6}, v{PW+2} offset:1024\nds_write_b32 v{PW+9}, v{CG}")
        a(f"s_mov_b32 exec_hi, 0\nds_write_b32 v{PW+6}, v{PW+3} offset:2048\nds_write_b16_d16_hi v{PW+7}, v{PW+4}\ns_mov_b64 exec, -1\ns_waitcnt lgkmcnt(0)")
    XR=64; IS=116; XSF=96
    def idx_xs():
        maxu(a, 2, range(80,112,2))
        for m in ("quad_perm:[1,0,3,2]", "quad_perm:[2,3,0,1]", "row_half_mirror", "row_mirror"): a(f"v_max_u32 v2, v2, v2 {m} {DPPM}")
        a("v_readlane_b32 s70, v2, 0\nv_readlane_b32 s3, v2, 16\nv_readlane_b32 s28, v2, 32\nv_readlane_b32 s29, v2, 48\ns_max_u32 s70, s70, s3\ns_max_u32 s28, s28, s29\ns_max_u32 s70, s70, s28\ns_and_b32 s68, s70, 0x7ff\ns_sub_u32 s68, 2047, s68")
        a(f"s_lshl_b32 s3, s68, 11\ns_and_b32 s28, s77, 3\ns_lshl_b32 s28, s28, 9\ns_add_u32 s3, s3, s28\ns_lshr_b32 s28, s38, 1\ns_lshl_b32 s28, s28, 8\ns_add_u32 s3, s3, s28")
        a(f"v_lshrrev_b32 v3, 3, v1\nv_lshlrev_b32 v3, 5, v3\nbuffer_load_dwordx4 {R(XR,4)}, v3, s[{SX}:{SX+3}], s3 offen\nbuffer_load_dwordx4 {R(XR+4,4)}, v3, s[{SX}:{SX+3}], s3 offen offset:16")
        a(f"s_lshr_b32 s3, s68, 1\ns_lshl_b32 s3, s3, 4\ns_and_b32 s28, s68, 1\ns_lshl_b32 s28, s28, 2\ns_add_u32 s3, s3, s28\ns_add_u32 s3, s3, {L_STG}\nv_mov_b32 v3, s3\nds_read_b32 v{IS}, v3")
        vm.issue('xs',2)
    def proc2():
        vm.wait('f2')
        checked(a, "L_k2", range(CG,CG+16), ld_cs)
        for k in (2,1):
            for i in range(4*k): a(f"v_add_f32 v{CG+i}, v{CG+i}, v{CG+4*k+i}")
        for i in range(2): a(f"v_permlane32_swap_b32 v{CG+i}, v{CG+2+i}")
        for i in range(2): a(f"v_add_f32 v{CG+i}, v{CG+i}, v{CG+2+i}")
        a(f"v_permlane16_swap_b32 v{CG}, v{CG+1}\nv_add_f32 v{CG}, v{CG}, v{CG+1}")
    def xs_norm(part):
        if part==0:
            vm.wait('xs')
            a(f"v_and_b32 v5, 0xffff0000, v{IS}\nv_lshlrev_b32 v{IS}, 16, v{IS}\nv_rcp_f32 v{IS+1}, v5")
            for d in range(8): unpack(a, XSF+2*d, XR+d)
            a(f"v_mul_f32 v119, v{IS}, v{IS+1}")
        else:
            for i in range(16): a(f"v_fma_f32 v{XSF+i}, v{XSF+i}, v{IS+1}, -v119")
            for i in range(8): a(f"v_mov_b32 v{FA+i}, 0")
    def ffn_ld(i0,i1):
        if 'noffn' in EXP: return
        for i in range(i0,i1):
            if i<16: a(f"s_mov_b32 s3, {i*7168}\nbuffer_load_dwordx4 {R(FW+4*i,4)}, v{vF}, s[{SA}:{SA+3}], s3 offen{FNT}")
            else: a(f"s_lshr_b32 s3, s71, 3\ns_add_u32 s3, s3, {i-16}\ns_and_b32 s28, s3, 7\ns_lshr_b32 s3, s3, 3\ns_lshl_b32 s3, s3, 6\ns_add_u32 s3, s3, s28\ns_lshl_b32 s3, s3, 11\nbuffer_load_dwordx4 {R(FW+4*i,4)}, v{vD}, s[{SB}:{SB+3}], s3 offen{FNT}")
            vm.issue(('g',i),1)
    def ffn_mac(i0,i1,pk=False):
        if i1<=i0: return
        vm.wait(('g',i1-1))
        for i in range(i0,i1):
            for d in range(4):
                t=2+2*(d&1)
                unpack(a, t, FW+4*i+d)
                if pk:
                    if i%2 and d==0: a(f"v_mov_b32 v{XSF+i-1}, v{XSF+i}")
                    a(f"v_pk_fma_f32 {R(FA+2*d,2)}, {R(t,2)}, {R(XSF+(i&~1),2)}, {R(FA+2*d,2)} op_sel_hi:[1,0,1]")
                else:
                    a(f"v_fmac_f32 v{FA+2*d}, v{t}, v{XSF+i}\nv_fmac_f32 v{FA+2*d+1}, v{t+1}, v{XSF+i}")
    def phi_ld():
        srd(a, SC, 8, 65536)
        a(f"s_lshl_b32 s3, s38, 10\ns_add_u32 m0, s3, {L_PHI}\ns_lshl_b32 s28, s37, 12\ns_add_u32 s3, s3, s28\nbuffer_load_dwordx4 v{vL16}, s[{SC}:{SC+3}], s3 offen lds")
        a(f"s_add_u32 m0, m0, {L_PHQ-L_PHI}\ns_xor_b32 s3, s3, {QX*4096}\nbuffer_load_dwordx4 v{vL16}, s[{SC}:{SC+3}], s3 offen lds")
        vm.issue('phi',2)
    def wo_touch():
        a(f"s_lshl_b32 s3, s2, 13\ns_lshl_b32 s28, s38, 11\ns_add_u32 s3, s3, s28\nv_lshlrev_b32 v3, 7, v1\ns_mov_b64 exec, 0xffff\nbuffer_load_dword v20, v3, s[88:91], s3 offen\ns_mov_b64 exec, -1")
        vm.issue('wt',1)
    def xrows(h):
        a(f"s_lshl_b32 s3, s36, 7\ns_lshl_b32 s28, s37, 3\ns_add_u32 s3, s3, s28\ns_lshl_b32 s3, s3, 11\ns_add_u32 s3, s3, s30\ns_add_u32 m0, s30, {L_STG}")
        for i in (h,h+2): a(f"buffer_load_dwordx4 v{vL16}, s[{SX}:{SX+3}], s3 offen offset:{1024*i}{' nt' if 'xnt' in EXP else ''} lds")
        vm.issue('xr',2)
        if h==0: return
        srd(a, SC, 14, 2048)
        a(f"s_lshl_b32 s3, s38, 9\ns_add_u32 m0, s3, {L_WR}\ns_mov_b32 exec_hi, 0\nbuffer_load_dwordx4 v{vL16}, s[{SC}:{SC+3}], s3 offen lds\ns_mov_b64 exec, -1")
        vm.issue('xr',1)
    def x3_ld():
        xaddr(a, vXo); xload(a, vXo); vm.issue('x3',4)
    vWo=220
    def wo_setup():
        a("v_lshrrev_b32 v5, 3, v1\nv_lshlrev_b32 v6, 11, v5\nv_bfe_u32 v5, v1, 4, 2\nv_lshlrev_b32 v5, 1, v5\nv_and_b32 v7, 7, v1\nv_xor_b32 v5, v5, v7\nv_lshl_add_u32 v6, v5, 4, v6\ns_lshl_b32 s3, s35, 7\nv_add_u32 v6, s3, v6")
        for e in range(4): a(f"v_add_u32 v{vWo+e}, {e*15360}, v6")
        a("s_lshl_b32 s72, s38, 12\ns_lshl_b32 s73, s38, 16")
    def wo(c):
        a(f"s_add_u32 m0, s72, {c*16384}\ns_add_u32 s3, s73, {c*262144}")
        for e in range(4): a(f"buffer_load_dwordx4 v{vWo+e}, s[88:91], s3 offen offset:{e*1024} lds")
        vm.issue(('wo',c),4)
    T='T'
    M15=opt('m15',8)
    HL=48; HZ=32
    def post_setup():
        a(f"s_lshl_b32 s3, s36, 2\ns_add_u32 s3, s3, s38\ns_lshr_b32 s28, s3, 5\ns_and_b32 s3, s3, 31\ns_lshl_b32 s74, s3, 7\ns_lshl_b32 s3, s37, 1\ns_add_u32 s75, s3, s28")
        a(f"v_lshrrev_b32 v5, 3, v1\nv_mul_u32_u24 v5, {KVS}, v5\nv_and_b32 v7, 7, v1\nv_lshl_add_u32 v112, v7, 4, v5")
        a(f"s_mul_i32 s76, s75, {16*KVS}\ns_add_u32 s76, s76, s74\ns_add_u32 s76, s76, {WS_KVP}\ns_mul_i32 s3, s75, {KVS}\ns_add_u32 s3, s3, s74\ns_add_u32 s74, s3, {WS_KVR}")
        a(f"s_lshl_b32 s75, s37, 1\ns_add_u32 s75, s75, s36\ns_mul_i32 s81, s75, {16*KVS}\ns_add_u32 s81, s81, {WS_KVP+4096}\ns_mul_i32 s82, s75, {KVS}\ns_add_u32 s82, s82, {WS_KVR+4096}")
        a(f"s_lshr_b32 s3, s36, 1\ns_or_b32 s83, s3, s38")
        a(f"s_and_b32 s3, s38, 1\ns_lshl_b32 s3, s3, 3\ns_and_b32 s28, s77, 3\ns_lshl_b32 s28, s28, 1\ns_add_u32 s3, s3, s28\ns_lshr_b32 s28, s38, 1\ns_add_u32 s3, s3, s28\ns_mul_i32 s3, s3, 14336\ns_lshr_b32 s28, s77, 2\ns_lshl_b32 s28, s28, 8\ns_add_u32 s3, s3, s28\ns_add_u32 s3, s3, {WS_GU}")
        a(f"s_cmp_lt_u32 s77, 224\ns_cselect_b32 s84, s3, {WS_SIZE}")
    P=lambda pos: (lambda: place(pos))
    def place(pos):
        for w in PLC.get(pos,[]):
            if w[0]=='w': wo(int(w[1]))
            elif w[0]=='k': fillk(int(w[1]),int(w[1])+1)
            elif w[0]=='o': fillo(int(w[1]))
            elif w[0]=='x': xrows(int(w[1]))
            elif w=='r': ready_st()
            elif w=='y': x3_ld()
            elif w[0]=='s': a(f"s_sleep {int(w[1:])}")
            elif w[0]=='v': vm.wait(('wo',int(w[1])))
            elif w=='c': cs_ld3()
            elif w=='p': phi_ld()
            elif w=='t': wo_touch()
            elif w[0]=='g': ffn_ld(8*int(w[1]), min(23,8*int(w[1])+8))
    M14=opt('m14',3)
    def lnbar():
        vm.wait('xr'); a("s_barrier")
    sched = {
        0: [lambda: cs_rd(0), T, addr1],
        1: [T, addr2, nonce],
        2: [lambda: colsum(0), T, lnbar, wo_setup, post_setup, rdy_addr],
        3: [T],
        4: [lambda: cs_rd(4), T, lambda: colsum(3)],
        5: [T, fetch1],
        6: [T, lambda: colsum(1), lambda: vm.wait('f1')],
        7: [keys, T],
        8: [lambda: cs_rd(8), T, idx_xs, epoch_st],
        9: [T, lambda: colsum(2)],
        10:[cs_pub, T, proc1],
        11:[lambda: xs_norm(0), lambda: xs_norm(1), T],
        12:[T, fetch2],
        13:[T, proc2],
        14:[P('j14'), lambda: ffn_mac(0,M14), all_w],
        15:[P('j15'), lambda: ffn_mac(M14,M15), lambda: vm.wait('own')],
    }
    cs_addr(); fill_addr(); srd(a, 88, 10, 1024*1024*2)
    for k in range(16): sched[k].append(P(f"i{k}"))
    CL=[]; nx=0
    for item in filter(None,os.environ.get('CL','').split(';')):
        b,what=item.split(':'); fs=[]
        for w in what.split(','):
            if True:
                n=int(w[1:]); fs.append(lambda i0=nx,i1=nx+n: ffn_ld(i0,i1)); nx+=n
        CL.append((int(b.rstrip('s')), b.endswith('s'), fs))
    NLOOP=nx
    DEF='defer' in EXP
    def at(s):
        return [(c,fs) for b,same,fs in CL for c in range(NT) if b+(0 if same else c)==s]
    for s in range(16):
        vm.wait(('t',s))
        a("s_waitcnt lgkmcnt(0)")
        if s==0: stamp(a,2)
        a("s_barrier")
        if 'hst2' in EXP: stamp(a,33+s)
        late={c for c,_ in at(s-2)} if DEF and s+1<16 else set()
        skip={c for c,_ in at(s-1)} if DEF else set()
        if T not in sched[s]: vm.cond(late, lambda: tiles(s+1))
        for f in sched[s]:
            if f==T:
                vm.cond(late, lambda: tiles(s+1))
                vm.cond(set(range(NT))-skip, lambda: tiles(s+2))
            else: f()
        grp={}
        for c,fs in at(s): grp.setdefault(id(fs),(fs,[]))[1].append(c)
        for fs,cs_ in grp.values(): vm.cond(cs_, lambda: [f() for f in fs])
        if 'hst' in EXP: stamp(a,6+s)
    a("s_barrier")
    stamp(a,24)
    MX=opt('mx',M15)
    GL=80
    a(f"v_and_b32 v2, 15, v1\nv_min_u32 v2, 13, v2\nv_lshrrev_b32 v3, 4, v1\nv_mul_u32_u24 v3, 14336, v3\nv_lshl_add_u32 v13, v2, 4, v3\ns_lshl_b32 s75, s71, 2\ns_add_u32 s75, s75, {WS_GU}")
    def ld_gu():
        for j in range(4): a(f"s_add_u32 s3, s75, {4*j*14336}\nbuffer_load_dwordx4 {R(GL+4*j,4)}, v13, s[{SWS}:{SWS+3}], s3 offen sc1")
    def gu_fin():
        red8(a, FA)
        a(f"v_and_b32 v2, 8, v1\nv_cmp_eq_u32 vcc, 0, v2\nv_cndmask_b32 v{FA}, v{FA+1}, v{FA}, vcc")
        a(f"buffer_store_dword v{FA}, v{vP64}, s[{SWS}:{SWS+3}], s84 offen sc1")
        vm.issue('gu',1)
    place('x0')
    ffn_mac(M15,MX,True)
    if MX==16: gu_fin()
    place('x1')
    for c in (0,1,4): vm.wait(('wo',c))
    stamp(a,25)
    a("s_barrier")
    place('x2')
    a("s_setprio 3\ns_cmp_lg_u32 s38, 3\ns_cbranch_scc1 L_npl")
    ready_poll("L_rp", -1, 0xffff)
    a(f"v_mov_b32 v4, {L_FLG+16}\nv_mov_b32 v5, 1\nds_write_b32 v4, v5\nL_npl:")
    stamp(a,54)
    a(f"v_min_u32 v3, 4, v1\nv_lshlrev_b32 v3, 2, v3\nv_add_u32 v3, {L_FLG}, v3\nL_fw:\nds_read_b32 v4, v3\ns_waitcnt lgkmcnt(0)\nv_cmp_eq_u32 vcc, 0, v4\ns_cbranch_vccz L_fk\ns_sleep 1\ns_branch L_fw\nL_fk:")
    stamp(a,26)
    place('k')
    vm.wait(('g',15))
    MY=opt('my',MX+3 if MX<16 else 16)
    ffn_mac(MX,MY,True)
    if opt('h1d',0): a(f"s_sleep {opt('h1d',0)}")
    stamp(a,49)
    def ld_h1():
        for j in range(2): a(f"s_add_u32 s3, s76, {8*j*KVS}\nbuffer_load_dwordx4 {R(HL+4*j,4)}, v112, s[{SWS}:{SWS+3}], s3 offen sc1")
    def ld_hz():
        for j in range(2): a(f"s_add_u32 s3, s81, {8*j*KVS}\nbuffer_load_dwordx4 {R(HZ+4*j,4)}, v112, s[{SWS}:{SWS+3}], s3 offen sc1")
    ld_h1()
    a("s_cmp_lg_u32 s83, 0\ns_cbranch_scc1 L_nz")
    ld_hz()
    a("L_nz:")
    if MX==16:
        ld_gu()
        a("s_waitcnt vmcnt(4)")
        vm.q=[['gl']*4 for _ in range(NT)]
    else:
        ffn_mac(MY,16,True); gu_fin()
        a("s_waitcnt vmcnt(1)")
        vm.q=[['gu'] for _ in range(NT)]
    stamp(a,50)
    def reduce_line(src, E, sdst):
        L=[]
        class C_:
            def __call__(self, t): L.extend(t.split("\n"))
        c=C_()
        for d in range(4): unpack(c, E+2*d, src+d)
        for d in range(4):
            unpack(c, E+8+2*d, src+4+d)
            c(f"v_pk_add_f32 {R(E+2*d,2)}, {R(E+2*d,2)}, {R(E+8+2*d,2)}")
        red8(c, E)
        c(f"v_cvt_pk_bf16_f32 v{E}, v{E}, v{E+1}\nv_mov_b32 v{E+1}, v{E}\nv_permlane16_swap_b32 v{E}, v{E+1}\nv_mov_b32 v{E+2}, v{E}\nv_mov_b32 v{E+3}, v{E+1}")
        c(f"v_permlane32_swap_b32 v{E}, v{E+2}\nv_permlane32_swap_b32 v{E+1}, v{E+3}")
        return L, f"buffer_store_dwordx4 {R(E,4)}, v{vL16}, s[{SWS}:{SWS+3}], s{sdst} offen sc1"
    A_,sa=reduce_line(HL,64,74); Z_,sz=reduce_line(HZ,96,82)
    a("s_cmp_eq_u32 s83, 0\ns_cbranch_scc1 L_hz")
    checked(a, "L_k4", range(HL,HL+8), ld_h1)
    for x in A_: a(x)
    a(f"s_mov_b64 exec, 0xff\n{sa}\ns_branch L_h1e\nL_hz:")
    checked(a, "L_k3", list(range(HL,HL+8))+list(range(HZ,HZ+8)), lambda: (ld_h1(), ld_hz()))
    for x in zipl(A_,Z_): a(x)
    a(f"s_mov_b64 exec, 0xff\n{sa}\n{sz}\nL_h1e:\ns_mov_b64 exec, -1")
    stamp(a,53)
    a(f"s_lshl_b32 s3, s38, 2\ns_add_u32 s3, s3, {L_FLG}\nv_mov_b32 v4, s3\nv_mov_b32 v5, 3\nds_write_b32 v4, v5\ns_setprio 0")
    vm.issue('h1',1)
    if PLC.get('h1s'): a("s_waitcnt lgkmcnt(0)")
    place('h1s')
    stamp(a,27)
    def hsilu():
        stat3(a, 9, 8)
        a("s_waitcnt lgkmcnt(0)")
        silu_prep(a, PG, PX, 9, 8, 28)
    if MX<16:
        hsilu()
        ld_gu(); vm.issue('gl',4)
    vm.wait('gl')
    stamp(a,51)
    checked(a, "L_k5", range(GL,GL+16), ld_gu)
    stamp(a,52)
    for b in (GL,GL+8):
        for i in (0,2): a(f"v_pk_add_f32 {R(b+i,2)}, {R(b+i,2)}, {R(b+4+i,2)}")
    for i in range(4): a(f"v_permlane32_swap_b32 v{GL+i}, v{GL+8+i}")
    for i in range(4): a(f"v_add_f32 v{GL+i}, v{GL+i}, v{GL+8+i}")
    for i in (0,2): a(f"v_permlane16_swap_b32 v{GL+i}, v{GL+i+1}")
    for i in (0,2): a(f"v_add_f32 v{GL+i}, v{GL+i}, v{GL+i+1}")
    a(f"v_permlane32_swap_b32 v{GL}, v{GL+2}")
    g,u=GL,GL+2
    rne(a,g,g); rne(a,u,u)
    a(f"v_mul_f32 v2, 0xbfb8aa3b, v{g}\nv_exp_f32 v2, v2\nv_add_f32 v2, 1.0, v2\nv_rcp_f32 v2, v2\nv_mul_f32 v{g}, v{g}, v2")
    rne(a,g,g)
    a(f"v_mul_f32 v{g}, v{g}, v{u}")
    rne(a,g,g)
    a(f"v_bfe_u32 v2, v1, 3, 2\nv_lshlrev_b32 v2, 6, v2\nv_lshrrev_b32 v3, 5, v1\nv_lshl_add_u32 v2, v3, 2, v2")
    HB=56
    for i in range(7): a(f"ds_bpermute_b32 v{HB+2*i}, v2, v{g} offset:{8*i}")
    for i in range(0,8,2): a(f"v_mov_b64 {R(FA+i,2)}, 0")
    a("s_waitcnt lgkmcnt(0)")
    place('gu')
    for i in range(7):
        for d in range(4):
            t=2+2*(d&1)
            unpack(a, t, DW+4*i+d)
            a(f"v_pk_fma_f32 {R(FA+2*d,2)}, {R(t,2)}, {R(HB+2*i,2)}, {R(FA+2*d,2)} op_sel_hi:[1,0,1]")
    red8(a, FA)
    a(f"v_and_b32 v2, 8, v1\nv_cmp_eq_u32 vcc, 0, v2\ns_and_b32 s3, s2, 15\ns_lshl_b32 s3, s3, 4\ns_lshr_b32 s28, s2, 4\ns_add_u32 s3, s3, s28\ns_lshl_b32 s3, s3, 2\ns_add_u32 s3, s3, s38\ns_lshl_b32 s3, s3, 8\ns_add_u32 s3, s3, {WS_Y}")
    a(f"v_cndmask_b32 v{FA}, v{FA+1}, v{FA}, vcc\nbuffer_store_dword v{FA}, v{vP64}, s[{SWS}:{SWS+3}], s3 offen sc1")
    vm.issue('ys',1)
    place('y')
    if MX==16: hsilu()
    stamp(a,28)
    wait7(a, "L_ow")
    place('ho')
    if opt('hpd',4): a(f"s_sleep {opt('hpd',4)}")
    stamp(a,29)
    a("s_branch L_p3")

ACC=8
def acc(g,c6): return ACC+24*g+4*c6
ML,CC,CSV = [192,194,196,198],[200,202,220,222],[248,250]
CCP,RLP = [193,221],[195,223]
CSK,CSQ,PHI,MV,SQF = 204,212,224,104,120
vVS,vLN,vSR = 197,199,[201,203]
def zipl(A, B, n=1):
    out=[]; B=list(B)
    for x in A:
        out.append(x); out+=B[:n]; B=B[n:]
    return out+B
def feature(a, B, c0, isK, mid1=None, tail=None, fillB=(), hook=None):
    P=144; T=176; U=128
    EP=[P+8*g for g in range(4)]; EM=[acc(g,c0) for g in range(4)]
    MX=[T+2*g for g in range(4)]; NM=[T+8+2*g for g in range(4)]
    for g in range(4):
        for ft in range(2): mfma(a, EP[g]+4*ft, PHI+4*ft, B+4*g)
    if mid1: mid1()
    FS='fst' in EXP; b_=40 if isK else 50
    def mx(h):
        L=[]
        for k in range(4):
            for g in (2*h,2*h+1):
                p=EP[g]
                if k==0: L+=[f"v_max3_f32 v{MX[g]}, v{p}, v{p+1}, v{p+2}", f"v_max3_f32 v{NM[g]}, -v{p}, -v{p+1}, -v{p+2}"]
                elif k<3: L+=[f"v_max3_f32 v{MX[g]}, v{MX[g]}, v{p+2*k+1}, v{p+2*k+2}", f"v_max3_f32 v{NM[g]}, v{NM[g]}, -v{p+2*k+1}, -v{p+2*k+2}"]
                else: L+=[f"v_max_f32_e64 v{MX[g]}, v{MX[g]}, v{p+7}", f"v_max_f32_e64 v{NM[g]}, v{NM[g]}, -v{p+7}"]
        return L
    def xl(h, op, fin):
        q=[MX[2*h],MX[2*h+1],NM[2*h],NM[2*h+1]]
        return [f"v_permlane32_swap_b32 v{q[0]}, v{q[1]}\nv_permlane32_swap_b32 v{q[2]}, v{q[3]}",
                f"{op} v{q[0]}, v{q[0]}, v{q[1]}\n{op} v{q[2]}, v{q[2]}, v{q[3]}",
                f"v_permlane16_swap_b32 v{q[0]}, v{q[2]}\n{op} v{q[0]}, v{q[0]}, v{q[2]}"]+fin(q[0],q[2])+[
                f"v_permlane16_swap_b32 v{q[0]}, v{q[2]}\nv_mov_b32 v{q[1]}, v{q[0]}", f"v_mov_b32_e64 v{q[3]}, v{q[2]}",
                f"v_permlane32_swap_b32 v{q[0]}, v{q[1]}\nv_permlane32_swap_b32 v{q[2]}, v{q[3]}"]
    x1=lambda h: xl(h, "v_max_f32", lambda x,y: [f"v_mul_f32 v{y}, v{x}, v{CCP[h]}\nv_mul_f32 v{x}, v{x}, v{CCP[h]}"])
    x2=lambda h: xl(h, "v_add_f32", lambda x,y: [f"v_rcp_f32_e64 v{x}, v{x}", f"v_mul_f32 v{y}, v{x}, v{RLP[h]}\nv_mul_f32 v{x}, v{x}, v{RLP[h]}" if isK else f"v_mov_b32_e64 v{y}, v{x}"])
    def fm(h):
        L=[]
        for g in (2*h,2*h+1):
            for i in range(0,8,2):
                L+=[f"v_pk_fma_f32 {R(EM[g]+i,2)}, {R(EP[g]+i,2)}, {R(CC[g],2)}, {R(NM[g],2)} op_sel_hi:[1,0,0] neg_lo:[1,0,1] neg_hi:[1,0,1]",
                    f"v_pk_fma_f32 {R(EP[g]+i,2)}, {R(EP[g]+i,2)}, {R(CC[g],2)}, {R(MX[g],2)} op_sel_hi:[1,0,0] neg_lo:[0,0,1] neg_hi:[0,0,1]"]
        return L
    def ex(h): return [f"v_exp_f32 v{EM[g]+i}, v{EM[g]+i}\nv_exp_f32 v{EP[g]+i}, v{EP[g]+i}" for g in (2*h,2*h+1) for i in range(8)]
    def sm(h):
        L=[]
        for k in range(3):
            for g in (2*h,2*h+1):
                for sg,Eb in ((0,EP[g]),(1,EM[g])):
                    t=U+4*g+2*sg
                    L.append(f"v_pk_add_f32 {R(t,2)}, {R(Eb,2)}, {R(Eb+2,2)}" if k==0 else f"v_pk_add_f32 {R(t,2)}, {R(t,2)}, {R(Eb+2*k+2,2)}")
        for g in (2*h,2*h+1): L.append(f"v_add_f32 v{MX[g]}, v{U+4*g}, v{U+4*g+1}\nv_add_f32 v{NM[g]}, v{U+4*g+2}, v{U+4*g+3}")
        return L
    def fin(h):
        for g in (2*h,2*h+1):
            for pm,(Eb,Q) in enumerate(((EP[g],MX),(EM[g],NM))):
                for i in range(0,8,2): a(f"v_pk_mul_f32 {R(Eb+i,2)}, {R(Eb+i,2)}, {R(Q[g],2)} op_sel_hi:[1,0]")
                for i in range(4): a(f"v_cvt_pk_bf16_f32 v{Eb+i}, v{Eb+2*i}, v{Eb+2*i+1}")
                if tail: tail(g, pm, Eb)
    def E(L):
        for x in L: a(x)
    a.raw(".p2align 3, 0xbf800000") if False else None
    if FS: stamp2(a,b_)
    E(mx(0)); E(zipl(x1(0), mx(1), 2))
    if FS: stamp2(a,b_+1)
    E(zipl(x1(1), fm(0), 2))
    if FS: stamp2(a,b_+2)
    E(ex(0)); E(sm(0))
    if hook: hook(0)
    if FS: stamp2(a,b_+3)
    E(zipl(x2(0), fm(1), 2)); fin(0)
    if FS: stamp2(a,b_+4)
    if hook: hook(1)
    E(ex(1))
    if hook: hook(2)
    E(sm(1))
    if FS: stamp2(a,b_+5)
    E(zipl(x2(1), fillB, 1))
    if FS: stamp2(a,b_+6)
    fin(1)
    if FS: stamp2(a,b_+7)
    return EP, EM
def corrT(a, c0, CS, B):
    for g in range(4):
        s=g&1
        for i in range(0,8,2):
            r=acc(g,c0)+i
            a(f"v_pk_fma_f32 {R(r,2)}, {R(ML[g],2)}, {R(CS+i,2)}, {R(r,2)} op_sel_hi:[0,1,1] neg_lo:[1,0,0] neg_hi:[1,0,0]")
        for i in range(4): a(f"v_cvt_pk_bf16_f32 v{B+4*g+i}, v{acc(g,c0)+2*i}, v{acc(g,c0)+2*i+1}")

def ln_code(a):
    X=104; WR=120; S1=192; S2=196; S3=200; S4=204
    a(f"L_ln:\ns_lshl_b32 s3, s38, 12\ns_add_u32 s3, s3, {L_STG}\nv_lshlrev_b32 v2, 4, v1\nv_add_u32 v3, s3, v2\nv_add_u32 v2, {L_WR}, v2\ns_barrier")
    for i in range(2): a(f"ds_read_b128 {R(WR+4*i,4)}, v2 offset:{1024*i}")
    for i in range(4): a(f"ds_read_b128 {R(X+4*i,4)}, v3 offset:{1024*i}")
    stamp(a,3)
    a("v_mov_b32 v2, 0x3f803f80")
    for v in (S1,S2,S3,S4): a(f"v_mov_b32 v{v}, 0\nv_mov_b32 v{v+2}, 0")
    a("s_waitcnt lgkmcnt(2)")
    for r in range(2):
        if r: a("s_waitcnt lgkmcnt(0)")
        for d in range(8):
            x=X+8*r+d
            a(f"v_dot2c_f32_bf16 v{S1+2*r}, v{x}, v2\nv_dot2c_f32_bf16 v{S2+2*r}, v{x}, v{x}\nv_dot2c_f32_bf16 v{S3+2*r}, v{x}, v{WR+d}")
            a(f"v_dot2c_f32_bf16 v{S4+2*r}, v{WR+d}, v2")
    regs=[S1,S2,S3,S4]
    for v in regs: a(f"v_permlane32_swap_b32 v{v}, v{v+2}")
    for v in regs: a(f"v_add_f32 v{v}, v{v}, v{v+2}")
    for m in ("quad_perm:[1,0,3,2]", "quad_perm:[2,3,0,1]", "row_half_mirror", "row_mirror"):
        for v in regs: a(f"v_add_f32 v{v}, v{v}, v{v} {m} {DPPM}")
    for v in regs: a(f"v_mov_b32 v{v+1}, v{v}")
    for v in regs: a(f"v_permlane16_swap_b32 v{v}, v{v+1}")
    for v in regs: a(f"v_add_f32 v{v}, v{v}, v{v+1}")
    a(f"v_mul_f32 v{S1}, 0x3a800000, v{S1}\nv_mul_f32 v{S2}, 0x3a800000, v{S2}")
    rne(a, S1+1, S1)
    a(f"v_fma_f32 v{S2}, -v{S1}, v{S1}, v{S2}\nv_max_f32 v{S2}, 0, v{S2}\nv_fma_f32 v{S3}, -v{S1+1}, v{S4}, v{S3}\ns_waitcnt vmcnt(0)")
    rne(a, S2, S2)
    a(f"v_add_f32 v{S2}, 0x3727c5ac, v{S2}")
    rne(a, S2, S2)
    a(f"v_sqrt_f32 v{S2}, v{S2}")
    rne(a, S2, S2)
    a(f"v_rcp_f32 v2, v{S2}\nv_lshrrev_b32 v3, 16, v{S1+1}\nv_or_b32 v4, v3, v{S2}\nv_mul_f32 v{S3}, v{S3}, v2")
    rne(a, S3, S3)
    a(f"v_ashrrev_i32 v2, 31, v{S3}\nv_or_b32 v2, 0x80000000, v2\nv_xor_b32 v2, v{S3}, v2\nv_and_b32 v2, 0xffff0000, v2")
    a(f"v_lshrrev_b32 v3, 5, v1\nv_add_u32 v5, s69, v3\nv_sub_u32 v5, 2047, v5\nv_or_b32 v6, v2, v5\nv_mov_b32 v2, v6\nv_mov_b32 v5, v4\nv_add_u32 v7, 1, v248\nv_mov_b32 v3, 0\nv_readfirstlane_b32 s86, v7")
    a(f"v_permlane32_swap_b32 v6, v2\nv_permlane32_swap_b32 v4, v5\nv_max_u32 v6, v6, v2\ns_lshl_b32 s3, s69, 3")
    a(f"s_mov_b64 exec, 1\nbuffer_store_dwordx4 v[4:7], v3, s[{SWS}:{SWS+3}], s3 offen sc1\ns_mov_b64 exec, -1")
    stamp(a,4)
    a("s_branch L_lnr")

def c_wo(a, pos):
    for w in PLC.get(pos,[]):
        c=int(w[1])
        a(f"s_add_u32 m0, s72, {c*16384}\ns_add_u32 s3, s73, {c*262144}")
        for e in range(4): a(f"buffer_load_dwordx4 v{216+e}, s[88:91], s3 offen offset:{e*1024} lds")
def c_waves(a):
    a("L_C:")
    a("s_and_b32 s64, s38, 1\ns_lshr_b32 s65, s38, 1")
    F=[104,144]; vA=184; vW=186
    a("v_and_b32 v3, 15, v1\nv_lshlrev_b32 v3, 7, v3\ns_lshl_b32 s3, s64, 13\nv_add_u32 v3, s3, v3\nv_bfe_u32 v5, v1, 1, 3\nv_lshrrev_b32 v6, 4, v1\nv_xor_b32 v6, v6, v5")
    a(f"v_lshl_add_u32 v{vA}, v6, 4, v3\nv_xor_b32 v{vA+1}, 64, v{vA}")
    a("v_lshrrev_b32 v6, 4, v1\nv_lshlrev_b32 v6, 3, v6\nv_bfe_u32 v7, v1, 2, 2\nv_add_u32 v6, v6, v7\nv_lshlrev_b32 v6, 7, v6\nv_and_b32 v7, 3, v1\nv_lshl_add_u32 v6, v7, 3, v6\nv_add_u32 v6, 16384, v6")
    a("v_bfe_u32 v7, v1, 3, 2\ns_lshl_b32 s3, s65, 1\nv_xor_b32 v7, s3, v7")
    a(f"v_lshl_add_u32 v{vW}, v7, 5, v6\nv_xor_b32 v{vW+1}, 32, v{vW}")
    for i in range(4): a(f"v_add_u32 v{vA+4+i}, {2*SLOT}, v{vA+i}")
    a("s_waitcnt lgkmcnt(0)")
    srd(a, SWS, 26, WS_SIZE); srd(a, SX, 4, 2048*2048); srd(a, 88, 10, 1024*1024*2)
    a(f"s_lshl_b32 s3, s36, 7\ns_lshl_b32 s28, s37, 3\ns_add_u32 s3, s3, s28\ns_lshl_b32 s28, s38, 1\ns_add_u32 s69, s3, s28\nv_lshlrev_b32 v2, 4, v1\nv_mov_b32 v248, {WS_EPO}")
    for i in range(4): a(f"v_mov_b32 v{4+i}, -1")
    a(f"s_lshl_b32 s28, s2, 2\ns_add_u32 s28, s28, s38\ns_lshl_b32 s28, s28, 10\ns_add_u32 s28, s28, {WS_FILL}")
    a(f"buffer_store_dwordx4 v[4:7], v2, s[{SWS}:{SWS+3}], s28 offen sc1\nbuffer_load_dword v248, v248, s[{SWS}:{SWS+3}], 0 offen sc1")
    if STAMPS: a(f"v_mov_b32 v{VST-1}, 0\nv_writelane_b32 v{VST}, s96, 0")
    if 'nocpf' not in EXP:
        a("s_getpc_b64 s[92:93]")
        a.raw("L_pc:")
        a("s_sub_u32 s92, s92, L_pc-fused_kernel\ns_subb_u32 s93, s93, 0\ns_lshr_b32 s3, s2, 3\ns_lshl_b32 s3, s3, 2\ns_add_u32 s3, s3, s38\ns_lshl_b32 s3, s3, 8\nv_lshlrev_b32 v2, 7, v1\nv_add_u32 v2, s3, v2\ns_mov_b64 exec, 3")
        a("global_load_dword v249, v2, s[92:93]\ns_mov_b64 exec, -1")
    for i in range(0,96,2): a(f"v_mov_b64 {R(ACC+i,2)}, 0")
    def reads(sl, t2, fs):
        f=F[fs]; L=[]; b=4 if sl==2 else 0; o=SLOT if sl==1 else 0
        L.append(f"ds_read_b128 {R(f,4)}, v{vA+b+t2} offset:{o}")
        for c6 in range(6):
            for u in range(2):
                L.append(f"ds_read_b64_tr_b16 {R(f+16+4*c6+2*u,2)}, v{vW+b+(c6&1)} offset:{o+(32*t2+4*u)*128+(c6>>1)*8192}")
        for g in range(1,4): L.append(f"ds_read_b128 {R(f+4*g,4)}, v{vA+b+t2} offset:{o+g*2048}")
        return L
    def step(fs, rd, order=None):
        f=F[fs]; i=0
        for g,c6 in (order or [(g,c6) for g in range(4) for c6 in range(6)]):
            d=acc(g,c6)
            if c6<4: mfma(a, d, f+16+4*c6, f+4*g, d)
            else: mfma(a, d, f+4*g, f+16+4*c6, d)
            if rd is not None and i<len(rd): a(rd[i])
            i+=1
            if 'rd2' in EXP and rd is not None and i<len(rd) and i%3==0: a(rd[i]); i+=1
    a(f"s_lshl_b32 s3, s38, 2\ns_add_u32 s3, s3, {L_FLG}\nv_mov_b32 v2, s3\nv_mov_b32 v3, 0\nds_write_b32 v2, v3\nds_write_b32 v2, v3 offset:16")
    a("s_mov_b32 s86, 0\ns_mov_b32 s66, 0\ns_setprio 2\ns_waitcnt lgkmcnt(0)")
    stamp(a,1)
    a("s_barrier")
    stamp2(a,8)
    for r in reads(0,0,0): a(r)
    a("s_branch L_cmid")
    a.raw(".p2align 6")
    a("L_cloop:")
    for sl in range(3):
        if sl==0: a("s_cmp_eq_u32 s66, 1\ns_cbranch_scc1 L_ln\nL_lnr:")
        a("s_waitcnt lgkmcnt(0)\ns_barrier")
        step(1, reads(sl,0,0))
        if sl==0: a("L_cmid:")
        a("s_waitcnt lgkmcnt(0)\ns_nop 0")
        step(0, reads(sl,1,1)+(["s_add_u32 s66, s66, 1\ns_cmp_lt_u32 s66, 5"] if sl==2 else []))
    a("s_cbranch_scc1 L_cloop")
    AO=188
    ad = (f"v_and_b32 v2, 15, v1\nv_lshrrev_b32 v3, 4, v1\ns_lshl_b32 s3, s64, 8\ns_add_u32 s3, s3, {L_M}\nv_lshl_add_u32 v{AO}, v2, 2, s3\nv_lshl_add_u32 v{AO+1}, v3, 4, s3\n"
          f"v_lshrrev_b32 v7, 5, v1\nv_lshl_add_u32 v{AO+2}, v7, 6, v{AO}\n"
          f"s_lshl_b32 s3, s65, 7\ns_add_u32 s3, s3, {L_CS}\nv_lshl_add_u32 v{AO+3}, v3, 4, s3\nv_lshl_add_u32 v248, v2, 2, s3\n"
          f"s_lshl_b32 s3, s64, 7\ns_add_u32 s3, s3, {L_SQ}\nv_lshl_add_u32 v249, v3, 4, s3\nv_xor_b32 v253, 128, v249\n"
          f"v_lshrrev_b32 v250, 2, v1\nv_lshlrev_b32 v250, 6, v250\nv_and_b32 v251, 3, v1\nv_lshl_add_u32 v250, v251, 3, v250\ns_lshl_b32 s3, s65, 11\ns_add_u32 s3, s3, {L_PHI}\nv_add_u32 v252, s3, v250\n"
          f"v_bfe_u32 v5, v1, 1, 2\nv_lshlrev_b32 v5, 2, v5\nv_bfe_u32 v4, v1, 3, 1\nv_lshl_add_u32 v5, v4, 1, v5\nv_and_b32 v4, 1, v1\nv_add_u32 v5, v5, v4\nv_xor_b32 v5, v5, v3\n"
          f"s_lshl_b32 s3, s38, 13\ns_add_u32 s3, s3, {L_PHS}\nv_lshl_add_u32 v2, v2, 7, s3\nv_lshl_add_u32 v4, v5, 3, v2\nv_xor_b32 v5, 32, v4\nv_xor_b32 v6, 64, v4\nv_xor_b32 v7, 96, v4\n"
          f"v_bfe_u32 v2, v1, 3, 2\nv_lshlrev_b32 v2, 2, v2\nv_lshrrev_b32 v3, 5, v1\nv_lshl_add_u32 v2, v3, 1, v2\nv_bfe_u32 v3, v1, 2, 1\nv_add_u32 v2, v2, v3\nv_xor_b32 v2, v2, v251\n"
          f"v_lshrrev_b32 v3, 2, v1\nv_lshl_add_u32 v3, v3, 7, s3\nv_lshl_add_u32 v2, v2, 3, v3\ns_lshl_b32 s28, s64, 6\nv_xor_b32 v{vSR[0]}, s28, v2\nv_xor_b32 v{vSR[1]}, 32, v{vSR[0]}\n"
          f"s_lshl_b32 s3, s38, 12\ns_add_u32 s3, s3, {L_STG}\nv_lshlrev_b32 v{vLN}, 4, v1\nv_add_u32 v{vVS}, s3, v{vLN}\n"
          f"s_lshl_b32 s3, s37, 1\ns_add_u32 s67, s3, s65\ns_lshl_b32 s3, s67, 4\ns_add_u32 s3, s3, s36\ns_mul_i32 s3, s3, {KVS}\ns_add_u32 s75, s3, {WS_KVP}\ns_lshl_b32 s3, s64, 11\ns_add_u32 s74, s75, s3\ns_lshl_b32 s3, s64, 6\ns_add_u32 s75, s75, s3\ns_add_u32 s75, s75, 4096\n"
          f"s_lshl_b32 s3, s37, 4\ns_add_u32 s3, s3, s36\ns_lshl_b32 s3, s3, 7\ns_add_u32 s3, s3, {WS_RDY}\nv_mov_b32 v251, s86\ns_cmp_lg_u32 s38, 0\ns_cselect_b32 s76, {WS_SIZE}, s3").split("\n")
    def mix(rd, n):
        out=[]
        for i in range(24):
            t=[rd[i]] if i<len(rd) else []
            for _ in range(n if i<len(rd) else n+1):
                if ad: t.append(ad.pop(0))
            out.append("\n".join(t) if t else "s_nop 0")
        return out
    a("s_nop 0\ns_waitcnt lgkmcnt(0)\ns_barrier")
    step(1, mix(reads(0,0,0),1))
    a("s_waitcnt lgkmcnt(0)\ns_nop 0")
    step(0, mix(reads(0,1,1),1))
    while ad: a(ad.pop(0))
    rd=["s_barrier"]
    for g in (0,2): rd.append(f"ds_read_b32 v{ML[g]}, v{AO} offset:{64*g}\nds_read_b32 v{ML[g+1]}, v{AO} offset:{64*g+64}")
    for c in range(2): rd.append(f"ds_read_b128 {R(CSK+4*c,4)}, v{AO+3} offset:{256+64*c}")
    for ft in range(2):
        for v in range(2): rd.append(f"ds_read_b64_tr_b16 {R(PHI+4*ft+2*v,2)}, v252 offset:{1024*v+32*ft}")
    for g in range(4): rd.append(f"ds_read_b128 {R(MV+4*g,4)}, v{AO+1} offset:{64*g}")
    rd.append(f"ds_read_b32 v{CSV[1]}, v248 offset:576\nds_read_b32 v{CSV[0]}, v248 offset:512")
    for g in range(4): rd.append(f"ds_read_b32 v{CC[g]}, v{AO} offset:{2048+64*g}")
    for h in range(2): rd.append(f"ds_read_b32 v{CCP[h]}, v{AO+2} offset:{2048+128*h}\nds_read_b32 v{RLP[h]}, v{AO+2} offset:{1024+128*h}")
    for ks in range(2): rd.append(f"ds_read_b128 {R(SQF+4*ks,4)}, v249 offset:{64*ks}")
    for c in range(2): rd.append(f"ds_read_b128 {R(CSQ+4*c,4)}, v{AO+3} offset:{64*c}")
    a("s_waitcnt lgkmcnt(0)")
    step(1, rd, [(g,c6) for cs in ((2,3),(4,5),(0,1)) for g in range(4) for c6 in cs])
    a("s_waitcnt lgkmcnt(4)")
    stamp2(a,24)
    BK=232
    corrT(a, 2, CSK, BK)
    VL='vearly' not in EXP
    def vcorr():
        for g in range(4):
            for dt in range(2):
                for i in (0,2):
                    r=acc(g,4+dt)+i
                    a(f"v_pk_fma_f32 {R(r,2)}, {R(MV+4*g+i,2)}, {R(CSV[dt],2)}, {R(r,2)} op_sel_hi:[1,0,1] neg_lo:[1,0,0] neg_hi:[1,0,0]")
        for ks in range(2):
            for dt in range(2):
                d=acc(2*ks,4+dt); e=acc(2*ks+1,4+dt)
                a(f"v_cvt_pk_bf16_f32 v{d}, v{d}, v{d+1}\nv_cvt_pk_bf16_f32 v{d+1}, v{d+2}, v{d+3}\nv_cvt_pk_bf16_f32 v{d+2}, v{e}, v{e+1}\nv_cvt_pk_bf16_f32 v{d+3}, v{e+2}, v{e+3}")
                if not VL: a(f"ds_write_b128 v{vVS}, {R(d,4)} offset:{2048*ks+1024*dt}")
        for ks in range(2): a(f"ds_read_b128 {R(MV+4*ks,4)}, v253 offset:{64*ks}")
    AF=232
    KVt=[144,152,acc(0,2)]
    PA_=128
    def tail(g, pm, Eb):
        for ft in range(2): a(f"ds_write_b64 v{4+2*pm+ft}, {R(Eb+2*ft,2)} offset:{2048*g}")
        if VL and g<2: a(f"ds_write_b128 v{vVS}, {R(acc(2*g,4+pm),4)} offset:{2048*g+1024*pm}")
        if g&1 and pm:
            ks=g>>1
            for ft in range(2):
                for v in range(2): a(f"ds_read_b64_tr_b16 {R(AF+8*ks+4*ft+2*v,2)}, v{vSR[ft]} offset:{4096*ks+2048*v}")
    def kvm(k4):
        ks=k4&1; own=k4<2; L=[]
        for dt in range(3):
            for ft in range(2):
                d=KVt[dt]+4*ft
                Bo=(acc(2*ks+(0 if own else 1),4+dt) if dt<2 else (SQF if own else MV)+4*ks)
                L.append(f"v_mfma_f32_16x16x32_bf16 {R(d,4)}, {R((AF if own else PA_)+8*ks+4*ft,4)}, {R(Bo,4)}, {R(d,4) if k4 else '0'}")
        return L
    k0=kvm(0); k0[0]="s_waitcnt lgkmcnt(0)\ns_nop 0\n"+k0[0]
    CH=opt('ch',2)
    def hook(k):
        if k==CH: a(f"s_mov_b64 exec, 1\nbuffer_store_dword v251, v{vLN}, s[{SWS}:{SWS+3}], s76 offen sc1\ns_mov_b64 exec, -1")
    EP,EM = feature(a, BK, 2, True, mid1=vcorr, tail=tail, fillB=k0, hook=hook)
    stamp(a,34)
    a(f"v_xor_b32 v{vSR[0]}, 0x2000, v{vSR[0]}\nv_xor_b32 v{vSR[1]}, 0x2000, v{vSR[1]}\nv_xor_b32 v{vVS}, 0x1000, v{vVS}\ns_waitcnt lgkmcnt(4)\ns_barrier")
    for ks in range(2):
        for ft in range(2):
            for v in range(2): a(f"ds_read_b64_tr_b16 {R(PA_+8*ks+4*ft+2*v,2)}, v{vSR[ft]} offset:{4096*ks+2048*v}")
        for dt in range(2): a(f"ds_read_b128 {R(acc(2*ks+1,4+dt),4)}, v{vVS} offset:{2048*ks+1024*dt}")
    for k4 in range(1,4):
        a(f"s_waitcnt lgkmcnt({(12,6,0)[k4-1]})")
        for x in kvm(k4): a(x)
    stamp(a,33)
    for ft in range(2):
        for v in range(2): a(f"ds_read_b64_tr_b16 {R(PHI+4*ft+2*v,2)}, v252 offset:{L_PHQ-L_PHI+1024*v+32*ft}")
    a(f"s_xor_b32 s67, s67, {2*QX}\ns_lshl_b32 s3, s38, 2\ns_add_u32 s3, s3, {L_FLG}\nv_mov_b32 v4, s3\nv_mov_b32 v5, 1")
    for j in range(3):
        b=KVt[j]
        for i in range(4): a(f"v_cvt_pk_bf16_f32 v{b+i}, v{b+2*i}, v{b+2*i+1}")
        if j<2: a(f"buffer_store_dwordx4 {R(b,4)}, v{vLN}, s[{SWS}:{SWS+3}], s74 offen offset:{1024*j} sc1")
    a("s_mov_b32 exec_lo, 0x00010001\ns_mov_b32 exec_hi, 0x00010001")
    a(f"buffer_store_dwordx4 {R(KVt[2],4)}, v1, s[{SWS}:{SWS+3}], s75 offen sc1\ns_mov_b64 exec, -1\nds_write_b32 v4, v5")
    stamp(a,25)
    a("s_setprio 0")
    corrT(a, 0, CSQ, BK)
    a("s_waitcnt lgkmcnt(1)")
    EP,EM = feature(a, BK, 0, False)
    stamp(a,26)
    KF=104; ZF=120
    xaddr(a, 4); xload(a, 4)
    key_rd(a, 248)
    a("v_lshrrev_b32 v5, 3, v1\nv_lshlrev_b32 v6, 11, v5\nv_bfe_u32 v5, v1, 4, 2\nv_lshlrev_b32 v5, 1, v5\nv_and_b32 v7, 7, v1\nv_xor_b32 v5, v5, v7\nv_lshl_add_u32 v6, v5, 4, v6\ns_lshl_b32 s3, s35, 7\nv_add_u32 v6, s3, v6")
    for e in range(4): a(f"v_add_u32 v{216+e}, {e*15360}, v6")
    a("s_lshl_b32 s72, s38, 12\ns_lshl_b32 s73, s38, 16")
    stat3(a, 193, 192)
    a(f"s_mul_i32 s76, s67, {KVS}\ns_add_u32 s76, s76, {WS_KVR}\nv_lshlrev_b32 v5, 4, v1\nv_and_b32 v6, 48, v1\nv_add_u32 v6, 4096, v6")
    a(f"s_lshl_b32 s3, s38, 2\ns_add_u32 s3, s3, {L_FLG}\nv_mov_b32 v3, s3\nL_gw:\nds_read_b32 v2, v3\ns_waitcnt lgkmcnt(0)\nv_readfirstlane_b32 s3, v2\ns_cmp_eq_u32 s3, 3\ns_cbranch_scc1 L_gk\ns_sleep 1\ns_branch L_gw\nL_gk:")
    stamp(a,35)
    if opt('h2d',6): a(f"s_sleep {opt('h2d',6)}")
    def ld_h2():
        for j in range(4): a(f"buffer_load_dwordx4 {R(KF+4*j,4)}, v5, s[{SWS}:{SWS+3}], s76 offen offset:{1024*j} sc1")
        for pm in range(2): a(f"buffer_load_dwordx4 {R(ZF+4*pm,4)}, v6, s[{SWS}:{SWS+3}], s76 offen offset:{64*pm} sc1")
    ld_h2()
    key_fin(a, 248)
    a(f"s_lshl_b32 s3, s36, 3\ns_lshl_b32 s28, s64, 2\ns_add_u32 s3, s3, s28\ns_lshl_b32 s3, s3, 5\ns_add_u32 s3, s3, s67\ns_lshl_b32 s77, s3, 10\ns_add_u32 s77, s77, {WS_O}")
    a("s_waitcnt vmcnt(0)")
    stamp(a,36)
    checked(a, "L_k7", range(KF,KF+24), ld_h2)
    a("s_setprio 2")
    c_wo(a,'c2')
    stamp(a,27)
    for g in range(4):
        N=acc(g,2)
        for pm,Eb in ((0,EP[g]),(1,EM[g])):
            mfma(a, N+8, ZF+4*pm, Eb, N+8 if pm else None)
            for dt in range(2): mfma(a, N+4*dt, KF+8*pm+4*dt, Eb, N+4*dt if pm else None)
    for g in range(4): a(f"v_add_f32 v{acc(g,2)+8}, 0x358637bd, v{acc(g,2)+8}")
    for g in range(4): a(f"v_rcp_f32 v{acc(g,2)+8}, v{acc(g,2)+8}")
    for g in range(4):
        N=acc(g,2)
        for i in range(0,8,2): a(f"v_pk_mul_f32 {R(N+i,2)}, {R(N+i,2)}, {R(N+8,2)} op_sel_hi:[1,0]")
        for i in range(4): a(f"v_cvt_pk_bf16_f32 v{N+i}, v{N+2*i}, v{N+2*i+1}")
        a(f"buffer_store_dwordx4 {R(N,4)}, v5, s[{SWS}:{SWS+3}], s77 offen sc1")
        if g<3: a("s_add_u32 s77, s77, 32768")
    a(f"v_mov_b32 v2, 7\nds_write_b32 v3, v2\ns_and_b32 s3, s68, 127\ns_lshl_b32 s3, s3, 2\ns_add_u32 s3, s3, {L_M+512}\nv_mov_b32 v2, s3\nds_read_b32 v250, v2\nds_read_b32 v251, v2 offset:1024")
    stamp(a,28)
    a("s_setprio 0")
    if 'sfirst' in EXP: silu_prep(a, PG, PX, 193, 192, 196)
    wait7(a, "L_cw")
    c_wo(a,'co')
    if 'sfirst' not in EXP: silu_prep(a, PG, PX, 193, 192, 196)
    if opt('cpd',0): a(f"s_sleep {opt('cpd',0)}")
    stamp(a,29)

def p3(a):
    a("L_p3:")
    a.pad(4)
    D=opt('d3',4)
    PA=8; PB=40; PW=PB+8*D; vW=PW+32; vB=vW+4
    srd(a, SB, 22, 2048*2048)
    a(f"s_lshr_b32 s64, s39, 2\ns_lshl_b32 s3, s34, 2\ns_add_u32 s3, s3, s38\ns_lshl_b32 s3, s3, 16\ns_lshl_b32 s28, s64, 14\ns_add_u32 s3, s3, s28\ns_add_u32 s76, s3, {WS_O}")
    a(f"s_lshl_b32 s3, s64, 15\nv_lshlrev_b32 v2, 4, v1\nv_add_u32 v{vB}, s3, v2\nv_xor_b32 v{vB+1}, 0x8000, v{vB}")
    a(f"v_lshrrev_b32 v2, 2, v1\nv_lshlrev_b32 v2, 7, v2\nv_bfe_u32 v3, v1, 3, 2\nv_lshl_add_u32 v2, v3, 5, v2\nv_and_b32 v3, 3, v1\nv_lshl_add_u32 v2, v3, 3, v2\ns_lshl_b32 s3, s64, 16\nv_add_u32 v{vW}, s3, v2")
    for ct in range(1,4): a(f"v_xor_b32 v{vW+ct}, {32*ct}, v{vW}")
    def ld(j):
        b=PB+8*(j%D)
        if j%4==0: a(f"s_add_u32 s77, s76, {j*1024}")
        for e in range(2): a(f"buffer_load_dwordx4 {R(b+4*e,4)}, v{vB+e}, s[{SWS}:{SWS+3}], s77 offen offset:{(j%4)*1024} sc1")
    def wr(j):
        b=PW+16*(j%2)
        return [f"ds_read_b64_tr_b16 {R(b+4*ct+2*v,2)}, v{vW+ct} offset:{j*4096+v*2048}" for ct in range(4) for v in range(2)]
    for j in range(D-1): ld(j)
    stamp(a,30)
    a(f"s_lshr_b32 s3, s68, 7\ns_xor_b32 s83, s3, s34\ns_or_b32 s83, s83, s39")
    YL=128; IS=250
    def ld_y():
        for j in range(16):
            if j%4==0: a(f"s_add_u32 s3, s78, {j*1024}")
            a(f"buffer_load_dwordx4 {R(YL+4*j,4)}, v192, s[{SWS}:{SWS+3}], s3 offen offset:{(j%4)*1024} sc1")
    def fix1():
        a(f"L_fx1:\nv_lshlrev_b32 v192, 4, v1\ns_lshl_b32 s78, s35, 14\ns_add_u32 s78, s78, {WS_Y}")
        a(f"v_and_b32 v2, 15, v1\nv_lshrrev_b32 v3, 4, v1\nv_lshl_add_u32 v193, v2, 2, v3\nv_and_b32 v2, 7, v193\nv_lshrrev_b32 v193, 3, v193\nv_lshl_add_u32 v193, v2, 3, v193\nv_lshlrev_b32 v2, 1, v193\ns_lshl_b32 s3, s68, 11\ns_lshl_b32 s28, s35, 7\ns_add_u32 s3, s3, s28\nbuffer_load_ushort v194, v2, s[{SX}:{SX+3}], s3 offen")
        ld_y()
        a("s_branch L_fx1r")
    def fix2():
        a("L_fx2:\ns_and_b32 s3, s70, 0xffff0000\ns_xor_b32 s28, s3, 0x80000000\ns_not_b32 s29, s3\ns_and_b32 s29, s29, 0xffff0000\ns_bitcmp1_b32 s3, 31\ns_cselect_b32 s3, s28, s29")
        a(f"v_mov_b32 v195, s3\nv_mul_f32 v195, 0xbfb8aa3b, v195\nv_exp_f32 v195, v195\nv_add_f32 v195, 1.0, v195\nv_rcp_f32 v195, v195")
        rne(a,195,195)
        checked(a, "L_k6", range(YL,YL+64), ld_y, sleep=4)
        for k in (8,4,2,1):
            for i in range(0,4*k,2): a(f"v_pk_add_f32 {R(YL+i,2)}, {R(YL+i,2)}, {R(YL+4*k+i,2)}")
        for i in range(2): a(f"v_permlane32_swap_b32 v{YL+i}, v{YL+2+i}")
        for i in range(2): a(f"v_add_f32 v{YL+i}, v{YL+i}, v{YL+2+i}")
        a(f"v_permlane16_swap_b32 v{YL}, v{YL+1}\nv_add_f32 v{YL}, v{YL}, v{YL+1}")
        rne(a,YL,YL)
        a(f"v_mul_f32 v{YL}, v{YL}, v195\nv_lshlrev_b32 v194, 16, v194\nv_sub_f32 v194, v194, v{IS}")
        rne(a,YL,YL); rne(a,194,194)
        a(f"v_mul_f32 v194, v194, v{IS+1}")
        rne(a,194,194)
        a(f"v_add_f32 v{YL}, v{YL}, v194")
        rne(a,YL,YL)
        a(f"v_mul_f32 v2, 0xbfb8aa3b, v{YL}\nv_exp_f32 v2, v2\nv_add_f32 v2, 1.0, v2\nv_rcp_f32 v2, v2\nv_mul_f32 v2, v{YL}, v2\nv_lshlrev_b32 v3, 2, v193\nds_write_b32 v3, v2\ns_branch L_fx2r")
    for r in wr(0): a(r)
    a("s_mov_b32 s29, 0")
    for j in range(16):
        b=PB+8*(j%D); w=PW+16*(j%2)
        if j+D-1<16: ld(j+D-1)
        a(f"s_waitcnt vmcnt({2*min(D-1,15-j)})")
        if j==opt('fxj',14): a("s_cmp_eq_u32 s83, 0\ns_cbranch_scc1 L_fx1\nL_fx1r:")
        a(f"L_c{j}:")
        maxu(a, 2, range(b,b+8))
        a(f"v_cmp_eq_u32 vcc, -1, v2\ns_cbranch_vccnz L_r{j}\nL_g{j}:\ns_waitcnt lgkmcnt(0)")
        if j in (3,7): a(f"s_cmp_eq_u32 s64, {0 if j==3 else 1}\ns_cbranch_scc1 L_nb{j}\ns_barrier\nL_nb{j}:")
        rd = wr(j+1) if j<15 else []
        i=0
        for ct in range(4):
            for e in range(2):
                d=PA+16*e+4*ct
                mfma(a, d, w+4*ct, b+4*e, d if j else None)
                if rd: a(rd[i])
                i+=1
    stamp(a,31)
    if STAMPS: a(f"v_writelane_b32 v{VST-1}, s29, 58")
    a("s_cmp_eq_u32 s83, 0\ns_cbranch_scc1 L_fx2\nL_fx2r:")
    a(f"s_lshl_b32 s3, s39, 12\ns_add_u32 s3, s3, {L_STG}\nv_lshlrev_b32 v2, 4, v1\nv_add_u32 v2, s3, v2\nv_xor_b32 v3, 0x4000, v2\ns_xor_b32 s28, s3, 0x4000")
    for ct in range(4): a(f"ds_write_b128 v2, {R(PA+16+4*ct,4)} offset:{1024*ct}")
    XF=40
    for d in range(8): unpack(a, XF+2*d, PX+d)
    a(f"v_and_b32 v4, 15, v1\nv_lshrrev_b32 v5, 4, v1\nv_lshlrev_b32 v6, 1, v4\nv_and_b32 v6, 14, v6\nv_xor_b32 v5, v5, v6\nv_lshl_add_u32 v4, v4, 7, s28\nv_lshl_add_u32 v4, v5, 3, v4")
    a(f"v_lshrrev_b32 v5, 3, v1\nv_and_b32 v6, 7, v1\nv_xor_b32 v7, v6, v5\nv_lshl_add_u32 v7, v7, 4, s28\nv_lshl_add_u32 v7, v5, 7, v7")
    a(f"s_lshl_b32 s3, s34, 7\ns_add_u32 s3, s3, s69\nv_add_u32 v5, s3, v5\nv_lshlrev_b32 v5, 11, v5\nv_lshl_add_u32 v5, v6, 4, v5\ns_lshl_b32 s3, s35, 7\ns_add_u32 s28, s3, 16384")
    a(f"s_lshl_b32 s29, s34, 7\ns_add_u32 s29, s29, s69\ns_andn2_b32 s77, s68, 15\ns_cmp_lg_u32 s29, s77")
    a("s_waitcnt lgkmcnt(0)\ns_barrier")
    a(f"s_cbranch_scc1 L_nov\nv_and_b32 v2, 48, v1\ns_and_b32 s29, s68, 15\ns_lshl_b32 exec_lo, 0x00010001, s29\ns_mov_b32 exec_hi, exec_lo")
    for ct in range(4): a(f"ds_read_b128 {R(PG+4*ct,4)}, v2 offset:{64*ct}")
    a("s_mov_b64 exec, -1\nL_nov:")
    for ct in range(4): a(f"ds_read_b128 {R(PA+16+4*ct,4)}, v3 offset:{1024*ct}")
    for ct in range(4):
        a(f"s_waitcnt lgkmcnt({3-ct})")
        for i in (0,2): a(f"v_pk_add_f32 {R(PA+4*ct+i,2)}, {R(PA+4*ct+i,2)}, {R(PA+16+4*ct+i,2)}")
        for i in (0,2): a(f"v_pk_fma_f32 {R(XF+4*ct+i,2)}, {R(PA+4*ct+i,2)}, {R(PG+4*ct+i,2)}, {R(XF+4*ct+i,2)}")
        for i in (0,1): a(f"v_cvt_pk_bf16_f32 v{PA+2*ct+i}, v{XF+4*ct+2*i}, v{XF+4*ct+2*i+1}")
    for ct in range(4):
        if ct: a(f"v_xor_b32 v6, {32*ct}, v4")
        a(f"ds_write_b64 v{6 if ct else 4}, {R(PA+2*ct,2)}")
    for e in range(2): a(f"ds_read_b128 {R(PA+16+4*e,4)}, v7 offset:{1024*e}")
    OM = '' if 'outplain' in EXP else ' sc1' if 'outsc1' in EXP else ' sc0 sc1 nt' if 'outall' in EXP else ' nt'
    for e in range(2):
        a(f"s_waitcnt lgkmcnt({1-e})\nbuffer_store_dwordx4 {R(PA+16+4*e,4)}, v5, s[{SB}:{SB+3}], s{28 if e else 3} offen{OM}")
    if STAMPS: a("s_waitcnt vmcnt(0)")
    stamp(a,32)
    dump(a)
    a("L_done:\ns_endpgm")
    ln_code(a); fix1(); fix2()
    for j in range(16):
        b=PB+8*(j%D)
        a(f"L_r{j}:\ns_add_u32 s29, s29, 1\ns_cmp_ge_u32 s29, {SPIN}\ns_cbranch_scc1 L_g{j}\ns_add_u32 s3, s76, {j*1024}")
        for e in range(2): a(f"buffer_load_dwordx4 {R(b+4*e,4)}, v{vB+e}, s[{SWS}:{SWS+3}], s3 offen sc1")
        a(f"s_waitcnt vmcnt(0)\ns_branch L_c{j}")

def kern(a):
    kernel_header(a, "fused_kernel")
    a("s_cmp_ge_u32 s2, 256\ns_cbranch_scc1 L_done")
    a("s_load_dwordx16 s[4:19], s[0:1], 0\ns_load_dwordx8 s[20:27], s[0:1], 64")
    if STAMPS: a("s_memrealtime s[96:97]")
    a("v_and_b32 v1, 63, v0\nv_lshrrev_b32 v2, 6, v0")
    a("v_readfirstlane_b32 s39, v2")
    a("s_and_b32 s34, s2, 1\ns_lshl_b32 s34, s34, 3\ns_bfe_u32 s3, s2, 0x30003\ns_add_u32 s36, s34, s3")
    a("s_bfe_u32 s37, s2, 0x20001\ns_lshl_b32 s37, s37, 2\ns_lshr_b32 s28, s2, 6\ns_add_u32 s37, s37, s28")
    if ARR==2: a("s_and_b32 s3, s3, 1\ns_add_u32 s34, s34, s3\ns_and_b32 s3, s2, 6\ns_add_u32 s34, s34, s3\ns_lshr_b32 s35, s2, 4")
    if ARR==4: a("s_and_b32 s3, s3, 3\ns_add_u32 s34, s34, s3\ns_and_b32 s3, s37, 4\ns_add_u32 s34, s34, s3\ns_lshr_b32 s35, s2, 5\ns_and_b32 s3, s37, 8\ns_add_u32 s35, s35, s3")
    if ARR==8: a("s_mov_b32 s34, s36\ns_xor_b32 s35, s37, 1")
    a("s_and_b32 s38, s39, 3")
    a("s_cmp_lt_u32 s39, 4\ns_cbranch_scc1 L_C")
    h_waves(a)
    c_waves(a)
    p3(a)
    return kernel_desc("fused_kernel", 256, 102)

if __name__ == "__main__":
    a=Asm()
    head = open('/code/%s.s.ref'%NAME).read().split('\n')
    hdr = [l for l in head if l.startswith(';') and '@launch' not in l and 'Override launch' not in l and 'grid=ceil' not in l]
    out='\n'.join(hdr)+"\n; @launch kernel=fused_kernel grid=(256,1,1) block=(512,1,1) lds=163840\n"
    out+='.amdgcn_target "amdgcn-amd-amdhsa--gfx950"\n.text\n'
    d=kern(a)
    if 'noal' not in EXP:
        import align
        a.lines,nw,nn = align.align(a.lines, '.amdgcn_target "amdgcn-amd-amdhsa--gfx950"\n.text\n')
    out+=a.text()+".p2align 8\n.fill 4096, 4, 0xbf800000\n"+'.section .rodata,"a"\n.p2align 6\n'+d
    if 'official' in EXP:
        out = out.replace("; @launch kernel=fused_kernel grid=", "; @launch grid=").replace("fused_kernel", NAME+"_kernel")
    open(sys.argv[1],"w").write(out)
```

```python
import sys, os
from asmgen import Asm, kernel_header, kernel_desc
NAME = "recurrent_scan__linear_kernel_hedgehog__moe_arch_mod__prompt"
EXP = os.environ.get('EXP','').split(',')
STAMPS = 'st' in EXP
def opt(name, default):
    for e in EXP:
        if e.startswith(name+'='): return int(e.split('=')[1])
    return default
WS_SIZE = 0x10000000
WS_REC  = 0x000000
WS_EPO  = 0x004000
WS_RDY  = 0x008000
KVS     = 4224
WS_FILL = 0x100000
WS_CSP  = WS_FILL
WS_KVR  = WS_CSP + 256*768
WS_GU   = WS_KVR + 32*KVS
WS_Y    = WS_GU + 16*3584*4
assert WS_Y + 16*64*256 <= WS_FILL + 0x100000
WS_O    = 0x400000
WS_KVP  = 0x800000
WS_DBG  = 0x3000000
SLOT = 40960
L_PHS  = 98304
L_WR   = 122880
L_STG  = 131072
LM     = 147456
L_PHI  = LM+256
L_M    = LM+4096+512
L_R    = L_M+1024
L_RC   = L_R+1024
L_SQ   = L_RC+512
L_CS   = L_SQ+256
L_PHQ  = LM+8192+256
L_KEY  = LM+8192+256+6144
L_FLG  = L_KEY+64
assert L_CS+768 <= LM+8192 and L_FLG+32 <= 163840
NT = opt('nt',1)
PLC = {}
for it_ in os.environ.get('PLC','i1:x0,x1;i2:c,p,t;i4:k0,k1,k2;i8:o0,o1;i9:o2,o3;i11:g0;j14:g1;x0:w0,w1,w4,y,g2;h1s:w5,w2;co:w3,w6,w7').split(';'):
    PLC[it_.split(':')[0]] = it_.split(':')[1].split(',')
FNT = '' if 'fplain' in EXP else ' nt'
TNT = ' nt' if 'tnt' in EXP else ''
ARR = opt('arr',8)
QX = opt('qx',4)
LNP = 3
DPPM = "row_mask:0xf bank_mask:0xf"
LOG2E = 0x3fb8aa3b
SPIN = 200000
SX, SW, SWS, SA, SB, SC = 40, 44, 48, 52, 56, 60
VST = 255
LNX = 192

def srd(a, d, base, size):
    a(f"s_mov_b32 s{d}, s{base}\ns_mov_b32 s{d+1}, s{base+1}\ns_mov_b32 s{d+2}, {size}\ns_mov_b32 s{d+3}, 0x00020000")
LEAK = opt('leak',-1)
def stamp(a, i):
    if i==LEAK: a("s_memrealtime s[94:95]")
    if STAMPS: a(f"s_memrealtime s[100:101]\ns_waitcnt lgkmcnt(0)\nv_writelane_b32 v{VST}, s100, {i}")
def stamp2(a, i):
    if i==LEAK: a("s_memrealtime s[94:95]")
    if STAMPS: a(f"s_memrealtime s[100:101]\ns_memtime s[98:99]\ns_waitcnt lgkmcnt(0)\nv_writelane_b32 v{VST}, s100, {i}\nv_writelane_b32 v{VST-1}, s98, {i}")
def dump(a):
    if STAMPS: a(f"s_lshl_b32 s3, s2, 3\ns_add_u32 s3, s3, s39\ns_lshl_b32 s3, s3, 9\ns_add_u32 s3, s3, {WS_DBG}\nv_lshlrev_b32 v2, 3, v1\nbuffer_store_dwordx2 v[{VST-1}:{VST}], v2, s[{SWS}:{SWS+3}], s3 offen")
def rne(a, dst, src):
    a(f"v_cvt_pk_bf16_f32 v{dst}, v{src}, v{src}\nv_lshlrev_b32 v{dst}, 16, v{dst}")
def R(b, n): return f"v[{b}:{b+n-1}]"
def unpack(a, dst, src):
    a(f"v_lshlrev_b32 v{dst}, 16, v{src}\nv_and_b32 v{dst+1}, 0xffff0000, v{src}")
def mfma(a, d, A, B, c=None):
    a(f"v_mfma_f32_16x16x32_bf16 {R(d,4)}, {R(A,4)}, {R(B,4)}, {'0' if c is None else R(c,4)}")

class VM:
    def __init__(self, a, nt=1): self.a=a; self.nt=nt; self.q=[[] for _ in range(nt)]; self.only=None; self.nl=0
    def issue(self, tag, n=1):
        for c in range(self.nt):
            if self.only is None or c in self.only: self.q[c] += [tag]*n
    def wait(self, tag):
        need={}
        for c in range(self.nt):
            q=self.q[c]
            if tag in q and (self.only is None or c in self.only):
                idx=max(i for i,t in enumerate(q) if t==tag); need[c]=len(q)-1-idx; self.q[c]=q[idx+1:]
        if not need: return
        allc=[c for c in range(self.nt) if self.only is None or c in self.only]
        base=max(need.values()) if len(need)==len(allc) else None
        if base is not None: self.a(f"s_waitcnt vmcnt({min(base,63)})")
        for c,n in need.items():
            if n!=base:
                self.nl+=1
                self.a(f"s_cmp_lg_u32 s85, {c}\ns_cbranch_scc1 L_vw{self.nl}\ns_waitcnt vmcnt({min(n,63)})\nL_vw{self.nl}:")
    def drain(self): self.a("s_waitcnt vmcnt(0)"); self.q=[[] for _ in range(self.nt)]
    def cond(self, classes, f):
        classes=set(classes)
        if not classes: return
        if len(classes)==self.nt: f(); return
        self.nl+=1; l=f"L_vc{self.nl}"
        if len(classes)==1: self.a(f"s_cmp_lg_u32 s85, {list(classes)[0]}\ns_cbranch_scc1 {l}")
        else:
            for c in set(range(self.nt))-classes: self.a(f"s_cmp_eq_u32 s85, {c}\ns_cbranch_scc1 {l}")
        self.only=classes; f(); self.only=None
        self.a(f"{l}:")

def maxu(a, dst, regs):
    regs=list(regs)
    if len(regs)==1: a(f"v_mov_b32 v{dst}, v{regs[0]}"); return
    if len(regs)==2: a(f"v_max_u32 v{dst}, v{regs[0]}, v{regs[1]}"); return
    a(f"v_max3_u32 v{dst}, v{regs[0]}, v{regs[1]}, v{regs[2]}"); regs=regs[3:]
    while len(regs)>=2: a(f"v_max3_u32 v{dst}, v{dst}, v{regs[0]}, v{regs[1]}"); regs=regs[2:]
    if regs: a(f"v_max_u32 v{dst}, v{dst}, v{regs[0]}")

def checked(a, lbl, regs, reload, t=2, sleep=1):
    a(f"s_mov_b32 s29, 0\n{lbl}:")
    maxu(a, t, regs)
    a(f"v_cmp_eq_u32 vcc, -1, v{t}\ns_cbranch_vccz {lbl}k\ns_add_u32 s29, s29, 1\ns_cmp_ge_u32 s29, {SPIN}\ns_cbranch_scc1 {lbl}k")
    if sleep: a(f"s_sleep {sleep}")
    reload()
    a(f"s_waitcnt vmcnt(0)\ns_branch {lbl}\n{lbl}k:")
    if STAMPS: a(f"v_writelane_b32 v{VST-1}, s29, {50+int(lbl[3:])}")

def red8(a, e):
    for i in range(4): a(f"v_permlane32_swap_b32 v{e+i}, v{e+4+i}")
    for i in range(4): a(f"v_add_f32 v{e+i}, v{e+i}, v{e+4+i}")
    for i in range(2): a(f"v_permlane16_swap_b32 v{e+i}, v{e+2+i}")
    for i in range(2): a(f"v_add_f32 v{e+i}, v{e+i}, v{e+2+i}")
    for i in range(2): a(f"v_add_f32 v{e+i}, v{e+i}, v{e+i} row_ror:8 {DPPM}")

def silu_prep(a, PG, PX, vm_, vr, T):
    assert vr%2==0 and T%2==0
    a(f"v_mul_f32 v{T}, v{vm_}, v{vr}\nv_mov_b32 v{T+2}, 0xbfb8aa3b")
    E=T+4
    for d in range(8): unpack(a, PG+2*d, PX+d)
    for i in range(0,16,2): a(f"v_pk_fma_f32 {R(PG+i,2)}, {R(PG+i,2)}, {R(vr,2)}, {R(T,2)} op_sel_hi:[1,0,0] neg_lo:[0,0,1] neg_hi:[0,0,1]")
    for i in range(0,16,2): a(f"v_pk_mul_f32 {R(E+i,2)}, {R(PG+i,2)}, {R(T+2,2)} op_sel_hi:[1,0]")
    for i in range(16): a(f"v_exp_f32 v{E+i}, v{E+i}")
    for i in range(0,16,2): a(f"v_pk_add_f32 {R(E+i,2)}, {R(E+i,2)}, 1.0 op_sel_hi:[1,0]")
    for i in range(16): a(f"v_rcp_f32 v{E+i}, v{E+i}")
    for i in range(0,16,2): a(f"v_pk_mul_f32 {R(PG+i,2)}, {R(PG+i,2)}, {R(E+i,2)}")

PG, PX = 224, 240
def xaddr(a, dst):
    a(f"s_lshl_b32 s3, s38, 1\ns_lshr_b32 s28, s39, 2\ns_add_u32 s3, s3, s28\ns_lshl_b32 s69, s3, 4\ns_lshl_b32 s3, s34, 7\ns_add_u32 s3, s3, s69")
    a(f"v_and_b32 v2, 15, v1\nv_add_u32 v{dst}, s3, v2\nv_lshlrev_b32 v{dst}, 11, v{dst}\nv_lshrrev_b32 v2, 4, v1\nv_lshl_add_u32 v{dst}, v2, 3, v{dst}\ns_lshl_b32 s3, s35, 7\nv_add_u32 v{dst}, s3, v{dst}")
def xload(a, v):
    for ct in range(4): a(f"buffer_load_dwordx2 {R(PX+2*ct,2)}, v{v}, s[{SX}:{SX+3}], 0 offen offset:{32*ct}")
def stat3(a, vm_, vr):
    a(f"v_and_b32 v2, 15, v1\nv_add_u32 v2, s69, v2\nv_lshlrev_b32 v2, 2, v2\nv_add_u32 v2, {L_M+512}, v2\nds_read_b32 v{vm_}, v2\nds_read_b32 v{vr}, v2 offset:1024")

def wait7(a, l):
    a(f"v_and_b32 v3, 3, v1\nv_lshlrev_b32 v3, 2, v3\nv_add_u32 v3, {L_FLG}, v3\n{l}:\nds_read_b32 v2, v3\ns_waitcnt lgkmcnt(0)\nv_cmp_ne_u32 vcc, 7, v2\ns_cbranch_vccz {l}k\ns_sleep 1\ns_branch {l}\n{l}k:")
def key_rd(a, v):
    a(f"v_mov_b32 v2, {L_KEY}\nds_read_b32 v{v}, v2")
def key_fin(a, v):
    a(f"s_waitcnt lgkmcnt(0)\nv_readfirstlane_b32 s70, v{v}\ns_and_b32 s68, s70, 0x7ff\ns_sub_u32 s68, 2047, s68")

def h_waves(a):
    vm = VM(a, NT)
    vA=8; vW=12; vCS=18; vF=21; vD=22; vXo=23
    CSA=24; CSL=32; XF=80
    FW=128; DW=192; FA=120; SENT=248; vL16=252; vP64=253
    a("L_H:")
    a("v_and_b32 v4, 7, v1\ns_lshl_b32 s33, s37, 7\ns_add_u32 s85, s36, s37\ns_and_b32 s85, s85, 3\ns_lshl_b32 s87, s85, 7")
    a("s_lshl_b32 s3, s36, 7\ns_lshl_b32 s28, s38, 5\ns_add_u32 s3, s3, s28")
    a("v_lshrrev_b32 v7, 3, v1\nv_add_u32 v3, s3, v7\nv_lshlrev_b32 v3, 11, v3")
    a("v_lshrrev_b32 v5, 4, v1\nv_xor_b32 v6, v4, v5\nv_xor_b32 v5, 4, v6")
    a("v_lshl_add_u32 v6, v6, 4, v3\nv_lshl_add_u32 v5, v5, 4, v3")
    for j in range(4): a(f"v_add_u32 v{vA+j}, {j*16384 - j*1024}, v{5 if j&1 else 6}")
    a("s_lshr_b32 s32, s36, 1\ns_and_b32 s32, s32, 2\ns_xor_b32 s32, s32, s38" if 'nowx' not in EXP else "s_mov_b32 s32, s38")
    a("s_lshl_b32 s3, s32, 4\nv_add_u32 v7, s3, v7\nv_mul_u32_u24 v7, 6144, v7")
    a("v_bfe_u32 v6, v1, 4, 1\nv_lshlrev_b32 v6, 1, v6\nv_xor_b32 v5, v4, v6\nv_add_u32 v7, s33, v7\nv_xor_b32 v6, 4, v5\nv_lshl_add_u32 v6, v6, 4, v7\nv_lshl_add_u32 v7, v5, 4, v7")
    for e in range(6): a(f"v_add_u32 v{vW+e}, {(e>>1)*2048 + (e&1)*(8*6144-1024)}, v{6 if e&1 else 7}")
    for e in range(2): a(f"v_xor_b32 v{vW+e}, {QX*128}, v{vW+e}")
    a(f"s_lshl_b32 s30, s38, 12\ns_lshl_b32 s31, s32, 11\ns_add_u32 s31, s31, 16384")
    a("s_waitcnt lgkmcnt(0)")
    srd(a, SW, 6, 1024*3072*2); srd(a, SX, 4, 2048*2048)
    def tiles(s, wfirst=False):
        sl=(s%3)*SLOT
        def A_():
            a(f"s_add_u32 m0, s30, {sl}")
            for j in range(4): a(f"buffer_load_dwordx4 v{vA+j}, s[{SX}:{SX+3}], s3 offen offset:{j*1024}{TNT if s%4==0 else ''} lds")
        def W_():
            for e in range(6):
                if e%2==0: a(f"s_add_u32 m0, s31, {sl+(e>>1)*8192}")
                a(f"buffer_load_dwordx4 v{vW+e}, s[{SW}:{SW+3}], s28 offen offset:{(e&1)*1024}{TNT if s%4==0 else ''} lds")
        a(f"s_add_u32 s3, s87, {(s&3)*128}\ns_and_b32 s3, s3, 511\ns_or_b32 s3, s3, {(s>>2)*512}\ns_mul_i32 s28, s3, 3072")
        if wfirst: W_(); A_()
        else: A_(); W_()
        vm.issue(('t',s),10)
    def fill_addr():
        a(f"s_lshr_b32 s3, s38, 1\ns_lshl_b32 s28, s37, 1\ns_add_u32 s28, s28, s3\ns_and_b32 s29, s38, 1")
        a(f"s_lshl_b32 s3, s28, 4\ns_add_u32 s3, s3, s36\ns_mul_i32 s3, s3, {KVS}\ns_mul_i32 s78, s29, {KVS//2}\ns_add_u32 s78, s78, s3\ns_add_u32 s78, s78, {WS_KVP}")
        a(f"s_lshl_b32 s3, s36, 1\ns_add_u32 s29, s29, s3\ns_xor_b32 s28, s28, {2*QX}\ns_lshl_b32 s3, s29, 7\ns_add_u32 s3, s3, s28\ns_lshl_b32 s3, s3, 10\ns_add_u32 s79, s3, {WS_O}")
    def fillk(i0_,i1_):
        if 'nofill' in EXP: return
        for i in range(i0_,i1_):
            if i<2: a(f"buffer_store_dwordx4 {R(SENT,4)}, v{vL16}, s[{SWS}:{SWS+3}], s78 offen offset:{i*1024} sc1")
            else: a(f"s_mov_b64 exec, 15\nbuffer_store_dwordx4 {R(SENT,4)}, v{vL16}, s[{SWS}:{SWS+3}], s78 offen offset:2048 sc1\ns_mov_b64 exec, -1")
            vm.issue('own',1)
    def fillo(i):
        if 'nofill' in EXP: return
        a(f"s_add_u32 s3, s79, {i*32768}\nbuffer_store_dwordx4 {R(SENT,4)}, v{vL16}, s[{SWS}:{SWS+3}], s3 offen sc1")
        vm.issue('own',1)
    PRO=os.environ.get('PRO','t0,e,t1').split(',')
    for p in PRO:
        if p=='e':
            if STAMPS: a(f"v_mov_b32 v{VST-1}, 0\nv_writelane_b32 v{VST}, s96, 0")
            srd(a, SWS, 26, WS_SIZE)
            a(f"v_mov_b32 v19, {WS_EPO}\nbuffer_load_dword v19, v19, s[{SWS}:{SWS+3}], 0 offen sc1"); vm.issue('epo',1)
            stamp(a,1)
        else: tiles(int(p[1]), 'wf' in EXP)
    for i in range(4): a(f"v_mov_b32 v{SENT+i}, -1")
    a(f"v_lshlrev_b32 v{vL16}, 4, v1\ns_and_b32 s85, s85, {NT-1}")
    a(f"s_lshl_b32 s3, s37, 4\ns_add_u32 s3, s3, s36\ns_mul_i32 s67, s3, 768\ns_add_u32 s67, s67, {WS_CSP}\ns_lshl_b32 s3, s38, 8\ns_add_u32 s67, s67, s3\ns_cmp_eq_u32 s38, 3\ns_cselect_b32 s67, {WS_SIZE}, s67")
    for i in range(8): a(f"v_mov_b32 v{CSA+i}, 0")
    a(f"v_lshlrev_b32 v{vP64}, 2, v1")
    KY=64; ST=72; CG=80; PW=224
    a("s_cmp_gt_u32 s37, 3\ns_subb_u32 s77, s37, 0\ns_cmp_gt_u32 s37, 11\ns_subb_u32 s77, s77, 0\ns_lshl_b32 s77, s77, 4\ns_add_u32 s77, s77, s36\ns_and_b32 s3, s37, 7\ns_cmp_eq_u32 s3, 3\ns_cselect_b32 s77, 224, s77")
    a(f"s_bitcmp1_b32 s38, 0\ns_cselect_b32 s{SA}, s18, s16\ns_cselect_b32 s{SA+1}, s19, s17\ns_cmp_lt_u32 s77, 224\ns_cselect_b32 s{SA+2}, {1024*3584*2}, 0\ns_mov_b32 s{SA+3}, 0x00020000")
    srd(a, SB, 20, 3584*1024*2)
    a("s_and_b32 s3, s77, 3\ns_lshl_b32 s3, s3, 8\ns_lshr_b32 s28, s38, 1\ns_lshl_b32 s28, s28, 7\ns_add_u32 s3, s3, s28\nv_lshrrev_b32 v5, 3, v1\nv_lshl_add_u32 v6, v5, 4, s3")
    a(f"v_mul_u32_u24 v6, 7168, v6\nv_lshl_add_u32 v6, v4, 4, v6\ns_lshr_b32 s3, s77, 2\ns_lshl_b32 s3, s3, 7\nv_add_u32 v{vF}, s3, v6")
    a("s_lshr_b32 s3, s2, 4\ns_mul_i32 s3, s3, 224\ns_mul_i32 s28, s38, 56\ns_add_u32 s71, s3, s28")
    a(f"v_lshlrev_b32 v6, 14, v5\nv_lshl_add_u32 v6, v4, 4, v6\ns_and_b32 s3, s2, 15\ns_lshl_b32 s3, s3, 7\nv_add_u32 v{vD}, s3, v6")

    def cs_addr():
        a(f"v_bfe_u32 v5, v1, 4, 1\nv_lshlrev_b32 v5, 5, v5\nv_xor_b32 v5, v5, v{vL16}\ns_min_u32 s3, s38, 2\ns_lshl_b32 s3, s3, 13\ns_lshr_b32 s80, s36, 2\ns_lshl_b32 s28, s80, 11\ns_add_u32 s3, s3, s28\ns_add_u32 s3, s3, 16384\nv_add_u32 v{vCS}, s3, v5")
    def cs_rd(s_):
        a(f"v_add_u32 v2, {(s_%3)*SLOT}, v{vCS}\nv_xor_b32 v3, 64, v2")
        for i in range(2): a(f"ds_read_b128 {R(CSL+8*(s_>>2)+4*i,4)}, v{2+i} offset:{1024*i}")
    def cs_ld3():
        a(f"v_lshrrev_b32 v2, 3, v1\nv_mul_u32_u24 v2, 6144, v2\nv_and_b32 v3, 7, v1\nv_lshl_add_u32 v2, v3, 4, v2")
        a(f"s_lshr_b32 s3, s87, 1\ns_lshl_b32 s28, s80, 4\ns_add_u32 s3, s3, s28\ns_add_u32 s3, s3, 768\ns_mul_i32 s3, s3, 6144\ns_lshl_b32 s28, s38, 11\ns_add_u32 s3, s3, s28\ns_add_u32 s3, s3, s33")
        a(f"s_xor_b32 s28, s3, {QX*128}\ns_cmp_eq_u32 s38, 0\ns_cselect_b32 s3, s28, s3\ns_cmp_eq_u32 s38, 3\ns_cselect_b32 s3, 0x7000000, s3\ns_add_u32 s28, s3, {8*6144}")
        for i in range(2): a(f"buffer_load_dwordx4 {R(CSL+24+4*i,4)}, v2, s[{SW}:{SW+3}], s{28 if i else 3} offen")
        vm.issue('c3',2)
    def colsum(q):
        if q==3: vm.wait('c3')
        for j in range(2):
            for d in range(4):
                t=2+2*(d&1)
                unpack(a, t, CSL+8*q+4*j+d)
                a(f"v_add_f32 v{CSA+2*d}, v{CSA+2*d}, v{t}\nv_add_f32 v{CSA+2*d+1}, v{CSA+2*d+1}, v{t+1}")
    def cs_pub():
        red8(a, CSA)
        a(f"v_and_b32 v2, 8, v1\nv_cmp_eq_u32 vcc, 0, v2\nv_cndmask_b32 v{CSA}, v{CSA+1}, v{CSA}, vcc")
        a(f"buffer_store_dword v{CSA}, v{vP64}, s[{SWS}:{SWS+3}], s67 offen sc1")
        vm.issue('pub',1)
    RDY=118
    def nonce():
        vm.wait('epo')
        a("v_readfirstlane_b32 s86, v19\ns_add_u32 s86, s86, 1")
    def ready_st():
        a(f"s_lshl_b32 s3, s37, 4\ns_add_u32 s3, s3, s36\ns_lshl_b32 s3, s3, 7\ns_add_u32 s3, s3, {WS_RDY}\ns_cmp_lg_u32 s38, 0\ns_cselect_b32 s3, {WS_SIZE}, s3\nv_mov_b32 v2, s86\ns_mov_b64 exec, 1\nbuffer_store_dword v2, v{vL16}, s[{SWS}:{SWS+3}], s3 offen sc1\ns_mov_b64 exec, -1")
        vm.issue('rs',1)
    def rdy_addr():
        a(f"v_and_b32 v2, 15, v1\nv_bfe_u32 v3, v1, 4, 1\nv_mul_u32_u24 v3, {QX}, v3\nv_xor_b32 v3, s37, v3\nv_lshl_add_u32 v3, v3, 4, v2\nv_lshl_add_u32 v2, v2, 4, s34\nv_cmp_gt_u32 vcc, 32, v1\nv_cndmask_b32 v2, v2, v3, vcc\nv_lshlrev_b32 v113, 7, v2")
    def ready_poll(l, lo, hi):
        a(f"s_mov_b32 s3, {WS_RDY}\ns_mov_b32 s29, 0\ns_mov_b32 exec_lo, {lo}\ns_mov_b32 exec_hi, {hi}\n{l}:\nbuffer_load_dword v{RDY}, v113, s[{SWS}:{SWS+3}], s3 offen sc1\ns_waitcnt vmcnt(0)")
        a(f"v_cmp_ne_u32 vcc, s86, v{RDY}\ns_cbranch_vccz {l}k\ns_mov_b64 exec, vcc\ns_add_u32 s29, s29, 1\ns_cmp_lt_u32 s29, {SPIN}\ns_cbranch_scc1 {l}\n{l}k:\ns_mov_b64 exec, -1")
        if STAMPS and lo: a(f"v_writelane_b32 v{VST-1}, s29, 50")
    def tagged(l, regs, reload, after=None):
        a(f"s_mov_b32 s29, 0\n{l}:\nv_cmp_ne_u32 vcc, s86, v{regs[0]}")
        for r in regs[1:]: a(f"v_cmp_ne_u32 s[92:93], s86, v{r}\ns_or_b64 vcc, vcc, s[92:93]")
        a(f"s_cbranch_vccz {l}k\ns_add_u32 s29, s29, 1\ns_cmp_ge_u32 s29, {SPIN}\ns_cbranch_scc1 {l}k\ns_sleep 2")
        reload()
        a("s_waitcnt vmcnt(0)")
        if after: after()
        a(f"s_branch {l}\n{l}k:")
        if STAMPS: a(f"v_writelane_b32 v{VST-1}, s29, {51 if l=='L_k1' else 50}")
    def epoch_st():
        a(f"s_or_b32 s3, s2, s38\ns_cmp_lg_u32 s3, 0\ns_cselect_b32 s3, {WS_SIZE}, {WS_EPO}" if 0 else f"s_or_b32 s3, s2, s38\ns_mov_b32 s28, {WS_EPO}\ns_cmp_lg_u32 s3, 0\ns_cselect_b32 s3, {WS_SIZE}, s28")
        a(f"v_mov_b32 v2, s86\ns_mov_b64 exec, 1\nbuffer_store_dword v2, v{vL16}, s[{SWS}:{SWS+3}], s3 offen sc1\ns_mov_b64 exec, -1")
        vm.issue('es',1)
    def ld_f1():
        a(f"s_lshl_b32 s3, s38, 12\ns_add_u32 m0, s3, {L_STG}")
        for k in range(4): a(f"buffer_load_dwordx4 v{vL16}, s[{SWS}:{SWS+3}], s3 offen offset:{1024*k} sc1 lds")
    def fetch1(): ld_f1(); vm.issue('f1',4)
    def keys_rd():
        for k in range(16): a(f"ds_read_b64 {R(80+2*k,2)}, v{PW+8} offset:{1024*k}")
        a(f"ds_read_b32 v{ST}, v{PW+13}\ns_waitcnt lgkmcnt(0)")
        a(f"v_min3_u32 v4, v81, v83, v85\nv_max3_u32 v5, v81, v83, v85")
        for k in range(3,15,2): a(f"v_min3_u32 v4, v4, v{81+2*k}, v{83+2*k}\nv_max3_u32 v5, v5, v{81+2*k}, v{83+2*k}")
    def ld_all():
        for q in range(4):
            a(f"s_mov_b32 m0, {L_STG+4096*q}\ns_movk_i32 s3, {4096*q}")
            for k in range(4): a(f"buffer_load_dwordx4 v{vL16}, s[{SWS}:{SWS+3}], s3 offen offset:{1024*k} sc1 lds")
    def keys():
        keys_rd()
        tagged("L_k1", [4,5,111], ld_all, keys_rd)
    def ld_cs():
        a(f"s_mul_i32 s3, s37, {16*768}\ns_mul_i32 s28, s38, 192\ns_add_u32 s3, s3, s28\ns_add_u32 s3, s3, {WS_CSP}\ns_add_u32 s28, s3, {8*768}")
        for k in range(4): a(f"buffer_load_dwordx4 {R(CG+4*k,4)}, v{PW+11}, s[{SWS}:{SWS+3}], s{28 if k>=2 else 3} offen offset:{3072*(k&1)} sc1")
    def fetch2():
        ld_cs(); vm.issue('f2',4)
    def proc1():
        a(f"v_and_b32 v{PW+4}, 0xffff0000, v{ST}\nv_lshlrev_b32 v{PW+1}, 16, v{ST}\nv_rcp_f32 v{PW+2}, v{PW+4}\nv_mov_b32 v{PW}, s70\nv_mul_f32 v{PW+3}, {LOG2E}, v{PW+2}")
    def addr1():
        a(f"v_add_u32 v{PW+8}, {L_STG+8}, v{vL16}")
        a(f"v_lshrrev_b32 v2, 5, v1\nv_and_b32 v3, 31, v1\nv_lshl_add_u32 v2, v2, 7, v3\ns_lshl_b32 s3, s38, 7\ns_add_u32 s3, s3, {L_M}\nv_lshl_add_u32 v{PW+6}, v2, 2, s3")
        a(f"v_bfe_u32 v4, v1, 2, 2\nv_lshlrev_b32 v4, 3, v4\nv_bfe_u32 v7, v1, 4, 1\nv_lshl_add_u32 v4, v7, 2, v4\nv_and_b32 v7, 3, v1\nv_add_u32 v4, v4, v7\ns_lshl_b32 s3, s38, 6\ns_add_u32 s3, s3, {L_SQ}\nv_lshl_add_u32 v{PW+7}, v4, 1, s3")
    def addr2():
        a(f"s_lshl_b32 s3, s36, 7\ns_lshl_b32 s28, s34, 7\nv_mov_b32 v2, s3\nv_mov_b32 v4, s28\nv_cmp_gt_u32 vcc, 32, v1\ns_lshl_b32 s3, s38, 5\nv_and_b32 v3, 30, v1\nv_cndmask_b32 v2, v4, v2, vcc\nv_add3_u32 v2, v2, v3, s3\nv_and_b32 v3, 1, v1\nv_lshl_add_u32 v2, v2, 1, v3\nv_lshlrev_b32 v2, 2, v2\nv_add_u32 v{PW+13}, {L_STG}, v2")
        a(f"s_mul_i32 s3, s38, 48\nv_and_b32 v2, 15, v1\nv_min_u32 v2, 11, v2\nv_lshrrev_b32 v3, 4, v1\nv_lshlrev_b32 v4, 4, v2\nv_lshl_add_u32 v2, v2, 2, v3\nv_add_u32 v2, s3, v2")
        a(f"v_and_b32 v5, 7, v2\nv_bfe_u32 v6, v2, 3, 3\nv_lshl_add_u32 v5, v5, 3, v6\nv_and_b32 v2, 0xc0, v2\nv_add_u32 v2, v2, v5\nv_lshlrev_b32 v2, 2, v2\nv_add_u32 v{PW+9}, {L_CS}, v2\nv_mul_u32_u24 v3, 768, v3\nv_add_u32 v{PW+11}, v3, v4\nv_mov_b32 v{PW+10}, {L_KEY}")
    def all_w():
        a(f"ds_write_b32 v{PW+10}, v{PW}\nds_write_b32 v{PW+6}, v{PW+1}\nds_write_b32 v{PW+6}, v{PW+2} offset:1024\nds_write_b32 v{PW+9}, v{CG}")
        a(f"s_mov_b32 exec_hi, 0\nds_write_b32 v{PW+6}, v{PW+3} offset:2048\nds_write_b16_d16_hi v{PW+7}, v{PW+4}\ns_mov_b64 exec, -1\ns_waitcnt lgkmcnt(0)")
    XR=64; IS=116; XSF=96
    def idx_xs():
        maxu(a, 2, range(80,112,2))
        for m in ("quad_perm:[1,0,3,2]", "quad_perm:[2,3,0,1]", "row_half_mirror", "row_mirror"): a(f"v_max_u32 v2, v2, v2 {m} {DPPM}")
        a("v_readlane_b32 s70, v2, 0\nv_readlane_b32 s3, v2, 16\nv_readlane_b32 s28, v2, 32\nv_readlane_b32 s29, v2, 48\ns_max_u32 s70, s70, s3\ns_max_u32 s28, s28, s29\ns_max_u32 s70, s70, s28\ns_and_b32 s68, s70, 0x7ff\ns_sub_u32 s68, 2047, s68")
        a(f"s_lshl_b32 s3, s68, 11\ns_and_b32 s28, s77, 3\ns_lshl_b32 s28, s28, 9\ns_add_u32 s3, s3, s28\ns_lshr_b32 s28, s38, 1\ns_lshl_b32 s28, s28, 8\ns_add_u32 s3, s3, s28")
        a(f"v_lshrrev_b32 v3, 3, v1\nv_lshlrev_b32 v3, 5, v3\nbuffer_load_dwordx4 {R(XR,4)}, v3, s[{SX}:{SX+3}], s3 offen\nbuffer_load_dwordx4 {R(XR+4,4)}, v3, s[{SX}:{SX+3}], s3 offen offset:16")
        a(f"s_lshr_b32 s3, s68, 1\ns_lshl_b32 s3, s3, 4\ns_and_b32 s28, s68, 1\ns_lshl_b32 s28, s28, 2\ns_add_u32 s3, s3, s28\ns_add_u32 s3, s3, {L_STG}\nv_mov_b32 v3, s3\nds_read_b32 v{IS}, v3")
        vm.issue('xs',2)
    def proc2():
        vm.wait('f2')
        checked(a, "L_k2", range(CG,CG+16), ld_cs)
        for k in (2,1):
            for i in range(4*k): a(f"v_add_f32 v{CG+i}, v{CG+i}, v{CG+4*k+i}")
        for i in range(2): a(f"v_permlane32_swap_b32 v{CG+i}, v{CG+2+i}")
        for i in range(2): a(f"v_add_f32 v{CG+i}, v{CG+i}, v{CG+2+i}")
        a(f"v_permlane16_swap_b32 v{CG}, v{CG+1}\nv_add_f32 v{CG}, v{CG}, v{CG+1}")
    def xs_norm(part):
        if part==0:
            vm.wait('xs')
            a(f"v_and_b32 v5, 0xffff0000, v{IS}\nv_lshlrev_b32 v{IS}, 16, v{IS}\nv_rcp_f32 v{IS+1}, v5")
            for d in range(8): unpack(a, XSF+2*d, XR+d)
            a(f"v_mul_f32 v119, v{IS}, v{IS+1}")
        else:
            for i in range(16): a(f"v_fma_f32 v{XSF+i}, v{XSF+i}, v{IS+1}, -v119")
            for i in range(8): a(f"v_mov_b32 v{FA+i}, 0")
    def ffn_ld(i0,i1):
        if 'noffn' in EXP: return
        for i in range(i0,i1):
            if i<16: a(f"s_mov_b32 s3, {i*7168}\nbuffer_load_dwordx4 {R(FW+4*i,4)}, v{vF}, s[{SA}:{SA+3}], s3 offen{FNT}")
            else: a(f"s_lshr_b32 s3, s71, 3\ns_add_u32 s3, s3, {i-16}\ns_and_b32 s28, s3, 7\ns_lshr_b32 s3, s3, 3\ns_lshl_b32 s3, s3, 6\ns_add_u32 s3, s3, s28\ns_lshl_b32 s3, s3, 11\nbuffer_load_dwordx4 {R(FW+4*i,4)}, v{vD}, s[{SB}:{SB+3}], s3 offen{FNT}")
            vm.issue(('g',i),1)
    def ffn_mac(i0,i1,pk=False):
        if i1<=i0: return
        vm.wait(('g',i1-1))
        for i in range(i0,i1):
            for d in range(4):
                t=2+2*(d&1)
                unpack(a, t, FW+4*i+d)
                if pk:
                    if i%2 and d==0: a(f"v_mov_b32 v{XSF+i-1}, v{XSF+i}")
                    a(f"v_pk_fma_f32 {R(FA+2*d,2)}, {R(t,2)}, {R(XSF+(i&~1),2)}, {R(FA+2*d,2)} op_sel_hi:[1,0,1]")
                else:
                    a(f"v_fmac_f32 v{FA+2*d}, v{t}, v{XSF+i}\nv_fmac_f32 v{FA+2*d+1}, v{t+1}, v{XSF+i}")
    def phi_ld():
        srd(a, SC, 8, 65536)
        a(f"s_lshl_b32 s3, s38, 10\ns_add_u32 m0, s3, {L_PHI}\ns_lshl_b32 s28, s37, 12\ns_add_u32 s3, s3, s28\nbuffer_load_dwordx4 v{vL16}, s[{SC}:{SC+3}], s3 offen lds")
        a(f"s_add_u32 m0, m0, {L_PHQ-L_PHI}\ns_xor_b32 s3, s3, {QX*4096}\nbuffer_load_dwordx4 v{vL16}, s[{SC}:{SC+3}], s3 offen lds")
        vm.issue('phi',2)
    def wo_touch():
        a(f"s_lshl_b32 s3, s2, 13\ns_lshl_b32 s28, s38, 11\ns_add_u32 s3, s3, s28\nv_lshlrev_b32 v3, 7, v1\ns_mov_b64 exec, 0xffff\nbuffer_load_dword v20, v3, s[88:91], s3 offen\ns_mov_b64 exec, -1")
        vm.issue('wt',1)
    def xrows(h):
        a(f"s_lshl_b32 s3, s36, 7\ns_lshl_b32 s28, s37, 3\ns_add_u32 s3, s3, s28\ns_lshl_b32 s3, s3, 11\ns_add_u32 s3, s3, s30\ns_add_u32 m0, s30, {L_STG}")
        for i in (h,h+2): a(f"buffer_load_dwordx4 v{vL16}, s[{SX}:{SX+3}], s3 offen offset:{1024*i}{' nt' if 'xnt' in EXP else ''} lds")
        vm.issue('xr',2)
        if h==0: return
        srd(a, SC, 14, 2048)
        a(f"s_lshl_b32 s3, s38, 9\ns_add_u32 m0, s3, {L_WR}\ns_mov_b32 exec_hi, 0\nbuffer_load_dwordx4 v{vL16}, s[{SC}:{SC+3}], s3 offen lds\ns_mov_b64 exec, -1")
        vm.issue('xr',1)
    def x3_ld():
        xaddr(a, vXo); xload(a, vXo); vm.issue('x3',4)
    vWo=220
    def wo_setup():
        a("v_lshrrev_b32 v5, 3, v1\nv_lshlrev_b32 v6, 11, v5\nv_bfe_u32 v5, v1, 4, 2\nv_lshlrev_b32 v5, 1, v5\nv_and_b32 v7, 7, v1\nv_xor_b32 v5, v5, v7\nv_lshl_add_u32 v6, v5, 4, v6\ns_lshl_b32 s3, s35, 7\nv_add_u32 v6, s3, v6")
        for e in range(4): a(f"v_add_u32 v{vWo+e}, {e*15360}, v6")
        a("s_lshl_b32 s72, s38, 12\ns_lshl_b32 s73, s38, 16")
    def wo(c):
        a(f"s_add_u32 m0, s72, {c*16384}\ns_add_u32 s3, s73, {c*262144}")
        for e in range(4): a(f"buffer_load_dwordx4 v{vWo+e}, s[88:91], s3 offen offset:{e*1024} lds")
        vm.issue(('wo',c),4)
    T='T'
    M15=opt('m15',8)
    HL=48; HZ=32
    def post_setup():
        a(f"s_lshl_b32 s3, s36, 2\ns_add_u32 s3, s3, s38\ns_lshr_b32 s28, s3, 5\ns_and_b32 s3, s3, 31\ns_lshl_b32 s74, s3, 7\ns_lshl_b32 s3, s37, 1\ns_add_u32 s75, s3, s28")
        a(f"v_lshrrev_b32 v5, 3, v1\nv_mul_u32_u24 v5, {KVS}, v5\nv_and_b32 v7, 7, v1\nv_lshl_add_u32 v112, v7, 4, v5")
        a(f"s_mul_i32 s76, s75, {16*KVS}\ns_add_u32 s76, s76, s74\ns_add_u32 s76, s76, {WS_KVP}\ns_mul_i32 s3, s75, {KVS}\ns_add_u32 s3, s3, s74\ns_add_u32 s74, s3, {WS_KVR}")
        a(f"s_lshl_b32 s75, s37, 1\ns_add_u32 s75, s75, s36\ns_mul_i32 s81, s75, {16*KVS}\ns_add_u32 s81, s81, {WS_KVP+4096}\ns_mul_i32 s82, s75, {KVS}\ns_add_u32 s82, s82, {WS_KVR+4096}")
        a(f"s_lshr_b32 s3, s36, 1\ns_or_b32 s83, s3, s38")
        a(f"s_and_b32 s3, s38, 1\ns_lshl_b32 s3, s3, 3\ns_and_b32 s28, s77, 3\ns_lshl_b32 s28, s28, 1\ns_add_u32 s3, s3, s28\ns_lshr_b32 s28, s38, 1\ns_add_u32 s3, s3, s28\ns_mul_i32 s3, s3, 14336\ns_lshr_b32 s28, s77, 2\ns_lshl_b32 s28, s28, 8\ns_add_u32 s3, s3, s28\ns_add_u32 s3, s3, {WS_GU}")
        a(f"s_cmp_lt_u32 s77, 224\ns_cselect_b32 s84, s3, {WS_SIZE}")
    P=lambda pos: (lambda: place(pos))
    def place(pos):
        for w in PLC.get(pos,[]):
            if w[0]=='w': wo(int(w[1]))
            elif w[0]=='k': fillk(int(w[1]),int(w[1])+1)
            elif w[0]=='o': fillo(int(w[1]))
            elif w[0]=='x': xrows(int(w[1]))
            elif w=='r': ready_st()
            elif w=='y': x3_ld()
            elif w[0]=='s': a(f"s_sleep {int(w[1:])}")
            elif w[0]=='v': vm.wait(('wo',int(w[1])))
            elif w=='c': cs_ld3()
            elif w=='p': phi_ld()
            elif w=='t': wo_touch()
            elif w[0]=='g': ffn_ld(8*int(w[1]), min(23,8*int(w[1])+8))
    M14=opt('m14',3)
    def lnbar():
        vm.wait('xr'); a("s_barrier")
    sched = {
        0: [lambda: cs_rd(0), T, addr1],
        1: [T, addr2, nonce],
        2: [lambda: colsum(0), T, lnbar, wo_setup, post_setup, rdy_addr],
        3: [T],
        4: [lambda: cs_rd(4), T, lambda: colsum(3)],
        5: [T, fetch1],
        6: [T, lambda: colsum(1), lambda: vm.wait('f1')],
        7: [keys, T],
        8: [lambda: cs_rd(8), T, idx_xs, epoch_st],
        9: [T, lambda: colsum(2)],
        10:[cs_pub, T, proc1],
        11:[lambda: xs_norm(0), lambda: xs_norm(1), T],
        12:[T, fetch2],
        13:[T, proc2],
        14:[P('j14'), lambda: ffn_mac(0,M14), all_w],
        15:[P('j15'), lambda: ffn_mac(M14,M15), lambda: vm.wait('own')],
    }
    cs_addr(); fill_addr(); srd(a, 88, 10, 1024*1024*2)
    for k in range(16): sched[k].append(P(f"i{k}"))
    CL=[]; nx=0
    for item in filter(None,os.environ.get('CL','').split(';')):
        b,what=item.split(':'); fs=[]
        for w in what.split(','):
            if True:
                n=int(w[1:]); fs.append(lambda i0=nx,i1=nx+n: ffn_ld(i0,i1)); nx+=n
        CL.append((int(b.rstrip('s')), b.endswith('s'), fs))
    NLOOP=nx
    DEF='defer' in EXP
    def at(s):
        return [(c,fs) for b,same,fs in CL for c in range(NT) if b+(0 if same else c)==s]
    for s in range(16):
        vm.wait(('t',s))
        a("s_waitcnt lgkmcnt(0)")
        if s==0: stamp(a,2)
        a("s_barrier")
        if 'hst2' in EXP: stamp(a,33+s)
        late={c for c,_ in at(s-2)} if DEF and s+1<16 else set()
        skip={c for c,_ in at(s-1)} if DEF else set()
        if T not in sched[s]: vm.cond(late, lambda: tiles(s+1))
        for f in sched[s]:
            if f==T:
                vm.cond(late, lambda: tiles(s+1))
                vm.cond(set(range(NT))-skip, lambda: tiles(s+2))
            else: f()
        grp={}
        for c,fs in at(s): grp.setdefault(id(fs),(fs,[]))[1].append(c)
        for fs,cs_ in grp.values(): vm.cond(cs_, lambda: [f() for f in fs])
        if 'hst' in EXP: stamp(a,6+s)
    a("s_barrier")
    stamp(a,24)
    MX=opt('mx',M15)
    GL=80
    a(f"v_and_b32 v2, 15, v1\nv_min_u32 v2, 13, v2\nv_lshrrev_b32 v3, 4, v1\nv_mul_u32_u24 v3, 14336, v3\nv_lshl_add_u32 v13, v2, 4, v3\ns_lshl_b32 s75, s71, 2\ns_add_u32 s75, s75, {WS_GU}")
    def ld_gu():
        for j in range(4): a(f"s_add_u32 s3, s75, {4*j*14336}\nbuffer_load_dwordx4 {R(GL+4*j,4)}, v13, s[{SWS}:{SWS+3}], s3 offen sc1")
    def gu_fin():
        red8(a, FA)
        a(f"v_and_b32 v2, 8, v1\nv_cmp_eq_u32 vcc, 0, v2\nv_cndmask_b32 v{FA}, v{FA+1}, v{FA}, vcc")
        a(f"buffer_store_dword v{FA}, v{vP64}, s[{SWS}:{SWS+3}], s84 offen sc1")
        vm.issue('gu',1)
    place('x0')
    ffn_mac(M15,MX,True)
    if MX==16: gu_fin()
    place('x1')
    for c in (0,1,4): vm.wait(('wo',c))
    stamp(a,25)
    a("s_barrier")
    place('x2')
    a("s_setprio 3\ns_cmp_lg_u32 s38, 3\ns_cbranch_scc1 L_npl")
    ready_poll("L_rp", -1, 0xffff)
    a(f"v_mov_b32 v4, {L_FLG+16}\nv_mov_b32 v5, 1\nds_write_b32 v4, v5\nL_npl:")
    stamp(a,54)
    a(f"v_min_u32 v3, 4, v1\nv_lshlrev_b32 v3, 2, v3\nv_add_u32 v3, {L_FLG}, v3\nL_fw:\nds_read_b32 v4, v3\ns_waitcnt lgkmcnt(0)\nv_cmp_eq_u32 vcc, 0, v4\ns_cbranch_vccz L_fk\ns_sleep 1\ns_branch L_fw\nL_fk:")
    stamp(a,26)
    place('k')
    vm.wait(('g',15))
    MY=opt('my',MX+3 if MX<16 else 16)
    ffn_mac(MX,MY,True)
    if opt('h1d',0): a(f"s_sleep {opt('h1d',0)}")
    stamp(a,49)
    def ld_h1():
        for j in range(2): a(f"s_add_u32 s3, s76, {8*j*KVS}\nbuffer_load_dwordx4 {R(HL+4*j,4)}, v112, s[{SWS}:{SWS+3}], s3 offen sc1")
    def ld_hz():
        for j in range(2): a(f"s_add_u32 s3, s81, {8*j*KVS}\nbuffer_load_dwordx4 {R(HZ+4*j,4)}, v112, s[{SWS}:{SWS+3}], s3 offen sc1")
    ld_h1()
    a("s_cmp_lg_u32 s83, 0\ns_cbranch_scc1 L_nz")
    ld_hz()
    a("L_nz:")
    if MX==16:
        ld_gu()
        a("s_waitcnt vmcnt(4)")
        vm.q=[['gl']*4 for _ in range(NT)]
    else:
        ffn_mac(MY,16,True); gu_fin()
        a("s_waitcnt vmcnt(1)")
        vm.q=[['gu'] for _ in range(NT)]
    stamp(a,50)
    def reduce_line(src, E, sdst):
        L=[]
        class C_:
            def __call__(self, t): L.extend(t.split("\n"))
        c=C_()
        for d in range(4): unpack(c, E+2*d, src+d)
        for d in range(4):
            unpack(c, E+8+2*d, src+4+d)
            c(f"v_pk_add_f32 {R(E+2*d,2)}, {R(E+2*d,2)}, {R(E+8+2*d,2)}")
        red8(c, E)
        c(f"v_cvt_pk_bf16_f32 v{E}, v{E}, v{E+1}\nv_mov_b32 v{E+1}, v{E}\nv_permlane16_swap_b32 v{E}, v{E+1}\nv_mov_b32 v{E+2}, v{E}\nv_mov_b32 v{E+3}, v{E+1}")
        c(f"v_permlane32_swap_b32 v{E}, v{E+2}\nv_permlane32_swap_b32 v{E+1}, v{E+3}")
        return L, f"buffer_store_dwordx4 {R(E,4)}, v{vL16}, s[{SWS}:{SWS+3}], s{sdst} offen sc1"
    A_,sa=reduce_line(HL,64,74); Z_,sz=reduce_line(HZ,96,82)
    a("s_cmp_eq_u32 s83, 0\ns_cbranch_scc1 L_hz")
    checked(a, "L_k4", range(HL,HL+8), ld_h1)
    for x in A_: a(x)
    a(f"s_mov_b64 exec, 0xff\n{sa}\ns_branch L_h1e\nL_hz:")
    checked(a, "L_k3", list(range(HL,HL+8))+list(range(HZ,HZ+8)), lambda: (ld_h1(), ld_hz()))
    for x in zipl(A_,Z_): a(x)
    a(f"s_mov_b64 exec, 0xff\n{sa}\n{sz}\nL_h1e:\ns_mov_b64 exec, -1")
    stamp(a,53)
    a(f"s_lshl_b32 s3, s38, 2\ns_add_u32 s3, s3, {L_FLG}\nv_mov_b32 v4, s3\nv_mov_b32 v5, 3\nds_write_b32 v4, v5\ns_setprio 0")
    vm.issue('h1',1)
    if PLC.get('h1s'): a("s_waitcnt lgkmcnt(0)")
    place('h1s')
    stamp(a,27)
    def hsilu():
        stat3(a, 9, 8)
        a("s_waitcnt lgkmcnt(0)")
        silu_prep(a, PG, PX, 9, 8, 28)
    if MX<16:
        hsilu()
        ld_gu(); vm.issue('gl',4)
    vm.wait('gl')
    stamp(a,51)
    checked(a, "L_k5", range(GL,GL+16), ld_gu)
    stamp(a,52)
    for b in (GL,GL+8):
        for i in (0,2): a(f"v_pk_add_f32 {R(b+i,2)}, {R(b+i,2)}, {R(b+4+i,2)}")
    for i in range(4): a(f"v_permlane32_swap_b32 v{GL+i}, v{GL+8+i}")
    for i in range(4): a(f"v_add_f32 v{GL+i}, v{GL+i}, v{GL+8+i}")
    for i in (0,2): a(f"v_permlane16_swap_b32 v{GL+i}, v{GL+i+1}")
    for i in (0,2): a(f"v_add_f32 v{GL+i}, v{GL+i}, v{GL+i+1}")
    a(f"v_permlane32_swap_b32 v{GL}, v{GL+2}")
    g,u=GL,GL+2
    rne(a,g,g); rne(a,u,u)
    a(f"v_mul_f32 v2, 0xbfb8aa3b, v{g}\nv_exp_f32 v2, v2\nv_add_f32 v2, 1.0, v2\nv_rcp_f32 v2, v2\nv_mul_f32 v{g}, v{g}, v2")
    rne(a,g,g)
    a(f"v_mul_f32 v{g}, v{g}, v{u}")
    rne(a,g,g)
    a(f"v_bfe_u32 v2, v1, 3, 2\nv_lshlrev_b32 v2, 6, v2\nv_lshrrev_b32 v3, 5, v1\nv_lshl_add_u32 v2, v3, 2, v2")
    HB=56
    for i in range(7): a(f"ds_bpermute_b32 v{HB+2*i}, v2, v{g} offset:{8*i}")
    for i in range(0,8,2): a(f"v_mov_b64 {R(FA+i,2)}, 0")
    a("s_waitcnt lgkmcnt(0)")
    place('gu')
    for i in range(7):
        for d in range(4):
            t=2+2*(d&1)
            unpack(a, t, DW+4*i+d)
            a(f"v_pk_fma_f32 {R(FA+2*d,2)}, {R(t,2)}, {R(HB+2*i,2)}, {R(FA+2*d,2)} op_sel_hi:[1,0,1]")
    red8(a, FA)
    a(f"v_and_b32 v2, 8, v1\nv_cmp_eq_u32 vcc, 0, v2\ns_and_b32 s3, s2, 15\ns_lshl_b32 s3, s3, 4\ns_lshr_b32 s28, s2, 4\ns_add_u32 s3, s3, s28\ns_lshl_b32 s3, s3, 2\ns_add_u32 s3, s3, s38\ns_lshl_b32 s3, s3, 8\ns_add_u32 s3, s3, {WS_Y}")
    a(f"v_cndmask_b32 v{FA}, v{FA+1}, v{FA}, vcc\nbuffer_store_dword v{FA}, v{vP64}, s[{SWS}:{SWS+3}], s3 offen sc1")
    vm.issue('ys',1)
    place('y')
    if MX==16: hsilu()
    stamp(a,28)
    wait7(a, "L_ow")
    place('ho')
    if opt('hpd',4): a(f"s_sleep {opt('hpd',4)}")
    stamp(a,29)
    a("s_branch L_p3")

ACC=8
def acc(g,c6): return ACC+24*g+4*c6
ML,CC,CSV = [192,194,196,198],[200,202,220,222],[248,250]
CCP,RLP = [193,221],[195,223]
CSK,CSQ,PHI,MV,SQF = 204,212,224,104,120
vVS,vLN,vSR = 197,199,[201,203]
def zipl(A, B, n=1):
    out=[]; B=list(B)
    for x in A:
        out.append(x); out+=B[:n]; B=B[n:]
    return out+B
def feature(a, B, c0, isK, mid1=None, tail=None, fillB=(), hook=None):
    P=144; T=176; U=128
    EP=[P+8*g for g in range(4)]; EM=[acc(g,c0) for g in range(4)]
    MX=[T+2*g for g in range(4)]; NM=[T+8+2*g for g in range(4)]
    for g in range(4):
        for ft in range(2): mfma(a, EP[g]+4*ft, PHI+4*ft, B+4*g)
    if mid1: mid1()
    FS='fst' in EXP; b_=40 if isK else 50
    def mx(h):
        L=[]
        for k in range(4):
            for g in (2*h,2*h+1):
                p=EP[g]
                if k==0: L+=[f"v_max3_f32 v{MX[g]}, v{p}, v{p+1}, v{p+2}", f"v_max3_f32 v{NM[g]}, -v{p}, -v{p+1}, -v{p+2}"]
                elif k<3: L+=[f"v_max3_f32 v{MX[g]}, v{MX[g]}, v{p+2*k+1}, v{p+2*k+2}", f"v_max3_f32 v{NM[g]}, v{NM[g]}, -v{p+2*k+1}, -v{p+2*k+2}"]
                else: L+=[f"v_max_f32_e64 v{MX[g]}, v{MX[g]}, v{p+7}", f"v_max_f32_e64 v{NM[g]}, v{NM[g]}, -v{p+7}"]
        return L
    def xl(h, op, fin):
        q=[MX[2*h],MX[2*h+1],NM[2*h],NM[2*h+1]]
        return [f"v_permlane32_swap_b32 v{q[0]}, v{q[1]}\nv_permlane32_swap_b32 v{q[2]}, v{q[3]}",
                f"{op} v{q[0]}, v{q[0]}, v{q[1]}\n{op} v{q[2]}, v{q[2]}, v{q[3]}",
                f"v_permlane16_swap_b32 v{q[0]}, v{q[2]}\n{op} v{q[0]}, v{q[0]}, v{q[2]}"]+fin(q[0],q[2])+[
                f"v_permlane16_swap_b32 v{q[0]}, v{q[2]}\nv_mov_b32 v{q[1]}, v{q[0]}", f"v_mov_b32_e64 v{q[3]}, v{q[2]}",
                f"v_permlane32_swap_b32 v{q[0]}, v{q[1]}\nv_permlane32_swap_b32 v{q[2]}, v{q[3]}"]
    x1=lambda h: xl(h, "v_max_f32", lambda x,y: [f"v_mul_f32 v{y}, v{x}, v{CCP[h]}\nv_mul_f32 v{x}, v{x}, v{CCP[h]}"])
    x2=lambda h: xl(h, "v_add_f32", lambda x,y: [f"v_rcp_f32_e64 v{x}, v{x}", f"v_mul_f32 v{y}, v{x}, v{RLP[h]}\nv_mul_f32 v{x}, v{x}, v{RLP[h]}" if isK else f"v_mov_b32_e64 v{y}, v{x}"])
    def fm(h):
        L=[]
        for g in (2*h,2*h+1):
            for i in range(0,8,2):
                L+=[f"v_pk_fma_f32 {R(EM[g]+i,2)}, {R(EP[g]+i,2)}, {R(CC[g],2)}, {R(NM[g],2)} op_sel_hi:[1,0,0] neg_lo:[1,0,1] neg_hi:[1,0,1]",
                    f"v_pk_fma_f32 {R(EP[g]+i,2)}, {R(EP[g]+i,2)}, {R(CC[g],2)}, {R(MX[g],2)} op_sel_hi:[1,0,0] neg_lo:[0,0,1] neg_hi:[0,0,1]"]
        return L
    def ex(h): return [f"v_exp_f32 v{EM[g]+i}, v{EM[g]+i}\nv_exp_f32 v{EP[g]+i}, v{EP[g]+i}" for g in (2*h,2*h+1) for i in range(8)]
    def sm(h):
        L=[]
        for k in range(3):
            for g in (2*h,2*h+1):
                for sg,Eb in ((0,EP[g]),(1,EM[g])):
                    t=U+4*g+2*sg
                    L.append(f"v_pk_add_f32 {R(t,2)}, {R(Eb,2)}, {R(Eb+2,2)}" if k==0 else f"v_pk_add_f32 {R(t,2)}, {R(t,2)}, {R(Eb+2*k+2,2)}")
        for g in (2*h,2*h+1): L.append(f"v_add_f32 v{MX[g]}, v{U+4*g}, v{U+4*g+1}\nv_add_f32 v{NM[g]}, v{U+4*g+2}, v{U+4*g+3}")
        return L
    def fin(h):
        for g in (2*h,2*h+1):
            for pm,(Eb,Q) in enumerate(((EP[g],MX),(EM[g],NM))):
                for i in range(0,8,2): a(f"v_pk_mul_f32 {R(Eb+i,2)}, {R(Eb+i,2)}, {R(Q[g],2)} op_sel_hi:[1,0]")
                for i in range(4): a(f"v_cvt_pk_bf16_f32 v{Eb+i}, v{Eb+2*i}, v{Eb+2*i+1}")
                if tail: tail(g, pm, Eb)
    def E(L):
        for x in L: a(x)
    a.raw(".p2align 3, 0xbf800000") if False else None
    if FS: stamp2(a,b_)
    E(mx(0)); E(zipl(x1(0), mx(1), 2))
    if FS: stamp2(a,b_+1)
    E(zipl(x1(1), fm(0), 2))
    if FS: stamp2(a,b_+2)
    E(ex(0)); E(sm(0))
    if hook: hook(0)
    if FS: stamp2(a,b_+3)
    E(zipl(x2(0), fm(1), 2)); fin(0)
    if FS: stamp2(a,b_+4)
    if hook: hook(1)
    E(ex(1))
    if hook: hook(2)
    E(sm(1))
    if FS: stamp2(a,b_+5)
    E(zipl(x2(1), fillB, 1))
    if FS: stamp2(a,b_+6)
    fin(1)
    if FS: stamp2(a,b_+7)
    return EP, EM
def corrT(a, c0, CS, B):
    for g in range(4):
        s=g&1
        for i in range(0,8,2):
            r=acc(g,c0)+i
            a(f"v_pk_fma_f32 {R(r,2)}, {R(ML[g],2)}, {R(CS+i,2)}, {R(r,2)} op_sel_hi:[0,1,1] neg_lo:[1,0,0] neg_hi:[1,0,0]")
        for i in range(4): a(f"v_cvt_pk_bf16_f32 v{B+4*g+i}, v{acc(g,c0)+2*i}, v{acc(g,c0)+2*i+1}")

def ln_code(a):
    X=104; WR=120; S1=192; S2=196; S3=200; S4=204
    a(f"L_ln:\ns_lshl_b32 s3, s38, 12\ns_add_u32 s3, s3, {L_STG}\nv_lshlrev_b32 v2, 4, v1\nv_add_u32 v3, s3, v2\nv_add_u32 v2, {L_WR}, v2\ns_barrier")
    for i in range(2): a(f"ds_read_b128 {R(WR+4*i,4)}, v2 offset:{1024*i}")
    for i in range(4): a(f"ds_read_b128 {R(X+4*i,4)}, v3 offset:{1024*i}")
    stamp(a,3)
    a("v_mov_b32 v2, 0x3f803f80")
    for v in (S1,S2,S3,S4): a(f"v_mov_b32 v{v}, 0\nv_mov_b32 v{v+2}, 0")
    a("s_waitcnt lgkmcnt(2)")
    for r in range(2):
        if r: a("s_waitcnt lgkmcnt(0)")
        for d in range(8):
            x=X+8*r+d
            a(f"v_dot2c_f32_bf16 v{S1+2*r}, v{x}, v2\nv_dot2c_f32_bf16 v{S2+2*r}, v{x}, v{x}\nv_dot2c_f32_bf16 v{S3+2*r}, v{x}, v{WR+d}")
            a(f"v_dot2c_f32_bf16 v{S4+2*r}, v{WR+d}, v2")
    regs=[S1,S2,S3,S4]
    for v in regs: a(f"v_permlane32_swap_b32 v{v}, v{v+2}")
    for v in regs: a(f"v_add_f32 v{v}, v{v}, v{v+2}")
    for m in ("quad_perm:[1,0,3,2]", "quad_perm:[2,3,0,1]", "row_half_mirror", "row_mirror"):
        for v in regs: a(f"v_add_f32 v{v}, v{v}, v{v} {m} {DPPM}")
    for v in regs: a(f"v_mov_b32 v{v+1}, v{v}")
    for v in regs: a(f"v_permlane16_swap_b32 v{v}, v{v+1}")
    for v in regs: a(f"v_add_f32 v{v}, v{v}, v{v+1}")
    a(f"v_mul_f32 v{S1}, 0x3a800000, v{S1}\nv_mul_f32 v{S2}, 0x3a800000, v{S2}")
    rne(a, S1+1, S1)
    a(f"v_fma_f32 v{S2}, -v{S1}, v{S1}, v{S2}\nv_max_f32 v{S2}, 0, v{S2}\nv_fma_f32 v{S3}, -v{S1+1}, v{S4}, v{S3}\ns_waitcnt vmcnt(0)")
    rne(a, S2, S2)
    a(f"v_add_f32 v{S2}, 0x3727c5ac, v{S2}")
    rne(a, S2, S2)
    a(f"v_sqrt_f32 v{S2}, v{S2}")
    rne(a, S2, S2)
    a(f"v_rcp_f32 v2, v{S2}\nv_lshrrev_b32 v3, 16, v{S1+1}\nv_or_b32 v4, v3, v{S2}\nv_mul_f32 v{S3}, v{S3}, v2")
    rne(a, S3, S3)
    a(f"v_ashrrev_i32 v2, 31, v{S3}\nv_or_b32 v2, 0x80000000, v2\nv_xor_b32 v2, v{S3}, v2\nv_and_b32 v2, 0xffff0000, v2")
    a(f"v_lshrrev_b32 v3, 5, v1\nv_add_u32 v5, s69, v3\nv_sub_u32 v5, 2047, v5\nv_or_b32 v6, v2, v5\nv_mov_b32 v2, v6\nv_mov_b32 v5, v4\nv_add_u32 v7, 1, v248\nv_mov_b32 v3, 0\nv_readfirstlane_b32 s86, v7")
    a(f"v_permlane32_swap_b32 v6, v2\nv_permlane32_swap_b32 v4, v5\nv_max_u32 v6, v6, v2\ns_lshl_b32 s3, s69, 3")
    a(f"s_mov_b64 exec, 1\nbuffer_store_dwordx4 v[4:7], v3, s[{SWS}:{SWS+3}], s3 offen sc1\ns_mov_b64 exec, -1")
    stamp(a,4)
    a("s_branch L_lnr")

def c_wo(a, pos):
    for w in PLC.get(pos,[]):
        c=int(w[1])
        a(f"s_add_u32 m0, s72, {c*16384}\ns_add_u32 s3, s73, {c*262144}")
        for e in range(4): a(f"buffer_load_dwordx4 v{216+e}, s[88:91], s3 offen offset:{e*1024} lds")
def c_waves(a):
    a("L_C:")
    a("s_and_b32 s64, s38, 1\ns_lshr_b32 s65, s38, 1")
    F=[104,144]; vA=184; vW=186
    a("v_and_b32 v3, 15, v1\nv_lshlrev_b32 v3, 7, v3\ns_lshl_b32 s3, s64, 13\nv_add_u32 v3, s3, v3\nv_bfe_u32 v5, v1, 1, 3\nv_lshrrev_b32 v6, 4, v1\nv_xor_b32 v6, v6, v5")
    a(f"v_lshl_add_u32 v{vA}, v6, 4, v3\nv_xor_b32 v{vA+1}, 64, v{vA}")
    a("v_lshrrev_b32 v6, 4, v1\nv_lshlrev_b32 v6, 3, v6\nv_bfe_u32 v7, v1, 2, 2\nv_add_u32 v6, v6, v7\nv_lshlrev_b32 v6, 7, v6\nv_and_b32 v7, 3, v1\nv_lshl_add_u32 v6, v7, 3, v6\nv_add_u32 v6, 16384, v6")
    a("v_bfe_u32 v7, v1, 3, 2\ns_lshl_b32 s3, s65, 1\nv_xor_b32 v7, s3, v7")
    a(f"v_lshl_add_u32 v{vW}, v7, 5, v6\nv_xor_b32 v{vW+1}, 32, v{vW}")
    for i in range(4): a(f"v_add_u32 v{vA+4+i}, {2*SLOT}, v{vA+i}")
    a("s_waitcnt lgkmcnt(0)")
    srd(a, SWS, 26, WS_SIZE); srd(a, SX, 4, 2048*2048); srd(a, 88, 10, 1024*1024*2)
    a(f"s_lshl_b32 s3, s36, 7\ns_lshl_b32 s28, s37, 3\ns_add_u32 s3, s3, s28\ns_lshl_b32 s28, s38, 1\ns_add_u32 s69, s3, s28\nv_lshlrev_b32 v2, 4, v1\nv_mov_b32 v248, {WS_EPO}")
    for i in range(4): a(f"v_mov_b32 v{4+i}, -1")
    a(f"s_lshl_b32 s28, s2, 2\ns_add_u32 s28, s28, s38\ns_lshl_b32 s28, s28, 10\ns_add_u32 s28, s28, {WS_FILL}")
    a(f"buffer_store_dwordx4 v[4:7], v2, s[{SWS}:{SWS+3}], s28 offen sc1\nbuffer_load_dword v248, v248, s[{SWS}:{SWS+3}], 0 offen sc1")
    if STAMPS: a(f"v_mov_b32 v{VST-1}, 0\nv_writelane_b32 v{VST}, s96, 0")
    if 'nocpf' not in EXP:
        a("s_getpc_b64 s[92:93]")
        a.raw("L_pc:")
        a("s_sub_u32 s92, s92, L_pc-fused_kernel\ns_subb_u32 s93, s93, 0\ns_lshr_b32 s3, s2, 3\ns_lshl_b32 s3, s3, 2\ns_add_u32 s3, s3, s38\ns_lshl_b32 s3, s3, 8\nv_lshlrev_b32 v2, 7, v1\nv_add_u32 v2, s3, v2\ns_mov_b64 exec, 3")
        a("global_load_dword v249, v2, s[92:93]\ns_mov_b64 exec, -1")
    for i in range(0,96,2): a(f"v_mov_b64 {R(ACC+i,2)}, 0")
    def reads(sl, t2, fs):
        f=F[fs]; L=[]; b=4 if sl==2 else 0; o=SLOT if sl==1 else 0
        L.append(f"ds_read_b128 {R(f,4)}, v{vA+b+t2} offset:{o}")
        for c6 in range(6):
            for u in range(2):
                L.append(f"ds_read_b64_tr_b16 {R(f+16+4*c6+2*u,2)}, v{vW+b+(c6&1)} offset:{o+(32*t2+4*u)*128+(c6>>1)*8192}")
        for g in range(1,4): L.append(f"ds_read_b128 {R(f+4*g,4)}, v{vA+b+t2} offset:{o+g*2048}")
        return L
    def step(fs, rd, order=None):
        f=F[fs]; i=0
        for g,c6 in (order or [(g,c6) for g in range(4) for c6 in range(6)]):
            d=acc(g,c6)
            if c6<4: mfma(a, d, f+16+4*c6, f+4*g, d)
            else: mfma(a, d, f+4*g, f+16+4*c6, d)
            if rd is not None and i<len(rd): a(rd[i])
            i+=1
            if 'rd2' in EXP and rd is not None and i<len(rd) and i%3==0: a(rd[i]); i+=1
    a(f"s_lshl_b32 s3, s38, 2\ns_add_u32 s3, s3, {L_FLG}\nv_mov_b32 v2, s3\nv_mov_b32 v3, 0\nds_write_b32 v2, v3\nds_write_b32 v2, v3 offset:16")
    a("s_mov_b32 s86, 0\ns_mov_b32 s66, 0\ns_setprio 2\ns_waitcnt lgkmcnt(0)")
    stamp(a,1)
    a("s_barrier")
    stamp2(a,8)
    for r in reads(0,0,0): a(r)
    a("s_branch L_cmid")
    a.raw(".p2align 6")
    a("L_cloop:")
    for sl in range(3):
        if sl==0: a("s_cmp_eq_u32 s66, 1\ns_cbranch_scc1 L_ln\nL_lnr:")
        a("s_waitcnt lgkmcnt(0)\ns_barrier")
        step(1, reads(sl,0,0))
        if sl==0: a("L_cmid:")
        a("s_waitcnt lgkmcnt(0)\ns_nop 0")
        step(0, reads(sl,1,1)+(["s_add_u32 s66, s66, 1\ns_cmp_lt_u32 s66, 5"] if sl==2 else []))
    a("s_cbranch_scc1 L_cloop")
    AO=188
    ad = (f"v_and_b32 v2, 15, v1\nv_lshrrev_b32 v3, 4, v1\ns_lshl_b32 s3, s64, 8\ns_add_u32 s3, s3, {L_M}\nv_lshl_add_u32 v{AO}, v2, 2, s3\nv_lshl_add_u32 v{AO+1}, v3, 4, s3\n"
          f"v_lshrrev_b32 v7, 5, v1\nv_lshl_add_u32 v{AO+2}, v7, 6, v{AO}\n"
          f"s_lshl_b32 s3, s65, 7\ns_add_u32 s3, s3, {L_CS}\nv_lshl_add_u32 v{AO+3}, v3, 4, s3\nv_lshl_add_u32 v248, v2, 2, s3\n"
          f"s_lshl_b32 s3, s64, 7\ns_add_u32 s3, s3, {L_SQ}\nv_lshl_add_u32 v249, v3, 4, s3\nv_xor_b32 v253, 128, v249\n"
          f"v_lshrrev_b32 v250, 2, v1\nv_lshlrev_b32 v250, 6, v250\nv_and_b32 v251, 3, v1\nv_lshl_add_u32 v250, v251, 3, v250\ns_lshl_b32 s3, s65, 11\ns_add_u32 s3, s3, {L_PHI}\nv_add_u32 v252, s3, v250\n"
          f"v_bfe_u32 v5, v1, 1, 2\nv_lshlrev_b32 v5, 2, v5\nv_bfe_u32 v4, v1, 3, 1\nv_lshl_add_u32 v5, v4, 1, v5\nv_and_b32 v4, 1, v1\nv_add_u32 v5, v5, v4\nv_xor_b32 v5, v5, v3\n"
          f"s_lshl_b32 s3, s38, 13\ns_add_u32 s3, s3, {L_PHS}\nv_lshl_add_u32 v2, v2, 7, s3\nv_lshl_add_u32 v4, v5, 3, v2\nv_xor_b32 v5, 32, v4\nv_xor_b32 v6, 64, v4\nv_xor_b32 v7, 96, v4\n"
          f"v_bfe_u32 v2, v1, 3, 2\nv_lshlrev_b32 v2, 2, v2\nv_lshrrev_b32 v3, 5, v1\nv_lshl_add_u32 v2, v3, 1, v2\nv_bfe_u32 v3, v1, 2, 1\nv_add_u32 v2, v2, v3\nv_xor_b32 v2, v2, v251\n"
          f"v_lshrrev_b32 v3, 2, v1\nv_lshl_add_u32 v3, v3, 7, s3\nv_lshl_add_u32 v2, v2, 3, v3\ns_lshl_b32 s28, s64, 6\nv_xor_b32 v{vSR[0]}, s28, v2\nv_xor_b32 v{vSR[1]}, 32, v{vSR[0]}\n"
          f"s_lshl_b32 s3, s38, 12\ns_add_u32 s3, s3, {L_STG}\nv_lshlrev_b32 v{vLN}, 4, v1\nv_add_u32 v{vVS}, s3, v{vLN}\n"
          f"s_lshl_b32 s3, s37, 1\ns_add_u32 s67, s3, s65\ns_lshl_b32 s3, s67, 4\ns_add_u32 s3, s3, s36\ns_mul_i32 s3, s3, {KVS}\ns_add_u32 s75, s3, {WS_KVP}\ns_lshl_b32 s3, s64, 11\ns_add_u32 s74, s75, s3\ns_lshl_b32 s3, s64, 6\ns_add_u32 s75, s75, s3\ns_add_u32 s75, s75, 4096\n"
          f"s_lshl_b32 s3, s37, 4\ns_add_u32 s3, s3, s36\ns_lshl_b32 s3, s3, 7\ns_add_u32 s3, s3, {WS_RDY}\nv_mov_b32 v251, s86\ns_cmp_lg_u32 s38, 0\ns_cselect_b32 s76, {WS_SIZE}, s3").split("\n")
    def mix(rd, n):
        out=[]
        for i in range(24):
            t=[rd[i]] if i<len(rd) else []
            for _ in range(n if i<len(rd) else n+1):
                if ad: t.append(ad.pop(0))
            out.append("\n".join(t) if t else "s_nop 0")
        return out
    a("s_nop 0\ns_waitcnt lgkmcnt(0)\ns_barrier")
    step(1, mix(reads(0,0,0),1))
    a("s_waitcnt lgkmcnt(0)\ns_nop 0")
    step(0, mix(reads(0,1,1),1))
    while ad: a(ad.pop(0))
    rd=["s_barrier"]
    for g in (0,2): rd.append(f"ds_read_b32 v{ML[g]}, v{AO} offset:{64*g}\nds_read_b32 v{ML[g+1]}, v{AO} offset:{64*g+64}")
    for c in range(2): rd.append(f"ds_read_b128 {R(CSK+4*c,4)}, v{AO+3} offset:{256+64*c}")
    for ft in range(2):
        for v in range(2): rd.append(f"ds_read_b64_tr_b16 {R(PHI+4*ft+2*v,2)}, v252 offset:{1024*v+32*ft}")
    for g in range(4): rd.append(f"ds_read_b128 {R(MV+4*g,4)}, v{AO+1} offset:{64*g}")
    rd.append(f"ds_read_b32 v{CSV[1]}, v248 offset:576\nds_read_b32 v{CSV[0]}, v248 offset:512")
    for g in range(4): rd.append(f"ds_read_b32 v{CC[g]}, v{AO} offset:{2048+64*g}")
    for h in range(2): rd.append(f"ds_read_b32 v{CCP[h]}, v{AO+2} offset:{2048+128*h}\nds_read_b32 v{RLP[h]}, v{AO+2} offset:{1024+128*h}")
    for ks in range(2): rd.append(f"ds_read_b128 {R(SQF+4*ks,4)}, v249 offset:{64*ks}")
    for c in range(2): rd.append(f"ds_read_b128 {R(CSQ+4*c,4)}, v{AO+3} offset:{64*c}")
    a("s_waitcnt lgkmcnt(0)")
    step(1, rd, [(g,c6) for cs in ((2,3),(4,5),(0,1)) for g in range(4) for c6 in cs])
    a("s_waitcnt lgkmcnt(4)")
    stamp2(a,24)
    BK=232
    corrT(a, 2, CSK, BK)
    VL='vearly' not in EXP
    def vcorr():
        for g in range(4):
            for dt in range(2):
                for i in (0,2):
                    r=acc(g,4+dt)+i
                    a(f"v_pk_fma_f32 {R(r,2)}, {R(MV+4*g+i,2)}, {R(CSV[dt],2)}, {R(r,2)} op_sel_hi:[1,0,1] neg_lo:[1,0,0] neg_hi:[1,0,0]")
        for ks in range(2):
            for dt in range(2):
                d=acc(2*ks,4+dt); e=acc(2*ks+1,4+dt)
                a(f"v_cvt_pk_bf16_f32 v{d}, v{d}, v{d+1}\nv_cvt_pk_bf16_f32 v{d+1}, v{d+2}, v{d+3}\nv_cvt_pk_bf16_f32 v{d+2}, v{e}, v{e+1}\nv_cvt_pk_bf16_f32 v{d+3}, v{e+2}, v{e+3}")
                if not VL: a(f"ds_write_b128 v{vVS}, {R(d,4)} offset:{2048*ks+1024*dt}")
        for ks in range(2): a(f"ds_read_b128 {R(MV+4*ks,4)}, v253 offset:{64*ks}")
    AF=232
    KVt=[144,152,acc(0,2)]
    PA_=128
    def tail(g, pm, Eb):
        for ft in range(2): a(f"ds_write_b64 v{4+2*pm+ft}, {R(Eb+2*ft,2)} offset:{2048*g}")
        if VL and g<2: a(f"ds_write_b128 v{vVS}, {R(acc(2*g,4+pm),4)} offset:{2048*g+1024*pm}")
        if g&1 and pm:
            ks=g>>1
            for ft in range(2):
                for v in range(2): a(f"ds_read_b64_tr_b16 {R(AF+8*ks+4*ft+2*v,2)}, v{vSR[ft]} offset:{4096*ks+2048*v}")
    def kvm(k4):
        ks=k4&1; own=k4<2; L=[]
        for dt in range(3):
            for ft in range(2):
                d=KVt[dt]+4*ft
                Bo=(acc(2*ks+(0 if own else 1),4+dt) if dt<2 else (SQF if own else MV)+4*ks)
                L.append(f"v_mfma_f32_16x16x32_bf16 {R(d,4)}, {R((AF if own else PA_)+8*ks+4*ft,4)}, {R(Bo,4)}, {R(d,4) if k4 else '0'}")
        return L
    k0=kvm(0); k0[0]="s_waitcnt lgkmcnt(0)\ns_nop 0\n"+k0[0]
    CH=opt('ch',2)
    def hook(k):
        if k==CH: a(f"s_mov_b64 exec, 1\nbuffer_store_dword v251, v{vLN}, s[{SWS}:{SWS+3}], s76 offen sc1\ns_mov_b64 exec, -1")
    EP,EM = feature(a, BK, 2, True, mid1=vcorr, tail=tail, fillB=k0, hook=hook)
    stamp(a,34)
    a(f"v_xor_b32 v{vSR[0]}, 0x2000, v{vSR[0]}\nv_xor_b32 v{vSR[1]}, 0x2000, v{vSR[1]}\nv_xor_b32 v{vVS}, 0x1000, v{vVS}\ns_waitcnt lgkmcnt(4)\ns_barrier")
    for ks in range(2):
        for ft in range(2):
            for v in range(2): a(f"ds_read_b64_tr_b16 {R(PA_+8*ks+4*ft+2*v,2)}, v{vSR[ft]} offset:{4096*ks+2048*v}")
        for dt in range(2): a(f"ds_read_b128 {R(acc(2*ks+1,4+dt),4)}, v{vVS} offset:{2048*ks+1024*dt}")
    for k4 in range(1,4):
        a(f"s_waitcnt lgkmcnt({(12,6,0)[k4-1]})")
        for x in kvm(k4): a(x)
    stamp(a,33)
    for ft in range(2):
        for v in range(2): a(f"ds_read_b64_tr_b16 {R(PHI+4*ft+2*v,2)}, v252 offset:{L_PHQ-L_PHI+1024*v+32*ft}")
    a(f"s_xor_b32 s67, s67, {2*QX}\ns_lshl_b32 s3, s38, 2\ns_add_u32 s3, s3, {L_FLG}\nv_mov_b32 v4, s3\nv_mov_b32 v5, 1")
    for j in range(3):
        b=KVt[j]
        for i in range(4): a(f"v_cvt_pk_bf16_f32 v{b+i}, v{b+2*i}, v{b+2*i+1}")
        if j<2: a(f"buffer_store_dwordx4 {R(b,4)}, v{vLN}, s[{SWS}:{SWS+3}], s74 offen offset:{1024*j} sc1")
    a("s_mov_b32 exec_lo, 0x00010001\ns_mov_b32 exec_hi, 0x00010001")
    a(f"buffer_store_dwordx4 {R(KVt[2],4)}, v1, s[{SWS}:{SWS+3}], s75 offen sc1\ns_mov_b64 exec, -1\nds_write_b32 v4, v5")
    stamp(a,25)
    a("s_setprio 0")
    corrT(a, 0, CSQ, BK)
    a("s_waitcnt lgkmcnt(1)")
    EP,EM = feature(a, BK, 0, False)
    stamp(a,26)
    KF=104; ZF=120
    xaddr(a, 4); xload(a, 4)
    key_rd(a, 248)
    a("v_lshrrev_b32 v5, 3, v1\nv_lshlrev_b32 v6, 11, v5\nv_bfe_u32 v5, v1, 4, 2\nv_lshlrev_b32 v5, 1, v5\nv_and_b32 v7, 7, v1\nv_xor_b32 v5, v5, v7\nv_lshl_add_u32 v6, v5, 4, v6\ns_lshl_b32 s3, s35, 7\nv_add_u32 v6, s3, v6")
    for e in range(4): a(f"v_add_u32 v{216+e}, {e*15360}, v6")
    a("s_lshl_b32 s72, s38, 12\ns_lshl_b32 s73, s38, 16")
    stat3(a, 193, 192)
    a(f"s_mul_i32 s76, s67, {KVS}\ns_add_u32 s76, s76, {WS_KVR}\nv_lshlrev_b32 v5, 4, v1\nv_and_b32 v6, 48, v1\nv_add_u32 v6, 4096, v6")
    a(f"s_lshl_b32 s3, s38, 2\ns_add_u32 s3, s3, {L_FLG}\nv_mov_b32 v3, s3\nL_gw:\nds_read_b32 v2, v3\ns_waitcnt lgkmcnt(0)\nv_readfirstlane_b32 s3, v2\ns_cmp_eq_u32 s3, 3\ns_cbranch_scc1 L_gk\ns_sleep 1\ns_branch L_gw\nL_gk:")
    stamp(a,35)
    if opt('h2d',6): a(f"s_sleep {opt('h2d',6)}")
    def ld_h2():
        for j in range(4): a(f"buffer_load_dwordx4 {R(KF+4*j,4)}, v5, s[{SWS}:{SWS+3}], s76 offen offset:{1024*j} sc1")
        for pm in range(2): a(f"buffer_load_dwordx4 {R(ZF+4*pm,4)}, v6, s[{SWS}:{SWS+3}], s76 offen offset:{64*pm} sc1")
    ld_h2()
    key_fin(a, 248)
    a(f"s_lshl_b32 s3, s36, 3\ns_lshl_b32 s28, s64, 2\ns_add_u32 s3, s3, s28\ns_lshl_b32 s3, s3, 5\ns_add_u32 s3, s3, s67\ns_lshl_b32 s77, s3, 10\ns_add_u32 s77, s77, {WS_O}")
    a("s_waitcnt vmcnt(0)")
    stamp(a,36)
    checked(a, "L_k7", range(KF,KF+24), ld_h2)
    a("s_setprio 2")
    c_wo(a,'c2')
    stamp(a,27)
    for g in range(4):
        N=acc(g,2)
        for pm,Eb in ((0,EP[g]),(1,EM[g])):
            mfma(a, N+8, ZF+4*pm, Eb, N+8 if pm else None)
            for dt in range(2): mfma(a, N+4*dt, KF+8*pm+4*dt, Eb, N+4*dt if pm else None)
    for g in range(4): a(f"v_add_f32 v{acc(g,2)+8}, 0x358637bd, v{acc(g,2)+8}")
    for g in range(4): a(f"v_rcp_f32 v{acc(g,2)+8}, v{acc(g,2)+8}")
    for g in range(4):
        N=acc(g,2)
        for i in range(0,8,2): a(f"v_pk_mul_f32 {R(N+i,2)}, {R(N+i,2)}, {R(N+8,2)} op_sel_hi:[1,0]")
        for i in range(4): a(f"v_cvt_pk_bf16_f32 v{N+i}, v{N+2*i}, v{N+2*i+1}")
        a(f"buffer_store_dwordx4 {R(N,4)}, v5, s[{SWS}:{SWS+3}], s77 offen sc1")
        if g<3: a("s_add_u32 s77, s77, 32768")
    a(f"v_mov_b32 v2, 7\nds_write_b32 v3, v2\ns_and_b32 s3, s68, 127\ns_lshl_b32 s3, s3, 2\ns_add_u32 s3, s3, {L_M+512}\nv_mov_b32 v2, s3\nds_read_b32 v250, v2\nds_read_b32 v251, v2 offset:1024")
    stamp(a,28)
    a("s_setprio 0")
    if 'sfirst' in EXP: silu_prep(a, PG, PX, 193, 192, 196)
    wait7(a, "L_cw")
    c_wo(a,'co')
    if 'sfirst' not in EXP: silu_prep(a, PG, PX, 193, 192, 196)
    if opt('cpd',0): a(f"s_sleep {opt('cpd',0)}")
    stamp(a,29)

def p3(a):
    a("L_p3:")
    a.pad(4)
    D=opt('d3',4)
    PA=8; PB=40; PW=PB+8*D; vW=PW+32; vB=vW+4
    srd(a, SB, 22, 2048*2048)
    a(f"s_lshr_b32 s64, s39, 2\ns_lshl_b32 s3, s34, 2\ns_add_u32 s3, s3, s38\ns_lshl_b32 s3, s3, 16\ns_lshl_b32 s28, s64, 14\ns_add_u32 s3, s3, s28\ns_add_u32 s76, s3, {WS_O}")
    a(f"s_lshl_b32 s3, s64, 15\nv_lshlrev_b32 v2, 4, v1\nv_add_u32 v{vB}, s3, v2\nv_xor_b32 v{vB+1}, 0x8000, v{vB}")
    a(f"v_lshrrev_b32 v2, 2, v1\nv_lshlrev_b32 v2, 7, v2\nv_bfe_u32 v3, v1, 3, 2\nv_lshl_add_u32 v2, v3, 5, v2\nv_and_b32 v3, 3, v1\nv_lshl_add_u32 v2, v3, 3, v2\ns_lshl_b32 s3, s64, 16\nv_add_u32 v{vW}, s3, v2")
    for ct in range(1,4): a(f"v_xor_b32 v{vW+ct}, {32*ct}, v{vW}")
    def ld(j):
        b=PB+8*(j%D)
        if j%4==0: a(f"s_add_u32 s77, s76, {j*1024}")
        for e in range(2): a(f"buffer_load_dwordx4 {R(b+4*e,4)}, v{vB+e}, s[{SWS}:{SWS+3}], s77 offen offset:{(j%4)*1024} sc1")
    def wr(j):
        b=PW+16*(j%2)
        return [f"ds_read_b64_tr_b16 {R(b+4*ct+2*v,2)}, v{vW+ct} offset:{j*4096+v*2048}" for ct in range(4) for v in range(2)]
    for j in range(D-1): ld(j)
    stamp(a,30)
    a(f"s_lshr_b32 s3, s68, 7\ns_xor_b32 s83, s3, s34\ns_or_b32 s83, s83, s39")
    YL=128; IS=250
    def ld_y():
        for j in range(16):
            if j%4==0: a(f"s_add_u32 s3, s78, {j*1024}")
            a(f"buffer_load_dwordx4 {R(YL+4*j,4)}, v192, s[{SWS}:{SWS+3}], s3 offen offset:{(j%4)*1024} sc1")
    def fix1():
        a(f"L_fx1:\nv_lshlrev_b32 v192, 4, v1\ns_lshl_b32 s78, s35, 14\ns_add_u32 s78, s78, {WS_Y}")
        a(f"v_and_b32 v2, 15, v1\nv_lshrrev_b32 v3, 4, v1\nv_lshl_add_u32 v193, v2, 2, v3\nv_and_b32 v2, 7, v193\nv_lshrrev_b32 v193, 3, v193\nv_lshl_add_u32 v193, v2, 3, v193\nv_lshlrev_b32 v2, 1, v193\ns_lshl_b32 s3, s68, 11\ns_lshl_b32 s28, s35, 7\ns_add_u32 s3, s3, s28\nbuffer_load_ushort v194, v2, s[{SX}:{SX+3}], s3 offen")
        ld_y()
        a("s_branch L_fx1r")
    def fix2():
        a("L_fx2:\ns_and_b32 s3, s70, 0xffff0000\ns_xor_b32 s28, s3, 0x80000000\ns_not_b32 s29, s3\ns_and_b32 s29, s29, 0xffff0000\ns_bitcmp1_b32 s3, 31\ns_cselect_b32 s3, s28, s29")
        a(f"v_mov_b32 v195, s3\nv_mul_f32 v195, 0xbfb8aa3b, v195\nv_exp_f32 v195, v195\nv_add_f32 v195, 1.0, v195\nv_rcp_f32 v195, v195")
        rne(a,195,195)
        checked(a, "L_k6", range(YL,YL+64), ld_y, sleep=4)
        for k in (8,4,2,1):
            for i in range(0,4*k,2): a(f"v_pk_add_f32 {R(YL+i,2)}, {R(YL+i,2)}, {R(YL+4*k+i,2)}")
        for i in range(2): a(f"v_permlane32_swap_b32 v{YL+i}, v{YL+2+i}")
        for i in range(2): a(f"v_add_f32 v{YL+i}, v{YL+i}, v{YL+2+i}")
        a(f"v_permlane16_swap_b32 v{YL}, v{YL+1}\nv_add_f32 v{YL}, v{YL}, v{YL+1}")
        rne(a,YL,YL)
        a(f"v_mul_f32 v{YL}, v{YL}, v195\nv_lshlrev_b32 v194, 16, v194\nv_sub_f32 v194, v194, v{IS}")
        rne(a,YL,YL); rne(a,194,194)
        a(f"v_mul_f32 v194, v194, v{IS+1}")
        rne(a,194,194)
        a(f"v_add_f32 v{YL}, v{YL}, v194")
        rne(a,YL,YL)
        a(f"v_mul_f32 v2, 0xbfb8aa3b, v{YL}\nv_exp_f32 v2, v2\nv_add_f32 v2, 1.0, v2\nv_rcp_f32 v2, v2\nv_mul_f32 v2, v{YL}, v2\nv_lshlrev_b32 v3, 2, v193\nds_write_b32 v3, v2\ns_branch L_fx2r")
    for r in wr(0): a(r)
    a("s_mov_b32 s29, 0")
    for j in range(16):
        b=PB+8*(j%D); w=PW+16*(j%2)
        if j+D-1<16: ld(j+D-1)
        a(f"s_waitcnt vmcnt({2*min(D-1,15-j)})")
        if j==opt('fxj',14): a("s_cmp_eq_u32 s83, 0\ns_cbranch_scc1 L_fx1\nL_fx1r:")
        a(f"L_c{j}:")
        maxu(a, 2, range(b,b+8))
        a(f"v_cmp_eq_u32 vcc, -1, v2\ns_cbranch_vccnz L_r{j}\nL_g{j}:\ns_waitcnt lgkmcnt(0)")
        if j in (3,7): a(f"s_cmp_eq_u32 s64, {0 if j==3 else 1}\ns_cbranch_scc1 L_nb{j}\ns_barrier\nL_nb{j}:")
        rd = wr(j+1) if j<15 else []
        i=0
        for ct in range(4):
            for e in range(2):
                d=PA+16*e+4*ct
                mfma(a, d, w+4*ct, b+4*e, d if j else None)
                if rd: a(rd[i])
                i+=1
    stamp(a,31)
    if STAMPS: a(f"v_writelane_b32 v{VST-1}, s29, 58")
    a("s_cmp_eq_u32 s83, 0\ns_cbranch_scc1 L_fx2\nL_fx2r:")
    a(f"s_lshl_b32 s3, s39, 12\ns_add_u32 s3, s3, {L_STG}\nv_lshlrev_b32 v2, 4, v1\nv_add_u32 v2, s3, v2\nv_xor_b32 v3, 0x4000, v2\ns_xor_b32 s28, s3, 0x4000")
    for ct in range(4): a(f"ds_write_b128 v2, {R(PA+16+4*ct,4)} offset:{1024*ct}")
    XF=40
    for d in range(8): unpack(a, XF+2*d, PX+d)
    a(f"v_and_b32 v4, 15, v1\nv_lshrrev_b32 v5, 4, v1\nv_lshlrev_b32 v6, 1, v4\nv_and_b32 v6, 14, v6\nv_xor_b32 v5, v5, v6\nv_lshl_add_u32 v4, v4, 7, s28\nv_lshl_add_u32 v4, v5, 3, v4")
    a(f"v_lshrrev_b32 v5, 3, v1\nv_and_b32 v6, 7, v1\nv_xor_b32 v7, v6, v5\nv_lshl_add_u32 v7, v7, 4, s28\nv_lshl_add_u32 v7, v5, 7, v7")
    a(f"s_lshl_b32 s3, s34, 7\ns_add_u32 s3, s3, s69\nv_add_u32 v5, s3, v5\nv_lshlrev_b32 v5, 11, v5\nv_lshl_add_u32 v5, v6, 4, v5\ns_lshl_b32 s3, s35, 7\ns_add_u32 s28, s3, 16384")
    a(f"s_lshl_b32 s29, s34, 7\ns_add_u32 s29, s29, s69\ns_andn2_b32 s77, s68, 15\ns_cmp_lg_u32 s29, s77")
    a("s_waitcnt lgkmcnt(0)\ns_barrier")
    a(f"s_cbranch_scc1 L_nov\nv_and_b32 v2, 48, v1\ns_and_b32 s29, s68, 15\ns_lshl_b32 exec_lo, 0x00010001, s29\ns_mov_b32 exec_hi, exec_lo")
    for ct in range(4): a(f"ds_read_b128 {R(PG+4*ct,4)}, v2 offset:{64*ct}")
    a("s_mov_b64 exec, -1\nL_nov:")
    for ct in range(4): a(f"ds_read_b128 {R(PA+16+4*ct,4)}, v3 offset:{1024*ct}")
    for ct in range(4):
        a(f"s_waitcnt lgkmcnt({3-ct})")
        for i in (0,2): a(f"v_pk_add_f32 {R(PA+4*ct+i,2)}, {R(PA+4*ct+i,2)}, {R(PA+16+4*ct+i,2)}")
        for i in (0,2): a(f"v_pk_fma_f32 {R(XF+4*ct+i,2)}, {R(PA+4*ct+i,2)}, {R(PG+4*ct+i,2)}, {R(XF+4*ct+i,2)}")
        for i in (0,1): a(f"v_cvt_pk_bf16_f32 v{PA+2*ct+i}, v{XF+4*ct+2*i}, v{XF+4*ct+2*i+1}")
    for ct in range(4):
        if ct: a(f"v_xor_b32 v6, {32*ct}, v4")
        a(f"ds_write_b64 v{6 if ct else 4}, {R(PA+2*ct,2)}")
    for e in range(2): a(f"ds_read_b128 {R(PA+16+4*e,4)}, v7 offset:{1024*e}")
    OM = '' if 'outplain' in EXP else ' sc1' if 'outsc1' in EXP else ' sc0 sc1 nt' if 'outall' in EXP else ' nt'
    for e in range(2):
        a(f"s_waitcnt lgkmcnt({1-e})\nbuffer_store_dwordx4 {R(PA+16+4*e,4)}, v5, s[{SB}:{SB+3}], s{28 if e else 3} offen{OM}")
    if STAMPS: a("s_waitcnt vmcnt(0)")
    stamp(a,32)
    dump(a)
    if LEAK>=0: a("s_memrealtime s[98:99]\ns_waitcnt lgkmcnt(0)\ns_sub_u32 s94, s94, s96\ns_add_u32 s94, s94, s98\nL_lk:\ns_sleep 1\ns_memrealtime s[98:99]\ns_waitcnt lgkmcnt(0)\ns_cmp_lt_u32 s98, s94\ns_cbranch_scc1 L_lk")
    a("L_done:\ns_endpgm")
    ln_code(a); fix1(); fix2()
    for j in range(16):
        b=PB+8*(j%D)
        a(f"L_r{j}:\ns_add_u32 s29, s29, 1\ns_cmp_ge_u32 s29, {SPIN}\ns_cbranch_scc1 L_g{j}\ns_add_u32 s3, s76, {j*1024}")
        for e in range(2): a(f"buffer_load_dwordx4 {R(b+4*e,4)}, v{vB+e}, s[{SWS}:{SWS+3}], s3 offen sc1")
        a(f"s_waitcnt vmcnt(0)\ns_branch L_c{j}")

def kern(a):
    kernel_header(a, "fused_kernel")
    a("s_cmp_ge_u32 s2, 256\ns_cbranch_scc1 L_done")
    a("s_load_dwordx16 s[4:19], s[0:1], 0\ns_load_dwordx8 s[20:27], s[0:1], 64")
    if STAMPS or LEAK>=0: a("s_memrealtime s[96:97]\ns_memrealtime s[94:95]")
    a("v_and_b32 v1, 63, v0\nv_lshrrev_b32 v2, 6, v0")
    a("v_readfirstlane_b32 s39, v2")
    a("s_and_b32 s34, s2, 1\ns_lshl_b32 s34, s34, 3\ns_bfe_u32 s3, s2, 0x30003\ns_add_u32 s36, s34, s3")
    a("s_bfe_u32 s37, s2, 0x20001\ns_lshl_b32 s37, s37, 2\ns_lshr_b32 s28, s2, 6\ns_add_u32 s37, s37, s28")
    if ARR==2: a("s_and_b32 s3, s3, 1\ns_add_u32 s34, s34, s3\ns_and_b32 s3, s2, 6\ns_add_u32 s34, s34, s3\ns_lshr_b32 s35, s2, 4")
    if ARR==4: a("s_and_b32 s3, s3, 3\ns_add_u32 s34, s34, s3\ns_and_b32 s3, s37, 4\ns_add_u32 s34, s34, s3\ns_lshr_b32 s35, s2, 5\ns_and_b32 s3, s37, 8\ns_add_u32 s35, s35, s3")
    if ARR==8: a("s_mov_b32 s34, s36\ns_xor_b32 s35, s37, 1")
    a("s_and_b32 s38, s39, 3")
    a("s_cmp_lt_u32 s39, 4\ns_cbranch_scc1 L_C")
    h_waves(a)
    c_waves(a)
    p3(a)
    return kernel_desc("fused_kernel", 256, 102)

if __name__ == "__main__":
    a=Asm()
    head = open('/code/%s.s.ref'%NAME).read().split('\n')
    hdr = [l for l in head if l.startswith(';') and '@launch' not in l and 'Override launch' not in l and 'grid=ceil' not in l]
    out='\n'.join(hdr)+"\n; @launch kernel=fused_kernel grid=(256,1,1) block=(512,1,1) lds=163840\n"
    out+='.amdgcn_target "amdgcn-amd-amdhsa--gfx950"\n.text\n'
    d=kern(a)
    if 'noal' not in EXP:
        import align
        a.lines,nw,nn = align.align(a.lines, '.amdgcn_target "amdgcn-amd-amdhsa--gfx950"\n.text\n')
    out+=a.text()+".p2align 8\n.fill 4096, 4, 0xbf800000\n"+'.section .rodata,"a"\n.p2align 6\n'+d
    if 'official' in EXP:
        out = out.replace("; @launch kernel=fused_kernel grid=", "; @launch grid=").replace("fused_kernel", NAME+"_kernel")
    open(sys.argv[1],"w").write(out)
```

```python
import sys, os
from asmgen import Asm, kernel_header, kernel_desc
NAME = "recurrent_scan__linear_kernel_hedgehog__moe_arch_mod__prompt"
EXP = os.environ.get('EXP','').split(',')
STAMPS = 'st' in EXP
def opt(name, default):
    for e in EXP:
        if e.startswith(name+'='): return int(e.split('=')[1])
    return default
WS_SIZE = 0x10000000
WS_REC  = 0x000000
WS_EPO  = 0x004000
WS_RDY  = 0x008000
KVS     = 4224
WS_FILL = 0x100000
WS_CSP  = WS_FILL
WS_KVR  = WS_CSP + 256*768
WS_GU   = WS_KVR + 32*KVS
WS_Y    = WS_GU + 16*3584*4
assert WS_Y + 16*64*256 <= WS_FILL + 0x100000
WS_O    = 0x400000
WS_KVP  = 0x800000
WS_DBG  = 0x3000000
SLOT = 40960
L_PHS  = 98304
L_WR   = 122880
L_STG  = 131072
LM     = 147456
L_PHI  = LM+256
L_M    = LM+4096+512
L_R    = L_M+1024
L_RC   = L_R+1024
L_SQ   = L_RC+512
L_CS   = L_SQ+256
L_PHQ  = LM+8192+256
L_KEY  = LM+8192+256+6144
L_FLG  = L_KEY+64
assert L_CS+768 <= LM+8192 and L_FLG+32 <= 163840
NT = opt('nt',1)
PLC = {}
for it_ in os.environ.get('PLC','i0:k0,k1,k2;i1:o0;i3:a0;i4:a1;i5:o1,o2;i8:o3;i11:b0;i12:b1;i13:p,t;j14:g0;x0:w0,w1,w4,y,g1;x2:g2;h1s:w5,w2;co:w3,w6,w7').split(';'):
    PLC.setdefault(it_.split(':')[0],[]).extend(it_.split(':')[1].split(','))
FNT = '' if 'fplain' in EXP else ' nt'
TNT = ' nt' if 'tnt' in EXP else ''
ARR = opt('arr',8)
QX = opt('qx',4)
LNP = 3
DPPM = "row_mask:0xf bank_mask:0xf"
LOG2E = 0x3fb8aa3b
SPIN = 200000
SX, SW, SWS, SA, SB, SC = 40, 44, 48, 52, 56, 60
VST = 255
LNX = 192

def srd(a, d, base, size):
    a(f"s_mov_b32 s{d}, s{base}\ns_mov_b32 s{d+1}, s{base+1}\ns_mov_b32 s{d+2}, {size}\ns_mov_b32 s{d+3}, 0x00020000")
LEAK = opt('leak',-1)
def stamp(a, i):
    if i==LEAK: a("s_memrealtime s[94:95]")
    if STAMPS: a(f"s_memrealtime s[100:101]\ns_waitcnt lgkmcnt(0)\nv_writelane_b32 v{VST}, s100, {i}")
def stamp2(a, i):
    if i==LEAK: a("s_memrealtime s[94:95]")
    if STAMPS: a(f"s_memrealtime s[100:101]\ns_memtime s[98:99]\ns_waitcnt lgkmcnt(0)\nv_writelane_b32 v{VST}, s100, {i}\nv_writelane_b32 v{VST-1}, s98, {i}")
def dump(a):
    if STAMPS: a(f"s_lshl_b32 s3, s2, 3\ns_add_u32 s3, s3, s39\ns_lshl_b32 s3, s3, 9\ns_add_u32 s3, s3, {WS_DBG}\nv_lshlrev_b32 v2, 3, v1\nbuffer_store_dwordx2 v[{VST-1}:{VST}], v2, s[{SWS}:{SWS+3}], s3 offen")
def rne(a, dst, src):
    a(f"v_cvt_pk_bf16_f32 v{dst}, v{src}, v{src}\nv_lshlrev_b32 v{dst}, 16, v{dst}")
def R(b, n): return f"v[{b}:{b+n-1}]"
def unpack(a, dst, src):
    a(f"v_lshlrev_b32 v{dst}, 16, v{src}\nv_and_b32 v{dst+1}, 0xffff0000, v{src}")
def mfma(a, d, A, B, c=None):
    a(f"v_mfma_f32_16x16x32_bf16 {R(d,4)}, {R(A,4)}, {R(B,4)}, {'0' if c is None else R(c,4)}")

class CAsm(Asm):
    cap=None
    def __call__(self, text):
        if self.cap is not None: self.cap += [t for t in text.strip().split('\n') if t.strip()]
        else: super().__call__(text)
    def capture(self, f):
        self.cap=[]; f(); r=self.cap; self.cap=None; return r

class VM:
    def __init__(self, a, nt=1): self.a=a; self.nt=nt; self.q=[[] for _ in range(nt)]; self.only=None; self.nl=0
    def issue(self, tag, n=1):
        for c in range(self.nt):
            if self.only is None or c in self.only: self.q[c] += [tag]*n
    def wait(self, tag):
        need={}
        for c in range(self.nt):
            q=self.q[c]
            if tag in q and (self.only is None or c in self.only):
                idx=max(i for i,t in enumerate(q) if t==tag); need[c]=len(q)-1-idx; self.q[c]=q[idx+1:]
        if not need: return
        allc=[c for c in range(self.nt) if self.only is None or c in self.only]
        base=max(need.values()) if len(need)==len(allc) else None
        if base is not None: self.a(f"s_waitcnt vmcnt({min(base,63)})")
        for c,n in need.items():
            if n!=base:
                self.nl+=1
                self.a(f"s_cmp_lg_u32 s85, {c}\ns_cbranch_scc1 L_vw{self.nl}\ns_waitcnt vmcnt({min(n,63)})\nL_vw{self.nl}:")
    def drain(self): self.a("s_waitcnt vmcnt(0)"); self.q=[[] for _ in range(self.nt)]
    def cond(self, classes, f):
        classes=set(classes)
        if not classes: return
        if len(classes)==self.nt: f(); return
        self.nl+=1; l=f"L_vc{self.nl}"
        if len(classes)==1: self.a(f"s_cmp_lg_u32 s85, {list(classes)[0]}\ns_cbranch_scc1 {l}")
        else:
            for c in set(range(self.nt))-classes: self.a(f"s_cmp_eq_u32 s85, {c}\ns_cbranch_scc1 {l}")
        self.only=classes; f(); self.only=None
        self.a(f"{l}:")

def maxu(a, dst, regs):
    regs=list(regs)
    if len(regs)==1: a(f"v_mov_b32 v{dst}, v{regs[0]}"); return
    if len(regs)==2: a(f"v_max_u32 v{dst}, v{regs[0]}, v{regs[1]}"); return
    a(f"v_max3_u32 v{dst}, v{regs[0]}, v{regs[1]}, v{regs[2]}"); regs=regs[3:]
    while len(regs)>=2: a(f"v_max3_u32 v{dst}, v{dst}, v{regs[0]}, v{regs[1]}"); regs=regs[2:]
    if regs: a(f"v_max_u32 v{dst}, v{dst}, v{regs[0]}")

def checked(a, lbl, regs, reload, t=2, sleep=1):
    a(f"s_mov_b32 s29, 0\n{lbl}:")
    maxu(a, t, regs)
    a(f"v_cmp_eq_u32 vcc, -1, v{t}\ns_cbranch_vccz {lbl}k\ns_add_u32 s29, s29, 1\ns_cmp_ge_u32 s29, {SPIN}\ns_cbranch_scc1 {lbl}k")
    if sleep: a(f"s_sleep {sleep}")
    reload()
    a(f"s_waitcnt vmcnt(0)\ns_branch {lbl}\n{lbl}k:")
    if STAMPS: a(f"v_writelane_b32 v{VST-1}, s29, {50+int(lbl[3:])}")

def red8(a, e):
    for i in range(4): a(f"v_permlane32_swap_b32 v{e+i}, v{e+4+i}")
    for i in range(4): a(f"v_add_f32 v{e+i}, v{e+i}, v{e+4+i}")
    for i in range(2): a(f"v_permlane16_swap_b32 v{e+i}, v{e+2+i}")
    for i in range(2): a(f"v_add_f32 v{e+i}, v{e+i}, v{e+2+i}")
    for i in range(2): a(f"v_add_f32 v{e+i}, v{e+i}, v{e+i} row_ror:8 {DPPM}")

def silu_prep(a, PG, PX, vm_, vr, T):
    assert vr%2==0 and T%2==0
    a(f"v_mul_f32 v{T}, v{vm_}, v{vr}\nv_mov_b32 v{T+2}, 0xbfb8aa3b")
    E=T+4
    for d in range(8): unpack(a, PG+2*d, PX+d)
    for i in range(0,16,2): a(f"v_pk_fma_f32 {R(PG+i,2)}, {R(PG+i,2)}, {R(vr,2)}, {R(T,2)} op_sel_hi:[1,0,0] neg_lo:[0,0,1] neg_hi:[0,0,1]")
    for i in range(0,16,2): a(f"v_pk_mul_f32 {R(E+i,2)}, {R(PG+i,2)}, {R(T+2,2)} op_sel_hi:[1,0]")
    for i in range(16): a(f"v_exp_f32 v{E+i}, v{E+i}")
    for i in range(0,16,2): a(f"v_pk_add_f32 {R(E+i,2)}, {R(E+i,2)}, 1.0 op_sel_hi:[1,0]")
    for i in range(16): a(f"v_rcp_f32 v{E+i}, v{E+i}")
    for i in range(0,16,2): a(f"v_pk_mul_f32 {R(PG+i,2)}, {R(PG+i,2)}, {R(E+i,2)}")

PG, PX = 224, 240
def xaddr(a, dst):
    a(f"s_lshl_b32 s3, s38, 1\ns_lshr_b32 s28, s39, 2\ns_add_u32 s3, s3, s28\ns_lshl_b32 s69, s3, 4\ns_lshl_b32 s3, s34, 7\ns_add_u32 s3, s3, s69")
    a(f"v_and_b32 v2, 15, v1\nv_add_u32 v{dst}, s3, v2\nv_lshlrev_b32 v{dst}, 11, v{dst}\nv_lshrrev_b32 v2, 4, v1\nv_lshl_add_u32 v{dst}, v2, 3, v{dst}\ns_lshl_b32 s3, s35, 7\nv_add_u32 v{dst}, s3, v{dst}")
def xload(a, v):
    for ct in range(4): a(f"buffer_load_dwordx2 {R(PX+2*ct,2)}, v{v}, s[{SX}:{SX+3}], 0 offen offset:{32*ct}")
def stat3(a, vm_, vr):
    a(f"v_and_b32 v2, 15, v1\nv_add_u32 v2, s69, v2\nv_lshlrev_b32 v2, 2, v2\nv_add_u32 v2, {L_M+512}, v2\nds_read_b32 v{vm_}, v2\nds_read_b32 v{vr}, v2 offset:1024")

def wait7(a, l):
    a(f"v_and_b32 v3, 3, v1\nv_lshlrev_b32 v3, 2, v3\nv_add_u32 v3, {L_FLG}, v3\n{l}:\nds_read_b32 v2, v3\ns_waitcnt lgkmcnt(0)\nv_cmp_ne_u32 vcc, 7, v2\ns_cbranch_vccz {l}k\ns_sleep 1\ns_branch {l}\n{l}k:")
def key_rd(a, v):
    a(f"v_mov_b32 v2, {L_KEY}\nds_read_b32 v{v}, v2")
def key_fin(a, v):
    a(f"s_waitcnt lgkmcnt(0)\nv_readfirstlane_b32 s70, v{v}\ns_and_b32 s68, s70, 0x7ff\ns_sub_u32 s68, 2047, s68")

def h_waves(a):
    vm = VM(a, NT)
    vA=8; vW=12; vCS=18; vF=21; vD=22; vXo=23
    CSA=24; CSL=32; XF=80
    FW=128; DW=192; FA=120; SENT=248; vL16=252; vP64=253
    a("L_H:")
    a("v_and_b32 v4, 7, v1\ns_lshl_b32 s33, s37, 7\ns_add_u32 s85, s36, s37\ns_and_b32 s85, s85, 3\ns_lshl_b32 s87, s85, 7\ns_and_b32 s66, s36, 8\ns_lshl_b32 s66, s66, 7")
    a("s_lshl_b32 s3, s36, 7\ns_lshl_b32 s28, s38, 5\ns_add_u32 s3, s3, s28")
    a("v_lshrrev_b32 v7, 3, v1\nv_add_u32 v3, s3, v7\nv_lshlrev_b32 v3, 11, v3")
    a("v_lshrrev_b32 v5, 4, v1\nv_xor_b32 v6, v4, v5\nv_xor_b32 v5, 4, v6")
    a("v_lshl_add_u32 v6, v6, 4, v3\nv_lshl_add_u32 v5, v5, 4, v3")
    for j in range(4): a(f"v_add_u32 v{vA+j}, {j*16384 - j*1024}, v{5 if j&1 else 6}")
    a("s_lshr_b32 s32, s36, 1\ns_and_b32 s32, s32, 2\ns_xor_b32 s32, s32, s38" if 'nowx' not in EXP else "s_mov_b32 s32, s38")
    a("s_lshl_b32 s3, s32, 4\nv_add_u32 v7, s3, v7\nv_mul_u32_u24 v7, 6144, v7")
    a("v_bfe_u32 v6, v1, 4, 1\nv_lshlrev_b32 v6, 1, v6\nv_xor_b32 v5, v4, v6\nv_add_u32 v7, s33, v7\nv_xor_b32 v6, 4, v5\nv_lshl_add_u32 v6, v6, 4, v7\nv_lshl_add_u32 v7, v5, 4, v7")
    for e in range(6): a(f"v_add_u32 v{vW+e}, {(e>>1)*2048 + (e&1)*(8*6144-1024)}, v{6 if e&1 else 7}")
    for e in range(2): a(f"v_xor_b32 v{vW+e}, {QX*128}, v{vW+e}")
    a(f"s_lshl_b32 s30, s38, 12\ns_lshl_b32 s31, s32, 11\ns_add_u32 s31, s31, 16384")
    a("s_waitcnt lgkmcnt(0)")
    srd(a, SW, 6, 1024*3072*2); srd(a, SX, 4, 2048*2048)
    def tiles(s, wfirst=False, part=None):
        sl=(s%3)*SLOT
        def A_():
            a(f"s_add_u32 m0, s30, {sl}")
            for j in range(4): a(f"buffer_load_dwordx4 v{vA+j}, s[{SX}:{SX+3}], s64 offen offset:{j*1024}{TNT if s%4==0 else ''} lds")
        def W_():
            for e in range(6):
                if e%2==0: a(f"s_add_u32 m0, s31, {sl+(e>>1)*8192}")
                a(f"buffer_load_dwordx4 v{vW+e}, s[{SW}:{SW+3}], s65 offen offset:{(e&1)*1024}{TNT if s%4==0 else ''} lds")
        a(f"s_add_u32 s64, s87, {(s&3)*128}\ns_and_b32 s64, s64, 511\ns_or_b32 s64, s64, {(s>>2)*512}\ns_xor_b32 s64, s64, s66\ns_mul_i32 s65, s64, 3072")
        if part=='W': W_(); vm.issue(('t',s),6); return
        if part=='A': A_(); vm.issue(('t',s),4); return
        if wfirst: W_(); A_()
        else: A_(); W_()
        vm.issue(('t',s),10)
    def fill_addr():
        a(f"s_lshr_b32 s3, s38, 1\ns_lshl_b32 s28, s37, 1\ns_add_u32 s28, s28, s3\ns_and_b32 s29, s38, 1")
        a(f"s_lshl_b32 s3, s28, 4\ns_add_u32 s3, s3, s36\ns_mul_i32 s3, s3, {KVS}\ns_mul_i32 s78, s29, {KVS//2}\ns_add_u32 s78, s78, s3\ns_add_u32 s78, s78, {WS_KVP}")
        a(f"s_lshl_b32 s3, s36, 1\ns_add_u32 s29, s29, s3\ns_xor_b32 s28, s28, {2*QX}\ns_lshl_b32 s3, s29, 7\ns_add_u32 s3, s3, s28\ns_lshl_b32 s3, s3, 10\ns_add_u32 s79, s3, {WS_O}")
    def fillk(i0_,i1_):
        if 'nofill' in EXP: return
        for i in range(i0_,i1_):
            if i<2: a(f"buffer_store_dwordx4 {R(SENT,4)}, v{vL16}, s[{SWS}:{SWS+3}], s78 offen offset:{i*1024} sc1")
            else: a(f"s_mov_b64 exec, 15\nbuffer_store_dwordx4 {R(SENT,4)}, v{vL16}, s[{SWS}:{SWS+3}], s78 offen offset:2048 sc1\ns_mov_b64 exec, -1")
            vm.issue('own',1)
    def fillo(i):
        if 'nofill' in EXP: return
        a(f"s_add_u32 s3, s79, {i*32768}\nbuffer_store_dwordx4 {R(SENT,4)}, v{vL16}, s[{SWS}:{SWS+3}], s3 offen sc1")
        vm.issue('own',1)
    def xrows(h):
        a(f"s_lshl_b32 s3, s36, 7\ns_lshl_b32 s28, s37, 3\ns_add_u32 s3, s3, s28\ns_lshl_b32 s3, s3, 11\ns_add_u32 s3, s3, s30\ns_add_u32 m0, s30, {L_STG}")
        for i in (h,h+2): a(f"buffer_load_dwordx4 v{vL16}, s[{SX}:{SX+3}], s3 offen offset:{1024*i}{' nt' if 'xnt' in EXP else ''} lds")
        vm.issue('xr',2)
        if h==0: return
        srd(a, SC, 14, 2048)
        a(f"s_lshl_b32 s3, s38, 9\ns_add_u32 m0, s3, {L_WR}\ns_mov_b32 exec_hi, 0\nbuffer_load_dwordx4 v{vL16}, s[{SC}:{SC+3}], s3 offen lds\ns_mov_b64 exec, -1")
        vm.issue('xr',1)
    LN0=True
    if LN0: a(f"v_lshlrev_b32 v{vL16}, 4, v1")
    PRO=os.environ.get('PRO','e,x,W0,s,A0,l,t1').split(',')
    def pro(L):
      for p in L:
        if p=='e':
            if STAMPS: a(f"v_mov_b32 v{VST-1}, 0\nv_writelane_b32 v{VST}, s96, 0")
            srd(a, SWS, 26, WS_SIZE)
            a(f"v_mov_b32 v19, {WS_EPO}\nbuffer_load_dword v19, v19, s[{SWS}:{SWS+3}], 0 offen sc1"); vm.issue('epo',1)
            stamp(a,1)
        elif p=='x': xrows(0); xrows(1)
        elif p=='l': vm.wait('xr'); a('s_barrier')
        elif p[0] in 'WA': tiles(int(p[1]), part=p[0])
        elif p[0]=='t' and len(p)==2: tiles(int(p[1]))
        else: place1(p)
    pro(PRO[:PRO.index('s')])
    for i in range(4): a(f"v_mov_b32 v{SENT+i}, -1")
    a(f"v_lshlrev_b32 v{vL16}, 4, v1\ns_and_b32 s85, s85, {NT-1}")
    a(f"s_lshl_b32 s3, s37, 4\ns_add_u32 s3, s3, s36\ns_mul_i32 s67, s3, 768\ns_add_u32 s67, s67, {WS_CSP}\ns_lshl_b32 s3, s38, 8\ns_add_u32 s67, s67, s3\ns_cmp_eq_u32 s38, 3\ns_cselect_b32 s67, {WS_SIZE}, s67")
    for i in range(8): a(f"v_mov_b32 v{CSA+i}, 0")
    a(f"v_lshlrev_b32 v{vP64}, 2, v1")
    KY=64; ST=72; CG=80; PW=224
    a("s_cmp_gt_u32 s37, 3\ns_subb_u32 s77, s37, 0\ns_cmp_gt_u32 s37, 11\ns_subb_u32 s77, s77, 0\ns_lshl_b32 s77, s77, 4\ns_add_u32 s77, s77, s36\ns_and_b32 s3, s37, 7\ns_cmp_eq_u32 s3, 3\ns_cselect_b32 s77, 224, s77")
    a(f"s_bitcmp1_b32 s38, 0\ns_cselect_b32 s{SA}, s18, s16\ns_cselect_b32 s{SA+1}, s19, s17\ns_cmp_lt_u32 s77, 224\ns_cselect_b32 s{SA+2}, {1024*3584*2}, 0\ns_mov_b32 s{SA+3}, 0x00020000")
    srd(a, SB, 20, 3584*1024*2)
    a("s_and_b32 s3, s77, 3\ns_lshl_b32 s3, s3, 8\ns_lshr_b32 s28, s38, 1\ns_lshl_b32 s28, s28, 7\ns_add_u32 s3, s3, s28\nv_lshrrev_b32 v5, 3, v1\nv_lshl_add_u32 v6, v5, 4, s3")
    a(f"v_mul_u32_u24 v6, 7168, v6\nv_lshl_add_u32 v6, v4, 4, v6\ns_lshr_b32 s3, s77, 2\ns_lshl_b32 s3, s3, 7\nv_add_u32 v{vF}, s3, v6")
    a("s_lshr_b32 s3, s2, 4\ns_mul_i32 s3, s3, 224\ns_mul_i32 s28, s38, 56\ns_add_u32 s71, s3, s28")
    a(f"v_lshlrev_b32 v6, 14, v5\nv_lshl_add_u32 v6, v4, 4, v6\ns_and_b32 s3, s2, 15\ns_lshl_b32 s3, s3, 7\nv_add_u32 v{vD}, s3, v6")

    def cs_addr():
        a(f"v_bfe_u32 v5, v1, 4, 1\nv_lshlrev_b32 v5, 5, v5\nv_xor_b32 v5, v5, v{vL16}\ns_min_u32 s3, s38, 2\ns_lshl_b32 s3, s3, 13\ns_and_b32 s28, s36, 4\ns_lshl_b32 s28, s28, 10\ns_add_u32 s3, s3, s28\ns_add_u32 s3, s3, 16384\nv_add_u32 v{vCS}, s3, v5")
    def cs_rd(s_):
        a(f"v_add_u32 v2, {(s_%3)*SLOT}, v{vCS}\nv_xor_b32 v3, 64, v2")
        for i in range(4): a(f"ds_read_b128 {R(CSL+16*(s_>>2)+4*i,4)}, v{2+(i&1)} offset:{1024*i}")
    def colsum(q):
        for j in range(2):
            for d in range(4):
                t=2+2*(d&1)
                unpack(a, t, CSL+8*q+4*j+d)
                a(f"v_add_f32 v{CSA+2*d}, v{CSA+2*d}, v{t}\nv_add_f32 v{CSA+2*d+1}, v{CSA+2*d+1}, v{t+1}")
    def cs_red():
        red8(a, CSA)
    def cs_pub():
        a(f"v_and_b32 v2, 8, v1\nv_cmp_eq_u32 vcc, 0, v2\nv_cndmask_b32 v{CSA}, v{CSA+1}, v{CSA}, vcc")
        a(f"buffer_store_dword v{CSA}, v{vP64}, s[{SWS}:{SWS+3}], s67 offen sc1")
        vm.issue('pub',1)
    RDY=118
    def nonce():
        vm.wait('epo')
        a("v_readfirstlane_b32 s86, v19\ns_add_u32 s86, s86, 1")
    def ready_st():
        a(f"s_lshl_b32 s3, s37, 4\ns_add_u32 s3, s3, s36\ns_lshl_b32 s3, s3, 7\ns_add_u32 s3, s3, {WS_RDY}\ns_cmp_lg_u32 s38, 0\ns_cselect_b32 s3, {WS_SIZE}, s3\nv_mov_b32 v2, s86\ns_mov_b64 exec, 1\nbuffer_store_dword v2, v{vL16}, s[{SWS}:{SWS+3}], s3 offen sc1\ns_mov_b64 exec, -1")
        vm.issue('rs',1)
    def rdy_addr():
        a(f"v_and_b32 v2, 15, v1\nv_bfe_u32 v3, v1, 4, 1\nv_mul_u32_u24 v3, {QX}, v3\nv_xor_b32 v3, s37, v3\nv_lshl_add_u32 v3, v3, 4, v2\nv_lshl_add_u32 v2, v2, 4, s34\nv_cmp_gt_u32 vcc, 32, v1\nv_cndmask_b32 v2, v2, v3, vcc\nv_lshlrev_b32 v113, 7, v2")
    def ready_poll(l, lo, hi):
        a(f"s_mov_b32 s3, {WS_RDY}\ns_mov_b32 s29, 0\ns_mov_b32 exec_lo, {lo}\ns_mov_b32 exec_hi, {hi}\n{l}:\nbuffer_load_dword v{RDY}, v113, s[{SWS}:{SWS+3}], s3 offen sc1\ns_waitcnt vmcnt(0)")
        a(f"v_cmp_ne_u32 vcc, s86, v{RDY}\ns_cbranch_vccz {l}k\ns_mov_b64 exec, vcc\ns_add_u32 s29, s29, 1\ns_cmp_lt_u32 s29, {SPIN}\ns_cbranch_scc1 {l}\n{l}k:\ns_mov_b64 exec, -1")
        if STAMPS and lo: a(f"v_writelane_b32 v{VST-1}, s29, 50")
    def tagged(l, regs, reload, after=None):
        a(f"s_mov_b32 s29, 0\n{l}:\nv_cmp_ne_u32 vcc, s86, v{regs[0]}")
        for r in regs[1:]: a(f"v_cmp_ne_u32 s[92:93], s86, v{r}\ns_or_b64 vcc, vcc, s[92:93]")
        a(f"s_cbranch_vccz {l}k\ns_add_u32 s29, s29, 1\ns_cmp_ge_u32 s29, {SPIN}\ns_cbranch_scc1 {l}k\ns_sleep 2")
        reload()
        a("s_waitcnt vmcnt(0)")
        if after: after()
        a(f"s_branch {l}\n{l}k:")
        if STAMPS: a(f"v_writelane_b32 v{VST-1}, s29, {51 if l=='L_k1' else 50}")
    def epoch_st():
        a(f"s_or_b32 s3, s2, s38\ns_cmp_lg_u32 s3, 0\ns_cselect_b32 s3, {WS_SIZE}, {WS_EPO}" if 0 else f"s_or_b32 s3, s2, s38\ns_mov_b32 s28, {WS_EPO}\ns_cmp_lg_u32 s3, 0\ns_cselect_b32 s3, {WS_SIZE}, s28")
        a(f"v_mov_b32 v2, s86\ns_mov_b64 exec, 1\nbuffer_store_dword v2, v{vL16}, s[{SWS}:{SWS+3}], s3 offen sc1\ns_mov_b64 exec, -1")
        vm.issue('es',1)
    def ld_f1():
        a(f"s_lshl_b32 s3, s38, 12\ns_add_u32 m0, s3, {L_STG}")
        for k in range(4): a(f"buffer_load_dwordx4 v{vL16}, s[{SWS}:{SWS+3}], s3 offen offset:{1024*k} sc1 lds")
    def fetch1(h):
        a(f"s_lshl_b32 s3, s38, 12\ns_add_u32 m0, s3, {L_STG}")
        for k in (2*h,2*h+1): a(f"buffer_load_dwordx4 v{vL16}, s[{SWS}:{SWS+3}], s3 offen offset:{1024*k} sc1 lds")
        vm.issue('f1',2)
    def keys_r(h):
        for k in range(8*h,8*h+8): a(f"ds_read_b64 {R(80+2*k,2)}, v{PW+8} offset:{1024*k}")
        if h: a(f"ds_read_b32 v{ST}, v{PW+13}")
    def keys_rd(rd=True):
        if rd: keys_r(0); keys_r(1); a("s_waitcnt lgkmcnt(0)")
        a(f"v_min3_u32 v4, v81, v83, v85\nv_max3_u32 v5, v81, v83, v85")
        for k in range(3,15,2): a(f"v_min3_u32 v4, v4, v{81+2*k}, v{83+2*k}\nv_max3_u32 v5, v5, v{81+2*k}, v{83+2*k}")
    def ld_all():
        for q in range(4):
            a(f"s_mov_b32 m0, {L_STG+4096*q}\ns_movk_i32 s3, {4096*q}")
            for k in range(4): a(f"buffer_load_dwordx4 v{vL16}, s[{SWS}:{SWS+3}], s3 offen offset:{1024*k} sc1 lds")
    def keys():
        keys_rd(False)
        tagged("L_k1", [4,5,111], ld_all, keys_rd)
    def ld_cs(ks=range(4)):
        a(f"s_mul_i32 s3, s37, {16*768}\ns_mul_i32 s28, s38, 192\ns_add_u32 s3, s3, s28\ns_add_u32 s3, s3, {WS_CSP}\ns_add_u32 s28, s3, {8*768}")
        for k in ks: a(f"buffer_load_dwordx4 {R(CG+4*k,4)}, v{PW+11}, s[{SWS}:{SWS+3}], s{28 if k>=2 else 3} offen offset:{3072*(k&1)} sc1")
    def fetch2(h):
        ld_cs((2*h,2*h+1)); vm.issue('f2',2)
    def proc1():
        a(f"v_and_b32 v{PW+4}, 0xffff0000, v{ST}\nv_lshlrev_b32 v{PW+1}, 16, v{ST}\nv_rcp_f32 v{PW+2}, v{PW+4}\nv_mov_b32 v{PW}, s70\nv_mul_f32 v{PW+3}, {LOG2E}, v{PW+2}")
    def addr1():
        a(f"v_add_u32 v{PW+8}, {L_STG+8}, v{vL16}")
        a(f"v_lshrrev_b32 v2, 5, v1\nv_and_b32 v3, 31, v1\nv_lshl_add_u32 v2, v2, 7, v3\ns_lshl_b32 s3, s38, 7\ns_add_u32 s3, s3, {L_M}\nv_lshl_add_u32 v{PW+6}, v2, 2, s3")
        a(f"v_bfe_u32 v4, v1, 2, 2\nv_lshlrev_b32 v4, 3, v4\nv_bfe_u32 v7, v1, 4, 1\nv_lshl_add_u32 v4, v7, 2, v4\nv_and_b32 v7, 3, v1\nv_add_u32 v4, v4, v7\ns_lshl_b32 s3, s38, 6\ns_add_u32 s3, s3, {L_SQ}\nv_lshl_add_u32 v{PW+7}, v4, 1, s3")
    def addr2():
        a(f"s_lshl_b32 s3, s36, 7\ns_lshl_b32 s28, s34, 7\nv_mov_b32 v2, s3\nv_mov_b32 v4, s28\nv_cmp_gt_u32 vcc, 32, v1\ns_lshl_b32 s3, s38, 5\nv_and_b32 v3, 30, v1\nv_cndmask_b32 v2, v4, v2, vcc\nv_add3_u32 v2, v2, v3, s3\nv_and_b32 v3, 1, v1\nv_lshl_add_u32 v2, v2, 1, v3\nv_lshlrev_b32 v2, 2, v2\nv_add_u32 v{PW+13}, {L_STG}, v2")
        a(f"s_mul_i32 s3, s38, 48\nv_and_b32 v2, 15, v1\nv_min_u32 v2, 11, v2\nv_lshrrev_b32 v3, 4, v1\nv_lshlrev_b32 v4, 4, v2\nv_lshl_add_u32 v2, v2, 2, v3\nv_add_u32 v2, s3, v2")
        a(f"v_and_b32 v5, 7, v2\nv_bfe_u32 v6, v2, 3, 3\nv_lshl_add_u32 v5, v5, 3, v6\nv_and_b32 v2, 0xc0, v2\nv_add_u32 v2, v2, v5\nv_lshlrev_b32 v2, 2, v2\nv_add_u32 v{PW+9}, {L_CS}, v2\nv_mul_u32_u24 v3, 768, v3\nv_add_u32 v{PW+11}, v3, v4\nv_mov_b32 v{PW+10}, {L_KEY}")
    def all_w():
        a(f"ds_write_b32 v{PW+10}, v{PW}\nds_write_b32 v{PW+6}, v{PW+1}\nds_write_b32 v{PW+6}, v{PW+2} offset:1024\nds_write_b32 v{PW+9}, v{CG}")
        a(f"s_mov_b32 exec_hi, 0\nds_write_b32 v{PW+6}, v{PW+3} offset:2048\nds_write_b16_d16_hi v{PW+7}, v{PW+4}\ns_mov_b64 exec, -1")
    XR=64; IS=116; XSF=96
    def idx_a():
        maxu(a, 2, range(80,112,2))
        for m in ("quad_perm:[1,0,3,2]", "quad_perm:[2,3,0,1]", "row_half_mirror", "row_mirror"): a(f"v_max_u32 v2, v2, v2 {m} {DPPM}")
        a("v_readlane_b32 s70, v2, 0\nv_readlane_b32 s3, v2, 16\nv_readlane_b32 s28, v2, 32\nv_readlane_b32 s29, v2, 48\ns_max_u32 s70, s70, s3\ns_max_u32 s28, s28, s29\ns_max_u32 s70, s70, s28\ns_and_b32 s68, s70, 0x7ff\ns_sub_u32 s68, 2047, s68")
        a(f"s_lshl_b32 s3, s68, 11\ns_and_b32 s28, s77, 3\ns_lshl_b32 s28, s28, 9\ns_add_u32 s3, s3, s28\ns_lshr_b32 s28, s38, 1\ns_lshl_b32 s28, s28, 8\ns_add_u32 s3, s3, s28")
    def idx_xs():
        a(f"v_lshrrev_b32 v3, 3, v1\nv_lshlrev_b32 v3, 5, v3\nbuffer_load_dwordx4 {R(XR,4)}, v3, s[{SX}:{SX+3}], s3 offen\nbuffer_load_dwordx4 {R(XR+4,4)}, v3, s[{SX}:{SX+3}], s3 offen offset:16")
        a(f"s_lshr_b32 s3, s68, 1\ns_lshl_b32 s3, s3, 4\ns_and_b32 s28, s68, 1\ns_lshl_b32 s28, s28, 2\ns_add_u32 s3, s3, s28\ns_add_u32 s3, s3, {L_STG}\nv_mov_b32 v3, s3\nds_read_b32 v{IS}, v3")
        vm.issue('xs',2)
    def proc2():
        vm.wait('f2')
        checked(a, "L_k2", range(CG,CG+16), ld_cs)
        for k in (2,1):
            for i in range(4*k): a(f"v_add_f32 v{CG+i}, v{CG+i}, v{CG+4*k+i}")
        for i in range(2): a(f"v_permlane32_swap_b32 v{CG+i}, v{CG+2+i}")
        for i in range(2): a(f"v_add_f32 v{CG+i}, v{CG+i}, v{CG+2+i}")
        a(f"v_permlane16_swap_b32 v{CG}, v{CG+1}\nv_add_f32 v{CG}, v{CG}, v{CG+1}")
    def xs_norm(part):
        if part==0:
            vm.wait('xs')
            a(f"v_and_b32 v5, 0xffff0000, v{IS}\nv_lshlrev_b32 v{IS}, 16, v{IS}\nv_rcp_f32 v{IS+1}, v5")
            for d in range(8): unpack(a, XSF+2*d, XR+d)
            a(f"v_mul_f32 v119, v{IS}, v{IS+1}")
        else:
            for i in range(16): a(f"v_fma_f32 v{XSF+i}, v{XSF+i}, v{IS+1}, -v119")
            for i in range(8): a(f"v_mov_b32 v{FA+i}, 0")
    def ffn_ld(i0,i1):
        if 'noffn' in EXP: return
        for i in range(i0,i1):
            if i<16: a(f"s_mov_b32 s3, {i*7168}\nbuffer_load_dwordx4 {R(FW+4*i,4)}, v{vF}, s[{SA}:{SA+3}], s3 offen{FNT}")
            else: a(f"s_lshr_b32 s3, s71, 3\ns_add_u32 s3, s3, {i-16}\ns_and_b32 s28, s3, 7\ns_lshr_b32 s3, s3, 3\ns_lshl_b32 s3, s3, 6\ns_add_u32 s3, s3, s28\ns_lshl_b32 s3, s3, 11\nbuffer_load_dwordx4 {R(FW+4*i,4)}, v{vD}, s[{SB}:{SB+3}], s3 offen{FNT}")
            vm.issue(('g',i),1)
    def ffn_mac(i0,i1,pk=False):
        if i1<=i0: return
        vm.wait(('g',i1-1))
        for i in range(i0,i1):
            for d in range(4):
                t=2+2*(d&1)
                unpack(a, t, FW+4*i+d)
                if pk:
                    if i%2 and d==0: a(f"v_mov_b32 v{XSF+i-1}, v{XSF+i}")
                    a(f"v_pk_fma_f32 {R(FA+2*d,2)}, {R(t,2)}, {R(XSF+(i&~1),2)}, {R(FA+2*d,2)} op_sel_hi:[1,0,1]")
                else:
                    a(f"v_fmac_f32 v{FA+2*d}, v{t}, v{XSF+i}\nv_fmac_f32 v{FA+2*d+1}, v{t+1}, v{XSF+i}")
    def phi_ld():
        srd(a, SC, 8, 65536)
        a(f"s_lshl_b32 s3, s38, 10\ns_add_u32 m0, s3, {L_PHI}\ns_lshl_b32 s28, s37, 12\ns_add_u32 s3, s3, s28\nbuffer_load_dwordx4 v{vL16}, s[{SC}:{SC+3}], s3 offen lds")
        a(f"s_add_u32 m0, m0, {L_PHQ-L_PHI}\ns_xor_b32 s3, s3, {QX*4096}\nbuffer_load_dwordx4 v{vL16}, s[{SC}:{SC+3}], s3 offen lds")
        vm.issue('phi',2)
    def wo_touch():
        a(f"s_lshl_b32 s3, s2, 13\ns_lshl_b32 s28, s38, 11\ns_add_u32 s3, s3, s28\nv_lshlrev_b32 v3, 7, v1\ns_mov_b64 exec, 0xffff\nbuffer_load_dword v20, v3, s[88:91], s3 offen\ns_mov_b64 exec, -1")
        vm.issue('wt',1)
    def x3_ld():
        xaddr(a, vXo); xload(a, vXo); vm.issue('x3',4)
    vWo=220
    def wo_setup():
        a("v_lshrrev_b32 v5, 3, v1\nv_lshlrev_b32 v6, 11, v5\nv_bfe_u32 v5, v1, 4, 2\nv_lshlrev_b32 v5, 1, v5\nv_and_b32 v7, 7, v1\nv_xor_b32 v5, v5, v7\nv_lshl_add_u32 v6, v5, 4, v6\ns_lshl_b32 s3, s35, 7\nv_add_u32 v6, s3, v6")
        for e in range(4): a(f"v_add_u32 v{vWo+e}, {e*15360}, v6")
        a("s_lshl_b32 s72, s38, 12\ns_lshl_b32 s73, s38, 16")
    def wo(c):
        a(f"s_add_u32 m0, s72, {c*16384}\ns_add_u32 s3, s73, {c*262144}")
        for e in range(4): a(f"buffer_load_dwordx4 v{vWo+e}, s[88:91], s3 offen offset:{e*1024} lds")
        vm.issue(('wo',c),4)
    T='T'
    M15=opt('m15',0)
    HL=48; HZ=32
    def post_setup():
        a(f"s_lshl_b32 s3, s36, 2\ns_add_u32 s3, s3, s38\ns_lshr_b32 s28, s3, 5\ns_and_b32 s3, s3, 31\ns_lshl_b32 s74, s3, 7\ns_lshl_b32 s3, s37, 1\ns_add_u32 s75, s3, s28")
        a(f"v_lshrrev_b32 v5, 3, v1\nv_mul_u32_u24 v5, {KVS}, v5\nv_and_b32 v7, 7, v1\nv_lshl_add_u32 v112, v7, 4, v5")
        a(f"s_mul_i32 s76, s75, {16*KVS}\ns_add_u32 s76, s76, s74\ns_add_u32 s76, s76, {WS_KVP}\ns_mul_i32 s3, s75, {KVS}\ns_add_u32 s3, s3, s74\ns_add_u32 s74, s3, {WS_KVR}")
        a(f"s_lshl_b32 s75, s37, 1\ns_add_u32 s75, s75, s36\ns_mul_i32 s81, s75, {16*KVS}\ns_add_u32 s81, s81, {WS_KVP+4096}\ns_mul_i32 s82, s75, {KVS}\ns_add_u32 s82, s82, {WS_KVR+4096}")
        a(f"s_lshr_b32 s3, s36, 1\ns_or_b32 s83, s3, s38")
        a(f"s_and_b32 s3, s38, 1\ns_lshl_b32 s3, s3, 3\ns_and_b32 s28, s77, 3\ns_lshl_b32 s28, s28, 1\ns_add_u32 s3, s3, s28\ns_lshr_b32 s28, s38, 1\ns_add_u32 s3, s3, s28\ns_mul_i32 s3, s3, 14336\ns_lshr_b32 s28, s77, 2\ns_lshl_b32 s28, s28, 8\ns_add_u32 s3, s3, s28\ns_add_u32 s3, s3, {WS_GU}")
        a(f"s_cmp_lt_u32 s77, 224\ns_cselect_b32 s84, s3, {WS_SIZE}")
    P=lambda pos: (lambda: place(pos))
    def place(pos):
        for w in PLC.get(pos,[]): place1(w)
    def place1(w):
        if True:
            if w[0]=='w': wo(int(w[1]))
            elif w[0]=='k': fillk(int(w[1]),int(w[1])+1)
            elif w[0]=='o': fillo(int(w[1]))
            elif w[0]=='x': xrows(int(w[1]))
            elif w[0]=='a': fetch1(int(w[1]))
            elif w[0]=='b': fetch2(int(w[1]))
            elif w=='r': ready_st()
            elif w=='y': x3_ld()
            elif w[0]=='s': a(f"s_sleep {int(w[1:])}")
            elif w[0]=='v': vm.wait(('wo',int(w[1])))
            elif w=='p': phi_ld()
            elif w=='t': wo_touch()
            elif w[0]=='g': ffn_ld(8*int(w[1]), min(23,8*int(w[1])+8))
    M14=opt('m14',0)
    def lnbar():
        if LN0: return
        vm.wait('xr'); a("s_barrier")
    sched = {
        0: [lambda: cs_rd(0), T],
        1: [(lambda: colsum(0),)],
        2: [(lambda: colsum(1),)],
        3: [T],
        4: [lambda: cs_rd(4), T],
        5: [(lambda: colsum(2),), lambda: vm.wait('f1')],
        6: [lambda: keys_r(0), (lambda: colsum(3),)],
        7: [lambda: keys_r(1), cs_red, T],
        8: [keys, cs_pub, T],
        9: [(idx_a,), idx_xs],
        10:[(proc1,), epoch_st],
        11:[lambda: xs_norm(0), (lambda: xs_norm(1),)],
        12:[T],
        13:[T, proc2],
        14:[P('j14'), all_w, lambda: ffn_mac(0,M14)],
        15:[P('j15'), lambda: ffn_mac(M14,M15), lambda: vm.wait('own'), lambda: vm.wait('phi')],
    }
    addr1(); addr2(); wo_setup(); post_setup(); rdy_addr()
    cs_addr(); fill_addr(); srd(a, 88, 10, 1024*1024*2)
    pro(PRO[PRO.index('s')+1:]); nonce()
    for k in range(16): sched[k].append(P(f"i{k}"))
    CL=[]; nx=0
    for item in filter(None,os.environ.get('CL','').split(';')):
        b,what=item.split(':'); fs=[]
        for w in what.split(','):
            if True:
                n=int(w[1:]); fs.append(lambda i0=nx,i1=nx+n: ffn_ld(i0,i1)); nx+=n
        CL.append((int(b.rstrip('s')), b.endswith('s'), fs))
    NLOOP=nx
    DEF='defer' in EXP
    def at(s):
        return [(c,fs) for b,same,fs in CL for c in range(NT) if b+(0 if same else c)==s]
    for s in range(16):
        vm.wait(('t',s))
        a("s_waitcnt lgkmcnt(0)")
        if s==0: stamp(a,2)
        a("s_barrier")
        if 'hst2' in EXP: stamp(a,33+s)
        late={c for c,_ in at(s-2)} if DEF and s+1<16 else set()
        skip={c for c,_ in at(s-1)} if DEF else set()
        if s>=14: vm.cond(late, lambda: tiles(s+1))
        for f in sched[s]:
            if isinstance(f,tuple):
                J=a.capture(lambda: [g() for g in f]); D_=a.capture(lambda: tiles(s+2))
                if 'noil' in EXP:
                    for x in D_+J: a(x)
                else:
                    while J and J[0].startswith('s_waitcnt'): a(J.pop(0))
                    n=-(-len(J)//9); k=0
                    for x in D_:
                        a(x)
                        if x.startswith('buffer_'):
                            k+=1
                            if k>=2:
                                for y in J[:n]: a(y)
                                J=J[n:]
                    for y in J: a(y)
            elif f==T:
                vm.cond(late, lambda: tiles(s+1))
                vm.cond(set(range(NT))-skip, lambda: tiles(s+2))
            else: f()
        grp={}
        for c,fs in at(s): grp.setdefault(id(fs),(fs,[]))[1].append(c)
        for fs,cs_ in grp.values(): vm.cond(cs_, lambda: [f() for f in fs])
        if 'hst' in EXP: stamp(a,6+s)
    a("s_barrier")
    stamp(a,24)
    MX=opt('mx',6)
    GL=80
    a(f"v_and_b32 v2, 15, v1\nv_min_u32 v2, 13, v2\nv_lshrrev_b32 v3, 4, v1\nv_mul_u32_u24 v3, 14336, v3\nv_lshl_add_u32 v13, v2, 4, v3\ns_lshl_b32 s75, s71, 2\ns_add_u32 s75, s75, {WS_GU}")
    def ld_gu():
        for j in range(4): a(f"s_add_u32 s3, s75, {4*j*14336}\nbuffer_load_dwordx4 {R(GL+4*j,4)}, v13, s[{SWS}:{SWS+3}], s3 offen sc1")
    def gu_fin():
        red8(a, FA)
        a(f"v_and_b32 v2, 8, v1\nv_cmp_eq_u32 vcc, 0, v2\nv_cndmask_b32 v{FA}, v{FA+1}, v{FA}, vcc")
        a(f"buffer_store_dword v{FA}, v{vP64}, s[{SWS}:{SWS+3}], s84 offen sc1")
        vm.issue('gu',1)
    place('x0')
    ffn_mac(M15,MX,True)
    if MX==16: gu_fin()
    place('x1')
    for c in (0,1,4): vm.wait(('wo',c))
    stamp(a,25)
    a("s_barrier")
    place('x2')
    a("s_setprio 3\ns_cmp_lg_u32 s38, 3\ns_cbranch_scc1 L_npl")
    ready_poll("L_rp", -1, 0xffff)
    a(f"v_mov_b32 v4, {L_FLG+16}\nv_mov_b32 v5, 1\nds_write_b32 v4, v5\nL_npl:")
    stamp(a,54)
    a(f"v_min_u32 v3, 4, v1\nv_lshlrev_b32 v3, 2, v3\nv_add_u32 v3, {L_FLG}, v3\nL_fw:\nds_read_b32 v4, v3\ns_waitcnt lgkmcnt(0)\nv_cmp_eq_u32 vcc, 0, v4\ns_cbranch_vccz L_fk\ns_sleep 1\ns_branch L_fw\nL_fk:")
    stamp(a,26)
    place('k')
    vm.wait(('g',15))
    MY=opt('my',MX+3 if MX<16 else 16)
    ffn_mac(MX,MY,True)
    if opt('h1d',0): a(f"s_sleep {opt('h1d',0)}")
    stamp(a,49)
    def ld_h1():
        for j in range(2): a(f"s_add_u32 s3, s76, {8*j*KVS}\nbuffer_load_dwordx4 {R(HL+4*j,4)}, v112, s[{SWS}:{SWS+3}], s3 offen sc1")
    def ld_hz():
        for j in range(2): a(f"s_add_u32 s3, s81, {8*j*KVS}\nbuffer_load_dwordx4 {R(HZ+4*j,4)}, v112, s[{SWS}:{SWS+3}], s3 offen sc1")
    ld_h1()
    a("s_cmp_lg_u32 s83, 0\ns_cbranch_scc1 L_nz")
    ld_hz()
    a("L_nz:")
    if MX==16:
        ld_gu()
        a("s_waitcnt vmcnt(4)")
        vm.q=[['gl']*4 for _ in range(NT)]
    else:
        ffn_mac(MY,16,True); gu_fin()
        a("s_waitcnt vmcnt(1)")
        vm.q=[['gu'] for _ in range(NT)]
    stamp(a,50)
    def reduce_line(src, E, sdst):
        L=[]
        class C_:
            def __call__(self, t): L.extend(t.split("\n"))
        c=C_()
        for d in range(4): unpack(c, E+2*d, src+d)
        for d in range(4):
            unpack(c, E+8+2*d, src+4+d)
            c(f"v_pk_add_f32 {R(E+2*d,2)}, {R(E+2*d,2)}, {R(E+8+2*d,2)}")
        red8(c, E)
        c(f"v_cvt_pk_bf16_f32 v{E}, v{E}, v{E+1}\nv_mov_b32 v{E+1}, v{E}\nv_permlane16_swap_b32 v{E}, v{E+1}\nv_mov_b32 v{E+2}, v{E}\nv_mov_b32 v{E+3}, v{E+1}")
        c(f"v_permlane32_swap_b32 v{E}, v{E+2}\nv_permlane32_swap_b32 v{E+1}, v{E+3}")
        return L, f"buffer_store_dwordx4 {R(E,4)}, v{vL16}, s[{SWS}:{SWS+3}], s{sdst} offen sc1"
    A_,sa=reduce_line(HL,64,74); Z_,sz=reduce_line(HZ,96,82)
    a("s_cmp_eq_u32 s83, 0\ns_cbranch_scc1 L_hz")
    checked(a, "L_k4", range(HL,HL+8), ld_h1)
    for x in A_: a(x)
    a(f"s_mov_b64 exec, 0xff\n{sa}\ns_branch L_h1e\nL_hz:")
    checked(a, "L_k3", list(range(HL,HL+8))+list(range(HZ,HZ+8)), lambda: (ld_h1(), ld_hz()))
    for x in zipl(A_,Z_): a(x)
    a(f"s_mov_b64 exec, 0xff\n{sa}\n{sz}\nL_h1e:\ns_mov_b64 exec, -1")
    stamp(a,53)
    a(f"s_lshl_b32 s3, s38, 2\ns_add_u32 s3, s3, {L_FLG}\nv_mov_b32 v4, s3\nv_mov_b32 v5, 3\nds_write_b32 v4, v5\ns_setprio 0")
    vm.issue('h1',1)
    if PLC.get('h1s'): a("s_waitcnt lgkmcnt(0)")
    place('h1s')
    stamp(a,27)
    def hsilu():
        stat3(a, 9, 8)
        a("s_waitcnt lgkmcnt(0)")
        silu_prep(a, PG, PX, 9, 8, 28)
    if MX<16:
        hsilu()
        ld_gu(); vm.issue('gl',4)
    vm.wait('gl')
    stamp(a,51)
    checked(a, "L_k5", range(GL,GL+16), ld_gu)
    stamp(a,52)
    for b in (GL,GL+8):
        for i in (0,2): a(f"v_pk_add_f32 {R(b+i,2)}, {R(b+i,2)}, {R(b+4+i,2)}")
    for i in range(4): a(f"v_permlane32_swap_b32 v{GL+i}, v{GL+8+i}")
    for i in range(4): a(f"v_add_f32 v{GL+i}, v{GL+i}, v{GL+8+i}")
    for i in (0,2): a(f"v_permlane16_swap_b32 v{GL+i}, v{GL+i+1}")
    for i in (0,2): a(f"v_add_f32 v{GL+i}, v{GL+i}, v{GL+i+1}")
    a(f"v_permlane32_swap_b32 v{GL}, v{GL+2}")
    g,u=GL,GL+2
    rne(a,g,g); rne(a,u,u)
    a(f"v_mul_f32 v2, 0xbfb8aa3b, v{g}\nv_exp_f32 v2, v2\nv_add_f32 v2, 1.0, v2\nv_rcp_f32 v2, v2\nv_mul_f32 v{g}, v{g}, v2")
    rne(a,g,g)
    a(f"v_mul_f32 v{g}, v{g}, v{u}")
    rne(a,g,g)
    a(f"v_bfe_u32 v2, v1, 3, 2\nv_lshlrev_b32 v2, 6, v2\nv_lshrrev_b32 v3, 5, v1\nv_lshl_add_u32 v2, v3, 2, v2")
    HB=56
    for i in range(7): a(f"ds_bpermute_b32 v{HB+2*i}, v2, v{g} offset:{8*i}")
    for i in range(0,8,2): a(f"v_mov_b64 {R(FA+i,2)}, 0")
    a("s_waitcnt lgkmcnt(0)")
    place('gu')
    for i in range(7):
        for d in range(4):
            t=2+2*(d&1)
            unpack(a, t, DW+4*i+d)
            a(f"v_pk_fma_f32 {R(FA+2*d,2)}, {R(t,2)}, {R(HB+2*i,2)}, {R(FA+2*d,2)} op_sel_hi:[1,0,1]")
    red8(a, FA)
    a(f"v_and_b32 v2, 8, v1\nv_cmp_eq_u32 vcc, 0, v2\ns_and_b32 s3, s2, 15\ns_lshl_b32 s3, s3, 4\ns_lshr_b32 s28, s2, 4\ns_add_u32 s3, s3, s28\ns_lshl_b32 s3, s3, 2\ns_add_u32 s3, s3, s38\ns_lshl_b32 s3, s3, 8\ns_add_u32 s3, s3, {WS_Y}")
    a(f"v_cndmask_b32 v{FA}, v{FA+1}, v{FA}, vcc\nbuffer_store_dword v{FA}, v{vP64}, s[{SWS}:{SWS+3}], s3 offen sc1")
    vm.issue('ys',1)
    place('y')
    if MX==16: hsilu()
    stamp(a,28)
    wait7(a, "L_ow")
    place('ho')
    if opt('hpd',4): a(f"s_sleep {opt('hpd',4)}")
    stamp(a,29)
    if opt('hp3',0): a(f"s_setprio {opt('hp3',0)}")
    a("s_branch L_p3")

ACC=8
def acc(g,c6): return ACC+24*g+4*c6
ML,CC,CSV = [192,194,196,198],[200,202,220,222],[248,250]
CCP,RLP = [193,221],[195,223]
CSK,CSQ,PHI,MV,SQF = 204,212,224,104,120
vVS,vLN,vSR = 197,199,[201,203]
def zipl(A, B, n=1):
    out=[]; B=list(B)
    for x in A:
        out.append(x); out+=B[:n]; B=B[n:]
    return out+B
def feature(a, B, c0, isK, mid1=None, tail=None, fillB=(), hook=None):
    P=144; T=176; U=128
    EP=[P+8*g for g in range(4)]; EM=[acc(g,c0) for g in range(4)]
    MX=[T+2*g for g in range(4)]; NM=[T+8+2*g for g in range(4)]
    for g in range(4):
        for ft in range(2): mfma(a, EP[g]+4*ft, PHI+4*ft, B+4*g)
    if mid1: mid1()
    FS='fst' in EXP; b_=40 if isK else 50
    def mx(h):
        L=[]
        for k in range(4):
            for g in (2*h,2*h+1):
                p=EP[g]
                if k==0: L+=[f"v_max3_f32 v{MX[g]}, v{p}, v{p+1}, v{p+2}", f"v_max3_f32 v{NM[g]}, -v{p}, -v{p+1}, -v{p+2}"]
                elif k<3: L+=[f"v_max3_f32 v{MX[g]}, v{MX[g]}, v{p+2*k+1}, v{p+2*k+2}", f"v_max3_f32 v{NM[g]}, v{NM[g]}, -v{p+2*k+1}, -v{p+2*k+2}"]
                else: L+=[f"v_max_f32_e64 v{MX[g]}, v{MX[g]}, v{p+7}", f"v_max_f32_e64 v{NM[g]}, v{NM[g]}, -v{p+7}"]
        return L
    def xl(h, op, fin):
        q=[MX[2*h],MX[2*h+1],NM[2*h],NM[2*h+1]]
        return [f"v_permlane32_swap_b32 v{q[0]}, v{q[1]}\nv_permlane32_swap_b32 v{q[2]}, v{q[3]}",
                f"{op} v{q[0]}, v{q[0]}, v{q[1]}\n{op} v{q[2]}, v{q[2]}, v{q[3]}",
                f"v_permlane16_swap_b32 v{q[0]}, v{q[2]}\n{op} v{q[0]}, v{q[0]}, v{q[2]}"]+fin(q[0],q[2])+[
                f"v_permlane16_swap_b32 v{q[0]}, v{q[2]}\nv_mov_b32 v{q[1]}, v{q[0]}", f"v_mov_b32_e64 v{q[3]}, v{q[2]}",
                f"v_permlane32_swap_b32 v{q[0]}, v{q[1]}\nv_permlane32_swap_b32 v{q[2]}, v{q[3]}"]
    x1=lambda h: xl(h, "v_max_f32", lambda x,y: [f"v_mul_f32 v{y}, v{x}, v{CCP[h]}\nv_mul_f32 v{x}, v{x}, v{CCP[h]}"])
    x2=lambda h: xl(h, "v_add_f32", lambda x,y: [f"v_rcp_f32_e64 v{x}, v{x}", f"v_mul_f32 v{y}, v{x}, v{RLP[h]}\nv_mul_f32 v{x}, v{x}, v{RLP[h]}" if isK else f"v_mov_b32_e64 v{y}, v{x}"])
    def fm(h):
        L=[]
        for g in (2*h,2*h+1):
            for i in range(0,8,2):
                L+=[f"v_pk_fma_f32 {R(EM[g]+i,2)}, {R(EP[g]+i,2)}, {R(CC[g],2)}, {R(NM[g],2)} op_sel_hi:[1,0,0] neg_lo:[1,0,1] neg_hi:[1,0,1]",
                    f"v_pk_fma_f32 {R(EP[g]+i,2)}, {R(EP[g]+i,2)}, {R(CC[g],2)}, {R(MX[g],2)} op_sel_hi:[1,0,0] neg_lo:[0,0,1] neg_hi:[0,0,1]"]
        return L
    def ex(h): return [f"v_exp_f32 v{EM[g]+i}, v{EM[g]+i}\nv_exp_f32 v{EP[g]+i}, v{EP[g]+i}" for g in (2*h,2*h+1) for i in range(8)]
    def sm(h):
        L=[]
        for k in range(3):
            for g in (2*h,2*h+1):
                for sg,Eb in ((0,EP[g]),(1,EM[g])):
                    t=U+4*g+2*sg
                    L.append(f"v_pk_add_f32 {R(t,2)}, {R(Eb,2)}, {R(Eb+2,2)}" if k==0 else f"v_pk_add_f32 {R(t,2)}, {R(t,2)}, {R(Eb+2*k+2,2)}")
        for g in (2*h,2*h+1): L.append(f"v_add_f32 v{MX[g]}, v{U+4*g}, v{U+4*g+1}\nv_add_f32 v{NM[g]}, v{U+4*g+2}, v{U+4*g+3}")
        return L
    def fin(h):
        for g in (2*h,2*h+1):
            for pm,(Eb,Q) in enumerate(((EP[g],MX),(EM[g],NM))):
                for i in range(0,8,2): a(f"v_pk_mul_f32 {R(Eb+i,2)}, {R(Eb+i,2)}, {R(Q[g],2)} op_sel_hi:[1,0]")
                for i in range(4): a(f"v_cvt_pk_bf16_f32 v{Eb+i}, v{Eb+2*i}, v{Eb+2*i+1}")
                if tail: tail(g, pm, Eb)
    def E(L):
        for x in L: a(x)
    a.raw(".p2align 3, 0xbf800000") if False else None
    if FS: stamp2(a,b_)
    E(mx(0)); E(zipl(x1(0), mx(1), 2))
    if FS: stamp2(a,b_+1)
    E(zipl(x1(1), fm(0), 2))
    if FS: stamp2(a,b_+2)
    E(ex(0)); E(sm(0))
    if hook: hook(0)
    if FS: stamp2(a,b_+3)
    E(zipl(x2(0), fm(1), 2)); fin(0)
    if FS: stamp2(a,b_+4)
    if hook: hook(1)
    E(ex(1))
    if hook: hook(2)
    E(sm(1))
    if FS: stamp2(a,b_+5)
    E(zipl(x2(1), fillB, 1))
    if FS: stamp2(a,b_+6)
    fin(1)
    if FS: stamp2(a,b_+7)
    return EP, EM
def corrT(a, c0, CS, B):
    for g in range(4):
        s=g&1
        for i in range(0,8,2):
            r=acc(g,c0)+i
            a(f"v_pk_fma_f32 {R(r,2)}, {R(ML[g],2)}, {R(CS+i,2)}, {R(r,2)} op_sel_hi:[0,1,1] neg_lo:[1,0,0] neg_hi:[1,0,0]")
        for i in range(4): a(f"v_cvt_pk_bf16_f32 v{B+4*g+i}, v{acc(g,c0)+2*i}, v{acc(g,c0)+2*i+1}")

def ln_code(a):
    X=104; WR=120; S1=192; S2=196; S3=200; S4=204
    a(f"L_ln:\ns_lshl_b32 s3, s38, 12\ns_add_u32 s3, s3, {L_STG}\nv_lshlrev_b32 v2, 4, v1\nv_add_u32 v3, s3, v2\nv_add_u32 v2, {L_WR}, v2\ns_barrier")
    for i in range(2): a(f"ds_read_b128 {R(WR+4*i,4)}, v2 offset:{1024*i}")
    for i in range(4): a(f"ds_read_b128 {R(X+4*i,4)}, v3 offset:{1024*i}")
    stamp(a,3)
    a("v_mov_b32 v2, 0x3f803f80")
    for v in (S1,S2,S3,S4): a(f"v_mov_b32 v{v}, 0\nv_mov_b32 v{v+2}, 0")
    a("s_waitcnt lgkmcnt(2)")
    for r in range(2):
        if r: a("s_waitcnt lgkmcnt(0)")
        for d in range(8):
            x=X+8*r+d
            a(f"v_dot2c_f32_bf16 v{S1+2*r}, v{x}, v2\nv_dot2c_f32_bf16 v{S2+2*r}, v{x}, v{x}\nv_dot2c_f32_bf16 v{S3+2*r}, v{x}, v{WR+d}")
            a(f"v_dot2c_f32_bf16 v{S4+2*r}, v{WR+d}, v2")
    regs=[S1,S2,S3,S4]
    for v in regs: a(f"v_permlane32_swap_b32 v{v}, v{v+2}")
    for v in regs: a(f"v_add_f32 v{v}, v{v}, v{v+2}")
    for m in ("quad_perm:[1,0,3,2]", "quad_perm:[2,3,0,1]", "row_half_mirror", "row_mirror"):
        for v in regs: a(f"v_add_f32 v{v}, v{v}, v{v} {m} {DPPM}")
    for v in regs: a(f"v_mov_b32 v{v+1}, v{v}")
    for v in regs: a(f"v_permlane16_swap_b32 v{v}, v{v+1}")
    for v in regs: a(f"v_add_f32 v{v}, v{v}, v{v+1}")
    a(f"v_mul_f32 v{S1}, 0x3a800000, v{S1}\nv_mul_f32 v{S2}, 0x3a800000, v{S2}")
    rne(a, S1+1, S1)
    a(f"v_fma_f32 v{S2}, -v{S1}, v{S1}, v{S2}\nv_max_f32 v{S2}, 0, v{S2}\nv_fma_f32 v{S3}, -v{S1+1}, v{S4}, v{S3}\ns_waitcnt vmcnt(0)")
    rne(a, S2, S2)
    a(f"v_add_f32 v{S2}, 0x3727c5ac, v{S2}")
    rne(a, S2, S2)
    a(f"v_sqrt_f32 v{S2}, v{S2}")
    rne(a, S2, S2)
    a(f"v_rcp_f32 v2, v{S2}\nv_lshrrev_b32 v3, 16, v{S1+1}\nv_or_b32 v4, v3, v{S2}\nv_mul_f32 v{S3}, v{S3}, v2")
    rne(a, S3, S3)
    a(f"v_ashrrev_i32 v2, 31, v{S3}\nv_or_b32 v2, 0x80000000, v2\nv_xor_b32 v2, v{S3}, v2\nv_and_b32 v2, 0xffff0000, v2")
    a(f"v_lshrrev_b32 v3, 5, v1\nv_add_u32 v5, s69, v3\nv_sub_u32 v5, 2047, v5\nv_or_b32 v6, v2, v5\nv_mov_b32 v2, v6\nv_mov_b32 v5, v4\nv_add_u32 v7, 1, v248\nv_mov_b32 v3, 0\nv_readfirstlane_b32 s86, v7")
    a(f"v_permlane32_swap_b32 v6, v2\nv_permlane32_swap_b32 v4, v5\nv_max_u32 v6, v6, v2\ns_lshl_b32 s3, s69, 3")
    a(f"s_mov_b64 exec, 1\nbuffer_store_dwordx4 v[4:7], v3, s[{SWS}:{SWS+3}], s3 offen sc1\ns_mov_b64 exec, -1")
    stamp(a,4)
    a("s_branch L_lnr")

def c_wo(a, pos):
    for w in PLC.get(pos,[]):
        c=int(w[1])
        a(f"s_add_u32 m0, s72, {c*16384}\ns_add_u32 s3, s73, {c*262144}")
        for e in range(4): a(f"buffer_load_dwordx4 v{216+e}, s[88:91], s3 offen offset:{e*1024} lds")
def c_waves(a):
    a("L_C:")
    a("s_and_b32 s64, s38, 1\ns_lshr_b32 s65, s38, 1")
    F=[104,144]; vA=184; vW=186
    a("v_and_b32 v3, 15, v1\nv_lshlrev_b32 v3, 7, v3\ns_lshl_b32 s3, s64, 13\nv_add_u32 v3, s3, v3\nv_bfe_u32 v5, v1, 1, 3\nv_lshrrev_b32 v6, 4, v1\nv_xor_b32 v6, v6, v5")
    a(f"v_lshl_add_u32 v{vA}, v6, 4, v3\nv_xor_b32 v{vA+1}, 64, v{vA}")
    a("v_lshrrev_b32 v6, 4, v1\nv_lshlrev_b32 v6, 3, v6\nv_bfe_u32 v7, v1, 2, 2\nv_add_u32 v6, v6, v7\nv_lshlrev_b32 v6, 7, v6\nv_and_b32 v7, 3, v1\nv_lshl_add_u32 v6, v7, 3, v6\nv_add_u32 v6, 16384, v6")
    a("v_bfe_u32 v7, v1, 3, 2\ns_lshl_b32 s3, s65, 1\nv_xor_b32 v7, s3, v7")
    a(f"v_lshl_add_u32 v{vW}, v7, 5, v6\nv_xor_b32 v{vW+1}, 32, v{vW}")
    for i in range(4): a(f"v_add_u32 v{vA+4+i}, {2*SLOT}, v{vA+i}")
    a("s_waitcnt lgkmcnt(0)")
    srd(a, SWS, 26, WS_SIZE); srd(a, SX, 4, 2048*2048); srd(a, 88, 10, 1024*1024*2)
    a(f"s_lshl_b32 s3, s36, 7\ns_lshl_b32 s28, s37, 3\ns_add_u32 s3, s3, s28\ns_lshl_b32 s28, s38, 1\ns_add_u32 s69, s3, s28\nv_lshlrev_b32 v2, 4, v1\nv_mov_b32 v248, {WS_EPO}")
    for i in range(4): a(f"v_mov_b32 v{4+i}, -1")
    a(f"s_lshl_b32 s28, s2, 2\ns_add_u32 s28, s28, s38\ns_lshl_b32 s28, s28, 10\ns_add_u32 s28, s28, {WS_FILL}")
    a(f"buffer_store_dwordx4 v[4:7], v2, s[{SWS}:{SWS+3}], s28 offen sc1\nbuffer_load_dword v248, v248, s[{SWS}:{SWS+3}], 0 offen sc1")
    if STAMPS: a(f"v_mov_b32 v{VST-1}, 0\nv_writelane_b32 v{VST}, s96, 0")
    if 'nocpf' not in EXP:
        a("s_getpc_b64 s[92:93]")
        a.raw("L_pc:")
        a("s_sub_u32 s92, s92, L_pc-fused_kernel\ns_subb_u32 s93, s93, 0\ns_lshr_b32 s3, s2, 3\ns_lshl_b32 s3, s3, 2\ns_add_u32 s3, s3, s38\ns_lshl_b32 s3, s3, 8\nv_lshlrev_b32 v2, 7, v1\nv_add_u32 v2, s3, v2\ns_mov_b64 exec, 3")
        a("global_load_dword v249, v2, s[92:93]\ns_mov_b64 exec, -1")
    for i in range(0,96,2): a(f"v_mov_b64 {R(ACC+i,2)}, 0")
    def reads(sl, t2, fs):
        f=F[fs]; L=[]; b=4 if sl==2 else 0; o=SLOT if sl==1 else 0
        L.append(f"ds_read_b128 {R(f,4)}, v{vA+b+t2} offset:{o}")
        for c6 in range(6):
            for u in range(2):
                L.append(f"ds_read_b64_tr_b16 {R(f+16+4*c6+2*u,2)}, v{vW+b+(c6&1)} offset:{o+(32*t2+4*u)*128+(c6>>1)*8192}")
        for g in range(1,4): L.append(f"ds_read_b128 {R(f+4*g,4)}, v{vA+b+t2} offset:{o+g*2048}")
        return L
    def step(fs, rd, order=None):
        f=F[fs]; i=0
        for g,c6 in (order or [(g,c6) for g in range(4) for c6 in range(6)]):
            d=acc(g,c6)
            if c6<4: mfma(a, d, f+16+4*c6, f+4*g, d)
            else: mfma(a, d, f+4*g, f+16+4*c6, d)
            if rd is not None and i<len(rd): a(rd[i])
            i+=1
            if 'rd2' in EXP and rd is not None and i<len(rd) and i%3==0: a(rd[i]); i+=1
    a(f"s_lshl_b32 s3, s38, 2\ns_add_u32 s3, s3, {L_FLG}\nv_mov_b32 v2, s3\nv_mov_b32 v3, 0\nds_write_b32 v2, v3\nds_write_b32 v2, v3 offset:16")
    a("s_mov_b32 s86, 0\ns_mov_b32 s66, 0\ns_setprio 2\ns_waitcnt lgkmcnt(0)")
    stamp(a,1)
    if True: ln_code(a); a("L_lnr:")
    a("s_barrier")
    stamp2(a,8)
    for r in reads(0,0,0): a(r)
    a("s_branch L_cmid")
    a.raw(".p2align 6")
    a("L_cloop:")
    for sl in range(3):
        if sl==0 and False: a("s_cmp_eq_u32 s66, 1\ns_cbranch_scc1 L_ln\nL_lnr:")
        a("s_waitcnt lgkmcnt(0)\ns_barrier")
        step(1, reads(sl,0,0))
        if sl==0: a("L_cmid:")
        a("s_waitcnt lgkmcnt(0)\ns_nop 0")
        step(0, reads(sl,1,1)+(["s_add_u32 s66, s66, 1\ns_cmp_lt_u32 s66, 5"] if sl==2 else []))
    a("s_cbranch_scc1 L_cloop")
    AO=188
    ad = (f"v_and_b32 v2, 15, v1\nv_lshrrev_b32 v3, 4, v1\ns_lshl_b32 s3, s64, 8\ns_add_u32 s3, s3, {L_M}\nv_lshl_add_u32 v{AO}, v2, 2, s3\nv_lshl_add_u32 v{AO+1}, v3, 4, s3\n"
          f"v_lshrrev_b32 v7, 5, v1\nv_lshl_add_u32 v{AO+2}, v7, 6, v{AO}\n"
          f"s_lshl_b32 s3, s65, 7\ns_add_u32 s3, s3, {L_CS}\nv_lshl_add_u32 v{AO+3}, v3, 4, s3\nv_lshl_add_u32 v248, v2, 2, s3\n"
          f"s_lshl_b32 s3, s64, 7\ns_add_u32 s3, s3, {L_SQ}\nv_lshl_add_u32 v249, v3, 4, s3\nv_xor_b32 v253, 128, v249\n"
          f"v_lshrrev_b32 v250, 2, v1\nv_lshlrev_b32 v250, 6, v250\nv_and_b32 v251, 3, v1\nv_lshl_add_u32 v250, v251, 3, v250\ns_lshl_b32 s3, s65, 11\ns_add_u32 s3, s3, {L_PHI}\nv_add_u32 v252, s3, v250\n"
          f"v_bfe_u32 v5, v1, 1, 2\nv_lshlrev_b32 v5, 2, v5\nv_bfe_u32 v4, v1, 3, 1\nv_lshl_add_u32 v5, v4, 1, v5\nv_and_b32 v4, 1, v1\nv_add_u32 v5, v5, v4\nv_xor_b32 v5, v5, v3\n"
          f"s_lshl_b32 s3, s38, 13\ns_add_u32 s3, s3, {L_PHS}\nv_lshl_add_u32 v2, v2, 7, s3\nv_lshl_add_u32 v4, v5, 3, v2\nv_xor_b32 v5, 32, v4\nv_xor_b32 v6, 64, v4\nv_xor_b32 v7, 96, v4\n"
          f"v_bfe_u32 v2, v1, 3, 2\nv_lshlrev_b32 v2, 2, v2\nv_lshrrev_b32 v3, 5, v1\nv_lshl_add_u32 v2, v3, 1, v2\nv_bfe_u32 v3, v1, 2, 1\nv_add_u32 v2, v2, v3\nv_xor_b32 v2, v2, v251\n"
          f"v_lshrrev_b32 v3, 2, v1\nv_lshl_add_u32 v3, v3, 7, s3\nv_lshl_add_u32 v2, v2, 3, v3\ns_lshl_b32 s28, s64, 6\nv_xor_b32 v{vSR[0]}, s28, v2\nv_xor_b32 v{vSR[1]}, 32, v{vSR[0]}\n"
          f"s_lshl_b32 s3, s38, 12\ns_add_u32 s3, s3, {L_STG}\nv_lshlrev_b32 v{vLN}, 4, v1\nv_add_u32 v{vVS}, s3, v{vLN}\n"
          f"s_lshl_b32 s3, s37, 1\ns_add_u32 s67, s3, s65\ns_lshl_b32 s3, s67, 4\ns_add_u32 s3, s3, s36\ns_mul_i32 s3, s3, {KVS}\ns_add_u32 s75, s3, {WS_KVP}\ns_lshl_b32 s3, s64, 11\ns_add_u32 s74, s75, s3\ns_lshl_b32 s3, s64, 6\ns_add_u32 s75, s75, s3\ns_add_u32 s75, s75, 4096\n"
          f"s_lshl_b32 s3, s37, 4\ns_add_u32 s3, s3, s36\ns_lshl_b32 s3, s3, 7\ns_add_u32 s3, s3, {WS_RDY}\nv_mov_b32 v251, s86\ns_cmp_lg_u32 s38, 0\ns_cselect_b32 s76, {WS_SIZE}, s3").split("\n")
    def mix(rd, n):
        out=[]
        for i in range(24):
            t=[rd[i]] if i<len(rd) else []
            for _ in range(n if i<len(rd) else n+1):
                if ad: t.append(ad.pop(0))
            out.append("\n".join(t) if t else "s_nop 0")
        return out
    a("s_nop 0\ns_waitcnt lgkmcnt(0)\ns_barrier")
    step(1, mix(reads(0,0,0),1))
    a("s_waitcnt lgkmcnt(0)\ns_nop 0")
    step(0, mix(reads(0,1,1),1))
    while ad: a(ad.pop(0))
    rd=["s_barrier"]
    for g in (0,2): rd.append(f"ds_read_b32 v{ML[g]}, v{AO} offset:{64*g}\nds_read_b32 v{ML[g+1]}, v{AO} offset:{64*g+64}")
    for c in range(2): rd.append(f"ds_read_b128 {R(CSK+4*c,4)}, v{AO+3} offset:{256+64*c}")
    for ft in range(2):
        for v in range(2): rd.append(f"ds_read_b64_tr_b16 {R(PHI+4*ft+2*v,2)}, v252 offset:{1024*v+32*ft}")
    for g in range(4): rd.append(f"ds_read_b128 {R(MV+4*g,4)}, v{AO+1} offset:{64*g}")
    rd.append(f"ds_read_b32 v{CSV[1]}, v248 offset:576\nds_read_b32 v{CSV[0]}, v248 offset:512")
    for g in range(4): rd.append(f"ds_read_b32 v{CC[g]}, v{AO} offset:{2048+64*g}")
    for h in range(2): rd.append(f"ds_read_b32 v{CCP[h]}, v{AO+2} offset:{2048+128*h}\nds_read_b32 v{RLP[h]}, v{AO+2} offset:{1024+128*h}")
    for ks in range(2): rd.append(f"ds_read_b128 {R(SQF+4*ks,4)}, v249 offset:{64*ks}")
    for c in range(2): rd.append(f"ds_read_b128 {R(CSQ+4*c,4)}, v{AO+3} offset:{64*c}")
    a("s_waitcnt lgkmcnt(0)")
    step(1, rd, [(g,c6) for cs in ((2,3),(4,5),(0,1)) for g in range(4) for c6 in cs])
    a("s_waitcnt lgkmcnt(4)")
    stamp2(a,24)
    BK=232
    corrT(a, 2, CSK, BK)
    VL='vearly' not in EXP
    def vcorr():
        for g in range(4):
            for dt in range(2):
                for i in (0,2):
                    r=acc(g,4+dt)+i
                    a(f"v_pk_fma_f32 {R(r,2)}, {R(MV+4*g+i,2)}, {R(CSV[dt],2)}, {R(r,2)} op_sel_hi:[1,0,1] neg_lo:[1,0,0] neg_hi:[1,0,0]")
        for ks in range(2):
            for dt in range(2):
                d=acc(2*ks,4+dt); e=acc(2*ks+1,4+dt)
                a(f"v_cvt_pk_bf16_f32 v{d}, v{d}, v{d+1}\nv_cvt_pk_bf16_f32 v{d+1}, v{d+2}, v{d+3}\nv_cvt_pk_bf16_f32 v{d+2}, v{e}, v{e+1}\nv_cvt_pk_bf16_f32 v{d+3}, v{e+2}, v{e+3}")
                if not VL: a(f"ds_write_b128 v{vVS}, {R(d,4)} offset:{2048*ks+1024*dt}")
        for ks in range(2): a(f"ds_read_b128 {R(MV+4*ks,4)}, v253 offset:{64*ks}")
    AF=232
    KVt=[144,152,acc(0,2)]
    PA_=128
    def tail(g, pm, Eb):
        for ft in range(2): a(f"ds_write_b64 v{4+2*pm+ft}, {R(Eb+2*ft,2)} offset:{2048*g}")
        if VL and g<2: a(f"ds_write_b128 v{vVS}, {R(acc(2*g,4+pm),4)} offset:{2048*g+1024*pm}")
        if g&1 and pm:
            ks=g>>1
            for ft in range(2):
                for v in range(2): a(f"ds_read_b64_tr_b16 {R(AF+8*ks+4*ft+2*v,2)}, v{vSR[ft]} offset:{4096*ks+2048*v}")
    def kvm(k4):
        ks=k4&1; own=k4<2; L=[]
        for dt in range(3):
            for ft in range(2):
                d=KVt[dt]+4*ft
                Bo=(acc(2*ks+(0 if own else 1),4+dt) if dt<2 else (SQF if own else MV)+4*ks)
                L.append(f"v_mfma_f32_16x16x32_bf16 {R(d,4)}, {R((AF if own else PA_)+8*ks+4*ft,4)}, {R(Bo,4)}, {R(d,4) if k4 else '0'}")
        return L
    k0=kvm(0); k0[0]="s_waitcnt lgkmcnt(0)\ns_nop 0\n"+k0[0]
    CH=opt('ch',2)
    def hook(k):
        if k==CH: a(f"s_mov_b64 exec, 1\nbuffer_store_dword v251, v{vLN}, s[{SWS}:{SWS+3}], s76 offen sc1\ns_mov_b64 exec, -1")
    EP,EM = feature(a, BK, 2, True, mid1=vcorr, tail=tail, fillB=k0, hook=hook)
    stamp(a,34)
    a(f"v_xor_b32 v{vSR[0]}, 0x2000, v{vSR[0]}\nv_xor_b32 v{vSR[1]}, 0x2000, v{vSR[1]}\nv_xor_b32 v{vVS}, 0x1000, v{vVS}\ns_waitcnt lgkmcnt(4)\ns_barrier")
    for ks in range(2):
        for ft in range(2):
            for v in range(2): a(f"ds_read_b64_tr_b16 {R(PA_+8*ks+4*ft+2*v,2)}, v{vSR[ft]} offset:{4096*ks+2048*v}")
        for dt in range(2): a(f"ds_read_b128 {R(acc(2*ks+1,4+dt),4)}, v{vVS} offset:{2048*ks+1024*dt}")
    for k4 in range(1,4):
        a(f"s_waitcnt lgkmcnt({(12,6,0)[k4-1]})")
        for x in kvm(k4): a(x)
    stamp(a,33)
    for ft in range(2):
        for v in range(2): a(f"ds_read_b64_tr_b16 {R(PHI+4*ft+2*v,2)}, v252 offset:{L_PHQ-L_PHI+1024*v+32*ft}")
    a(f"s_xor_b32 s67, s67, {2*QX}\ns_lshl_b32 s3, s38, 2\ns_add_u32 s3, s3, {L_FLG}\nv_mov_b32 v4, s3\nv_mov_b32 v5, 1")
    for j in range(3):
        b=KVt[j]
        for i in range(4): a(f"v_cvt_pk_bf16_f32 v{b+i}, v{b+2*i}, v{b+2*i+1}")
        if j<2: a(f"buffer_store_dwordx4 {R(b,4)}, v{vLN}, s[{SWS}:{SWS+3}], s74 offen offset:{1024*j} sc1")
    a("s_mov_b32 exec_lo, 0x00010001\ns_mov_b32 exec_hi, 0x00010001")
    a(f"buffer_store_dwordx4 {R(KVt[2],4)}, v1, s[{SWS}:{SWS+3}], s75 offen sc1\ns_mov_b64 exec, -1\nds_write_b32 v4, v5")
    stamp(a,25)
    a("s_setprio 0")
    corrT(a, 0, CSQ, BK)
    a("s_waitcnt lgkmcnt(1)")
    EP,EM = feature(a, BK, 0, False)
    stamp(a,26)
    KF=104; ZF=120
    xaddr(a, 4); xload(a, 4)
    key_rd(a, 248)
    a("v_lshrrev_b32 v5, 3, v1\nv_lshlrev_b32 v6, 11, v5\nv_bfe_u32 v5, v1, 4, 2\nv_lshlrev_b32 v5, 1, v5\nv_and_b32 v7, 7, v1\nv_xor_b32 v5, v5, v7\nv_lshl_add_u32 v6, v5, 4, v6\ns_lshl_b32 s3, s35, 7\nv_add_u32 v6, s3, v6")
    for e in range(4): a(f"v_add_u32 v{216+e}, {e*15360}, v6")
    a("s_lshl_b32 s72, s38, 12\ns_lshl_b32 s73, s38, 16")
    stat3(a, 193, 192)
    a(f"s_mul_i32 s76, s67, {KVS}\ns_add_u32 s76, s76, {WS_KVR}\nv_lshlrev_b32 v5, 4, v1\nv_and_b32 v6, 48, v1\nv_add_u32 v6, 4096, v6")
    a(f"s_lshl_b32 s3, s38, 2\ns_add_u32 s3, s3, {L_FLG}\nv_mov_b32 v3, s3\nL_gw:\nds_read_b32 v2, v3\ns_waitcnt lgkmcnt(0)\nv_readfirstlane_b32 s3, v2\ns_cmp_eq_u32 s3, 3\ns_cbranch_scc1 L_gk\ns_sleep 1\ns_branch L_gw\nL_gk:")
    stamp(a,35)
    if opt('h2d',6): a(f"s_sleep {opt('h2d',6)}")
    def ld_h2():
        for j in range(4): a(f"buffer_load_dwordx4 {R(KF+4*j,4)}, v5, s[{SWS}:{SWS+3}], s76 offen offset:{1024*j} sc1")
        for pm in range(2): a(f"buffer_load_dwordx4 {R(ZF+4*pm,4)}, v6, s[{SWS}:{SWS+3}], s76 offen offset:{64*pm} sc1")
    ld_h2()
    key_fin(a, 248)
    a(f"s_lshl_b32 s3, s36, 3\ns_lshl_b32 s28, s64, 2\ns_add_u32 s3, s3, s28\ns_lshl_b32 s3, s3, 5\ns_add_u32 s3, s3, s67\ns_lshl_b32 s77, s3, 10\ns_add_u32 s77, s77, {WS_O}")
    a("s_waitcnt vmcnt(0)")
    stamp(a,36)
    checked(a, "L_k7", range(KF,KF+24), ld_h2)
    a("s_setprio 2")
    c_wo(a,'c2')
    stamp(a,27)
    for g in range(4):
        N=acc(g,2)
        for pm,Eb in ((0,EP[g]),(1,EM[g])):
            mfma(a, N+8, ZF+4*pm, Eb, N+8 if pm else None)
            for dt in range(2): mfma(a, N+4*dt, KF+8*pm+4*dt, Eb, N+4*dt if pm else None)
    for g in range(4): a(f"v_add_f32 v{acc(g,2)+8}, 0x358637bd, v{acc(g,2)+8}")
    for g in range(4): a(f"v_rcp_f32 v{acc(g,2)+8}, v{acc(g,2)+8}")
    for g in range(4):
        N=acc(g,2)
        for i in range(0,8,2): a(f"v_pk_mul_f32 {R(N+i,2)}, {R(N+i,2)}, {R(N+8,2)} op_sel_hi:[1,0]")
        for i in range(4): a(f"v_cvt_pk_bf16_f32 v{N+i}, v{N+2*i}, v{N+2*i+1}")
        a(f"buffer_store_dwordx4 {R(N,4)}, v5, s[{SWS}:{SWS+3}], s77 offen sc1")
        if g<3: a("s_add_u32 s77, s77, 32768")
    a(f"v_mov_b32 v2, 7\nds_write_b32 v3, v2\ns_and_b32 s3, s68, 127\ns_lshl_b32 s3, s3, 2\ns_add_u32 s3, s3, {L_M+512}\nv_mov_b32 v2, s3\nds_read_b32 v250, v2\nds_read_b32 v251, v2 offset:1024")
    stamp(a,28)
    a("s_setprio 0")
    if 'sfirst' in EXP: silu_prep(a, PG, PX, 193, 192, 196)
    wait7(a, "L_cw")
    c_wo(a,'co')
    if 'sfirst' not in EXP: silu_prep(a, PG, PX, 193, 192, 196)
    if opt('cpd',0): a(f"s_sleep {opt('cpd',0)}")
    stamp(a,29)

def p3(a):
    a("L_p3:")
    a.pad(4)
    D=opt('d3',4)
    PA=8; PB=40; PW=PB+8*D; vW=PW+32; vB=vW+4
    srd(a, SB, 22, 2048*2048)
    a(f"s_lshr_b32 s64, s39, 2\ns_lshl_b32 s3, s34, 2\ns_add_u32 s3, s3, s38\ns_lshl_b32 s3, s3, 16\ns_lshl_b32 s28, s64, 14\ns_add_u32 s3, s3, s28\ns_add_u32 s76, s3, {WS_O}")
    a(f"s_lshl_b32 s3, s64, 15\nv_lshlrev_b32 v2, 4, v1\nv_add_u32 v{vB}, s3, v2\nv_xor_b32 v{vB+1}, 0x8000, v{vB}")
    a(f"v_lshrrev_b32 v2, 2, v1\nv_lshlrev_b32 v2, 7, v2\nv_bfe_u32 v3, v1, 3, 2\nv_lshl_add_u32 v2, v3, 5, v2\nv_and_b32 v3, 3, v1\nv_lshl_add_u32 v2, v3, 3, v2\ns_lshl_b32 s3, s64, 16\nv_add_u32 v{vW}, s3, v2")
    for ct in range(1,4): a(f"v_xor_b32 v{vW+ct}, {32*ct}, v{vW}")
    ROT='prot' in EXP
    vWr=196
    if ROT:
        for k in range(4):
            a(f"s_and_b32 s3, s35, 3\ns_xor_b32 s3, s3, {k}\ns_lshl_b32 s{79+k}, s3, 10\ns_add_u32 s{79+k}, s{79+k}, s76\ns_lshl_b32 s3, s3, 12")
            for ct in range(4): a(f"v_add_u32 v{vWr+4*k+ct}, s3, v{vW+ct}")
    def ldx(j, b, sreg):
        if ROT: a(f"s_add_u32 s{sreg}, s{79+(j&3)}, {(j&~3)*1024}")
        for e in range(2): a(f"buffer_load_dwordx4 {R(b+4*e,4)}, v{vB+e}, s[{SWS}:{SWS+3}], s{sreg} offen offset:{0 if ROT else (j%4)*1024} sc1")
    def ld(j):
        b=PB+8*(j%D)
        if j%4==0 and not ROT: a(f"s_add_u32 s77, s76, {j*1024}")
        ldx(j,b,77)
    def wr(j):
        b=PW+16*(j%2)
        if ROT: return [f"ds_read_b64_tr_b16 {R(b+4*ct+2*v,2)}, v{vWr+4*(j&3)+ct} offset:{(j&~3)*4096+v*2048}" for ct in range(4) for v in range(2)]
        return [f"ds_read_b64_tr_b16 {R(b+4*ct+2*v,2)}, v{vW+ct} offset:{j*4096+v*2048}" for ct in range(4) for v in range(2)]
    for j in range(D-1): ld(j)
    stamp2(a,30)
    a(f"s_lshr_b32 s3, s68, 7\ns_xor_b32 s83, s3, s34\ns_or_b32 s83, s83, s39")
    YL=128; IS=250
    def ld_y():
        for j in range(16):
            if j%4==0: a(f"s_add_u32 s3, s78, {j*1024}")
            a(f"buffer_load_dwordx4 {R(YL+4*j,4)}, v192, s[{SWS}:{SWS+3}], s3 offen offset:{(j%4)*1024} sc1")
    def fix1():
        a(f"L_fx1:\nv_lshlrev_b32 v192, 4, v1\ns_lshl_b32 s78, s35, 14\ns_add_u32 s78, s78, {WS_Y}")
        a(f"v_and_b32 v2, 15, v1\nv_lshrrev_b32 v3, 4, v1\nv_lshl_add_u32 v193, v2, 2, v3\nv_and_b32 v2, 7, v193\nv_lshrrev_b32 v193, 3, v193\nv_lshl_add_u32 v193, v2, 3, v193\nv_lshlrev_b32 v2, 1, v193\ns_lshl_b32 s3, s68, 11\ns_lshl_b32 s28, s35, 7\ns_add_u32 s3, s3, s28\nbuffer_load_ushort v194, v2, s[{SX}:{SX+3}], s3 offen")
        ld_y()
        a("s_branch L_fx1r")
    def fix2():
        a("L_fx2:\ns_and_b32 s3, s70, 0xffff0000\ns_xor_b32 s28, s3, 0x80000000\ns_not_b32 s29, s3\ns_and_b32 s29, s29, 0xffff0000\ns_bitcmp1_b32 s3, 31\ns_cselect_b32 s3, s28, s29")
        a(f"v_mov_b32 v195, s3\nv_mul_f32 v195, 0xbfb8aa3b, v195\nv_exp_f32 v195, v195\nv_add_f32 v195, 1.0, v195\nv_rcp_f32 v195, v195")
        rne(a,195,195)
        checked(a, "L_k6", range(YL,YL+64), ld_y, sleep=4)
        for k in (8,4,2,1):
            for i in range(0,4*k,2): a(f"v_pk_add_f32 {R(YL+i,2)}, {R(YL+i,2)}, {R(YL+4*k+i,2)}")
        for i in range(2): a(f"v_permlane32_swap_b32 v{YL+i}, v{YL+2+i}")
        for i in range(2): a(f"v_add_f32 v{YL+i}, v{YL+i}, v{YL+2+i}")
        a(f"v_permlane16_swap_b32 v{YL}, v{YL+1}\nv_add_f32 v{YL}, v{YL}, v{YL+1}")
        rne(a,YL,YL)
        a(f"v_mul_f32 v{YL}, v{YL}, v195\nv_lshlrev_b32 v194, 16, v194\nv_sub_f32 v194, v194, v{IS}")
        rne(a,YL,YL); rne(a,194,194)
        a(f"v_mul_f32 v194, v194, v{IS+1}")
        rne(a,194,194)
        a(f"v_add_f32 v{YL}, v{YL}, v194")
        rne(a,YL,YL)
        a(f"v_mul_f32 v2, 0xbfb8aa3b, v{YL}\nv_exp_f32 v2, v2\nv_add_f32 v2, 1.0, v2\nv_rcp_f32 v2, v2\nv_mul_f32 v2, v{YL}, v2\nv_lshlrev_b32 v3, 2, v193\nds_write_b32 v3, v2\ns_branch L_fx2r")
    for r in wr(0): a(r)
    a("s_mov_b32 s29, 0")
    for j in range(16):
        b=PB+8*(j%D); w=PW+16*(j%2)
        if j+D-1<16: ld(j+D-1)
        a(f"s_waitcnt vmcnt({2*min(D-1,15-j)})")
        if j==opt('fxj',14): a("s_cmp_eq_u32 s83, 0\ns_cbranch_scc1 L_fx1\nL_fx1r:")
        if 'pst' in EXP and j%4==0: stamp2(a,40+j//4)
        a(f"L_c{j}:")
        maxu(a, 2, range(b,b+8))
        a(f"v_cmp_eq_u32 vcc, -1, v2\ns_cbranch_vccnz L_r{j}\nL_g{j}:\ns_waitcnt lgkmcnt(0)")
        BC=opt('bc',7)
        if BC==3:
            if j==3: a("s_barrier")
        elif j in (3,BC): a(f"s_cmp_eq_u32 s64, {0 if j==3 else 1}\ns_cbranch_scc1 L_nb{j}\ns_barrier\nL_nb{j}:")
        rd = wr(j+1) if j<15 else []
        i=0
        for ct in range(4):
            for e in range(2):
                d=PA+16*e+4*ct
                mfma(a, d, w+4*ct, b+4*e, d if j else None)
                if rd: a(rd[i])
                i+=1
    stamp2(a,31)
    if STAMPS: a(f"v_writelane_b32 v{VST-1}, s29, 58")
    a("s_cmp_eq_u32 s83, 0\ns_cbranch_scc1 L_fx2\nL_fx2r:")
    a(f"s_lshl_b32 s3, s39, 12\ns_add_u32 s3, s3, {L_STG}\nv_lshlrev_b32 v2, 4, v1\nv_add_u32 v2, s3, v2\nv_xor_b32 v3, 0x4000, v2\ns_xor_b32 s28, s3, 0x4000")
    for ct in range(4): a(f"ds_write_b128 v2, {R(PA+16+4*ct,4)} offset:{1024*ct}")
    XF=40
    for d in range(8): unpack(a, XF+2*d, PX+d)
    a(f"v_and_b32 v4, 15, v1\nv_lshrrev_b32 v5, 4, v1\nv_lshlrev_b32 v6, 1, v4\nv_and_b32 v6, 14, v6\nv_xor_b32 v5, v5, v6\nv_lshl_add_u32 v4, v4, 7, s28\nv_lshl_add_u32 v4, v5, 3, v4")
    a(f"v_lshrrev_b32 v5, 3, v1\nv_and_b32 v6, 7, v1\nv_xor_b32 v7, v6, v5\nv_lshl_add_u32 v7, v7, 4, s28\nv_lshl_add_u32 v7, v5, 7, v7")
    a(f"s_lshl_b32 s3, s34, 7\ns_add_u32 s3, s3, s69\nv_add_u32 v5, s3, v5\nv_lshlrev_b32 v5, 11, v5\nv_lshl_add_u32 v5, v6, 4, v5\ns_lshl_b32 s3, s35, 7\ns_add_u32 s28, s3, 16384")
    a(f"s_lshl_b32 s29, s34, 7\ns_add_u32 s29, s29, s69\ns_andn2_b32 s77, s68, 15\ns_cmp_lg_u32 s29, s77")
    a("s_waitcnt lgkmcnt(0)\ns_barrier")
    a(f"s_cbranch_scc1 L_nov\nv_and_b32 v2, 48, v1\ns_and_b32 s29, s68, 15\ns_lshl_b32 exec_lo, 0x00010001, s29\ns_mov_b32 exec_hi, exec_lo")
    for ct in range(4): a(f"ds_read_b128 {R(PG+4*ct,4)}, v2 offset:{64*ct}")
    a("s_mov_b64 exec, -1\nL_nov:")
    for ct in range(4): a(f"ds_read_b128 {R(PA+16+4*ct,4)}, v3 offset:{1024*ct}")
    for ct in range(4):
        a(f"s_waitcnt lgkmcnt({3-ct})")
        for i in (0,2): a(f"v_pk_add_f32 {R(PA+4*ct+i,2)}, {R(PA+4*ct+i,2)}, {R(PA+16+4*ct+i,2)}")
        for i in (0,2): a(f"v_pk_fma_f32 {R(XF+4*ct+i,2)}, {R(PA+4*ct+i,2)}, {R(PG+4*ct+i,2)}, {R(XF+4*ct+i,2)}")
        for i in (0,1): a(f"v_cvt_pk_bf16_f32 v{PA+2*ct+i}, v{XF+4*ct+2*i}, v{XF+4*ct+2*i+1}")
    for ct in range(4):
        if ct: a(f"v_xor_b32 v6, {32*ct}, v4")
        a(f"ds_write_b64 v{6 if ct else 4}, {R(PA+2*ct,2)}")
    for e in range(2): a(f"ds_read_b128 {R(PA+16+4*e,4)}, v7 offset:{1024*e}")
    OM = '' if 'outplain' in EXP else ' nt' if 'outnt' in EXP else ' sc1 nt' if 'outsn' in EXP else ' sc0 sc1' if 'outss' in EXP else ' sc1'
    for e in range(2):
        a(f"s_waitcnt lgkmcnt({1-e})\nbuffer_store_dwordx4 {R(PA+16+4*e,4)}, v5, s[{SB}:{SB+3}], s{28 if e else 3} offen{OM}")
    if STAMPS: a("s_waitcnt vmcnt(0)")
    stamp(a,32)
    dump(a)
    if LEAK>=0: a("s_memrealtime s[98:99]\ns_waitcnt lgkmcnt(0)\ns_sub_u32 s94, s94, s96\ns_add_u32 s94, s94, s98\nL_lk:\ns_sleep 1\ns_memrealtime s[98:99]\ns_waitcnt lgkmcnt(0)\ns_cmp_lt_u32 s98, s94\ns_cbranch_scc1 L_lk")
    a("L_done:\ns_endpgm")
    if False: ln_code(a)
    fix1(); fix2()
    for j in range(16):
        b=PB+8*(j%D)
        a(f"L_r{j}:\ns_add_u32 s29, s29, 1\ns_cmp_ge_u32 s29, {SPIN}\ns_cbranch_scc1 L_g{j}\ns_add_u32 s3, s76, {(j&~3)*1024}")
        ldx(j,b,3)
        a(f"s_waitcnt vmcnt(0)\ns_branch L_c{j}")

def kern(a):
    kernel_header(a, "fused_kernel")
    a("s_cmp_ge_u32 s2, 256\ns_cbranch_scc1 L_done")
    a("s_load_dwordx16 s[4:19], s[0:1], 0\ns_load_dwordx8 s[20:27], s[0:1], 64")
    if STAMPS or LEAK>=0: a("s_memrealtime s[96:97]\ns_memrealtime s[94:95]")
    a("v_and_b32 v1, 63, v0\nv_lshrrev_b32 v2, 6, v0")
    a("v_readfirstlane_b32 s39, v2")
    a("s_and_b32 s34, s2, 1\ns_lshl_b32 s34, s34, 3\ns_bfe_u32 s3, s2, 0x30003\ns_add_u32 s36, s34, s3")
    a("s_bfe_u32 s37, s2, 0x20001\ns_lshl_b32 s37, s37, 2\ns_lshr_b32 s28, s2, 6\ns_add_u32 s37, s37, s28")
    if ARR==2: a("s_and_b32 s3, s3, 1\ns_add_u32 s34, s34, s3\ns_and_b32 s3, s2, 6\ns_add_u32 s34, s34, s3\ns_lshr_b32 s35, s2, 4")
    if ARR==4: a("s_and_b32 s3, s3, 3\ns_add_u32 s34, s34, s3\ns_and_b32 s3, s37, 4\ns_add_u32 s34, s34, s3\ns_lshr_b32 s35, s2, 5\ns_and_b32 s3, s37, 8\ns_add_u32 s35, s35, s3")
    if ARR==8: a("s_mov_b32 s34, s36\ns_xor_b32 s35, s37, 1")
    a("s_and_b32 s38, s39, 3")
    a("s_cmp_lt_u32 s39, 4\ns_cbranch_scc1 L_C")
    h_waves(a)
    c_waves(a)
    p3(a)
    return kernel_desc("fused_kernel", 256, 102)

if __name__ == "__main__":
    a=CAsm()
    head = open('/code/%s.s.ref'%NAME).read().split('\n')
    hdr = [l for l in head if l.startswith(';') and '@launch' not in l and 'Override launch' not in l and 'grid=ceil' not in l]
    out='\n'.join(hdr)+"\n; @launch kernel=fused_kernel grid=(256,1,1) block=(512,1,1) lds=163840\n"
    out+='.amdgcn_target "amdgcn-amd-amdhsa--gfx950"\n.text\n'
    d=kern(a)
    if 'noal' not in EXP:
        import align
        a.lines,nw,nn = align.align(a.lines, '.amdgcn_target "amdgcn-amd-amdhsa--gfx950"\n.text\n')
    out+=a.text()+".p2align 8\n.fill 4096, 4, 0xbf800000\n"+'.section .rodata,"a"\n.p2align 6\n'+d
    if 'official' in EXP:
        out = out.replace("; @launch kernel=fused_kernel grid=", "; @launch grid=").replace("fused_kernel", NAME+"_kernel")
    open(sys.argv[1],"w").write(out)
```

```python
import sys, os
from asmgen import Asm, kernel_header, kernel_desc
NAME = "recurrent_scan__linear_kernel_hedgehog__moe_arch_mod__prompt"
EXP = os.environ.get('EXP','').split(',')
STAMPS = 'st' in EXP or 'lite' in EXP
LITE = 'lite' in EXP
def opt(name, default):
    for e in EXP:
        if e.startswith(name+'='): return int(e.split('=')[1])
    return default
WS_SIZE = 0x10000000
WS_REC  = 0x000000
WS_EPO  = 0x004000
WS_RDY  = 0x008000
KVS     = 4224
WS_FILL = 0x100000
WS_CSP  = 0x080000
WS_KVR  = WS_FILL
WS_GU   = WS_KVR + 32*KVS
WS_Y    = WS_GU + 16*3584*4
assert WS_Y + 16*64*256 <= WS_FILL + 1024*768
WS_O    = 0x400000
WS_KVP  = 0x800000
WS_DBG  = 0x3000000
SLOT = 40960
L_PHS  = 98304
L_WR   = 122880
L_STG  = 131072
LM     = 147456
L_PHI  = LM+256
L_M    = LM+4096+512
L_R    = L_M+1024
L_RC   = L_R+1024
L_SQ   = L_RC+512
L_CS   = L_SQ+256
L_PHQ  = LM+8192+256
L_KEY  = LM+8192+256+6144
L_FLG  = L_KEY+64
assert L_CS+768 <= LM+8192 and L_FLG+32 <= 163840
NT = opt('nt',1)
PLC = {}
for it_ in os.environ.get('PLC','i0:k0;i1:k1,k2;i4:a;i5:o0,o1;i8:p,t,G0006;i9:b0;j10:b1;i12:o2,o3;j14:G0614;x0:w0,w1,w4,G1421;x2:w2,w3,w5;h0:G2123;co:w6,w7').split(';'):
    PLC.setdefault(it_.split(':')[0],[]).extend(it_.split(':')[1].split(','))
FNT = '' if 'fplain' in EXP else ' nt'
TNT = ' nt' if 'tnt' in EXP else ''
ARR = opt('arr',8)
QX = opt('qx',4)
LNP = 3
DPPM = "row_mask:0xf bank_mask:0xf"
LOG2E = 0x3fb8aa3b
SPIN = 200000
SX, SW, SWS, SA, SB, SC = 40, 44, 48, 52, 56, 60
VST = 255
LNX = 192

def srd(a, d, base, size):
    a(f"s_mov_b32 s{d}, s{base}\ns_mov_b32 s{d+1}, s{base+1}\ns_mov_b32 s{d+2}, {size}\ns_mov_b32 s{d+3}, 0x00020000")
LEAK = opt('leak',-1)
def stamp(a, i):
    if i==LEAK: a("s_memrealtime s[94:95]")
    if STAMPS and (i==32 or not LITE): a(f"s_memrealtime s[100:101]\ns_waitcnt lgkmcnt(0)\nv_writelane_b32 v{VST}, s100, {i}")
def stamp2(a, i):
    if i==LEAK: a("s_memrealtime s[94:95]")
    if STAMPS and not LITE: a(f"s_memrealtime s[100:101]\ns_memtime s[98:99]\ns_waitcnt lgkmcnt(0)\nv_writelane_b32 v{VST}, s100, {i}\nv_writelane_b32 v{VST-1}, s98, {i}")
def dump(a):
    if STAMPS: a(f"s_lshl_b32 s3, s2, 3\ns_add_u32 s3, s3, s39\ns_lshl_b32 s3, s3, 9\ns_add_u32 s3, s3, {WS_DBG}\nv_lshlrev_b32 v2, 3, v1\nbuffer_store_dwordx2 v[{VST-1}:{VST}], v2, s[{SWS}:{SWS+3}], s3 offen")
def rne(a, dst, src):
    a(f"v_cvt_pk_bf16_f32 v{dst}, v{src}, v{src}\nv_lshlrev_b32 v{dst}, 16, v{dst}")
def R(b, n): return f"v[{b}:{b+n-1}]"
def unpack(a, dst, src):
    a(f"v_lshlrev_b32 v{dst}, 16, v{src}\nv_and_b32 v{dst+1}, 0xffff0000, v{src}")
def mfma(a, d, A, B, c=None):
    a(f"v_mfma_f32_16x16x32_bf16 {R(d,4)}, {R(A,4)}, {R(B,4)}, {'0' if c is None else R(c,4)}")

class CAsm(Asm):
    cap=None
    def __call__(self, text):
        if self.cap is not None: self.cap += [t for t in text.strip().split('\n') if t.strip()]
        else: super().__call__(text)
    def capture(self, f):
        self.cap=[]; f(); r=self.cap; self.cap=None; return r

class VM:
    def __init__(self, a, nt=1): self.a=a; self.nt=nt; self.q=[[] for _ in range(nt)]; self.only=None; self.nl=0
    def issue(self, tag, n=1):
        for c in range(self.nt):
            if self.only is None or c in self.only: self.q[c] += [tag]*n
    def wait(self, tag):
        need={}
        for c in range(self.nt):
            q=self.q[c]
            if tag in q and (self.only is None or c in self.only):
                idx=max(i for i,t in enumerate(q) if t==tag); need[c]=len(q)-1-idx; self.q[c]=q[idx+1:]
        if not need: return
        allc=[c for c in range(self.nt) if self.only is None or c in self.only]
        base=max(need.values()) if len(need)==len(allc) else None
        if base is not None: self.a(f"s_waitcnt vmcnt({min(base,63)})")
        for c,n in need.items():
            if n!=base:
                self.nl+=1
                self.a(f"s_cmp_lg_u32 s85, {c}\ns_cbranch_scc1 L_vw{self.nl}\ns_waitcnt vmcnt({min(n,63)})\nL_vw{self.nl}:")
    def drain(self): self.a("s_waitcnt vmcnt(0)"); self.q=[[] for _ in range(self.nt)]
    def cond(self, classes, f):
        classes=set(classes)
        if not classes: return
        if len(classes)==self.nt: f(); return
        self.nl+=1; l=f"L_vc{self.nl}"
        if len(classes)==1: self.a(f"s_cmp_lg_u32 s85, {list(classes)[0]}\ns_cbranch_scc1 {l}")
        else:
            for c in set(range(self.nt))-classes: self.a(f"s_cmp_eq_u32 s85, {c}\ns_cbranch_scc1 {l}")
        self.only=classes; f(); self.only=None
        self.a(f"{l}:")

def maxu(a, dst, regs):
    regs=list(regs)
    if len(regs)==1: a(f"v_mov_b32 v{dst}, v{regs[0]}"); return
    if len(regs)==2: a(f"v_max_u32 v{dst}, v{regs[0]}, v{regs[1]}"); return
    a(f"v_max3_u32 v{dst}, v{regs[0]}, v{regs[1]}, v{regs[2]}"); regs=regs[3:]
    while len(regs)>=2: a(f"v_max3_u32 v{dst}, v{dst}, v{regs[0]}, v{regs[1]}"); regs=regs[2:]
    if regs: a(f"v_max_u32 v{dst}, v{dst}, v{regs[0]}")

def checked(a, lbl, regs, reload, t=2, sleep=1):
    a(f"s_mov_b32 s29, 0\n{lbl}:")
    maxu(a, t, regs)
    a(f"v_cmp_eq_u32 vcc, -1, v{t}\ns_cbranch_vccz {lbl}k\ns_add_u32 s29, s29, 1\ns_cmp_ge_u32 s29, {SPIN}\ns_cbranch_scc1 {lbl}k")
    if sleep: a(f"s_sleep {sleep}")
    reload()
    a(f"s_waitcnt vmcnt(0)\ns_branch {lbl}\n{lbl}k:")
    if STAMPS: a(f"v_writelane_b32 v{VST-1}, s29, {50+int(lbl[3:])}")

def red8(a, e):
    for i in range(4): a(f"v_permlane32_swap_b32 v{e+i}, v{e+4+i}")
    for i in range(4): a(f"v_add_f32 v{e+i}, v{e+i}, v{e+4+i}")
    for i in range(2): a(f"v_permlane16_swap_b32 v{e+i}, v{e+2+i}")
    for i in range(2): a(f"v_add_f32 v{e+i}, v{e+i}, v{e+2+i}")
    for i in range(2): a(f"v_add_f32 v{e+i}, v{e+i}, v{e+i} row_ror:8 {DPPM}")

def silu_prep(a, PG, PX, vm_, vr, T):
    assert vr%2==0 and T%2==0
    a(f"v_mul_f32 v{T}, v{vm_}, v{vr}\nv_mov_b32 v{T+2}, 0xbfb8aa3b")
    E=T+4
    for d in range(8): unpack(a, PG+2*d, PX+d)
    for i in range(0,16,2): a(f"v_pk_fma_f32 {R(PG+i,2)}, {R(PG+i,2)}, {R(vr,2)}, {R(T,2)} op_sel_hi:[1,0,0] neg_lo:[0,0,1] neg_hi:[0,0,1]")
    for i in range(0,16,2): a(f"v_pk_mul_f32 {R(E+i,2)}, {R(PG+i,2)}, {R(T+2,2)} op_sel_hi:[1,0]")
    for i in range(16): a(f"v_exp_f32 v{E+i}, v{E+i}")
    for i in range(0,16,2): a(f"v_pk_add_f32 {R(E+i,2)}, {R(E+i,2)}, 1.0 op_sel_hi:[1,0]")
    for i in range(16): a(f"v_rcp_f32 v{E+i}, v{E+i}")
    for i in range(0,16,2): a(f"v_pk_mul_f32 {R(PG+i,2)}, {R(PG+i,2)}, {R(E+i,2)}")

PG, PX = 224, 240
def xaddr(a, dst, t0=2, t1=3):
    a(f"s_lshl_b32 s3, s38, 1\ns_lshr_b32 s28, s39, 2\ns_add_u32 s3, s3, s28\ns_lshl_b32 s69, s3, 4")
    a(f"v_and_b32 v{t0}, 15, v1\nv_add_u32 v{dst}, s69, v{t0}\nv_lshlrev_b32 v{dst}, 7, v{dst}\nv_lshrrev_b32 v{t0}, 1, v{t0}\nv_lshrrev_b32 v{t1}, 5, v1\nv_xor_b32 v{t0}, v{t0}, v{t1}\nv_lshl_add_u32 v{dst}, v{t0}, 4, v{dst}\nv_bfe_u32 v{t1}, v1, 4, 1\nv_lshl_add_u32 v{dst}, v{t1}, 3, v{dst}")
def stat3(a, vm_, vr):
    a(f"v_and_b32 v2, 15, v1\nv_add_u32 v2, s69, v2\nv_lshlrev_b32 v2, 2, v2\nv_add_u32 v2, {L_M}, v2\nds_read_b32 v{vm_}, v2\nds_read_b32 v{vr}, v2 offset:1024")

def wait7(a, l):
    a(f"v_and_b32 v3, 3, v1\nv_lshlrev_b32 v3, 2, v3\nv_add_u32 v3, {L_FLG}, v3\n{l}:\nds_read_b32 v2, v3\ns_waitcnt lgkmcnt(0)\nv_cmp_ne_u32 vcc, 7, v2\ns_cbranch_vccz {l}k\ns_sleep 1\ns_branch {l}\n{l}k:")
def key_rd(a, v):
    a(f"v_mov_b32 v2, {L_KEY}\nds_read_b32 v{v}, v2")
def key_fin(a, v):
    a(f"s_waitcnt lgkmcnt(0)\nv_readfirstlane_b32 s70, v{v}\ns_and_b32 s68, s70, 0x7ff\ns_sub_u32 s68, 2047, s68")

def h_waves(a):
    vm = VM(a, NT)
    vA=8; vW=12; vCS=18; vF=21; vD=22; vXo=23
    CSA=24; CSL=32; XF=80
    FW=128; DW=192; FA=120; SENT=248; vL16=252; vP64=253
    a("L_H:")
    a("v_and_b32 v4, 7, v1\ns_lshl_b32 s33, s37, 7\ns_lshl_b32 s87, s85, 7\ns_lshl_b32 s66, s80, 7")
    a("s_lshl_b32 s3, s36, 7\ns_lshl_b32 s28, s38, 5\ns_add_u32 s3, s3, s28")
    a("v_lshrrev_b32 v7, 3, v1\nv_add_u32 v3, s3, v7\nv_lshlrev_b32 v3, 11, v3")
    a("v_lshrrev_b32 v5, 4, v1\nv_xor_b32 v6, v4, v5\nv_xor_b32 v5, 4, v6")
    a("v_lshl_add_u32 v6, v6, 4, v3\nv_lshl_add_u32 v5, v5, 4, v3")
    for j in range(4): a(f"v_add_u32 v{vA+j}, {j*16384 - j*1024}, v{5 if j&1 else 6}")
    a("s_lshr_b32 s32, s36, 1\ns_and_b32 s32, s32, 2\ns_xor_b32 s32, s32, s38" if 'nowx' not in EXP else "s_mov_b32 s32, s38")
    a("s_lshl_b32 s3, s32, 4\nv_add_u32 v7, s3, v7\nv_mul_u32_u24 v7, 6144, v7")
    a("v_bfe_u32 v6, v1, 4, 1\nv_lshlrev_b32 v6, 1, v6\nv_xor_b32 v5, v4, v6\nv_add_u32 v7, s33, v7\nv_xor_b32 v6, 4, v5\nv_lshl_add_u32 v6, v6, 4, v7\nv_lshl_add_u32 v7, v5, 4, v7")
    for e in range(6): a(f"v_add_u32 v{vW+e}, {(e>>1)*2048 + (e&1)*(8*6144-1024)}, v{6 if e&1 else 7}")
    for e in range(2): a(f"v_xor_b32 v{vW+e}, {QX*128}, v{vW+e}")
    a(f"s_lshl_b32 s30, s38, 12\ns_lshl_b32 s31, s32, 11\ns_add_u32 s31, s31, 16384")
    a("s_waitcnt lgkmcnt(0)")
    srd(a, SW, 6, 1024*3072*2); srd(a, SX, 4, 2048*2048)
    def tiles(s, wfirst=False, part=None):
        sl=(s%3)*SLOT
        def A_():
            a(f"s_add_u32 m0, s30, {sl}")
            for j in range(4): a(f"buffer_load_dwordx4 v{vA+j}, s[{SX}:{SX+3}], s64 offen offset:{j*1024}{TNT if s%4==0 else ''} lds")
        def W_():
            for e in range(6):
                if e%2==0: a(f"s_add_u32 m0, s31, {sl+(e>>1)*8192}")
                a(f"buffer_load_dwordx4 v{vW+e}, s[{SW}:{SW+3}], s65 offen offset:{(e&1)*1024}{TNT if s%4==0 else ''} lds")
        a(f"s_add_u32 s64, s87, {(s&3)*128}\ns_and_b32 s64, s64, 511\ns_or_b32 s64, s64, {(s>>2)*512}\ns_xor_b32 s64, s64, s66\ns_mul_i32 s65, s64, 3072")
        if part=='W': W_(); vm.issue(('t',s),6); return
        if part=='A': A_(); vm.issue(('t',s),4); return
        if wfirst: W_(); A_()
        else: A_(); W_()
        vm.issue(('t',s),10)
    def fill_addr():
        a(f"s_lshr_b32 s3, s38, 1\ns_lshl_b32 s28, s37, 1\ns_add_u32 s28, s28, s3\ns_and_b32 s29, s38, 1")
        a(f"s_lshl_b32 s3, s28, 4\ns_add_u32 s3, s3, s36\ns_mul_i32 s3, s3, {KVS}\ns_mul_i32 s78, s29, {KVS//2}\ns_add_u32 s78, s78, s3\ns_add_u32 s78, s78, {WS_KVP}")
        a(f"s_lshl_b32 s3, s36, 1\ns_add_u32 s29, s29, s3\ns_xor_b32 s28, s28, {2*QX}\ns_lshl_b32 s3, s29, 7\ns_add_u32 s3, s3, s28\ns_lshl_b32 s3, s3, 10\ns_add_u32 s79, s3, {WS_O}")
    def fillk(i0_,i1_):
        if 'nofill' in EXP: return
        for i in range(i0_,i1_):
            if i<2: a(f"buffer_store_dwordx4 {R(SENT,4)}, v{vL16}, s[{SWS}:{SWS+3}], s78 offen offset:{i*1024} sc1")
            else: a(f"s_mov_b64 exec, 15\nbuffer_store_dwordx4 {R(SENT,4)}, v{vL16}, s[{SWS}:{SWS+3}], s78 offen offset:2048 sc1\ns_mov_b64 exec, -1")
            vm.issue('own',1)
    def fillo(i):
        if 'nofill' in EXP: return
        a(f"s_add_u32 s3, s79, {i*32768}\nbuffer_store_dwordx4 {R(SENT,4)}, v{vL16}, s[{SWS}:{SWS+3}], s3 offen sc1")
        vm.issue('own',1)
    def xrows(h):
        a(f"s_lshl_b32 s3, s36, 7\ns_lshl_b32 s28, s37, 3\ns_add_u32 s3, s3, s28\ns_lshl_b32 s3, s3, 11\ns_add_u32 s3, s3, s30\ns_add_u32 m0, s30, {L_STG}")
        for i in (h,h+2): a(f"buffer_load_dwordx4 v{vL16}, s[{SX}:{SX+3}], s3 offen offset:{1024*i}{' nt' if 'xnt' in EXP else ''} lds")
        vm.issue('xr',2)
        if h==0: return
        srd(a, SC, 14, 2048)
        a(f"s_lshl_b32 s3, s38, 9\ns_add_u32 m0, s3, {L_WR}\ns_mov_b32 exec_hi, 0\nbuffer_load_dwordx4 v{vL16}, s[{SC}:{SC+3}], s3 offen lds\ns_mov_b64 exec, -1")
        vm.issue('xr',1)
    LN0=True
    if LN0: a(f"v_lshlrev_b32 v{vL16}, 4, v1")
    PRO=os.environ.get('PRO','e,x,W0,s,A0,l,t1').split(',')
    def pro(L):
      for p in L:
        if p=='e':
            if STAMPS: a(f"v_mov_b32 v{VST-1}, 0\nv_writelane_b32 v{VST}, s96, 0")
            srd(a, SWS, 26, WS_SIZE)
            a(f"v_mov_b32 v19, {WS_EPO}\nbuffer_load_dword v19, v19, s[{SWS}:{SWS+3}], 0 offen sc1"); vm.issue('epo',1)
            stamp(a,1)
        elif p=='x': xrows(0); xrows(1)
        elif p=='l': vm.wait('xr'); a('s_barrier')
        elif p[0] in 'WA': tiles(int(p[1]), part=p[0])
        elif p[0]=='t' and len(p)==2: tiles(int(p[1]))
        else: place1(p)
    pro(PRO[:PRO.index('s')])
    for i in range(4): a(f"v_mov_b32 v{SENT+i}, -1")
    a(f"v_lshlrev_b32 v{vL16}, 4, v1\ns_and_b32 s85, s85, {NT-1}")
    a(f"s_lshl_b32 s3, s37, 4\ns_add_u32 s3, s3, s36\ns_lshl_b32 s67, s3, 10\ns_add_u32 s67, s67, {WS_CSP}\ns_lshl_b32 s3, s38, 8\ns_add_u32 s67, s67, s3")
    for i in range(8): a(f"v_mov_b32 v{CSA+i}, 0")
    a(f"v_lshlrev_b32 v{vP64}, 2, v1")
    KY=64; ST=72; CG=80; PW=224
    a("s_cmp_gt_u32 s37, 3\ns_subb_u32 s77, s37, 0\ns_cmp_gt_u32 s37, 11\ns_subb_u32 s77, s77, 0\ns_lshl_b32 s77, s77, 4\ns_add_u32 s77, s77, s36\ns_and_b32 s3, s37, 7\ns_cmp_eq_u32 s3, 3\ns_cselect_b32 s77, 224, s77")
    a(f"s_bitcmp1_b32 s38, 0\ns_cselect_b32 s{SA}, s18, s16\ns_cselect_b32 s{SA+1}, s19, s17\ns_cmp_lt_u32 s77, 224\ns_cselect_b32 s{SA+2}, {1024*3584*2}, 0\ns_mov_b32 s{SA+3}, 0x00020000")
    srd(a, SB, 20, 3584*1024*2)
    a("s_and_b32 s3, s77, 3\ns_lshl_b32 s3, s3, 8\ns_lshr_b32 s28, s38, 1\ns_lshl_b32 s28, s28, 7\ns_add_u32 s3, s3, s28\nv_lshrrev_b32 v5, 3, v1\nv_lshl_add_u32 v6, v5, 4, s3")
    a(f"v_mul_u32_u24 v6, 7168, v6\nv_lshl_add_u32 v6, v4, 4, v6\ns_lshr_b32 s3, s77, 2\ns_lshl_b32 s3, s3, 7\nv_add_u32 v{vF}, s3, v6")
    a("s_lshr_b32 s3, s2, 4\ns_mul_i32 s3, s3, 224\ns_mul_i32 s28, s38, 56\ns_add_u32 s71, s3, s28")
    a(f"v_lshlrev_b32 v6, 14, v5\nv_lshl_add_u32 v6, v4, 4, v6\ns_and_b32 s3, s2, 15\ns_lshl_b32 s3, s3, 7\nv_add_u32 v{vD}, s3, v6")

    def cs_addr():
        a(f"v_bfe_u32 v5, v1, 4, 1\nv_lshlrev_b32 v5, 5, v5\nv_xor_b32 v5, v5, v{vL16}\ns_min_u32 s3, s38, 2\ns_lshl_b32 s3, s3, 13\ns_and_b32 s28, s36, 4\ns_lshl_b32 s28, s28, 10\ns_add_u32 s3, s3, s28\ns_add_u32 s3, s3, 16384\nv_add_u32 v{vCS}, s3, v5")
    def cs_rd(s_):
        a(f"v_add_u32 v2, {(s_%3)*SLOT}, v{vCS}\nv_xor_b32 v3, 64, v2")
        for i in range(4): a(f"ds_read_b128 {R(CSL+16*(s_>>2)+4*i,4)}, v{2+(i&1)} offset:{1024*i}")
    def colsum(q):
        for j in range(2):
            for d in range(4):
                t=2+2*(d&1)
                unpack(a, t, CSL+8*q+4*j+d)
                a(f"v_add_f32 v{CSA+2*d}, v{CSA+2*d}, v{t}\nv_add_f32 v{CSA+2*d+1}, v{CSA+2*d+1}, v{t+1}")
    def cs_red():
        red8(a, CSA)
    def cs_pub():
        a(f"v_and_b32 v2, 8, v1\nv_cmp_eq_u32 vcc, 0, v2\nv_cndmask_b32 v{CSA}, v{CSA+1}, v{CSA}, vcc\ns_cmp_eq_u32 s38, 3\ns_cselect_b64 exec, -1, 0\nv_mov_b32 v{CSA}, s70\ns_mov_b64 exec, -1")
        a(f"buffer_store_dword v{CSA}, v{vP64}, s[{SWS}:{SWS+3}], s67 offen sc1")
        vm.issue('pub',1)
    RDY=118
    def nonce():
        vm.wait('epo')
        a("v_readfirstlane_b32 s86, v19\ns_add_u32 s86, s86, 1")
    def ready_st():
        a(f"s_lshl_b32 s3, s37, 4\ns_add_u32 s3, s3, s36\ns_lshl_b32 s3, s3, 7\ns_add_u32 s3, s3, {WS_RDY}\ns_cmp_lg_u32 s38, 0\ns_cselect_b32 s3, {WS_SIZE}, s3\nv_mov_b32 v2, s86\ns_mov_b64 exec, 1\nbuffer_store_dword v2, v{vL16}, s[{SWS}:{SWS+3}], s3 offen sc1\ns_mov_b64 exec, -1")
        vm.issue('rs',1)
    def rdy_addr():
        a(f"v_and_b32 v2, 15, v1\nv_bfe_u32 v3, v1, 4, 1\nv_mul_u32_u24 v3, {QX}, v3\nv_xor_b32 v3, s37, v3\nv_lshl_add_u32 v3, v3, 4, v2\nv_lshl_add_u32 v2, v2, 4, s34\nv_cmp_gt_u32 vcc, 32, v1\nv_cndmask_b32 v2, v2, v3, vcc\nv_lshlrev_b32 v113, 7, v2")
    def ready_poll(l, lo, hi):
        a(f"s_mov_b32 s3, {WS_RDY}\ns_mov_b32 s29, 0\ns_mov_b32 exec_lo, {lo}\ns_mov_b32 exec_hi, {hi}\n{l}:\nbuffer_load_dword v{RDY}, v113, s[{SWS}:{SWS+3}], s3 offen sc1\ns_waitcnt vmcnt(0)")
        a(f"v_cmp_ne_u32 vcc, s86, v{RDY}\ns_cbranch_vccz {l}k\ns_mov_b64 exec, vcc\ns_add_u32 s29, s29, 1\ns_cmp_lt_u32 s29, {SPIN}\ns_cbranch_scc1 {l}\n{l}k:\ns_mov_b64 exec, -1")
        if STAMPS and lo: a(f"v_writelane_b32 v{VST-1}, s29, 50")
    def tagged(l, regs, reload, after=None):
        a(f"s_mov_b32 s29, 0\n{l}:\nv_cmp_ne_u32 vcc, s86, v{regs[0]}")
        for r in regs[1:]: a(f"v_cmp_ne_u32 s[92:93], s86, v{r}\ns_or_b64 vcc, vcc, s[92:93]")
        a(f"s_cbranch_vccz {l}k\ns_add_u32 s29, s29, 1\ns_cmp_ge_u32 s29, {SPIN}\ns_cbranch_scc1 {l}k\ns_sleep 2")
        reload()
        a("s_waitcnt vmcnt(0)")
        if after: after()
        a(f"s_branch {l}\n{l}k:")
        if STAMPS: a(f"v_writelane_b32 v{VST-1}, s29, {51 if l=='L_k1' else 50}")
    def epoch_st():
        a(f"s_or_b32 s3, s2, s38\ns_cmp_lg_u32 s3, 0\ns_cselect_b32 s3, {WS_SIZE}, {WS_EPO}" if 0 else f"s_or_b32 s3, s2, s38\ns_mov_b32 s28, {WS_EPO}\ns_cmp_lg_u32 s3, 0\ns_cselect_b32 s3, {WS_SIZE}, s28")
        a(f"v_mov_b32 v2, s86\ns_mov_b64 exec, 1\nbuffer_store_dword v2, v{vL16}, s[{SWS}:{SWS+3}], s3 offen sc1\ns_mov_b64 exec, -1")
        vm.issue('es',1)
    def ld_f1():
        a(f"s_lshl_b32 s3, s36, 10\nbuffer_load_dwordx4 {R(ST,4)}, v{vL16}, s[{SWS}:{SWS+3}], s3 offen sc1\ns_lshl_b32 s3, s37, 6\nbuffer_load_dword v{ST+4}, v{PW+8}, s[{SWS}:{SWS+3}], s3 offen offset:12 sc1")
    def fetch1(): ld_f1(); vm.issue('f1',2)
    def val1():
        vm.wait('f1'); tagged("L_k1", [ST+3,ST+4], ld_f1)
    def wmax(v, lanes=(0,16,32,48)):
        a(f"v_readlane_b32 s70, v{v}, {lanes[0]}\nv_readlane_b32 s3, v{v}, {lanes[1]}\nv_readlane_b32 s28, v{v}, {lanes[2]}\nv_readlane_b32 s29, v{v}, {lanes[3]}\ns_max_u32 s70, s70, s3\ns_max_u32 s28, s28, s29\ns_max_u32 s70, s70, s28")
    def proc1():
        for m in ("quad_perm:[1,0,3,2]", "quad_perm:[2,3,0,1]", "row_half_mirror", "row_mirror"):
            a(f"v_max_u32 v{ST+2}, v{ST+2}, v{ST+2} {m} {DPPM}")
        for e in range(2): a(f"v_and_b32 v{2+e}, 0xffff0000, v{ST+e}\nv_lshlrev_b32 v{PW+e}, 16, v{ST+e}")
        for e in range(2): a(f"v_rcp_f32 v{PW+2+e}, v{2+e}")
        a(f"v_lshrrev_b32 v2, 16, v2\nv_or_b32 v{PW+12}, v2, v3")
        for e in range(2): a(f"v_mul_f32 v{PW+4+e}, {LOG2E}, v{PW+2+e}")
        wmax(ST+2)
    def ld_cs(ks=range(4)):
        a(f"s_lshl_b32 s3, s37, 14\ns_add_u32 s3, s3, {WS_CSP}")
        for k in ks: a(f"s_add_u32 s28, s3, {4096*k}\nbuffer_load_dwordx4 {R(CG+4*k,4)}, v{PW+11}, s[{SWS}:{SWS+3}], s28 offen sc1")
    def fetch2(h):
        ld_cs((2*h,2*h+1)); vm.issue('f2',2)
    def addr1():
        a(f"v_lshrrev_b32 v2, 2, v1\nv_and_b32 v3, 3, v1\nv_lshlrev_b32 v3, 4, v3\nv_lshl_add_u32 v{PW+8}, v2, 10, v3\nv_lshlrev_b32 v2, 3, v1\nv_add_u32 v{PW+6}, {L_M}, v2")
        a(f"v_and_b32 v4, 49, v1\nv_bfe_u32 v7, v1, 1, 2\nv_lshl_add_u32 v4, v7, 2, v4\nv_bfe_u32 v7, v1, 3, 1\nv_lshl_add_u32 v4, v7, 1, v4\nv_lshlrev_b32 v4, 2, v4\nv_add_u32 v{PW+7}, {L_SQ}, v4")
    def addr2():
        a(f"s_mul_i32 s3, s38, 48\nv_and_b32 v2, 15, v1\nv_lshrrev_b32 v3, 4, v1\nv_cmp_gt_u32 vcc, 12, v2\nv_lshl_add_u32 v4, v2, 2, s3\nv_add_u32 v2, v4, v3\nv_mov_b32 v5, 192\nv_cndmask_b32 v4, v5, v4, vcc\nv_lshlrev_b32 v4, 2, v4\nv_lshl_add_u32 v{PW+11}, v3, 10, v4")
        a(f"v_and_b32 v5, 7, v2\nv_bfe_u32 v6, v2, 3, 3\nv_lshl_add_u32 v5, v5, 3, v6\nv_and_b32 v2, 0xc0, v2\nv_add_u32 v2, v2, v5\nv_lshlrev_b32 v2, 2, v2\nv_add_u32 v2, {L_CS}, v2\nv_mov_b32 v5, {L_KEY}\nv_cndmask_b32 v{PW+9}, v5, v2, vcc")
    def all_w():
        a(f"ds_write_b32 v{PW+9}, v{CG}\ns_lshl_b32 s3, s38, 4\ns_lshl_b64 exec, 0xffff, s3")
        a(f"ds_write_b64 v{PW+6}, {R(PW,2)}\nds_write_b64 v{PW+6}, {R(PW+2,2)} offset:1024\nds_write_b64 v{PW+6}, {R(PW+4,2)} offset:2048\nds_write_b32 v{PW+7}, v{PW+12}\ns_mov_b64 exec, -1")
    XR=64; IS=116; XSF=96
    def idx_xs():
        a("s_and_b32 s68, s70, 0x7ff\ns_sub_u32 s68, 2047, s68")
        a(f"s_lshl_b32 s3, s68, 11\ns_and_b32 s28, s77, 3\ns_lshl_b32 s28, s28, 9\ns_add_u32 s3, s3, s28\ns_lshr_b32 s28, s38, 1\ns_lshl_b32 s28, s28, 8\ns_add_u32 s3, s3, s28")
        a(f"v_lshrrev_b32 v3, 3, v1\nv_lshlrev_b32 v3, 5, v3\nbuffer_load_dwordx4 {R(XR,4)}, v3, s[{SX}:{SX+3}], s3 offen\nbuffer_load_dwordx4 {R(XR+4,4)}, v3, s[{SX}:{SX+3}], s3 offen offset:16")
        a(f"s_lshr_b32 s3, s68, 1\ns_lshl_b32 s3, s3, 4\ns_and_b32 s28, s68, 1\ns_lshl_b32 s28, s28, 2\ns_add_u32 s3, s3, s28\nv_mov_b32 v3, 0\nbuffer_load_dword v{IS}, v3, s[{SWS}:{SWS+3}], s3 offen sc1")
        vm.issue('xs',3)
    def val2():
        vm.wait('f2')
        checked(a, "L_k2", range(CG,CG+16), ld_cs)
    def proc2():
        maxu(a, 2, [CG,CG+4,CG+8,CG+12])
        for k in (2,1):
            for i in range(4*k): a(f"v_add_f32 v{CG+i}, v{CG+i}, v{CG+4*k+i}")
        wmax(2, (12,28,44,60))
        for i in range(2): a(f"v_permlane32_swap_b32 v{CG+i}, v{CG+2+i}")
        for i in range(2): a(f"v_add_f32 v{CG+i}, v{CG+i}, v{CG+2+i}")
        a(f"v_permlane16_swap_b32 v{CG}, v{CG+1}\nv_add_f32 v{CG}, v{CG}, v{CG+1}")
    def proc2b():
        a(f"s_mov_b32 exec_lo, 0xf000f000\ns_mov_b32 exec_hi, 0xf000f000\nv_mov_b32 v{CG}, s70\ns_mov_b64 exec, -1")
    def xs_norm(part):
        if part==0:
            vm.wait('xs')
            a(f"v_and_b32 v5, 0xffff0000, v{IS}\nv_lshlrev_b32 v{IS}, 16, v{IS}\nv_rcp_f32 v{IS+1}, v5")
            for d in range(8): unpack(a, XSF+2*d, XR+d)
            a(f"v_mul_f32 v119, v{IS}, v{IS+1}")
        else:
            for i in range(16): a(f"v_fma_f32 v{XSF+i}, v{XSF+i}, v{IS+1}, -v119")
            for i in range(8): a(f"v_mov_b32 v{FA+i}, 0")
    def ffn_ld(i0,i1):
        if 'noffn' in EXP: return
        for i in range(i0,i1):
            if i<16: a(f"s_mov_b32 s3, {i*7168}\nbuffer_load_dwordx4 {R(FW+4*i,4)}, v{vF}, s[{SA}:{SA+3}], s3 offen{FNT}")
            else: a(f"s_lshr_b32 s3, s71, 3\ns_add_u32 s3, s3, {i-16}\ns_and_b32 s28, s3, 7\ns_lshr_b32 s3, s3, 3\ns_lshl_b32 s3, s3, 6\ns_add_u32 s3, s3, s28\ns_lshl_b32 s3, s3, 11\nbuffer_load_dwordx4 {R(FW+4*i,4)}, v{vD}, s[{SB}:{SB+3}], s3 offen{FNT}")
            vm.issue(('g',i),1)
    def ffn_mac(i0,i1,pk=False):
        if i1<=i0: return
        vm.wait(('g',i1-1))
        for i in range(i0,i1):
            for d in range(4):
                t=2+2*(d&1)
                unpack(a, t, FW+4*i+d)
                if pk:
                    if i%2 and d==0: a(f"v_mov_b32 v{XSF+i-1}, v{XSF+i}")
                    a(f"v_pk_fma_f32 {R(FA+2*d,2)}, {R(t,2)}, {R(XSF+(i&~1),2)}, {R(FA+2*d,2)} op_sel_hi:[1,0,1]")
                else:
                    a(f"v_fmac_f32 v{FA+2*d}, v{t}, v{XSF+i}\nv_fmac_f32 v{FA+2*d+1}, v{t+1}, v{XSF+i}")
    def phi_ld():
        srd(a, SC, 8, 65536)
        a(f"s_lshl_b32 s3, s38, 10\ns_add_u32 m0, s3, {L_PHI}\ns_lshl_b32 s28, s37, 12\ns_add_u32 s3, s3, s28\nbuffer_load_dwordx4 v{vL16}, s[{SC}:{SC+3}], s3 offen lds")
        a(f"s_add_u32 m0, m0, {L_PHQ-L_PHI}\ns_xor_b32 s3, s3, {QX*4096}\nbuffer_load_dwordx4 v{vL16}, s[{SC}:{SC+3}], s3 offen lds")
        vm.issue('phi',2)
    def wo_touch():
        a(f"s_lshl_b32 s3, s2, 13\ns_lshl_b32 s28, s38, 11\ns_add_u32 s3, s3, s28\nv_lshlrev_b32 v3, 7, v1\ns_mov_b64 exec, 0xffff\nbuffer_load_dword v20, v3, s[88:91], s3 offen\ns_mov_b64 exec, -1")
        vm.issue('wt',1)
    def x3_ld():
        for ct in range(4): a(f"v_xor_b32 v2, {32*ct}, v{vXo}\nds_read_b64 {R(PX+2*ct,2)}, v2")
    vWo=220
    def wo_setup():
        a("v_lshrrev_b32 v5, 3, v1\nv_lshlrev_b32 v6, 11, v5\nv_bfe_u32 v5, v1, 4, 2\nv_lshlrev_b32 v5, 1, v5\nv_and_b32 v7, 7, v1\nv_xor_b32 v5, v5, v7\nv_lshl_add_u32 v6, v5, 4, v6\ns_lshl_b32 s3, s35, 7\nv_add_u32 v6, s3, v6")
        for e in range(4): a(f"v_add_u32 v{vWo+e}, {e*15360}, v6")
        a("s_lshl_b32 s72, s38, 12\ns_lshl_b32 s73, s38, 16")
    def wo(c):
        a(f"s_add_u32 m0, s72, {c*16384}\ns_add_u32 s3, s73, {c*262144}")
        for e in range(4): a(f"buffer_load_dwordx4 v{vWo+e}, s[88:91], s3 offen offset:{e*1024} lds")
        vm.issue(('wo',c),4)
    T='T'
    M15=opt('m15',5)
    HL=48; HZ=32
    def post_setup():
        a(f"s_lshl_b32 s3, s36, 2\ns_add_u32 s3, s3, s38\ns_lshr_b32 s28, s3, 5\ns_and_b32 s3, s3, 31\ns_lshl_b32 s74, s3, 7\ns_lshl_b32 s3, s37, 1\ns_add_u32 s75, s3, s28")
        a(f"v_lshrrev_b32 v5, 3, v1\nv_mul_u32_u24 v5, {KVS}, v5\nv_and_b32 v7, 7, v1\nv_lshl_add_u32 v112, v7, 4, v5")
        a(f"s_mul_i32 s76, s75, {16*KVS}\ns_add_u32 s76, s76, s74\ns_add_u32 s76, s76, {WS_KVP}\ns_mul_i32 s3, s75, {KVS}\ns_add_u32 s3, s3, s74\ns_add_u32 s74, s3, {WS_KVR}")
        a(f"s_lshl_b32 s75, s37, 1\ns_add_u32 s75, s75, s36\ns_mul_i32 s81, s75, {16*KVS}\ns_add_u32 s81, s81, {WS_KVP+4096}\ns_mul_i32 s82, s75, {KVS}\ns_add_u32 s82, s82, {WS_KVR+4096}")
        a(f"s_lshr_b32 s3, s36, 1\ns_or_b32 s83, s3, s38")
        a(f"s_and_b32 s3, s38, 1\ns_lshl_b32 s3, s3, 3\ns_and_b32 s28, s77, 3\ns_lshl_b32 s28, s28, 1\ns_add_u32 s3, s3, s28\ns_lshr_b32 s28, s38, 1\ns_add_u32 s3, s3, s28\ns_mul_i32 s3, s3, 14336\ns_lshr_b32 s28, s77, 2\ns_lshl_b32 s28, s28, 8\ns_add_u32 s3, s3, s28\ns_add_u32 s3, s3, {WS_GU}")
        a(f"s_cmp_lt_u32 s77, 224\ns_cselect_b32 s84, s3, {WS_SIZE}")
    P=lambda pos: (lambda: place(pos))
    def place(pos):
        for w in PLC.get(pos,[]): place1(w)
    def place1(w):
        if True:
            if w[0]=='w': wo(int(w[1]))
            elif w[0]=='k': fillk(int(w[1]),int(w[1])+1)
            elif w[0]=='o': fillo(int(w[1]))
            elif w[0]=='x': xrows(int(w[1]))
            elif w=='a': fetch1()
            elif w[0]=='b': fetch2(int(w[1]))
            elif w=='r': ready_st()
            elif w[0]=='s': a(f"s_sleep {int(w[1:])}")
            elif w[0]=='v': vm.wait(('wo',int(w[1])))
            elif w=='p': phi_ld()
            elif w=='t': wo_touch()
            elif w[0]=='G': ffn_ld(int(w[1:3]),int(w[3:5]))
            elif w[0]=='g': ffn_ld(8*int(w[1]), min(23,8*int(w[1])+8))
    M14=opt('m14',0)
    def lnbar():
        if LN0: return
        vm.wait('xr'); a("s_barrier")
    sched = {
        0: [lambda: cs_rd(0), T],
        1: [(lambda: colsum(0),)],
        2: [(lambda: colsum(1),)],
        3: [T],
        4: [lambda: cs_rd(4), T],
        5: [(lambda: colsum(2),)],
        6: [val1, (lambda: colsum(3),)],
        7: [proc1, cs_red, cs_pub, T],
        8: [T],
        9: [T],
        10:[T],
        11:[val2, proc2, proc2b, idx_xs, T],
        12:[T, epoch_st],
        13:[(lambda: xs_norm(0), lambda: xs_norm(1))],
        14:[P('j14'), all_w],
        15:[x3_ld, P('j15'), lambda: ffn_mac(0,M15), lambda: vm.wait('own'), lambda: vm.wait('phi')],
    }
    for k in range(14): sched[k].insert(0, P(f"j{k}"))
    addr1(); addr2(); wo_setup(); post_setup(); rdy_addr(); xaddr(a, vXo)
    cs_addr(); fill_addr(); srd(a, 88, 10, 1024*1024*2)
    pro(PRO[PRO.index('s')+1:]); nonce()
    for k in range(16): sched[k].append(P(f"i{k}"))
    CL=[]; nx=0
    for item in filter(None,os.environ.get('CL','').split(';')):
        b,what=item.split(':'); fs=[]
        for w in what.split(','):
            if True:
                n=int(w[1:]); fs.append(lambda i0=nx,i1=nx+n: ffn_ld(i0,i1)); nx+=n
        CL.append((int(b.rstrip('s')), b.endswith('s'), fs))
    NLOOP=nx
    DEF='defer' in EXP
    def at(s):
        return [(c,fs) for b,same,fs in CL for c in range(NT) if b+(0 if same else c)==s]
    for s in range(16):
        vm.wait(('t',s))
        a("s_waitcnt lgkmcnt(0)")
        if s==0: stamp(a,2)
        a("s_barrier")
        if 'hst2' in EXP: stamp(a,33+s)
        late={c for c,_ in at(s-2)} if DEF and s+1<16 else set()
        skip={c for c,_ in at(s-1)} if DEF else set()
        if s>=14: vm.cond(late, lambda: tiles(s+1))
        for f in sched[s]:
            if isinstance(f,tuple):
                J=a.capture(lambda: [g() for g in f]); D_=a.capture(lambda: tiles(s+2))
                if 'noil' in EXP:
                    for x in D_+J: a(x)
                else:
                    while J and J[0].startswith('s_waitcnt'): a(J.pop(0))
                    n=-(-len(J)//9); k=0
                    for x in D_:
                        a(x)
                        if x.startswith('buffer_'):
                            k+=1
                            if k>=2:
                                for y in J[:n]: a(y)
                                J=J[n:]
                    for y in J: a(y)
            elif f==T:
                vm.cond(late, lambda: tiles(s+1))
                vm.cond(set(range(NT))-skip, lambda: tiles(s+2))
            else: f()
        grp={}
        for c,fs in at(s): grp.setdefault(id(fs),(fs,[]))[1].append(c)
        for fs,cs_ in grp.values(): vm.cond(cs_, lambda: [f() for f in fs])
        if 'hst' in EXP: stamp(a,6+s)
    a("s_waitcnt lgkmcnt(0)\ns_barrier")
    stamp(a,24)
    MX=opt('mx',10)
    GL=80
    a(f"v_and_b32 v2, 15, v1\nv_min_u32 v2, 13, v2\nv_lshrrev_b32 v3, 4, v1\nv_mul_u32_u24 v3, 14336, v3\nv_lshl_add_u32 v13, v2, 4, v3\ns_lshl_b32 s75, s71, 2\ns_add_u32 s75, s75, {WS_GU}")
    def ld_gu():
        for j in range(4): a(f"s_add_u32 s3, s75, {4*j*14336}\nbuffer_load_dwordx4 {R(GL+4*j,4)}, v13, s[{SWS}:{SWS+3}], s3 offen sc1")
    def gu_fin():
        red8(a, FA)
        a(f"v_and_b32 v2, 8, v1\nv_cmp_eq_u32 vcc, 0, v2\nv_cndmask_b32 v{FA}, v{FA+1}, v{FA}, vcc")
        a(f"buffer_store_dword v{FA}, v{vP64}, s[{SWS}:{SWS+3}], s84 offen sc1")
        vm.issue('gu',1)
    place('x0')
    ffn_mac(M15,MX,True)
    if MX==16: gu_fin()
    place('x1')
    for c in (0,1,4): vm.wait(('wo',c))
    stamp(a,25)
    a("s_barrier")
    place('x2')
    a("s_setprio 3\ns_cmp_lg_u32 s38, 3\ns_cbranch_scc1 L_npl")
    NPP=opt('npp',1)
    if NPP==1: ready_poll("L_rp", -1, 0xffff)
    else:
        PS=opt('pps',2)
        a(f"s_mov_b32 s3, {WS_RDY}\ns_mov_b32 s29, 0\ns_mov_b32 exec_hi, 0xffff")
        for k in range(NPP-1): a(f"buffer_load_dword v{8+k}, v113, s[{SWS}:{SWS+3}], s3 offen sc1\ns_sleep {PS}")
        a("L_rp:")
        for k in range(NPP):
            a(f"buffer_load_dword v{8+(k+NPP-1)%NPP}, v113, s[{SWS}:{SWS+3}], s3 offen sc1\ns_waitcnt vmcnt({NPP-1})\nv_cmp_ne_u32 vcc, s86, v{8+k}\ns_cbranch_vccz L_rpk\ns_mov_b64 exec, vcc")
        a(f"s_add_u32 s29, s29, 1\ns_cmp_lt_u32 s29, {SPIN}\ns_cbranch_scc1 L_rp\nL_rpk:\ns_mov_b64 exec, -1")
    a(f"v_mov_b32 v4, {L_FLG+16}\nv_mov_b32 v5, 1\nds_write_b32 v4, v5\nL_npl:")
    stamp(a,54)
    a(f"v_min_u32 v3, 4, v1\nv_lshlrev_b32 v3, 2, v3\nv_add_u32 v3, {L_FLG}, v3\nL_fw:\nds_read_b32 v4, v3\ns_waitcnt lgkmcnt(0)\nv_cmp_eq_u32 vcc, 0, v4\ns_cbranch_vccz L_fk\ns_sleep 1\ns_branch L_fw\nL_fk:")
    stamp(a,26)
    place('k')
    vm.wait(('g',15))
    MY=opt('my',MX+2 if MX<16 else 16)
    ffn_mac(MX,MY,True)
    if opt('h1d',0): a(f"s_sleep {opt('h1d',0)}")
    stamp(a,49)
    def ld_h1():
        for j in range(2): a(f"s_add_u32 s3, s76, {8*j*KVS}\nbuffer_load_dwordx4 {R(HL+4*j,4)}, v112, s[{SWS}:{SWS+3}], s3 offen sc1")
    def ld_hz():
        for j in range(2): a(f"s_add_u32 s3, s81, {8*j*KVS}\nbuffer_load_dwordx4 {R(HZ+4*j,4)}, v112, s[{SWS}:{SWS+3}], s3 offen sc1")
    ld_h1()
    a("s_cmp_lg_u32 s83, 0\ns_cbranch_scc1 L_nz")
    ld_hz()
    a("L_nz:")
    if MX==16:
        ld_gu()
        a("s_waitcnt vmcnt(4)")
        vm.q=[['gl']*4 for _ in range(NT)]
    else:
        vm.q=[['h'] for _ in range(NT)]
        HK=min(16,MY+opt('h0k',2))
        ffn_mac(MY,HK,True)
        if HK==16: gu_fin()
        place('h0')
        ffn_mac(HK,16,True)
        if HK<16: gu_fin()
        vm.wait('h')
    stamp(a,50)
    def reduce_line(src, E, sdst):
        L=[]
        class C_:
            def __call__(self, t): L.extend(t.split("\n"))
        c=C_()
        for d in range(4): unpack(c, E+2*d, src+d)
        for d in range(4):
            unpack(c, E+8+2*d, src+4+d)
            c(f"v_pk_add_f32 {R(E+2*d,2)}, {R(E+2*d,2)}, {R(E+8+2*d,2)}")
        red8(c, E)
        c(f"v_cvt_pk_bf16_f32 v{E}, v{E}, v{E+1}\nv_mov_b32 v{E+1}, v{E}\nv_permlane16_swap_b32 v{E}, v{E+1}\nv_mov_b32 v{E+2}, v{E}\nv_mov_b32 v{E+3}, v{E+1}")
        c(f"v_permlane32_swap_b32 v{E}, v{E+2}\nv_permlane32_swap_b32 v{E+1}, v{E+3}")
        return L, f"buffer_store_dwordx4 {R(E,4)}, v{vL16}, s[{SWS}:{SWS+3}], s{sdst} offen sc1"
    A_,sa=reduce_line(HL,64,74); Z_,sz=reduce_line(HZ,96,82)
    a("s_cmp_eq_u32 s83, 0\ns_cbranch_scc1 L_hz")
    checked(a, "L_k4", range(HL,HL+8), ld_h1)
    for x in A_: a(x)
    a(f"s_mov_b64 exec, 0xff\n{sa}\ns_branch L_h1e\nL_hz:")
    checked(a, "L_k3", list(range(HL,HL+8))+list(range(HZ,HZ+8)), lambda: (ld_h1(), ld_hz()))
    for x in zipl(A_,Z_): a(x)
    a(f"s_mov_b64 exec, 0xff\n{sa}\n{sz}\nL_h1e:\ns_mov_b64 exec, -1")
    stamp(a,53)
    a(f"s_lshl_b32 s3, s38, 2\ns_add_u32 s3, s3, {L_FLG}\nv_mov_b32 v4, s3\nv_mov_b32 v5, 3\nds_write_b32 v4, v5\ns_setprio 0")
    vm.issue('h1',1)
    if PLC.get('h1s'): a("s_waitcnt lgkmcnt(0)")
    place('h1s')
    stamp(a,27)
    def hsilu():
        stat3(a, 9, 8)
        a("s_waitcnt lgkmcnt(0)")
        silu_prep(a, PG, PX, 9, 8, 28)
    if MX<16:
        hsilu()
        ld_gu(); vm.issue('gl',4)
    vm.wait('gl')
    stamp(a,51)
    checked(a, "L_k5", range(GL,GL+16), ld_gu)
    stamp(a,52)
    for b in (GL,GL+8):
        for i in (0,2): a(f"v_pk_add_f32 {R(b+i,2)}, {R(b+i,2)}, {R(b+4+i,2)}")
    for i in range(4): a(f"v_permlane32_swap_b32 v{GL+i}, v{GL+8+i}")
    for i in range(4): a(f"v_add_f32 v{GL+i}, v{GL+i}, v{GL+8+i}")
    for i in (0,2): a(f"v_permlane16_swap_b32 v{GL+i}, v{GL+i+1}")
    for i in (0,2): a(f"v_add_f32 v{GL+i}, v{GL+i}, v{GL+i+1}")
    a(f"v_permlane32_swap_b32 v{GL}, v{GL+2}")
    g,u=GL,GL+2
    rne(a,g,g); rne(a,u,u)
    a(f"v_mul_f32 v2, 0xbfb8aa3b, v{g}\nv_exp_f32 v2, v2\nv_add_f32 v2, 1.0, v2\nv_rcp_f32 v2, v2\nv_mul_f32 v{g}, v{g}, v2")
    rne(a,g,g)
    a(f"v_mul_f32 v{g}, v{g}, v{u}")
    rne(a,g,g)
    a(f"v_bfe_u32 v2, v1, 3, 2\nv_lshlrev_b32 v2, 6, v2\nv_lshrrev_b32 v3, 5, v1\nv_lshl_add_u32 v2, v3, 2, v2")
    HB=128
    for i in range(7): a(f"ds_bpermute_b32 v{HB+2*i}, v2, v{g} offset:{8*i}")
    for i in range(0,8,2): a(f"v_mov_b64 {R(FA+i,2)}, 0")
    a("s_waitcnt lgkmcnt(0)")
    place('gu')
    LD='g2' in PLC.get('ho',[])
    def down(plain=False):
        for i in range(7):
            for d in range(4):
                t=2+2*(d&1)
                unpack(a, t, DW+4*i+d)
                if plain: a(f"v_fmac_f32 v{FA+2*d}, v{t}, v{HB+2*i}\nv_fmac_f32 v{FA+2*d+1}, v{t+1}, v{HB+2*i}")
                else: a(f"v_pk_fma_f32 {R(FA+2*d,2)}, {R(t,2)}, {R(HB+2*i,2)}, {R(FA+2*d,2)} op_sel_hi:[1,0,1]")
        red8(a, FA)
        a(f"v_and_b32 v2, 8, v1\nv_cmp_eq_u32 vcc, 0, v2\ns_and_b32 s3, s2, 15\ns_lshl_b32 s3, s3, 4\ns_lshr_b32 s28, s2, 4\ns_add_u32 s3, s3, s28\ns_lshl_b32 s3, s3, 2\ns_add_u32 s3, s3, s38\ns_lshl_b32 s3, s3, 8\ns_add_u32 s3, s3, {WS_Y}")
        a(f"v_cndmask_b32 v{FA}, v{FA+1}, v{FA}, vcc\nbuffer_store_dword v{FA}, v{vP64}, s[{SWS}:{SWS+3}], s3 offen sc1")
    a.down = down if LD else None
    if not LD: down()
    vm.issue('ys',1)
    place('y')
    if MX==16: hsilu()
    stamp(a,28)
    wait7(a, "L_ow"); place('ho')
    if not LD and opt('hpd',4): a(f"s_sleep {opt('hpd',4)}")
    stamp(a,29)
    if opt('hp3',0): a(f"s_setprio {opt('hp3',0)}")
    a("s_branch L_p3")

ACC=8
def acc(g,c6): return ACC+24*g+4*c6
ML,CC,CSV = [192,194,196,198],[200,202,220,222],[248,250]
CCP,RLP = [193,221],[195,223]
CSK,CSQ,PHI,MV,SQF = 204,212,224,104,120
vVS,vLN,vSR = 197,199,[201,203]
def zipl(A, B, n=1):
    out=[]; B=list(B)
    for x in A:
        out.append(x); out+=B[:n]; B=B[n:]
    return out+B
def feature(a, B, c0, isK, mid1=None, tail=None, fillB=(), hook=None):
    P=144; T=176; U=128
    EP=[P+8*g for g in range(4)]; EM=[acc(g,c0) for g in range(4)]
    MX=[T+2*g for g in range(4)]; NM=[T+8+2*g for g in range(4)]
    for g in range(4):
        for ft in range(2): mfma(a, EP[g]+4*ft, PHI+4*ft, B+4*g)
    if mid1: mid1()
    FS='fst' in EXP; b_=40 if isK else 50
    def mx(h):
        L=[]
        for k in range(4):
            for g in (2*h,2*h+1):
                p=EP[g]
                if k==0: L+=[f"v_max3_f32 v{MX[g]}, v{p}, v{p+1}, v{p+2}", f"v_max3_f32 v{NM[g]}, -v{p}, -v{p+1}, -v{p+2}"]
                elif k<3: L+=[f"v_max3_f32 v{MX[g]}, v{MX[g]}, v{p+2*k+1}, v{p+2*k+2}", f"v_max3_f32 v{NM[g]}, v{NM[g]}, -v{p+2*k+1}, -v{p+2*k+2}"]
                else: L+=[f"v_max_f32_e64 v{MX[g]}, v{MX[g]}, v{p+7}", f"v_max_f32_e64 v{NM[g]}, v{NM[g]}, -v{p+7}"]
        return L
    def xl(h, op, fin):
        q=[MX[2*h],MX[2*h+1],NM[2*h],NM[2*h+1]]
        return [f"v_permlane32_swap_b32 v{q[0]}, v{q[1]}\nv_permlane32_swap_b32 v{q[2]}, v{q[3]}",
                f"{op} v{q[0]}, v{q[0]}, v{q[1]}\n{op} v{q[2]}, v{q[2]}, v{q[3]}",
                f"v_permlane16_swap_b32 v{q[0]}, v{q[2]}\n{op} v{q[0]}, v{q[0]}, v{q[2]}"]+fin(q[0],q[2])+[
                f"v_permlane16_swap_b32 v{q[0]}, v{q[2]}\nv_mov_b32 v{q[1]}, v{q[0]}", f"v_mov_b32_e64 v{q[3]}, v{q[2]}",
                f"v_permlane32_swap_b32 v{q[0]}, v{q[1]}\nv_permlane32_swap_b32 v{q[2]}, v{q[3]}"]
    x1=lambda h: xl(h, "v_max_f32", lambda x,y: [f"v_mul_f32 v{y}, v{x}, v{CCP[h]}\nv_mul_f32 v{x}, v{x}, v{CCP[h]}"])
    x2=lambda h: xl(h, "v_add_f32", lambda x,y: [f"v_rcp_f32_e64 v{x}, v{x}", f"v_mul_f32 v{y}, v{x}, v{RLP[h]}\nv_mul_f32 v{x}, v{x}, v{RLP[h]}" if isK else f"v_mov_b32_e64 v{y}, v{x}"])
    def fm(h):
        L=[]
        for g in (2*h,2*h+1):
            for i in range(0,8,2):
                L+=[f"v_pk_fma_f32 {R(EM[g]+i,2)}, {R(EP[g]+i,2)}, {R(CC[g],2)}, {R(NM[g],2)} op_sel_hi:[1,0,0] neg_lo:[1,0,1] neg_hi:[1,0,1]",
                    f"v_pk_fma_f32 {R(EP[g]+i,2)}, {R(EP[g]+i,2)}, {R(CC[g],2)}, {R(MX[g],2)} op_sel_hi:[1,0,0] neg_lo:[0,0,1] neg_hi:[0,0,1]"]
        return L
    def ex(h): return [f"v_exp_f32 v{EM[g]+i}, v{EM[g]+i}\nv_exp_f32 v{EP[g]+i}, v{EP[g]+i}" for g in (2*h,2*h+1) for i in range(8)]
    def sm(h):
        L=[]
        for k in range(3):
            for g in (2*h,2*h+1):
                for sg,Eb in ((0,EP[g]),(1,EM[g])):
                    t=U+4*g+2*sg
                    L.append(f"v_pk_add_f32 {R(t,2)}, {R(Eb,2)}, {R(Eb+2,2)}" if k==0 else f"v_pk_add_f32 {R(t,2)}, {R(t,2)}, {R(Eb+2*k+2,2)}")
        for g in (2*h,2*h+1): L.append(f"v_add_f32 v{MX[g]}, v{U+4*g}, v{U+4*g+1}\nv_add_f32 v{NM[g]}, v{U+4*g+2}, v{U+4*g+3}")
        return L
    def fin(h):
        for g in (2*h,2*h+1):
            for pm,(Eb,Q) in enumerate(((EP[g],MX),(EM[g],NM))):
                for i in range(0,8,2): a(f"v_pk_mul_f32 {R(Eb+i,2)}, {R(Eb+i,2)}, {R(Q[g],2)} op_sel_hi:[1,0]")
                for i in range(4): a(f"v_cvt_pk_bf16_f32 v{Eb+i}, v{Eb+2*i}, v{Eb+2*i+1}")
                if tail: tail(g, pm, Eb)
    def E(L):
        for x in L: a(x)
    a.raw(".p2align 3, 0xbf800000") if False else None
    if FS: stamp2(a,b_)
    E(mx(0)); E(zipl(x1(0), mx(1), 2))
    if FS: stamp2(a,b_+1)
    E(zipl(x1(1), fm(0), 2))
    if FS: stamp2(a,b_+2)
    E(ex(0)); E(sm(0))
    if hook: hook(0)
    if FS: stamp2(a,b_+3)
    E(zipl(x2(0), fm(1), 2)); fin(0)
    if FS: stamp2(a,b_+4)
    if hook: hook(1)
    E(ex(1))
    if hook: hook(2)
    E(sm(1))
    if FS: stamp2(a,b_+5)
    E(zipl(x2(1), fillB, 1))
    if FS: stamp2(a,b_+6)
    fin(1)
    if FS: stamp2(a,b_+7)
    return EP, EM
def corrT(a, c0, CS, B):
    for g in range(4):
        s=g&1
        for i in range(0,8,2):
            r=acc(g,c0)+i
            a(f"v_pk_fma_f32 {R(r,2)}, {R(ML[g],2)}, {R(CS+i,2)}, {R(r,2)} op_sel_hi:[0,1,1] neg_lo:[1,0,0] neg_hi:[1,0,0]")
        for i in range(4): a(f"v_cvt_pk_bf16_f32 v{B+4*g+i}, v{acc(g,c0)+2*i}, v{acc(g,c0)+2*i+1}")

def ln_code(a):
    X=104; WR=120; S1=192; S2=196; S3=200; S4=204
    a(f"L_ln:\ns_lshl_b32 s3, s38, 12\ns_add_u32 s3, s3, {L_STG}\nv_lshlrev_b32 v2, 4, v1\nv_add_u32 v3, s3, v2\nv_add_u32 v2, {L_WR}, v2\ns_barrier")
    for i in range(2): a(f"ds_read_b128 {R(WR+4*i,4)}, v2 offset:{1024*i}")
    for i in range(4): a(f"ds_read_b128 {R(X+4*i,4)}, v3 offset:{1024*i}")
    stamp(a,3)
    a("v_mov_b32 v2, 0x3f803f80")
    for v in (S1,S2,S3,S4): a(f"v_mov_b32 v{v}, 0\nv_mov_b32 v{v+2}, 0")
    a("s_waitcnt lgkmcnt(2)")
    for r in range(2):
        if r: a("s_waitcnt lgkmcnt(0)")
        for d in range(8):
            x=X+8*r+d
            a(f"v_dot2c_f32_bf16 v{S1+2*r}, v{x}, v2\nv_dot2c_f32_bf16 v{S2+2*r}, v{x}, v{x}\nv_dot2c_f32_bf16 v{S3+2*r}, v{x}, v{WR+d}")
            a(f"v_dot2c_f32_bf16 v{S4+2*r}, v{WR+d}, v2")
    regs=[S1,S2,S3,S4]
    for v in regs: a(f"v_permlane32_swap_b32 v{v}, v{v+2}")
    for v in regs: a(f"v_add_f32 v{v}, v{v}, v{v+2}")
    for m in ("quad_perm:[1,0,3,2]", "quad_perm:[2,3,0,1]", "row_half_mirror", "row_mirror"):
        for v in regs: a(f"v_add_f32 v{v}, v{v}, v{v} {m} {DPPM}")
    for v in regs: a(f"v_mov_b32 v{v+1}, v{v}")
    for v in regs: a(f"v_permlane16_swap_b32 v{v}, v{v+1}")
    for v in regs: a(f"v_add_f32 v{v}, v{v}, v{v+1}")
    a(f"v_mul_f32 v{S1}, 0x3a800000, v{S1}\nv_mul_f32 v{S2}, 0x3a800000, v{S2}")
    rne(a, S1+1, S1)
    a(f"v_fma_f32 v{S2}, -v{S1}, v{S1}, v{S2}\nv_max_f32 v{S2}, 0, v{S2}\nv_fma_f32 v{S3}, -v{S1+1}, v{S4}, v{S3}\ns_waitcnt vmcnt(0)")
    rne(a, S2, S2)
    a(f"v_add_f32 v{S2}, 0x3727c5ac, v{S2}")
    rne(a, S2, S2)
    a(f"v_sqrt_f32 v{S2}, v{S2}")
    rne(a, S2, S2)
    a(f"v_rcp_f32 v2, v{S2}\nv_lshrrev_b32 v3, 16, v{S1+1}\nv_or_b32 v4, v3, v{S2}\nv_mul_f32 v{S3}, v{S3}, v2")
    rne(a, S3, S3)
    a(f"v_ashrrev_i32 v2, 31, v{S3}\nv_or_b32 v2, 0x80000000, v2\nv_xor_b32 v2, v{S3}, v2\nv_and_b32 v2, 0xffff0000, v2")
    a(f"v_lshrrev_b32 v3, 5, v1\nv_add_u32 v5, s69, v3\nv_sub_u32 v5, 2047, v5\nv_or_b32 v6, v2, v5\nv_mov_b32 v2, v6\nv_mov_b32 v5, v4\nv_add_u32 v7, 1, v248\nv_mov_b32 v3, 0\nv_readfirstlane_b32 s86, v7")
    a(f"v_permlane32_swap_b32 v6, v2\nv_permlane32_swap_b32 v4, v5\nv_max_u32 v6, v6, v2\ns_lshl_b32 s3, s69, 3")
    a(f"s_mov_b64 exec, 1\nbuffer_store_dwordx4 v[4:7], v3, s[{SWS}:{SWS+3}], s3 offen sc1\ns_mov_b64 exec, -1")
    stamp(a,4)
    a("s_branch L_lnr")

def c_wo(a, pos):
    for w in PLC.get(pos,[]):
        c=int(w[1])
        a(f"s_add_u32 m0, s72, {c*16384}\ns_add_u32 s3, s73, {c*262144}")
        for e in range(4): a(f"buffer_load_dwordx4 v{216+e}, s[88:91], s3 offen offset:{e*1024} lds")
def c_waves(a):
    a("L_C:")
    a("s_and_b32 s64, s38, 1\ns_lshr_b32 s65, s38, 1")
    F=[104,144]; vA=184; vW=186
    a("v_and_b32 v3, 15, v1\nv_lshlrev_b32 v3, 7, v3\ns_lshl_b32 s3, s64, 13\nv_add_u32 v3, s3, v3\nv_bfe_u32 v5, v1, 1, 3\nv_lshrrev_b32 v6, 4, v1\nv_xor_b32 v6, v6, v5")
    a(f"v_lshl_add_u32 v{vA}, v6, 4, v3\nv_xor_b32 v{vA+1}, 64, v{vA}")
    a("v_lshrrev_b32 v6, 4, v1\nv_lshlrev_b32 v6, 3, v6\nv_bfe_u32 v7, v1, 2, 2\nv_add_u32 v6, v6, v7\nv_lshlrev_b32 v6, 7, v6\nv_and_b32 v7, 3, v1\nv_lshl_add_u32 v6, v7, 3, v6\nv_add_u32 v6, 16384, v6")
    a("v_bfe_u32 v7, v1, 3, 2\ns_lshl_b32 s3, s65, 1\nv_xor_b32 v7, s3, v7")
    a(f"v_lshl_add_u32 v{vW}, v7, 5, v6\nv_xor_b32 v{vW+1}, 32, v{vW}")
    for i in range(4): a(f"v_add_u32 v{vA+4+i}, {2*SLOT}, v{vA+i}")
    a("s_waitcnt lgkmcnt(0)")
    srd(a, SWS, 26, WS_SIZE); srd(a, SX, 4, 2048*2048); srd(a, 88, 10, 1024*1024*2)
    a(f"s_lshl_b32 s3, s36, 7\ns_lshl_b32 s28, s37, 3\ns_add_u32 s3, s3, s28\ns_lshl_b32 s28, s38, 1\ns_add_u32 s69, s3, s28\nv_lshlrev_b32 v2, 4, v1\nv_mov_b32 v248, {WS_EPO}")
    for i in range(4): a(f"v_mov_b32 v{4+i}, -1")
    a(f"s_lshl_b32 s28, s2, 2\ns_add_u32 s28, s28, s38\ns_mul_i32 s28, s28, 768\ns_add_u32 s28, s28, {WS_FILL-256}\ns_lshl_b32 s3, s37, 4\ns_add_u32 s3, s3, s36\ns_lshl_b32 s3, s3, 2\ns_add_u32 s3, s3, s38\ns_lshl_b32 s3, s3, 8\ns_add_u32 s3, s3, {WS_CSP}")
    a(f"v_cmp_gt_u32 vcc, 16, v1\nv_add_u32 v3, s3, v2\nv_add_u32 v2, s28, v2\nv_cndmask_b32 v2, v2, v3, vcc")
    a(f"buffer_store_dwordx4 v[4:7], v2, s[{SWS}:{SWS+3}], 0 offen sc1\nbuffer_load_dword v248, v248, s[{SWS}:{SWS+3}], 0 offen sc1")
    if STAMPS: a(f"v_mov_b32 v{VST-1}, 0\nv_writelane_b32 v{VST}, s96, 0")
    if 'nocpf' not in EXP:
        a("s_getpc_b64 s[92:93]")
        a.raw("L_pc:")
        a("s_sub_u32 s92, s92, L_pc-fused_kernel\ns_subb_u32 s93, s93, 0\ns_lshr_b32 s3, s2, 3\ns_lshl_b32 s3, s3, 2\ns_add_u32 s3, s3, s38\ns_lshl_b32 s3, s3, 8\nv_lshlrev_b32 v2, 7, v1\nv_add_u32 v2, s3, v2\ns_mov_b64 exec, 3")
        a("global_load_dword v249, v2, s[92:93]\ns_mov_b64 exec, -1")
    for i in range(0,96,2): a(f"v_mov_b64 {R(ACC+i,2)}, 0")
    def reads(sl, t2, fs):
        f=F[fs]; L=[]; b=4 if sl==2 else 0; o=SLOT if sl==1 else 0
        L.append(f"ds_read_b128 {R(f,4)}, v{vA+b+t2} offset:{o}")
        for c6 in range(6):
            for u in range(2):
                L.append(f"ds_read_b64_tr_b16 {R(f+16+4*c6+2*u,2)}, v{vW+b+(c6&1)} offset:{o+(32*t2+4*u)*128+(c6>>1)*8192}")
        for g in range(1,4): L.append(f"ds_read_b128 {R(f+4*g,4)}, v{vA+b+t2} offset:{o+g*2048}")
        return L
    def step(fs, rd, order=None):
        f=F[fs]; i=0
        for g,c6 in (order or [(g,c6) for g in range(4) for c6 in range(6)]):
            d=acc(g,c6)
            if c6<4: mfma(a, d, f+16+4*c6, f+4*g, d)
            else: mfma(a, d, f+4*g, f+16+4*c6, d)
            if rd is not None and i<len(rd): a(rd[i])
            i+=1
            if 'rd2' in EXP and rd is not None and i<len(rd) and i%3==0: a(rd[i]); i+=1
    a(f"s_lshl_b32 s3, s38, 2\ns_add_u32 s3, s3, {L_FLG}\nv_mov_b32 v2, s3\nv_mov_b32 v3, 0\nds_write_b32 v2, v3\nds_write_b32 v2, v3 offset:16")
    a("s_mov_b32 s86, 0\ns_mov_b32 s66, 0\ns_setprio 2\ns_waitcnt lgkmcnt(0)")
    stamp(a,1)
    if True: ln_code(a); a("L_lnr:")
    a("s_barrier")
    stamp2(a,8)
    for r in reads(0,0,0): a(r)
    a("s_branch L_cmid")
    a.raw(".p2align 6")
    a("L_cloop:")
    for sl in range(3):
        if sl==0 and False: a("s_cmp_eq_u32 s66, 1\ns_cbranch_scc1 L_ln\nL_lnr:")
        a("s_waitcnt lgkmcnt(0)\ns_barrier")
        step(1, reads(sl,0,0))
        if sl==0: a("L_cmid:")
        a("s_waitcnt lgkmcnt(0)\ns_nop 0")
        step(0, reads(sl,1,1)+(["s_add_u32 s66, s66, 1\ns_cmp_lt_u32 s66, 5"] if sl==2 else []))
    a("s_cbranch_scc1 L_cloop")
    AO=188
    ad = (f"v_and_b32 v2, 15, v1\nv_lshrrev_b32 v3, 4, v1\ns_lshl_b32 s3, s64, 8\ns_add_u32 s3, s3, {L_M}\nv_lshl_add_u32 v{AO}, v2, 2, s3\nv_lshl_add_u32 v{AO+1}, v3, 4, s3\n"
          f"v_lshrrev_b32 v7, 5, v1\nv_lshl_add_u32 v{AO+2}, v7, 6, v{AO}\n"
          f"s_lshl_b32 s3, s65, 7\ns_add_u32 s3, s3, {L_CS}\nv_lshl_add_u32 v{AO+3}, v3, 4, s3\nv_lshl_add_u32 v248, v2, 2, s3\n"
          f"s_lshl_b32 s3, s64, 7\ns_add_u32 s3, s3, {L_SQ}\nv_lshl_add_u32 v249, v3, 4, s3\nv_xor_b32 v253, 128, v249\n"
          f"v_lshrrev_b32 v250, 2, v1\nv_lshlrev_b32 v250, 6, v250\nv_and_b32 v251, 3, v1\nv_lshl_add_u32 v250, v251, 3, v250\ns_lshl_b32 s3, s65, 11\ns_add_u32 s3, s3, {L_PHI}\nv_add_u32 v252, s3, v250\n"
          f"v_bfe_u32 v5, v1, 1, 2\nv_lshlrev_b32 v5, 2, v5\nv_bfe_u32 v4, v1, 3, 1\nv_lshl_add_u32 v5, v4, 1, v5\nv_and_b32 v4, 1, v1\nv_add_u32 v5, v5, v4\nv_xor_b32 v5, v5, v3\n"
          f"s_lshl_b32 s3, s38, 13\ns_add_u32 s3, s3, {L_PHS}\nv_lshl_add_u32 v2, v2, 7, s3\nv_lshl_add_u32 v4, v5, 3, v2\nv_xor_b32 v5, 32, v4\nv_xor_b32 v6, 64, v4\nv_xor_b32 v7, 96, v4\n"
          f"v_bfe_u32 v2, v1, 3, 2\nv_lshlrev_b32 v2, 2, v2\nv_lshrrev_b32 v3, 5, v1\nv_lshl_add_u32 v2, v3, 1, v2\nv_bfe_u32 v3, v1, 2, 1\nv_add_u32 v2, v2, v3\nv_xor_b32 v2, v2, v251\n"
          f"v_lshrrev_b32 v3, 2, v1\nv_lshl_add_u32 v3, v3, 7, s3\nv_lshl_add_u32 v2, v2, 3, v3\ns_lshl_b32 s28, s64, 6\nv_xor_b32 v{vSR[0]}, s28, v2\nv_xor_b32 v{vSR[1]}, 32, v{vSR[0]}\n"
          f"s_lshl_b32 s3, s38, 12\ns_add_u32 s3, s3, {L_STG}\nv_lshlrev_b32 v{vLN}, 4, v1\nv_add_u32 v{vVS}, s3, v{vLN}\n"
          f"s_lshl_b32 s3, s37, 1\ns_add_u32 s67, s3, s65\ns_lshl_b32 s3, s67, 4\ns_add_u32 s3, s3, s36\ns_mul_i32 s3, s3, {KVS}\ns_add_u32 s75, s3, {WS_KVP}\ns_lshl_b32 s3, s64, 11\ns_add_u32 s74, s75, s3\ns_lshl_b32 s3, s64, 6\ns_add_u32 s75, s75, s3\ns_add_u32 s75, s75, 4096\n"
          f"s_lshl_b32 s3, s37, 4\ns_add_u32 s3, s3, s36\ns_lshl_b32 s3, s3, 7\ns_add_u32 s3, s3, {WS_RDY}\nv_mov_b32 v251, s86\ns_cmp_lg_u32 s38, 0\ns_cselect_b32 s76, {WS_SIZE}, s3").split("\n")
    ad = a.capture(lambda: xaddr(a, 240, 241, 242)) + [f"v_xor_b32 v{240+ct}, {32*ct}, v240" for ct in range(1,4)] + ad
    xr = [f"ds_read_b64 {R(232+2*ct,2)}, v{240+ct}" for ct in range(4)]
    def mix(rd, n):
        out=[]
        for i in range(24):
            t=[rd[i]] if i<len(rd) else []
            for _ in range(2):
                if ad: t.append(ad.pop(0))
            out.append("\n".join(t) if t else "s_nop 0")
        return out
    a("s_nop 0\ns_waitcnt lgkmcnt(0)\ns_barrier")
    step(1, mix(reads(0,0,0),1))
    a("s_waitcnt lgkmcnt(0)\ns_nop 0")
    step(0, mix(reads(0,1,1)+xr,1))
    while ad: a(ad.pop(0))
    rd=["s_barrier"]
    for g in (0,2): rd.append(f"ds_read_b32 v{ML[g]}, v{AO} offset:{64*g}\nds_read_b32 v{ML[g+1]}, v{AO} offset:{64*g+64}")
    for c in range(2): rd.append(f"ds_read_b128 {R(CSK+4*c,4)}, v{AO+3} offset:{256+64*c}")
    for ft in range(2):
        for v in range(2): rd.append(f"ds_read_b64_tr_b16 {R(PHI+4*ft+2*v,2)}, v252 offset:{1024*v+32*ft}")
    for g in range(4): rd.append(f"ds_read_b128 {R(MV+4*g,4)}, v{AO+1} offset:{64*g}")
    rd.append(f"ds_read_b32 v{CSV[1]}, v248 offset:576\nds_read_b32 v{CSV[0]}, v248 offset:512")
    for g in range(4): rd.append(f"ds_read_b32 v{CC[g]}, v{AO} offset:{2048+64*g}")
    for h in range(2): rd.append(f"ds_read_b32 v{CCP[h]}, v{AO+2} offset:{2048+128*h}\nds_read_b32 v{RLP[h]}, v{AO+2} offset:{1024+128*h}")
    for ks in range(2): rd.append(f"ds_read_b128 {R(SQF+4*ks,4)}, v249 offset:{64*ks}")
    for c in range(2): rd.append(f"ds_read_b128 {R(CSQ+4*c,4)}, v{AO+3} offset:{64*c}")
    a("s_waitcnt lgkmcnt(0)")
    step(1, rd, [(g,c6) for cs in ((2,3),(4,5),(0,1)) for g in range(4) for c6 in cs])
    a("s_waitcnt lgkmcnt(4)")
    stamp2(a,24)
    BK=232
    for i in range(8): a(f"v_mov_b32 v{177+2*i}, v{232+i}")
    corrT(a, 2, CSK, BK)
    VL='vearly' not in EXP
    def vcorr():
        for g in range(4):
            for dt in range(2):
                for i in (0,2):
                    r=acc(g,4+dt)+i
                    a(f"v_pk_fma_f32 {R(r,2)}, {R(MV+4*g+i,2)}, {R(CSV[dt],2)}, {R(r,2)} op_sel_hi:[1,0,1] neg_lo:[1,0,0] neg_hi:[1,0,0]")
        for ks in range(2):
            for dt in range(2):
                d=acc(2*ks,4+dt); e=acc(2*ks+1,4+dt)
                a(f"v_cvt_pk_bf16_f32 v{d}, v{d}, v{d+1}\nv_cvt_pk_bf16_f32 v{d+1}, v{d+2}, v{d+3}\nv_cvt_pk_bf16_f32 v{d+2}, v{e}, v{e+1}\nv_cvt_pk_bf16_f32 v{d+3}, v{e+2}, v{e+3}")
                if not VL: a(f"ds_write_b128 v{vVS}, {R(d,4)} offset:{2048*ks+1024*dt}")
        for ks in range(2): a(f"ds_read_b128 {R(MV+4*ks,4)}, v253 offset:{64*ks}")
    AF=232
    KVt=[144,152,acc(0,2)]
    PA_=128
    def tail(g, pm, Eb):
        for ft in range(2): a(f"ds_write_b64 v{4+2*pm+ft}, {R(Eb+2*ft,2)} offset:{2048*g}")
        if VL and g<2: a(f"ds_write_b128 v{vVS}, {R(acc(2*g,4+pm),4)} offset:{2048*g+1024*pm}")
        if g&1 and pm:
            ks=g>>1
            for ft in range(2):
                for v in range(2): a(f"ds_read_b64_tr_b16 {R(AF+8*ks+4*ft+2*v,2)}, v{vSR[ft]} offset:{4096*ks+2048*v}")
    def kvm(k4):
        ks=k4&1; own=k4<2; L=[]
        for dt in range(3):
            for ft in range(2):
                d=KVt[dt]+4*ft
                Bo=(acc(2*ks+(0 if own else 1),4+dt) if dt<2 else (SQF if own else MV)+4*ks)
                L.append(f"v_mfma_f32_16x16x32_bf16 {R(d,4)}, {R((AF if own else PA_)+8*ks+4*ft,4)}, {R(Bo,4)}, {R(d,4) if k4 else '0'}")
        return L
    k0=kvm(0); k0[0]="s_waitcnt lgkmcnt(0)\ns_nop 0\n"+k0[0]
    CH=opt('ch',2)
    def hook(k):
        if k==CH: a(f"s_mov_b64 exec, 1\nbuffer_store_dword v251, v{vLN}, s[{SWS}:{SWS+3}], s76 offen sc1\ns_mov_b64 exec, -1")
    EP,EM = feature(a, BK, 2, True, mid1=vcorr, tail=tail, fillB=k0, hook=hook)
    stamp(a,34)
    a(f"v_xor_b32 v{vSR[0]}, 0x2000, v{vSR[0]}\nv_xor_b32 v{vSR[1]}, 0x2000, v{vSR[1]}\nv_xor_b32 v{vVS}, 0x1000, v{vVS}\ns_waitcnt lgkmcnt(4)\ns_barrier")
    for ks in range(2):
        for ft in range(2):
            for v in range(2): a(f"ds_read_b64_tr_b16 {R(PA_+8*ks+4*ft+2*v,2)}, v{vSR[ft]} offset:{4096*ks+2048*v}")
        for dt in range(2): a(f"ds_read_b128 {R(acc(2*ks+1,4+dt),4)}, v{vVS} offset:{2048*ks+1024*dt}")
    for k4 in range(1,4):
        a(f"s_waitcnt lgkmcnt({(12,6,0)[k4-1]})")
        for x in kvm(k4): a(x)
    stamp(a,33)
    for ft in range(2):
        for v in range(2): a(f"ds_read_b64_tr_b16 {R(PHI+4*ft+2*v,2)}, v252 offset:{L_PHQ-L_PHI+1024*v+32*ft}")
    a(f"s_xor_b32 s67, s67, {2*QX}\ns_lshl_b32 s3, s38, 2\ns_add_u32 s3, s3, {L_FLG}\nv_mov_b32 v4, s3\nv_mov_b32 v5, 1")
    for j in range(3):
        b=KVt[j]
        for i in range(4): a(f"v_cvt_pk_bf16_f32 v{b+i}, v{b+2*i}, v{b+2*i+1}")
        if j<2: a(f"buffer_store_dwordx4 {R(b,4)}, v{vLN}, s[{SWS}:{SWS+3}], s74 offen offset:{1024*j} sc1")
    a("s_mov_b32 exec_lo, 0x00010001\ns_mov_b32 exec_hi, 0x00010001")
    a(f"buffer_store_dwordx4 {R(KVt[2],4)}, v1, s[{SWS}:{SWS+3}], s75 offen sc1\ns_mov_b64 exec, -1\nds_write_b32 v4, v5")
    stamp(a,25)
    a("s_setprio 0")
    corrT(a, 0, CSQ, BK)
    a("s_waitcnt lgkmcnt(1)")
    EP,EM = feature(a, BK, 0, False)
    stamp(a,26)
    KF=104; ZF=120
    for i in range(8): a(f"v_mov_b32 v{PX+i}, v{177+2*i}")
    key_rd(a, 248)
    a("v_lshrrev_b32 v5, 3, v1\nv_lshlrev_b32 v6, 11, v5\nv_bfe_u32 v5, v1, 4, 2\nv_lshlrev_b32 v5, 1, v5\nv_and_b32 v7, 7, v1\nv_xor_b32 v5, v5, v7\nv_lshl_add_u32 v6, v5, 4, v6\ns_lshl_b32 s3, s35, 7\nv_add_u32 v6, s3, v6")
    for e in range(4): a(f"v_add_u32 v{216+e}, {e*15360}, v6")
    a("s_lshl_b32 s72, s38, 12\ns_lshl_b32 s73, s38, 16")
    stat3(a, 193, 192)
    a(f"s_mul_i32 s76, s67, {KVS}\ns_add_u32 s76, s76, {WS_KVR}\nv_lshlrev_b32 v5, 4, v1\nv_and_b32 v6, 48, v1\nv_add_u32 v6, 4096, v6")
    a(f"s_lshl_b32 s3, s38, 2\ns_add_u32 s3, s3, {L_FLG}\nv_mov_b32 v3, s3\nL_gw:\nds_read_b32 v2, v3\ns_waitcnt lgkmcnt(0)\nv_readfirstlane_b32 s3, v2\ns_cmp_eq_u32 s3, 3\ns_cbranch_scc1 L_gk\ns_sleep 1\ns_branch L_gw\nL_gk:")
    stamp(a,35)
    if opt('h2d',6): a(f"s_sleep {opt('h2d',6)}")
    def ld_h2():
        for j in range(4): a(f"buffer_load_dwordx4 {R(KF+4*j,4)}, v5, s[{SWS}:{SWS+3}], s76 offen offset:{1024*j} sc1")
        for pm in range(2): a(f"buffer_load_dwordx4 {R(ZF+4*pm,4)}, v6, s[{SWS}:{SWS+3}], s76 offen offset:{64*pm} sc1")
    ld_h2()
    key_fin(a, 248)
    a(f"s_lshl_b32 s3, s36, 3\ns_lshl_b32 s28, s64, 2\ns_add_u32 s3, s3, s28\ns_lshl_b32 s3, s3, 5\ns_add_u32 s3, s3, s67\ns_lshl_b32 s77, s3, 10\ns_add_u32 s77, s77, {WS_O}")
    a("s_waitcnt vmcnt(0)")
    stamp(a,36)
    if 'h2m' in EXP:
        L=a.capture(ld_h2)
        def rl():
            for j,x in enumerate(L):
                maxu(a, 2, range(KF+4*j,KF+4*j+4))
                a(f"v_cmp_eq_u32 vcc, -1, v2\ns_cbranch_vccz L_hm{j}\ns_mov_b64 exec, vcc\n{x}\ns_mov_b64 exec, -1\nL_hm{j}:")
        checked(a, "L_k7", range(KF,KF+24), rl, sleep=0)
    else: checked(a, "L_k7", range(KF,KF+24), ld_h2)
    a("s_setprio 2")
    c_wo(a,'c2')
    stamp(a,27)
    for g in range(4):
        N=acc(g,2)
        for pm,Eb in ((0,EP[g]),(1,EM[g])):
            mfma(a, N+8, ZF+4*pm, Eb, N+8 if pm else None)
            for dt in range(2): mfma(a, N+4*dt, KF+8*pm+4*dt, Eb, N+4*dt if pm else None)
    for g in range(4): a(f"v_add_f32 v{acc(g,2)+8}, 0x358637bd, v{acc(g,2)+8}")
    for g in range(4): a(f"v_rcp_f32 v{acc(g,2)+8}, v{acc(g,2)+8}")
    for g in range(4):
        N=acc(g,2)
        for i in range(0,8,2): a(f"v_pk_mul_f32 {R(N+i,2)}, {R(N+i,2)}, {R(N+8,2)} op_sel_hi:[1,0]")
        for i in range(4): a(f"v_cvt_pk_bf16_f32 v{N+i}, v{N+2*i}, v{N+2*i+1}")
        a(f"buffer_store_dwordx4 {R(N,4)}, v5, s[{SWS}:{SWS+3}], s77 offen sc1")
        if g<3: a("s_add_u32 s77, s77, 32768")
    a(f"v_mov_b32 v2, 7\nds_write_b32 v3, v2\ns_and_b32 s3, s68, 127\ns_lshl_b32 s3, s3, 2\ns_add_u32 s3, s3, {L_M}\nv_mov_b32 v2, s3\nds_read_b32 v250, v2\nds_read_b32 v251, v2 offset:1024")
    stamp(a,28)
    a("s_setprio 0")
    if 'sfirst' in EXP: silu_prep(a, PG, PX, 193, 192, 196)
    wait7(a, "L_cw")
    c_wo(a,'co')
    if 'sfirst' not in EXP: silu_prep(a, PG, PX, 193, 192, 196)
    if opt('cpd',0): a(f"s_sleep {opt('cpd',0)}")
    stamp(a,29)

def p3(a):
    a("L_p3:")
    a.pad(4)
    D=opt('d3',5)
    PA=8; PB=40; PW=PB+8*D; vW=PW+32; vB=vW+4
    srd(a, SB, 22, 2048*2048)
    a(f"s_lshr_b32 s64, s39, 2\ns_lshl_b32 s3, s34, 2\ns_add_u32 s3, s3, s38\ns_lshl_b32 s3, s3, 16\ns_lshl_b32 s28, s64, 14\ns_add_u32 s3, s3, s28\ns_add_u32 s76, s3, {WS_O}")
    a(f"s_lshl_b32 s3, s64, 15\nv_lshlrev_b32 v2, 4, v1\nv_add_u32 v{vB}, s3, v2\nv_xor_b32 v{vB+1}, 0x8000, v{vB}")
    a(f"v_lshrrev_b32 v2, 2, v1\nv_lshlrev_b32 v2, 7, v2\nv_bfe_u32 v3, v1, 3, 2\nv_lshl_add_u32 v2, v3, 5, v2\nv_and_b32 v3, 3, v1\nv_lshl_add_u32 v2, v3, 3, v2\ns_lshl_b32 s3, s64, 16\nv_add_u32 v{vW}, s3, v2")
    for ct in range(1,4): a(f"v_xor_b32 v{vW+ct}, {32*ct}, v{vW}")
    ROT='prot' in EXP
    vWr=196
    if ROT:
        for k in range(4):
            a(f"s_and_b32 s3, s35, 3\ns_xor_b32 s3, s3, {k}\ns_lshl_b32 s{79+k}, s3, 10\ns_add_u32 s{79+k}, s{79+k}, s76\ns_lshl_b32 s3, s3, 12")
            for ct in range(4): a(f"v_add_u32 v{vWr+4*k+ct}, s3, v{vW+ct}")
    def ldx(j, b, sreg):
        if ROT: a(f"s_add_u32 s{sreg}, s{79+(j&3)}, {(j&~3)*1024}")
        for e in range(2): a(f"buffer_load_dwordx4 {R(b+4*e,4)}, v{vB+e}, s[{SWS}:{SWS+3}], s{sreg} offen offset:{0 if ROT else (j%4)*1024} sc1")
    def ld(j):
        b=PB+8*(j%D)
        if j%4==0 and not ROT: a(f"s_add_u32 s77, s76, {j*1024}")
        ldx(j,b,77)
    def wr(j):
        b=PW+16*(j%2)
        if ROT: return [f"ds_read_b64_tr_b16 {R(b+4*ct+2*v,2)}, v{vWr+4*(j&3)+ct} offset:{(j&~3)*4096+v*2048}" for ct in range(4) for v in range(2)]
        return [f"ds_read_b64_tr_b16 {R(b+4*ct+2*v,2)}, v{vW+ct} offset:{j*4096+v*2048}" for ct in range(4) for v in range(2)]
    for j in range(D-1): ld(j)
    stamp2(a,30)
    a(f"s_lshr_b32 s3, s68, 7\ns_xor_b32 s83, s3, s34\ns_or_b32 s83, s83, s39")
    YL=128; IS=250
    a("v_lshlrev_b32 v222, 4, v1")
    def ld_y():
        for j in range(16):
            if j%4==0: a(f"s_add_u32 s3, s78, {j*1024}")
            a(f"buffer_load_dwordx4 {R(YL+4*j,4)}, v222, s[{SWS}:{SWS+3}], s3 offen offset:{(j%4)*1024} sc1")
    def fix1():
        a(f"L_fx1:\ns_lshl_b32 s78, s35, 14\ns_add_u32 s78, s78, {WS_Y}")
        a(f"v_and_b32 v2, 15, v1\nv_lshrrev_b32 v3, 4, v1\nv_lshl_add_u32 v193, v2, 2, v3\nv_and_b32 v2, 7, v193\nv_lshrrev_b32 v193, 3, v193\nv_lshl_add_u32 v193, v2, 3, v193\nv_lshlrev_b32 v2, 1, v193\ns_lshl_b32 s3, s68, 11\ns_lshl_b32 s28, s35, 7\ns_add_u32 s3, s3, s28\nbuffer_load_ushort v194, v2, s[{SX}:{SX+3}], s3 offen")
        ld_y()
        a("s_branch L_fx1r")
    def fix2():
        a("L_fx2:\ns_and_b32 s3, s70, 0xffff0000\ns_xor_b32 s28, s3, 0x80000000\ns_not_b32 s29, s3\ns_and_b32 s29, s29, 0xffff0000\ns_bitcmp1_b32 s3, 31\ns_cselect_b32 s3, s28, s29")
        a(f"v_mov_b32 v195, s3\nv_mul_f32 v195, 0xbfb8aa3b, v195\nv_exp_f32 v195, v195\nv_add_f32 v195, 1.0, v195\nv_rcp_f32 v195, v195")
        rne(a,195,195)
        checked(a, "L_k6", range(YL,YL+64), ld_y, sleep=4)
        for k in (8,4,2,1):
            for i in range(0,4*k,2): a(f"v_pk_add_f32 {R(YL+i,2)}, {R(YL+i,2)}, {R(YL+4*k+i,2)}")
        for i in range(2): a(f"v_permlane32_swap_b32 v{YL+i}, v{YL+2+i}")
        for i in range(2): a(f"v_add_f32 v{YL+i}, v{YL+i}, v{YL+2+i}")
        a(f"v_permlane16_swap_b32 v{YL}, v{YL+1}\nv_add_f32 v{YL}, v{YL}, v{YL+1}")
        rne(a,YL,YL)
        a(f"v_mul_f32 v{YL}, v{YL}, v195\nv_lshlrev_b32 v194, 16, v194\nv_sub_f32 v194, v194, v{IS}")
        rne(a,YL,YL); rne(a,194,194)
        a(f"v_mul_f32 v194, v194, v{IS+1}")
        rne(a,194,194)
        a(f"v_add_f32 v{YL}, v{YL}, v194")
        rne(a,YL,YL)
        a(f"v_mul_f32 v2, 0xbfb8aa3b, v{YL}\nv_exp_f32 v2, v2\nv_add_f32 v2, 1.0, v2\nv_rcp_f32 v2, v2\nv_mul_f32 v2, v{YL}, v2\nv_lshlrev_b32 v3, 2, v193\nds_write_b32 v3, v2\ns_branch L_fx2r")
    for r in wr(0): a(r)
    a("s_mov_b32 s29, 0")
    BC=opt('bc',7)
    def chk(j):
        b=PB+8*(j%D)
        return a.capture(lambda: maxu(a, 2, range(b,b+8)))+["v_cmp_eq_u32 vcc, -1, v2"]
    a(f"s_waitcnt vmcnt({2*(D-2)})")
    for x in chk(0): a(x)
    for j in range(16):
        b=PB+8*(j%D); w=PW+16*(j%2)
        a(f"s_cbranch_vccnz L_r{j}\nL_g{j}:")
        if 'pst' in EXP and j%4==0: stamp2(a,40+j//4)
        if a.down and j==opt('jd',4): a("s_cmp_eq_u32 s64, 1\ns_cbranch_scc1 L_dn\nL_dnr:")
        if j==opt('fxj',14): a("s_cmp_eq_u32 s83, 0\ns_cbranch_scc1 L_fx1\nL_fx1r:")
        a("s_waitcnt lgkmcnt(0)")
        if 'bal' in EXP and j in (0,5,9,13): a(f"s_setprio {3-(j//4)}")
        if 'bal2' in EXP and j in (0,8,12,14): a(f"s_setprio {dict(zip((0,8,12,14),(3,2,1,0)))[j]}")
        if BC==3:
            if j==3: a("s_barrier")
        elif j in (opt('bh',3),BC): a(f"s_cmp_eq_u32 s64, {0 if j!=BC else 1}\ns_cbranch_scc1 L_nb{j}\ns_barrier\nL_nb{j}:")
        S=[[] for _ in range(8)]
        if j<15:
            rd=wr(j+1)
            for i in range(4): S[i]=rd[2*i:2*i+2]
            if j+D-1<16: S[4]=a.capture(lambda: ld(j+D-1))
            c=chk(j+1)
            S[5]=[f"s_waitcnt vmcnt({2*min(D-2,14-j)})"]+c[:1]; S[6]=c[1:3]; S[7]=c[3:]
        i=0
        for ct in range(4):
            for e in range(2):
                d=PA+16*e+4*ct
                mfma(a, d, w+4*ct, b+4*e, d if j else None)
                for x in S[i]: a(x)
                i+=1
    stamp2(a,31)
    if STAMPS: a(f"v_writelane_b32 v{VST-1}, s29, 58")
    a("s_cmp_eq_u32 s83, 0\ns_cbranch_scc1 L_fx2\nL_fx2r:")
    a(f"s_lshl_b32 s3, s39, 12\ns_add_u32 s3, s3, {L_STG}\nv_lshlrev_b32 v2, 4, v1\nv_add_u32 v2, s3, v2\nv_xor_b32 v3, 0x4000, v2\ns_xor_b32 s28, s3, 0x4000")
    for ct in range(4): a(f"ds_write_b128 v2, {R(PA+16+4*ct,4)} offset:{1024*ct}")
    XF=40
    for d in range(8): unpack(a, XF+2*d, PX+d)
    a(f"v_and_b32 v4, 15, v1\nv_lshrrev_b32 v5, 4, v1\nv_lshlrev_b32 v6, 1, v4\nv_and_b32 v6, 14, v6\nv_xor_b32 v5, v5, v6\nv_lshl_add_u32 v4, v4, 7, s28\nv_lshl_add_u32 v4, v5, 3, v4")
    a(f"v_lshrrev_b32 v5, 3, v1\nv_and_b32 v6, 7, v1\nv_xor_b32 v7, v6, v5\nv_lshl_add_u32 v7, v7, 4, s28\nv_lshl_add_u32 v7, v5, 7, v7")
    a(f"s_lshl_b32 s3, s34, 7\ns_add_u32 s3, s3, s69\nv_add_u32 v5, s3, v5\nv_lshlrev_b32 v5, 11, v5\nv_lshl_add_u32 v5, v6, 4, v5\ns_lshl_b32 s3, s35, 7\ns_add_u32 s28, s3, 16384")
    a(f"s_lshl_b32 s29, s34, 7\ns_add_u32 s29, s29, s69\ns_andn2_b32 s77, s68, 15\ns_cmp_lg_u32 s29, s77")
    a("s_waitcnt lgkmcnt(0)\ns_barrier")
    a(f"s_cbranch_scc1 L_nov\nv_and_b32 v2, 48, v1\ns_and_b32 s29, s68, 15\ns_lshl_b32 exec_lo, 0x00010001, s29\ns_mov_b32 exec_hi, exec_lo")
    for ct in range(4): a(f"ds_read_b128 {R(PG+4*ct,4)}, v2 offset:{64*ct}")
    a("s_mov_b64 exec, -1\nL_nov:")
    stamp(a,60)
    for ct in range(4): a(f"ds_read_b128 {R(PA+16+4*ct,4)}, v3 offset:{1024*ct}")
    for ct in range(4):
        a(f"s_waitcnt lgkmcnt({3-ct})")
        for i in (0,2): a(f"v_pk_add_f32 {R(PA+4*ct+i,2)}, {R(PA+4*ct+i,2)}, {R(PA+16+4*ct+i,2)}")
        for i in (0,2): a(f"v_pk_fma_f32 {R(XF+4*ct+i,2)}, {R(PA+4*ct+i,2)}, {R(PG+4*ct+i,2)}, {R(XF+4*ct+i,2)}")
        for i in (0,1): a(f"v_cvt_pk_bf16_f32 v{PA+2*ct+i}, v{XF+4*ct+2*i}, v{XF+4*ct+2*i+1}")
    for ct in range(4):
        if ct: a(f"v_xor_b32 v6, {32*ct}, v4")
        a(f"ds_write_b64 v{6 if ct else 4}, {R(PA+2*ct,2)}")
    for e in range(2): a(f"ds_read_b128 {R(PA+16+4*e,4)}, v7 offset:{1024*e}")
    OM = '' if 'outplain' in EXP else ' nt' if 'outnt' in EXP else ' sc1 nt' if 'outsn' in EXP else ' sc0 sc1' if 'outss' in EXP else ' sc1'
    for e in range(2):
        a(f"s_waitcnt lgkmcnt({1-e})\nbuffer_store_dwordx4 {R(PA+16+4*e,4)}, v5, s[{SB}:{SB+3}], s{28 if e else 3} offen{OM}")
    stamp(a,61)
    if STAMPS: a("s_waitcnt vmcnt(0)")
    stamp(a,32)
    dump(a)
    if LEAK>=0: a("s_memrealtime s[98:99]\ns_waitcnt lgkmcnt(0)\ns_sub_u32 s94, s94, s96\ns_add_u32 s94, s94, s98\nL_lk:\ns_sleep 1\ns_memrealtime s[98:99]\ns_waitcnt lgkmcnt(0)\ns_cmp_lt_u32 s98, s94\ns_cbranch_scc1 L_lk")
    a("L_done:\ns_endpgm")
    if False: ln_code(a)
    fix1(); fix2()
    if a.down:
        a("L_dn:")
        if 'dprio' in EXP: a("s_setprio 3")
        a.down('dprio' not in EXP)
        if 'dprio' in EXP: a("s_setprio 0")
        a("s_branch L_dnr")
    for j in range(16):
        b=PB+8*(j%D)
        a(f"L_r{j}:\ns_add_u32 s29, s29, 1\ns_cmp_ge_u32 s29, {SPIN}\ns_cbranch_scc1 L_g{j}\ns_add_u32 s3, s76, {(j&~3)*1024}")
        ldx(j,b,3)
        a("s_waitcnt vmcnt(0)")
        for x in chk(j): a(x)
        a(f"s_cbranch_vccnz L_r{j}\ns_branch L_g{j}")

def kern(a):
    kernel_header(a, "fused_kernel")
    a("s_cmp_ge_u32 s2, 256\ns_cbranch_scc1 L_done")
    a("s_load_dwordx16 s[4:19], s[0:1], 0\ns_load_dwordx8 s[20:27], s[0:1], 64")
    if STAMPS or LEAK>=0: a("s_memrealtime s[96:97]\ns_memrealtime s[94:95]")
    a("v_and_b32 v1, 63, v0\nv_lshrrev_b32 v2, 6, v0")
    a("v_readfirstlane_b32 s39, v2")
    a("s_and_b32 s34, s2, 1\ns_lshl_b32 s34, s34, 3\ns_bfe_u32 s3, s2, 0x30003\ns_add_u32 s36, s34, s3")
    a("s_bfe_u32 s37, s2, 0x20001\ns_lshl_b32 s37, s37, 2\ns_lshr_b32 s28, s2, 6\ns_add_u32 s37, s37, s28")
    a("s_and_b32 s80, s37, 12\ns_xor_b32 s80, s80, s34\ns_add_u32 s85, s36, s37\ns_and_b32 s85, s85, 3\ns_add_u32 s3, s85, 3\ns_and_b32 s3, s3, 3\ns_xor_b32 s35, s80, 12\ns_or_b32 s35, s35, s3\ns_mov_b32 s34, s36")
    a("s_and_b32 s38, s39, 3")
    a("s_cmp_lt_u32 s39, 4\ns_cbranch_scc1 L_C")
    h_waves(a)
    c_waves(a)
    p3(a)
    return kernel_desc("fused_kernel", 256, 102)

if __name__ == "__main__":
    a=CAsm()
    head = open('/code/%s.s.ref'%NAME).read().split('\n')
    hdr = [l for l in head if l.startswith(';') and '@launch' not in l and 'Override launch' not in l and 'grid=ceil' not in l]
    out='\n'.join(hdr)+"\n; @launch kernel=fused_kernel grid=(256,1,1) block=(512,1,1) lds=163840\n"
    out+='.amdgcn_target "amdgcn-amd-amdhsa--gfx950"\n.text\n'
    d=kern(a)
    if 'noal' not in EXP:
        import align
        a.lines,nw,nn = align.align(a.lines, '.amdgcn_target "amdgcn-amd-amdhsa--gfx950"\n.text\n')
    out+=a.text()+".p2align 8\n.fill 4096, 4, 0xbf800000\n"+'.section .rodata,"a"\n.p2align 6\n'+d
    if 'official' in EXP:
        out = out.replace("; @launch kernel=fused_kernel grid=", "; @launch grid=").replace("fused_kernel", NAME+"_kernel")
    open(sys.argv[1],"w").write(out)
```

```python
import sys, os
from asmgen import Asm, kernel_header, kernel_desc
NAME = "recurrent_scan__linear_kernel_hedgehog__moe_arch_mod__prompt"
EXP = os.environ.get('EXP','').split(',')
STAMPS = 'st' in EXP or 'lite' in EXP
LITE = 'lite' in EXP
def opt(name, default):
    for e in EXP:
        if e.startswith(name+'='): return int(e.split('=')[1])
    return default
WS_SIZE = 0x10000000
WS_REC  = 0x000000
WS_EPO  = 0x004000
WS_RDY  = 0x008000
KVS     = 4224
WS_FILL = 0x100000
WS_CSP  = 0x080000
WS_KVR  = WS_FILL
WS_GU   = WS_KVR + 32*KVS
WS_Y    = WS_GU + 16*3584*4
assert WS_Y + 16*64*256 <= WS_FILL + 1024*768
WS_O    = 0x400000
WS_KVP  = 0x800000
WS_DBG  = 0x3000000
SLOT = 40960
L_PHS  = 98304
L_WR   = 122880
L_STG  = 131072
LM     = 147456
L_PHI  = LM+256
L_M    = LM+4096+512
L_R    = L_M+1024
L_RC   = L_R+1024
L_SQ   = L_RC+512
L_CS   = L_SQ+256
L_PHQ  = LM+8192+256
L_KEY  = LM+8192+256+6144
L_FLG  = L_KEY+64
assert L_CS+768 <= LM+8192 and L_FLG+32 <= 163840
NT = opt('nt',1)
PLC = {}
for it_ in os.environ.get('PLC','i0:k0;i1:k1,k2;i3:p,t,G0004;i4:a;i5:o0,o1;i8:o2,o3;i9:b0;j10:b1;j14:G0412;x0:w0,w1,w4,G1219;x2:w2,w3,w5;h0:G1923;co:w6,w7').split(';'):
    PLC.setdefault(it_.split(':')[0],[]).extend(it_.split(':')[1].split(','))
FNT = '' if 'fplain' in EXP else ' nt'
TNT = ' nt' if 'tnt' in EXP else ''
ARR = opt('arr',8)
QX = opt('qx',4)
LNP = 3
DPPM = "row_mask:0xf bank_mask:0xf"
LOG2E = 0x3fb8aa3b
SPIN = 200000
SX, SW, SWS, SA, SB, SC = 40, 44, 48, 52, 56, 60
VST = 255
LNX = 192

def srd(a, d, base, size):
    a(f"s_mov_b32 s{d}, s{base}\ns_mov_b32 s{d+1}, s{base+1}\ns_mov_b32 s{d+2}, {size}\ns_mov_b32 s{d+3}, 0x00020000")
LEAK = opt('leak',-1)
def stamp(a, i):
    if i==LEAK: a("s_memrealtime s[94:95]")
    if STAMPS and (i==32 or not LITE): a(f"s_memrealtime s[100:101]\ns_waitcnt lgkmcnt(0)\nv_writelane_b32 v{VST}, s100, {i}")
def stamp2(a, i):
    if i==LEAK: a("s_memrealtime s[94:95]")
    if STAMPS and not LITE: a(f"s_memrealtime s[100:101]\ns_memtime s[98:99]\ns_waitcnt lgkmcnt(0)\nv_writelane_b32 v{VST}, s100, {i}\nv_writelane_b32 v{VST-1}, s98, {i}")
def dump(a):
    if STAMPS: a(f"s_lshl_b32 s3, s2, 3\ns_add_u32 s3, s3, s39\ns_lshl_b32 s3, s3, 9\ns_add_u32 s3, s3, {WS_DBG}\nv_lshlrev_b32 v2, 3, v1\nbuffer_store_dwordx2 v[{VST-1}:{VST}], v2, s[{SWS}:{SWS+3}], s3 offen")
def rne(a, dst, src):
    a(f"v_cvt_pk_bf16_f32 v{dst}, v{src}, v{src}\nv_lshlrev_b32 v{dst}, 16, v{dst}")
def R(b, n): return f"v[{b}:{b+n-1}]"
def unpack(a, dst, src):
    a(f"v_lshlrev_b32 v{dst}, 16, v{src}\nv_and_b32 v{dst+1}, 0xffff0000, v{src}")
def mfma(a, d, A, B, c=None):
    a(f"v_mfma_f32_16x16x32_bf16 {R(d,4)}, {R(A,4)}, {R(B,4)}, {'0' if c is None else R(c,4)}")

class CAsm(Asm):
    cap=None
    def __call__(self, text):
        if self.cap is not None: self.cap += [t for t in text.strip().split('\n') if t.strip()]
        else: super().__call__(text)
    def capture(self, f):
        self.cap=[]; f(); r=self.cap; self.cap=None; return r

class VM:
    def __init__(self, a, nt=1): self.a=a; self.nt=nt; self.q=[[] for _ in range(nt)]; self.only=None; self.nl=0
    def issue(self, tag, n=1):
        for c in range(self.nt):
            if self.only is None or c in self.only: self.q[c] += [tag]*n
    def wait(self, tag):
        need={}
        for c in range(self.nt):
            q=self.q[c]
            if tag in q and (self.only is None or c in self.only):
                idx=max(i for i,t in enumerate(q) if t==tag); need[c]=len(q)-1-idx; self.q[c]=q[idx+1:]
        if not need: return
        allc=[c for c in range(self.nt) if self.only is None or c in self.only]
        base=max(need.values()) if len(need)==len(allc) else None
        if base is not None: self.a(f"s_waitcnt vmcnt({min(base,63)})")
        for c,n in need.items():
            if n!=base:
                self.nl+=1
                self.a(f"s_cmp_lg_u32 s85, {c}\ns_cbranch_scc1 L_vw{self.nl}\ns_waitcnt vmcnt({min(n,63)})\nL_vw{self.nl}:")
    def drain(self): self.a("s_waitcnt vmcnt(0)"); self.q=[[] for _ in range(self.nt)]
    def cond(self, classes, f):
        classes=set(classes)
        if not classes: return
        if len(classes)==self.nt: f(); return
        self.nl+=1; l=f"L_vc{self.nl}"
        if len(classes)==1: self.a(f"s_cmp_lg_u32 s85, {list(classes)[0]}\ns_cbranch_scc1 {l}")
        else:
            for c in set(range(self.nt))-classes: self.a(f"s_cmp_eq_u32 s85, {c}\ns_cbranch_scc1 {l}")
        self.only=classes; f(); self.only=None
        self.a(f"{l}:")

def maxu(a, dst, regs):
    regs=list(regs)
    if len(regs)==1: a(f"v_mov_b32 v{dst}, v{regs[0]}"); return
    if len(regs)==2: a(f"v_max_u32 v{dst}, v{regs[0]}, v{regs[1]}"); return
    a(f"v_max3_u32 v{dst}, v{regs[0]}, v{regs[1]}, v{regs[2]}"); regs=regs[3:]
    while len(regs)>=2: a(f"v_max3_u32 v{dst}, v{dst}, v{regs[0]}, v{regs[1]}"); regs=regs[2:]
    if regs: a(f"v_max_u32 v{dst}, v{dst}, v{regs[0]}")

def checked(a, lbl, regs, reload, t=2, sleep=1):
    a(f"s_mov_b32 s29, 0\n{lbl}:")
    maxu(a, t, regs)
    a(f"v_cmp_eq_u32 vcc, -1, v{t}\ns_cbranch_vccz {lbl}k\ns_add_u32 s29, s29, 1\ns_cmp_ge_u32 s29, {SPIN}\ns_cbranch_scc1 {lbl}k")
    if sleep: a(f"s_sleep {sleep}")
    reload()
    a(f"s_waitcnt vmcnt(0)\ns_branch {lbl}\n{lbl}k:")
    if STAMPS: a(f"v_writelane_b32 v{VST-1}, s29, {50+int(lbl[3:])}")

def red8(a, e):
    for i in range(4): a(f"v_permlane32_swap_b32 v{e+i}, v{e+4+i}")
    for i in range(4): a(f"v_add_f32 v{e+i}, v{e+i}, v{e+4+i}")
    for i in range(2): a(f"v_permlane16_swap_b32 v{e+i}, v{e+2+i}")
    for i in range(2): a(f"v_add_f32 v{e+i}, v{e+i}, v{e+2+i}")
    for i in range(2): a(f"v_add_f32 v{e+i}, v{e+i}, v{e+i} row_ror:8 {DPPM}")

def silu_prep(a, PG, PX, vm_, vr, T):
    assert vr%2==0 and T%2==0
    a(f"v_mul_f32 v{T}, v{vm_}, v{vr}\nv_mov_b32 v{T+2}, 0xbfb8aa3b")
    E=T+4
    for d in range(8): unpack(a, PG+2*d, PX+d)
    for i in range(0,16,2): a(f"v_pk_fma_f32 {R(PG+i,2)}, {R(PG+i,2)}, {R(vr,2)}, {R(T,2)} op_sel_hi:[1,0,0] neg_lo:[0,0,1] neg_hi:[0,0,1]")
    for i in range(0,16,2): a(f"v_pk_mul_f32 {R(E+i,2)}, {R(PG+i,2)}, {R(T+2,2)} op_sel_hi:[1,0]")
    for i in range(16): a(f"v_exp_f32 v{E+i}, v{E+i}")
    for i in range(0,16,2): a(f"v_pk_add_f32 {R(E+i,2)}, {R(E+i,2)}, 1.0 op_sel_hi:[1,0]")
    for i in range(16): a(f"v_rcp_f32 v{E+i}, v{E+i}")
    for i in range(0,16,2): a(f"v_pk_mul_f32 {R(PG+i,2)}, {R(PG+i,2)}, {R(E+i,2)}")

PG, PX = 224, 240
def xaddr(a, dst, t0=2, t1=3):
    a(f"s_lshl_b32 s3, s38, 1\ns_lshr_b32 s28, s39, 2\ns_add_u32 s3, s3, s28\ns_lshl_b32 s69, s3, 4")
    a(f"v_and_b32 v{t0}, 15, v1\nv_add_u32 v{dst}, s69, v{t0}\nv_lshlrev_b32 v{dst}, 7, v{dst}\nv_lshrrev_b32 v{t0}, 1, v{t0}\nv_lshrrev_b32 v{t1}, 5, v1\nv_xor_b32 v{t0}, v{t0}, v{t1}\nv_lshl_add_u32 v{dst}, v{t0}, 4, v{dst}\nv_bfe_u32 v{t1}, v1, 4, 1\nv_lshl_add_u32 v{dst}, v{t1}, 3, v{dst}")
def stat3(a, vm_, vr):
    a(f"v_and_b32 v2, 15, v1\nv_add_u32 v2, s69, v2\nv_lshlrev_b32 v2, 2, v2\nv_add_u32 v2, {L_M}, v2\nds_read_b32 v{vm_}, v2\nds_read_b32 v{vr}, v2 offset:1024")

def wait7(a, l):
    a(f"v_and_b32 v3, 3, v1\nv_lshlrev_b32 v3, 2, v3\nv_add_u32 v3, {L_FLG}, v3\n{l}:\nds_read_b32 v2, v3\ns_waitcnt lgkmcnt(0)\nv_cmp_ne_u32 vcc, 7, v2\ns_cbranch_vccz {l}k\ns_sleep 1\ns_branch {l}\n{l}k:")
def key_rd(a, v):
    a(f"v_mov_b32 v2, {L_KEY}\nds_read_b32 v{v}, v2")
def key_fin(a, v):
    a(f"s_waitcnt lgkmcnt(0)\nv_readfirstlane_b32 s70, v{v}\ns_and_b32 s68, s70, 0x7ff\ns_sub_u32 s68, 2047, s68")

def h_waves(a):
    vm = VM(a, NT)
    vA=8; vW=12; vCS=18; vF=21; vD=22; vXo=23
    CSA=24; CSL=32; XF=80
    FW=128; DW=192; FA=120; SENT=248; vL16=252; vP64=253
    a("L_H:")
    a("v_and_b32 v4, 7, v1\ns_lshl_b32 s33, s37, 7\ns_lshl_b32 s87, s85, 7\ns_lshl_b32 s66, s80, 7")
    a("s_lshl_b32 s3, s36, 7\ns_lshl_b32 s28, s38, 5\ns_add_u32 s3, s3, s28")
    a("v_lshrrev_b32 v7, 3, v1\nv_add_u32 v3, s3, v7\nv_lshlrev_b32 v3, 11, v3")
    a("v_lshrrev_b32 v5, 4, v1\nv_xor_b32 v6, v4, v5\nv_xor_b32 v5, 4, v6")
    a("v_lshl_add_u32 v6, v6, 4, v3\nv_lshl_add_u32 v5, v5, 4, v3")
    for j in range(4): a(f"v_add_u32 v{vA+j}, {j*16384 - j*1024}, v{5 if j&1 else 6}")
    a("s_lshr_b32 s32, s36, 1\ns_and_b32 s32, s32, 2\ns_xor_b32 s32, s32, s38" if 'nowx' not in EXP else "s_mov_b32 s32, s38")
    a("s_lshl_b32 s3, s32, 4\nv_add_u32 v7, s3, v7\nv_mul_u32_u24 v7, 6144, v7")
    a("v_bfe_u32 v6, v1, 4, 1\nv_lshlrev_b32 v6, 1, v6\nv_xor_b32 v5, v4, v6\nv_add_u32 v7, s33, v7\nv_xor_b32 v6, 4, v5\nv_lshl_add_u32 v6, v6, 4, v7\nv_lshl_add_u32 v7, v5, 4, v7")
    for e in range(6): a(f"v_add_u32 v{vW+e}, {(e>>1)*2048 + (e&1)*(8*6144-1024)}, v{6 if e&1 else 7}")
    for e in range(2): a(f"v_xor_b32 v{vW+e}, {QX*128}, v{vW+e}")
    a(f"s_lshl_b32 s30, s38, 12\ns_lshl_b32 s31, s32, 11\ns_add_u32 s31, s31, 16384")
    a("s_waitcnt lgkmcnt(0)")
    srd(a, SW, 6, 1024*3072*2); srd(a, SX, 4, 2048*2048)
    def tiles(s, wfirst=False, part=None):
        sl=(s%3)*SLOT
        def A_():
            a(f"s_add_u32 m0, s30, {sl}")
            for j in range(4): a(f"buffer_load_dwordx4 v{vA+j}, s[{SX}:{SX+3}], s64 offen offset:{j*1024}{TNT if s%4==0 else ''} lds")
        def W_():
            for e in range(6):
                if e%2==0: a(f"s_add_u32 m0, s31, {sl+(e>>1)*8192}")
                a(f"buffer_load_dwordx4 v{vW+e}, s[{SW}:{SW+3}], s65 offen offset:{(e&1)*1024}{TNT if s%4==0 else ''} lds")
        if 'b2' in EXP and s<4: a(f"s_add_u32 s64, s87, {(s&1)*128}\ns_and_b32 s64, s64, 255\ns_or_b32 s64, s64, {(s>>1)*256}\ns_xor_b32 s64, s64, s66\ns_mul_i32 s65, s64, 3072")
        else: a(f"s_add_u32 s64, s87, {(s&3)*128}\ns_and_b32 s64, s64, 511\ns_or_b32 s64, s64, {(s>>2)*512}\ns_xor_b32 s64, s64, s66\ns_mul_i32 s65, s64, 3072")
        if part=='W': W_(); vm.issue(('t',s),6); return
        if part=='A': A_(); vm.issue(('t',s),4); return
        if wfirst: W_(); A_()
        else: A_(); W_()
        vm.issue(('t',s),10)
    def fill_addr():
        a(f"s_lshr_b32 s3, s38, 1\ns_lshl_b32 s28, s37, 1\ns_add_u32 s28, s28, s3\ns_and_b32 s29, s38, 1")
        a(f"s_lshl_b32 s3, s28, 4\ns_add_u32 s3, s3, s36\ns_mul_i32 s3, s3, {KVS}\ns_mul_i32 s78, s29, {KVS//2}\ns_add_u32 s78, s78, s3\ns_add_u32 s78, s78, {WS_KVP}")
        a(f"s_lshl_b32 s3, s36, 1\ns_add_u32 s29, s29, s3\ns_xor_b32 s28, s28, {2*QX}\ns_lshl_b32 s3, s29, 7\ns_add_u32 s3, s3, s28\ns_lshl_b32 s3, s3, 10\ns_add_u32 s79, s3, {WS_O}")
    def fillk(i0_,i1_):
        if 'nofill' in EXP: return
        for i in range(i0_,i1_):
            if i<2: a(f"buffer_store_dwordx4 {R(SENT,4)}, v{vL16}, s[{SWS}:{SWS+3}], s78 offen offset:{i*1024} sc1")
            else: a(f"s_mov_b64 exec, 15\nbuffer_store_dwordx4 {R(SENT,4)}, v{vL16}, s[{SWS}:{SWS+3}], s78 offen offset:2048 sc1\ns_mov_b64 exec, -1")
            vm.issue('own',1)
    def fillo(i):
        if 'nofill' in EXP: return
        a(f"s_add_u32 s3, s79, {i*32768}\nbuffer_store_dwordx4 {R(SENT,4)}, v{vL16}, s[{SWS}:{SWS+3}], s3 offen sc1")
        vm.issue('own',1)
    def xrows(h):
        a(f"s_lshl_b32 s3, s36, 7\ns_lshl_b32 s28, s37, 3\ns_add_u32 s3, s3, s28\ns_lshl_b32 s3, s3, 11\ns_add_u32 s3, s3, s30\ns_add_u32 m0, s30, {L_STG}")
        for i in (h,h+2): a(f"buffer_load_dwordx4 v{vL16}, s[{SX}:{SX+3}], s3 offen offset:{1024*i}{' nt' if 'xnt' in EXP else ''} lds")
        vm.issue('xr',2)
        if h==0: return
        srd(a, SC, 14, 2048)
        a(f"s_lshl_b32 s3, s38, 9\ns_add_u32 m0, s3, {L_WR}\ns_mov_b32 exec_hi, 0\nbuffer_load_dwordx4 v{vL16}, s[{SC}:{SC+3}], s3 offen lds\ns_mov_b64 exec, -1")
        vm.issue('xr',1)
    LN0=True
    if LN0: a(f"v_lshlrev_b32 v{vL16}, 4, v1")
    PRO=os.environ.get('PRO','e,x,W0,s,A0,l,t1').split(',')
    def pro(L):
      for p in L:
        if p=='e':
            if STAMPS: a(f"v_mov_b32 v{VST-1}, 0\nv_writelane_b32 v{VST}, s96, 0")
            srd(a, SWS, 26, WS_SIZE)
            a(f"v_mov_b32 v19, {WS_EPO}\nbuffer_load_dword v19, v19, s[{SWS}:{SWS+3}], 0 offen sc1"); vm.issue('epo',1)
            stamp(a,1)
        elif p=='x': xrows(0); xrows(1)
        elif p=='l': vm.wait('xr'); a('s_barrier')
        elif p[0] in 'WA': tiles(int(p[1]), part=p[0])
        elif p[0]=='t' and len(p)==2: tiles(int(p[1]))
        else: place1(p)
    pro(PRO[:PRO.index('s')])
    for i in range(4): a(f"v_mov_b32 v{SENT+i}, -1")
    a(f"v_lshlrev_b32 v{vL16}, 4, v1\ns_and_b32 s85, s85, {NT-1}")
    a(f"s_lshl_b32 s3, s37, 4\ns_add_u32 s3, s3, s36\ns_lshl_b32 s67, s3, 10\ns_add_u32 s67, s67, {WS_CSP}\ns_lshl_b32 s3, s38, 8\ns_add_u32 s67, s67, s3")
    for i in range(8): a(f"v_mov_b32 v{CSA+i}, 0")
    a(f"v_lshlrev_b32 v{vP64}, 2, v1")
    KY=64; ST=72; CG=80; PW=224
    a("s_cmp_gt_u32 s37, 3\ns_subb_u32 s77, s37, 0\ns_cmp_gt_u32 s37, 11\ns_subb_u32 s77, s77, 0\ns_lshl_b32 s77, s77, 4\ns_add_u32 s77, s77, s36\ns_and_b32 s3, s37, 7\ns_cmp_eq_u32 s3, 3\ns_cselect_b32 s77, 224, s77")
    a(f"s_bitcmp1_b32 s38, 0\ns_cselect_b32 s{SA}, s18, s16\ns_cselect_b32 s{SA+1}, s19, s17\ns_cmp_lt_u32 s77, 224\ns_cselect_b32 s{SA+2}, {1024*3584*2}, 0\ns_mov_b32 s{SA+3}, 0x00020000")
    srd(a, SB, 20, 3584*1024*2)
    a("s_and_b32 s3, s77, 3\ns_lshl_b32 s3, s3, 8\ns_lshr_b32 s28, s38, 1\ns_lshl_b32 s28, s28, 7\ns_add_u32 s3, s3, s28\nv_lshrrev_b32 v5, 3, v1\nv_lshl_add_u32 v6, v5, 4, s3")
    a(f"v_mul_u32_u24 v6, 7168, v6\nv_lshl_add_u32 v6, v4, 4, v6\ns_lshr_b32 s3, s77, 2\ns_lshl_b32 s3, s3, 7\nv_add_u32 v{vF}, s3, v6")
    a("s_lshr_b32 s3, s2, 4\ns_mul_i32 s3, s3, 224\ns_mul_i32 s28, s38, 56\ns_add_u32 s71, s3, s28")
    a(f"v_lshlrev_b32 v6, 14, v5\nv_lshl_add_u32 v6, v4, 4, v6\ns_and_b32 s3, s2, 15\ns_lshl_b32 s3, s3, 7\nv_add_u32 v{vD}, s3, v6")

    def cs_addr():
        a(f"v_bfe_u32 v5, v1, 4, 1\nv_lshlrev_b32 v5, 5, v5\nv_xor_b32 v5, v5, v{vL16}\ns_min_u32 s3, s38, 2\ns_lshl_b32 s3, s3, 13\ns_and_b32 s28, s36, 4\ns_lshl_b32 s28, s28, 10\ns_add_u32 s3, s3, s28\ns_add_u32 s3, s3, 16384\nv_add_u32 v{vCS}, s3, v5")
    def cs_rd(s_):
        a(f"v_add_u32 v2, {(s_%3)*SLOT}, v{vCS}\nv_xor_b32 v3, 64, v2")
        for i in range(4): a(f"ds_read_b128 {R(CSL+16*(s_>>2)+4*i,4)}, v{2+(i&1)} offset:{1024*i}")
    def colsum(q):
        for j in range(2):
            for d in range(4):
                t=2+2*(d&1)
                unpack(a, t, CSL+8*q+4*j+d)
                a(f"v_add_f32 v{CSA+2*d}, v{CSA+2*d}, v{t}\nv_add_f32 v{CSA+2*d+1}, v{CSA+2*d+1}, v{t+1}")
    def cs_red():
        red8(a, CSA)
    def cs_pub():
        a(f"v_and_b32 v2, 8, v1\nv_cmp_eq_u32 vcc, 0, v2\nv_cndmask_b32 v{CSA}, v{CSA+1}, v{CSA}, vcc\ns_cmp_eq_u32 s38, 3\ns_cselect_b64 exec, -1, 0\nv_mov_b32 v{CSA}, s70\ns_mov_b64 exec, -1")
        a(f"buffer_store_dword v{CSA}, v{vP64}, s[{SWS}:{SWS+3}], s67 offen sc1")
        vm.issue('pub',1)
    RDY=118
    def nonce():
        vm.wait('epo')
        a("v_readfirstlane_b32 s86, v19\ns_mul_i32 s86, s86, 1664525\ns_add_u32 s86, s86, 1013904223")
    def ready_st():
        a(f"s_lshl_b32 s3, s37, 4\ns_add_u32 s3, s3, s36\ns_lshl_b32 s3, s3, 7\ns_add_u32 s3, s3, {WS_RDY}\ns_cmp_lg_u32 s38, 0\ns_cselect_b32 s3, {WS_SIZE}, s3\nv_mov_b32 v2, s86\ns_mov_b64 exec, 1\nbuffer_store_dword v2, v{vL16}, s[{SWS}:{SWS+3}], s3 offen sc1\ns_mov_b64 exec, -1")
        vm.issue('rs',1)
    def rdy_addr():
        a(f"v_and_b32 v2, 15, v1\nv_bfe_u32 v3, v1, 4, 1\nv_mul_u32_u24 v3, {QX}, v3\nv_xor_b32 v3, s37, v3\nv_lshl_add_u32 v3, v3, 4, v2\nv_lshl_add_u32 v2, v2, 4, s34\nv_cmp_gt_u32 vcc, 32, v1\nv_cndmask_b32 v2, v2, v3, vcc\nv_lshlrev_b32 v113, 7, v2")
    def ready_poll(l, lo, hi):
        a(f"s_mov_b32 s3, {WS_RDY}\ns_mov_b32 s29, 0\ns_mov_b32 exec_lo, {lo}\ns_mov_b32 exec_hi, {hi}\n{l}:\nbuffer_load_dword v{RDY}, v113, s[{SWS}:{SWS+3}], s3 offen sc1\ns_waitcnt vmcnt(0)")
        a(f"v_cmp_ne_u32 vcc, s86, v{RDY}\ns_cbranch_vccz {l}k\ns_mov_b64 exec, vcc\ns_add_u32 s29, s29, 1\ns_cmp_lt_u32 s29, {SPIN}\ns_cbranch_scc1 {l}\n{l}k:\ns_mov_b64 exec, -1")
        if STAMPS and lo: a(f"v_writelane_b32 v{VST-1}, s29, 50")
    def tagged(l, regs, reload, after=None):
        a(f"s_mov_b32 s29, 0\n{l}:\nv_cmp_ne_u32 vcc, s86, v{regs[0]}")
        for r in regs[1:]: a(f"v_cmp_ne_u32 s[92:93], s86, v{r}\ns_or_b64 vcc, vcc, s[92:93]")
        a(f"s_cbranch_vccz {l}k\ns_add_u32 s29, s29, 1\ns_cmp_ge_u32 s29, {SPIN}\ns_cbranch_scc1 {l}k\ns_sleep 2")
        reload()
        a("s_waitcnt vmcnt(0)")
        if after: after()
        a(f"s_branch {l}\n{l}k:")
        if STAMPS: a(f"v_writelane_b32 v{VST-1}, s29, {51 if l=='L_k1' else 50}")
    def epoch_st():
        a(f"s_or_b32 s3, s2, s38\ns_cmp_lg_u32 s3, 0\ns_cselect_b32 s3, {WS_SIZE}, {WS_EPO}" if 0 else f"s_or_b32 s3, s2, s38\ns_mov_b32 s28, {WS_EPO}\ns_cmp_lg_u32 s3, 0\ns_cselect_b32 s3, {WS_SIZE}, s28")
        a(f"v_mov_b32 v2, s86\ns_mov_b64 exec, 1\nbuffer_store_dword v2, v{vL16}, s[{SWS}:{SWS+3}], s3 offen sc1\ns_mov_b64 exec, -1")
        vm.issue('es',1)
    def ld_f1():
        a(f"s_lshl_b32 s3, s36, 10\nbuffer_load_dwordx4 {R(ST,4)}, v{vL16}, s[{SWS}:{SWS+3}], s3 offen sc1\ns_lshl_b32 s3, s37, 6\nbuffer_load_dword v{ST+4}, v{PW+8}, s[{SWS}:{SWS+3}], s3 offen offset:12 sc1")
    def fetch1(): ld_f1(); vm.issue('f1',2)
    def val1():
        vm.wait('f1'); tagged("L_k1", [ST+3,ST+4], ld_f1)
    def wmax(v, lanes=(0,16,32,48)):
        a(f"v_readlane_b32 s70, v{v}, {lanes[0]}\nv_readlane_b32 s3, v{v}, {lanes[1]}\nv_readlane_b32 s28, v{v}, {lanes[2]}\nv_readlane_b32 s29, v{v}, {lanes[3]}\ns_max_u32 s70, s70, s3\ns_max_u32 s28, s28, s29\ns_max_u32 s70, s70, s28")
    def proc1():
        for m in ("quad_perm:[1,0,3,2]", "quad_perm:[2,3,0,1]", "row_half_mirror", "row_mirror"):
            a(f"v_max_u32 v{ST+2}, v{ST+2}, v{ST+2} {m} {DPPM}")
        for e in range(2): a(f"v_and_b32 v{2+e}, 0xffff0000, v{ST+e}\nv_lshlrev_b32 v{PW+e}, 16, v{ST+e}")
        for e in range(2): a(f"v_rcp_f32 v{PW+2+e}, v{2+e}")
        a(f"v_lshrrev_b32 v2, 16, v2\nv_or_b32 v{PW+12}, v2, v3")
        for e in range(2): a(f"v_mul_f32 v{PW+4+e}, {LOG2E}, v{PW+2+e}")
        wmax(ST+2)
    def ld_cs(ks=range(4)):
        a(f"s_lshl_b32 s3, s37, 14\ns_add_u32 s3, s3, {WS_CSP}")
        for k in ks: a(f"s_add_u32 s28, s3, {4096*k}\nbuffer_load_dwordx4 {R(CG+4*k,4)}, v{PW+11}, s[{SWS}:{SWS+3}], s28 offen sc1")
    def fetch2(h):
        ld_cs((2*h,2*h+1)); vm.issue('f2',2)
    def addr1():
        a(f"v_lshrrev_b32 v2, 2, v1\nv_and_b32 v3, 3, v1\nv_lshlrev_b32 v3, 4, v3\nv_lshl_add_u32 v{PW+8}, v2, 10, v3\nv_lshlrev_b32 v2, 3, v1\nv_add_u32 v{PW+6}, {L_M}, v2")
        a(f"v_and_b32 v4, 49, v1\nv_bfe_u32 v7, v1, 1, 2\nv_lshl_add_u32 v4, v7, 2, v4\nv_bfe_u32 v7, v1, 3, 1\nv_lshl_add_u32 v4, v7, 1, v4\nv_lshlrev_b32 v4, 2, v4\nv_add_u32 v{PW+7}, {L_SQ}, v4")
    def addr2():
        a(f"s_mul_i32 s3, s38, 48\nv_and_b32 v2, 15, v1\nv_lshrrev_b32 v3, 4, v1\nv_cmp_gt_u32 vcc, 12, v2\nv_lshl_add_u32 v4, v2, 2, s3\nv_add_u32 v2, v4, v3\nv_mov_b32 v5, 192\nv_cndmask_b32 v4, v5, v4, vcc\nv_lshlrev_b32 v4, 2, v4\nv_lshl_add_u32 v{PW+11}, v3, 10, v4")
        a(f"v_and_b32 v5, 7, v2\nv_bfe_u32 v6, v2, 3, 3\nv_lshl_add_u32 v5, v5, 3, v6\nv_and_b32 v2, 0xc0, v2\nv_add_u32 v2, v2, v5\nv_lshlrev_b32 v2, 2, v2\nv_add_u32 v2, {L_CS}, v2\nv_mov_b32 v5, {L_KEY}\nv_cndmask_b32 v{PW+9}, v5, v2, vcc")
    def all_w():
        a(f"ds_write_b32 v{PW+9}, v{CG}\ns_lshl_b32 s3, s38, 4\ns_lshl_b64 exec, 0xffff, s3")
        a(f"ds_write_b64 v{PW+6}, {R(PW,2)}\nds_write_b64 v{PW+6}, {R(PW+2,2)} offset:1024\nds_write_b64 v{PW+6}, {R(PW+4,2)} offset:2048\nds_write_b32 v{PW+7}, v{PW+12}\ns_mov_b64 exec, -1")
    XR=64; IS=116; XSF=96
    def idx_xs():
        a("s_and_b32 s68, s70, 0x7ff\ns_sub_u32 s68, 2047, s68")
        a(f"s_lshl_b32 s3, s68, 11\ns_and_b32 s28, s77, 3\ns_lshl_b32 s28, s28, 9\ns_add_u32 s3, s3, s28\ns_lshr_b32 s28, s38, 1\ns_lshl_b32 s28, s28, 8\ns_add_u32 s3, s3, s28")
        a(f"v_lshrrev_b32 v3, 3, v1\nv_lshlrev_b32 v3, 5, v3\nbuffer_load_dwordx4 {R(XR,4)}, v3, s[{SX}:{SX+3}], s3 offen\nbuffer_load_dwordx4 {R(XR+4,4)}, v3, s[{SX}:{SX+3}], s3 offen offset:16")
        a(f"s_lshr_b32 s3, s68, 1\ns_lshl_b32 s3, s3, 4\ns_and_b32 s28, s68, 1\ns_lshl_b32 s28, s28, 2\ns_add_u32 s3, s3, s28\nv_mov_b32 v3, 0\nbuffer_load_dword v{IS}, v3, s[{SWS}:{SWS+3}], s3 offen sc1")
        vm.issue('xs',3)
    def val2():
        vm.wait('f2')
        checked(a, "L_k2", range(CG,CG+16), ld_cs)
    def proc2():
        maxu(a, 2, [CG,CG+4,CG+8,CG+12])
        for k in (2,1):
            for i in range(4*k): a(f"v_add_f32 v{CG+i}, v{CG+i}, v{CG+4*k+i}")
        wmax(2, (12,28,44,60))
        for i in range(2): a(f"v_permlane32_swap_b32 v{CG+i}, v{CG+2+i}")
        for i in range(2): a(f"v_add_f32 v{CG+i}, v{CG+i}, v{CG+2+i}")
        a(f"v_permlane16_swap_b32 v{CG}, v{CG+1}\nv_add_f32 v{CG}, v{CG}, v{CG+1}")
    def proc2b():
        a(f"s_mov_b32 exec_lo, 0xf000f000\ns_mov_b32 exec_hi, 0xf000f000\nv_mov_b32 v{CG}, s70\ns_mov_b64 exec, -1")
    def xs_norm(part):
        if part==0:
            vm.wait('xs')
            a(f"v_and_b32 v5, 0xffff0000, v{IS}\nv_lshlrev_b32 v{IS}, 16, v{IS}\nv_rcp_f32 v{IS+1}, v5")
            for d in range(8): unpack(a, XSF+2*d, XR+d)
            a(f"v_mul_f32 v119, v{IS}, v{IS+1}")
        else:
            for i in range(16): a(f"v_fma_f32 v{XSF+i}, v{XSF+i}, v{IS+1}, -v119")
            for i in range(8): a(f"v_mov_b32 v{FA+i}, 0")
    def ffn_ld(i0,i1):
        if 'noffn' in EXP: return
        for i in range(i0,i1):
            if i<16: a(f"s_mov_b32 s3, {i*7168}\nbuffer_load_dwordx4 {R(FW+4*i,4)}, v{vF}, s[{SA}:{SA+3}], s3 offen{FNT}")
            else: a(f"s_lshr_b32 s3, s71, 3\ns_add_u32 s3, s3, {i-16}\ns_and_b32 s28, s3, 7\ns_lshr_b32 s3, s3, 3\ns_lshl_b32 s3, s3, 6\ns_add_u32 s3, s3, s28\ns_lshl_b32 s3, s3, 11\nbuffer_load_dwordx4 {R(FW+4*i,4)}, v{vD}, s[{SB}:{SB+3}], s3 offen{FNT}")
            vm.issue(('g',i),1)
    def ffn_mac(i0,i1,pk=False):
        if i1<=i0: return
        vm.wait(('g',i1-1))
        for i in range(i0,i1):
            for d in range(4):
                t=2+2*(d&1)
                unpack(a, t, FW+4*i+d)
                if pk:
                    if i%2 and d==0: a(f"v_mov_b32 v{XSF+i-1}, v{XSF+i}")
                    a(f"v_pk_fma_f32 {R(FA+2*d,2)}, {R(t,2)}, {R(XSF+(i&~1),2)}, {R(FA+2*d,2)} op_sel_hi:[1,0,1]")
                else:
                    a(f"v_fmac_f32 v{FA+2*d}, v{t}, v{XSF+i}\nv_fmac_f32 v{FA+2*d+1}, v{t+1}, v{XSF+i}")
    def phi_ld():
        srd(a, SC, 8, 65536)
        a(f"s_lshl_b32 s3, s38, 10\ns_add_u32 m0, s3, {L_PHI}\ns_lshl_b32 s28, s37, 12\ns_add_u32 s3, s3, s28\nbuffer_load_dwordx4 v{vL16}, s[{SC}:{SC+3}], s3 offen lds")
        a(f"s_add_u32 m0, m0, {L_PHQ-L_PHI}\ns_xor_b32 s3, s3, {QX*4096}\nbuffer_load_dwordx4 v{vL16}, s[{SC}:{SC+3}], s3 offen lds")
        vm.issue('phi',2)
    def wo_touch():
        a(f"s_lshl_b32 s3, s2, 13\ns_lshl_b32 s28, s38, 11\ns_add_u32 s3, s3, s28\nv_lshlrev_b32 v3, 7, v1\ns_mov_b64 exec, 0xffff\nbuffer_load_dword v20, v3, s[88:91], s3 offen\ns_mov_b64 exec, -1")
        vm.issue('wt',1)
    def x3_ld():
        for ct in range(4): a(f"v_xor_b32 v2, {32*ct}, v{vXo}\nds_read_b64 {R(PX+2*ct,2)}, v2")
    vWo=220
    def wo_setup():
        a("v_lshrrev_b32 v5, 3, v1\nv_lshlrev_b32 v6, 11, v5\nv_bfe_u32 v5, v1, 4, 2\nv_lshlrev_b32 v5, 1, v5\nv_and_b32 v7, 7, v1\nv_xor_b32 v5, v5, v7\nv_lshl_add_u32 v6, v5, 4, v6\ns_lshl_b32 s3, s35, 7\nv_add_u32 v6, s3, v6")
        for e in range(4): a(f"v_add_u32 v{vWo+e}, {e*15360}, v6")
        a("s_lshl_b32 s72, s38, 12\ns_lshl_b32 s73, s38, 16")
    def wo(c):
        a(f"s_add_u32 m0, s72, {c*16384}\ns_add_u32 s3, s73, {c*262144}")
        for e in range(4): a(f"buffer_load_dwordx4 v{vWo+e}, s[88:91], s3 offen offset:{e*1024} lds")
        vm.issue(('wo',c),4)
    T='T'
    M15=opt('m15',4)
    HL=48; HZ=32
    def post_setup():
        a(f"s_lshl_b32 s3, s36, 2\ns_add_u32 s3, s3, s38\ns_lshr_b32 s28, s3, 5\ns_and_b32 s3, s3, 31\ns_lshl_b32 s74, s3, 7\ns_lshl_b32 s3, s37, 1\ns_add_u32 s75, s3, s28")
        a(f"v_lshrrev_b32 v5, 3, v1\nv_mul_u32_u24 v5, {KVS}, v5\nv_and_b32 v7, 7, v1\nv_lshl_add_u32 v112, v7, 4, v5")
        a(f"s_mul_i32 s76, s75, {16*KVS}\ns_add_u32 s76, s76, s74\ns_add_u32 s76, s76, {WS_KVP}\ns_mul_i32 s3, s75, {KVS}\ns_add_u32 s3, s3, s74\ns_add_u32 s74, s3, {WS_KVR}")
        a(f"s_lshl_b32 s75, s37, 1\ns_add_u32 s75, s75, s36\ns_mul_i32 s81, s75, {16*KVS}\ns_add_u32 s81, s81, {WS_KVP+4096}\ns_mul_i32 s82, s75, {KVS}\ns_add_u32 s82, s82, {WS_KVR+4096}")
        a(f"s_lshr_b32 s3, s36, 1\ns_or_b32 s83, s3, s38")
        a(f"s_and_b32 s3, s38, 1\ns_lshl_b32 s3, s3, 3\ns_and_b32 s28, s77, 3\ns_lshl_b32 s28, s28, 1\ns_add_u32 s3, s3, s28\ns_lshr_b32 s28, s38, 1\ns_add_u32 s3, s3, s28\ns_mul_i32 s3, s3, 14336\ns_lshr_b32 s28, s77, 2\ns_lshl_b32 s28, s28, 8\ns_add_u32 s3, s3, s28\ns_add_u32 s3, s3, {WS_GU}")
        a(f"s_cmp_lt_u32 s77, 224\ns_cselect_b32 s84, s3, {WS_SIZE}")
    P=lambda pos: (lambda: place(pos))
    def place(pos):
        for w in PLC.get(pos,[]): place1(w)
    def place1(w):
        if True:
            if w[0]=='w': wo(int(w[1]))
            elif w[0]=='k': fillk(int(w[1]),int(w[1])+1)
            elif w[0]=='o': fillo(int(w[1]))
            elif w[0]=='x': xrows(int(w[1]))
            elif w=='a': fetch1()
            elif w[0]=='b': fetch2(int(w[1]))
            elif w=='T':
                srd(a, SC, 22, 2048*2048)
                a(f"s_lshl_b32 s3, s34, 18\ns_mov_b64 exec, 1\nbuffer_load_dword v20, v{vL16}, s[{SC}:{SC+3}], s3 offen nt\ns_mov_b64 exec, -1"); vm.issue('tl',1)
            elif w=='U':
                a(f"s_mov_b32 exec_lo, 1\ns_mov_b32 exec_hi, 0x01000000\ns_lshl_b32 s3, s71, 11\nbuffer_load_dword v20, v{vF}, s[{SA}:{SA+3}], 0 offen nt\nbuffer_load_dword v20, v{vD}, s[{SB}:{SB+3}], s3 offen nt\nbuffer_load_dword v20, v{vWo}, s[88:91], 0 offen nt\ns_mov_b64 exec, -1"); vm.issue('tl',3)
            elif w=='r': ready_st()
            elif w[0]=='s': a(f"s_sleep {int(w[1:])}")
            elif w[0]=='v': vm.wait(('wo',int(w[1])))
            elif w=='p': phi_ld()
            elif w=='t': wo_touch()
            elif w[0]=='G': ffn_ld(int(w[1:3]),int(w[3:5]))
            elif w[0]=='g': ffn_ld(8*int(w[1]), min(23,8*int(w[1])+8))
    M14=opt('m14',2)
    def lnbar():
        if LN0: return
        vm.wait('xr'); a("s_barrier")
    sched = {
        0: [lambda: cs_rd(0), T],
        1: [(lambda: colsum(0),)],
        2: [(lambda: colsum(1),)],
        3: [T],
        4: [lambda: cs_rd(4), T],
        5: [(lambda: colsum(2),)],
        6: [val1, (lambda: colsum(3),)],
        7: [proc1, cs_red, cs_pub, T],
        8: [T],
        9: [T],
        10:[T],
        11:[val2, proc2, proc2b, idx_xs, T],
        12:[T, epoch_st],
        13:[(lambda: xs_norm(0), lambda: xs_norm(1))],
        14:[P('j14'), all_w, lambda: ffn_mac(0,M14), lambda: vm.wait('phi')],
        15:[x3_ld, P('j15'), lambda: ffn_mac(M14,M15), lambda: vm.wait('own'), lambda: vm.wait('phi')],
    }
    if 's2' in EXP:
        sched[7]=[(proc1, cs_red), cs_pub]; sched[11]=[val2, (proc2,), proc2b, idx_xs]
    if 's3' in EXP:
        sched[7]=[proc1, T]; sched[8]=[(cs_red,), cs_pub]; sched[11]=[T]; sched[12]=[val2, (proc2,), proc2b, idx_xs]; sched[13]=[T, epoch_st]
        sched[14]=[P('j14'), all_w, lambda: xs_norm(0), lambda: xs_norm(1), lambda: ffn_mac(0,M14)]
    for k in range(14): sched[k].insert(0, P(f"j{k}"))
    addr1(); addr2(); wo_setup(); post_setup(); rdy_addr(); xaddr(a, vXo)
    cs_addr(); fill_addr(); srd(a, 88, 10, 1024*1024*2)
    pro(PRO[PRO.index('s')+1:]); nonce()
    for k in range(16): sched[k].append(P(f"i{k}"))
    CL=[]; nx=0
    for item in filter(None,os.environ.get('CL','').split(';')):
        b,what=item.split(':'); fs=[]
        for w in what.split(','):
            if True:
                n=int(w[1:]); fs.append(lambda i0=nx,i1=nx+n: ffn_ld(i0,i1)); nx+=n
        CL.append((int(b.rstrip('s')), b.endswith('s'), fs))
    NLOOP=nx
    DEF='defer' in EXP
    def at(s):
        return [(c,fs) for b,same,fs in CL for c in range(NT) if b+(0 if same else c)==s]
    for s in range(16):
        vm.wait(('t',s))
        a("s_waitcnt lgkmcnt(0)")
        if s==0: stamp(a,2)
        a("s_barrier")
        if 'hst2' in EXP: stamp(a,33+s)
        late={c for c,_ in at(s-2)} if DEF and s+1<16 else set()
        skip={c for c,_ in at(s-1)} if DEF else set()
        if s>=14: vm.cond(late, lambda: tiles(s+1))
        for f in sched[s]:
            if isinstance(f,tuple):
                J=a.capture(lambda: [g() for g in f]); D_=a.capture(lambda: tiles(s+2))
                if 'noil' in EXP:
                    for x in D_+J: a(x)
                else:
                    while J and J[0].startswith('s_waitcnt'): a(J.pop(0))
                    n=-(-len(J)//9); k=0
                    for x in D_:
                        a(x)
                        if x.startswith('buffer_'):
                            k+=1
                            if k>=2:
                                for y in J[:n]: a(y)
                                J=J[n:]
                    for y in J: a(y)
            elif f==T:
                vm.cond(late, lambda: tiles(s+1))
                vm.cond(set(range(NT))-skip, lambda: tiles(s+2))
            else: f()
        grp={}
        for c,fs in at(s): grp.setdefault(id(fs),(fs,[]))[1].append(c)
        for fs,cs_ in grp.values(): vm.cond(cs_, lambda: [f() for f in fs])
        if 'hst' in EXP: stamp(a,6+s)
    a("s_waitcnt lgkmcnt(0)\ns_barrier")
    stamp(a,24)
    MX=opt('mx',12)
    GL=80
    a(f"v_and_b32 v2, 15, v1\nv_min_u32 v2, 13, v2\nv_lshrrev_b32 v3, 4, v1\nv_mul_u32_u24 v3, 14336, v3\nv_lshl_add_u32 v13, v2, 4, v3\ns_lshl_b32 s75, s71, 2\ns_add_u32 s75, s75, {WS_GU}")
    def ld_gu():
        for j in range(4): a(f"s_add_u32 s3, s75, {4*j*14336}\nbuffer_load_dwordx4 {R(GL+4*j,4)}, v13, s[{SWS}:{SWS+3}], s3 offen sc1")
    def gu_fin():
        red8(a, FA)
        a(f"v_and_b32 v2, 8, v1\nv_cmp_eq_u32 vcc, 0, v2\nv_cndmask_b32 v{FA}, v{FA+1}, v{FA}, vcc")
        a(f"buffer_store_dword v{FA}, v{vP64}, s[{SWS}:{SWS+3}], s84 offen sc1")
        vm.issue('gu',1)
    place('x0')
    ffn_mac(M15,MX,True)
    if MX==16: gu_fin()
    place('x1')
    for c in (0,1,4): vm.wait(('wo',c))
    stamp(a,25)
    a("s_barrier")
    place('x2')
    a("s_setprio 3\ns_cmp_lg_u32 s38, 3\ns_cbranch_scc1 L_npl")
    NPP=opt('npp',1)
    if NPP==1: ready_poll("L_rp", -1, 0xffff)
    else:
        PS=opt('pps',2)
        a(f"s_mov_b32 s3, {WS_RDY}\ns_mov_b32 s29, 0\ns_mov_b32 exec_hi, 0xffff")
        for k in range(NPP-1): a(f"buffer_load_dword v{8+k}, v113, s[{SWS}:{SWS+3}], s3 offen sc1\ns_sleep {PS}")
        a("L_rp:")
        for k in range(NPP):
            a(f"buffer_load_dword v{8+(k+NPP-1)%NPP}, v113, s[{SWS}:{SWS+3}], s3 offen sc1\ns_waitcnt vmcnt({NPP-1})\nv_cmp_ne_u32 vcc, s86, v{8+k}\ns_cbranch_vccz L_rpk\ns_mov_b64 exec, vcc")
        a(f"s_add_u32 s29, s29, 1\ns_cmp_lt_u32 s29, {SPIN}\ns_cbranch_scc1 L_rp\nL_rpk:\ns_mov_b64 exec, -1")
    a(f"v_mov_b32 v4, {L_FLG+16}\nv_mov_b32 v5, 1\nds_write_b32 v4, v5\nL_npl:")
    stamp(a,54)
    a(f"v_min_u32 v3, 4, v1\nv_lshlrev_b32 v3, 2, v3\nv_add_u32 v3, {L_FLG}, v3\nL_fw:\nds_read_b32 v4, v3\ns_waitcnt lgkmcnt(0)\nv_cmp_eq_u32 vcc, 0, v4\ns_cbranch_vccz L_fk\ns_sleep 1\ns_branch L_fw\nL_fk:")
    stamp(a,26)
    place('k')
    vm.wait(('g',15))
    MY=opt('my',MX+2 if MX<16 else 16)
    ffn_mac(MX,MY,True)
    if opt('h1d',0): a(f"s_sleep {opt('h1d',0)}")
    stamp(a,49)
    def ld_h1():
        for j in range(2): a(f"s_add_u32 s3, s76, {8*j*KVS}\nbuffer_load_dwordx4 {R(HL+4*j,4)}, v112, s[{SWS}:{SWS+3}], s3 offen sc1")
    def ld_hz():
        for j in range(2): a(f"s_add_u32 s3, s81, {8*j*KVS}\nbuffer_load_dwordx4 {R(HZ+4*j,4)}, v112, s[{SWS}:{SWS+3}], s3 offen sc1")
    ld_h1()
    a("s_cmp_lg_u32 s83, 0\ns_cbranch_scc1 L_nz")
    ld_hz()
    a("L_nz:")
    if MX==16:
        ld_gu()
        a("s_waitcnt vmcnt(4)")
        vm.q=[['gl']*4 for _ in range(NT)]
    else:
        vm.q=[['h'] for _ in range(NT)]
        HK=min(16,MY+opt('h0k',2))
        ffn_mac(MY,HK,True)
        if HK==16: gu_fin()
        place('h0')
        ffn_mac(HK,16,True)
        if HK<16: gu_fin()
        vm.wait('h')
    stamp(a,50)
    def reduce_line(src, E, sdst):
        L=[]
        class C_:
            def __call__(self, t): L.extend(t.split("\n"))
        c=C_()
        for d in range(4): unpack(c, E+2*d, src+d)
        for d in range(4):
            unpack(c, E+8+2*d, src+4+d)
            c(f"v_pk_add_f32 {R(E+2*d,2)}, {R(E+2*d,2)}, {R(E+8+2*d,2)}")
        red8(c, E)
        c(f"v_cvt_pk_bf16_f32 v{E}, v{E}, v{E+1}\nv_mov_b32 v{E+1}, v{E}\nv_permlane16_swap_b32 v{E}, v{E+1}\nv_mov_b32 v{E+2}, v{E}\nv_mov_b32 v{E+3}, v{E+1}")
        c(f"v_permlane32_swap_b32 v{E}, v{E+2}\nv_permlane32_swap_b32 v{E+1}, v{E+3}")
        return L, f"buffer_store_dwordx4 {R(E,4)}, v{vL16}, s[{SWS}:{SWS+3}], s{sdst} offen sc1"
    A_,sa=reduce_line(HL,64,74); Z_,sz=reduce_line(HZ,96,82)
    a("s_cmp_eq_u32 s83, 0\ns_cbranch_scc1 L_hz")
    checked(a, "L_k4", range(HL,HL+8), ld_h1)
    for x in A_: a(x)
    a(f"s_mov_b64 exec, 0xff\n{sa}\ns_branch L_h1e\nL_hz:")
    checked(a, "L_k3", list(range(HL,HL+8))+list(range(HZ,HZ+8)), lambda: (ld_h1(), ld_hz()))
    for x in zipl(A_,Z_): a(x)
    a(f"s_mov_b64 exec, 0xff\n{sa}\n{sz}\nL_h1e:\ns_mov_b64 exec, -1")
    stamp(a,53)
    a(f"s_lshl_b32 s3, s38, 2\ns_add_u32 s3, s3, {L_FLG}\nv_mov_b32 v4, s3\nv_mov_b32 v5, 3\nds_write_b32 v4, v5\ns_setprio 0")
    vm.issue('h1',1)
    if PLC.get('h1s'): a("s_waitcnt lgkmcnt(0)")
    place('h1s')
    stamp(a,27)
    def hsilu():
        stat3(a, 9, 8)
        a("s_waitcnt lgkmcnt(0)")
        silu_prep(a, PG, PX, 9, 8, 28)
    if MX<16:
        hsilu()
        ld_gu(); vm.issue('gl',4)
    vm.wait('gl')
    stamp(a,51)
    checked(a, "L_k5", range(GL,GL+16), ld_gu)
    stamp(a,52)
    for b in (GL,GL+8):
        for i in (0,2): a(f"v_pk_add_f32 {R(b+i,2)}, {R(b+i,2)}, {R(b+4+i,2)}")
    for i in range(4): a(f"v_permlane32_swap_b32 v{GL+i}, v{GL+8+i}")
    for i in range(4): a(f"v_add_f32 v{GL+i}, v{GL+i}, v{GL+8+i}")
    for i in (0,2): a(f"v_permlane16_swap_b32 v{GL+i}, v{GL+i+1}")
    for i in (0,2): a(f"v_add_f32 v{GL+i}, v{GL+i}, v{GL+i+1}")
    a(f"v_permlane32_swap_b32 v{GL}, v{GL+2}")
    g,u=GL,GL+2
    rne(a,g,g); rne(a,u,u)
    a(f"v_mul_f32 v2, 0xbfb8aa3b, v{g}\nv_exp_f32 v2, v2\nv_add_f32 v2, 1.0, v2\nv_rcp_f32 v2, v2\nv_mul_f32 v{g}, v{g}, v2")
    rne(a,g,g)
    a(f"v_mul_f32 v{g}, v{g}, v{u}")
    rne(a,g,g)
    a(f"v_bfe_u32 v2, v1, 3, 2\nv_lshlrev_b32 v2, 6, v2\nv_lshrrev_b32 v3, 5, v1\nv_lshl_add_u32 v2, v3, 2, v2")
    HB=128
    for i in range(7): a(f"ds_bpermute_b32 v{HB+2*i}, v2, v{g} offset:{8*i}")
    for i in range(0,8,2): a(f"v_mov_b64 {R(FA+i,2)}, 0")
    a("s_waitcnt lgkmcnt(0)")
    place('gu')
    LD='g2' in PLC.get('ho',[])
    def down(plain=False):
        for i in range(7):
            for d in range(4):
                t=2+2*(d&1)
                unpack(a, t, DW+4*i+d)
                if plain: a(f"v_fmac_f32 v{FA+2*d}, v{t}, v{HB+2*i}\nv_fmac_f32 v{FA+2*d+1}, v{t+1}, v{HB+2*i}")
                else: a(f"v_pk_fma_f32 {R(FA+2*d,2)}, {R(t,2)}, {R(HB+2*i,2)}, {R(FA+2*d,2)} op_sel_hi:[1,0,1]")
        red8(a, FA)
        a(f"v_and_b32 v2, 8, v1\nv_cmp_eq_u32 vcc, 0, v2\ns_and_b32 s3, s2, 15\ns_lshl_b32 s3, s3, 4\ns_lshr_b32 s28, s2, 4\ns_add_u32 s3, s3, s28\ns_lshl_b32 s3, s3, 2\ns_add_u32 s3, s3, s38\ns_lshl_b32 s3, s3, 8\ns_add_u32 s3, s3, {WS_Y}")
        a(f"v_cndmask_b32 v{FA}, v{FA+1}, v{FA}, vcc\nbuffer_store_dword v{FA}, v{vP64}, s[{SWS}:{SWS+3}], s3 offen sc1")
    a.down = down if LD else None
    if not LD: down()
    vm.issue('ys',1)
    place('y')
    if MX==16: hsilu()
    stamp(a,28)
    wait7(a, "L_ow"); place('ho')
    if not LD and opt('hpd',0): a(f"s_sleep {opt('hpd',0)}")
    stamp(a,29)
    if opt('hp3',0): a(f"s_setprio {opt('hp3',0)}")
    a("s_branch L_p3")

ACC=8
def acc(g,c6): return ACC+24*g+4*c6
ML,CC,CSV = [192,194,196,198],[200,202,220,222],[248,250]
CCP,RLP = [193,221],[195,223]
CSK,CSQ,PHI,MV,SQF = 204,212,224,104,120
vVS,vLN,vSR = 197,199,[201,203]
def zipl(A, B, n=1):
    out=[]; B=list(B)
    for x in A:
        out.append(x); out+=B[:n]; B=B[n:]
    return out+B
def feature(a, B, c0, isK, mid1=None, tail=None, fillB=(), hook=None):
    P=144; T=176; U=128
    EP=[P+8*g for g in range(4)]; EM=[acc(g,c0) for g in range(4)]
    MX=[T+2*g for g in range(4)]; NM=[T+8+2*g for g in range(4)]
    for g in range(4):
        for ft in range(2): mfma(a, EP[g]+4*ft, PHI+4*ft, acc(g,c0))
    if mid1: mid1()
    FS='fst' in EXP; b_=40 if isK else 50
    def mx(h):
        L=[]
        for k in range(4):
            for g in (2*h,2*h+1):
                p=EP[g]
                if k==0: L+=[f"v_max3_f32 v{MX[g]}, v{p}, v{p+1}, v{p+2}", f"v_max3_f32 v{NM[g]}, -v{p}, -v{p+1}, -v{p+2}"]
                elif k<3: L+=[f"v_max3_f32 v{MX[g]}, v{MX[g]}, v{p+2*k+1}, v{p+2*k+2}", f"v_max3_f32 v{NM[g]}, v{NM[g]}, -v{p+2*k+1}, -v{p+2*k+2}"]
                else: L+=[f"v_max_f32_e64 v{MX[g]}, v{MX[g]}, v{p+7}", f"v_max_f32_e64 v{NM[g]}, v{NM[g]}, -v{p+7}"]
        return L
    def xl(h, op, fin):
        q=[MX[2*h],MX[2*h+1],NM[2*h],NM[2*h+1]]
        return [f"v_permlane32_swap_b32 v{q[0]}, v{q[1]}\nv_permlane32_swap_b32 v{q[2]}, v{q[3]}",
                f"{op} v{q[0]}, v{q[0]}, v{q[1]}\n{op} v{q[2]}, v{q[2]}, v{q[3]}",
                f"v_permlane16_swap_b32 v{q[0]}, v{q[2]}\n{op} v{q[0]}, v{q[0]}, v{q[2]}"]+fin(q[0],q[2])+[
                f"v_permlane16_swap_b32 v{q[0]}, v{q[2]}\nv_mov_b32 v{q[1]}, v{q[0]}", f"v_mov_b32_e64 v{q[3]}, v{q[2]}",
                f"v_permlane32_swap_b32 v{q[0]}, v{q[1]}\nv_permlane32_swap_b32 v{q[2]}, v{q[3]}"]
    x1=lambda h: xl(h, "v_max_f32", lambda x,y: [f"v_mul_f32 v{y}, v{x}, v{CCP[h]}\nv_mul_f32 v{x}, v{x}, v{CCP[h]}"])
    x2=lambda h: xl(h, "v_add_f32", lambda x,y: [f"v_rcp_f32_e64 v{x}, v{x}", f"v_mul_f32 v{y}, v{x}, v{RLP[h]}\nv_mul_f32 v{x}, v{x}, v{RLP[h]}" if isK else f"v_mov_b32_e64 v{y}, v{x}"])
    def fm(h):
        L=[]
        for g in (2*h,2*h+1):
            for i in range(0,8,2):
                L+=[f"v_pk_fma_f32 {R(EM[g]+i,2)}, {R(EP[g]+i,2)}, {R(CC[g],2)}, {R(NM[g],2)} op_sel_hi:[1,0,0] neg_lo:[1,0,1] neg_hi:[1,0,1]",
                    f"v_pk_fma_f32 {R(EP[g]+i,2)}, {R(EP[g]+i,2)}, {R(CC[g],2)}, {R(MX[g],2)} op_sel_hi:[1,0,0] neg_lo:[0,0,1] neg_hi:[0,0,1]"]
        return L
    def ex(h): return [f"v_exp_f32 v{EM[g]+i}, v{EM[g]+i}\nv_exp_f32 v{EP[g]+i}, v{EP[g]+i}" for g in (2*h,2*h+1) for i in range(8)]
    def sm(h):
        L=[]
        for k in range(3):
            for g in (2*h,2*h+1):
                for sg,Eb in ((0,EP[g]),(1,EM[g])):
                    t=U+4*g+2*sg
                    L.append(f"v_pk_add_f32 {R(t,2)}, {R(Eb,2)}, {R(Eb+2,2)}" if k==0 else f"v_pk_add_f32 {R(t,2)}, {R(t,2)}, {R(Eb+2*k+2,2)}")
        for g in (2*h,2*h+1): L.append(f"v_add_f32 v{MX[g]}, v{U+4*g}, v{U+4*g+1}\nv_add_f32 v{NM[g]}, v{U+4*g+2}, v{U+4*g+3}")
        return L
    def fin(h):
        for g in (2*h,2*h+1):
            for pm,(Eb,Q) in enumerate(((EP[g],MX),(EM[g],NM))):
                for i in range(0,8,2): a(f"v_pk_mul_f32 {R(Eb+i,2)}, {R(Eb+i,2)}, {R(Q[g],2)} op_sel_hi:[1,0]")
                for i in range(4): a(f"v_cvt_pk_bf16_f32 v{Eb+i}, v{Eb+2*i}, v{Eb+2*i+1}")
                if tail: tail(g, pm, Eb)
    def E(L):
        for x in L: a(x)
    a.raw(".p2align 3, 0xbf800000") if False else None
    if FS: stamp2(a,b_)
    E(mx(0)); E(zipl(x1(0), mx(1), 2))
    if FS: stamp2(a,b_+1)
    E(zipl(x1(1), fm(0), 2))
    if FS: stamp2(a,b_+2)
    E(ex(0)); E(sm(0))
    if hook: hook(0)
    if FS: stamp2(a,b_+3)
    E(zipl(x2(0), fm(1), 2)); fin(0)
    if FS: stamp2(a,b_+4)
    if hook: hook(1)
    E(ex(1))
    if hook: hook(2)
    E(sm(1))
    if FS: stamp2(a,b_+5)
    E(zipl(x2(1), fillB, 1))
    if FS: stamp2(a,b_+6)
    fin(1)
    if FS: stamp2(a,b_+7)
    return EP, EM
def corrT(a, c0, CS, B):
    for g in range(4):
        s=g&1
        for i in range(0,8,2):
            r=acc(g,c0)+i
            a(f"v_pk_fma_f32 {R(r,2)}, {R(ML[g],2)}, {R(CS+i,2)}, {R(r,2)} op_sel_hi:[0,1,1] neg_lo:[1,0,0] neg_hi:[1,0,0]")
        for i in range(4): a(f"v_cvt_pk_bf16_f32 v{acc(g,c0)+i}, v{acc(g,c0)+2*i}, v{acc(g,c0)+2*i+1}")

def ln_code(a):
    X=104; WR=120; S1=144; S2=148; S3=152; S4=156
    a(f"L_ln:\ns_lshl_b32 s3, s38, 12\ns_add_u32 s3, s3, {L_STG}\nv_lshlrev_b32 v2, 4, v1\nv_add_u32 v3, s3, v2\nv_add_u32 v2, {L_WR}, v2\ns_barrier")
    for i in range(2): a(f"ds_read_b128 {R(WR+4*i,4)}, v2 offset:{1024*i}")
    for i in range(4): a(f"ds_read_b128 {R(X+4*i,4)}, v3 offset:{1024*i}")
    stamp(a,3)
    a("v_mov_b32 v2, 0x3f803f80")
    for v in (S1,S2,S3,S4): a(f"v_mov_b32 v{v}, 0\nv_mov_b32 v{v+2}, 0")
    a("s_waitcnt lgkmcnt(2)")
    for r in range(2):
        if r: a("s_waitcnt lgkmcnt(0)")
        for d in range(8):
            x=X+8*r+d
            a(f"v_dot2c_f32_bf16 v{S1+2*r}, v{x}, v2\nv_dot2c_f32_bf16 v{S2+2*r}, v{x}, v{x}\nv_dot2c_f32_bf16 v{S3+2*r}, v{x}, v{WR+d}")
            a(f"v_dot2c_f32_bf16 v{S4+2*r}, v{WR+d}, v2")
    regs=[S1,S2,S3,S4]
    for v in regs: a(f"v_permlane32_swap_b32 v{v}, v{v+2}")
    for v in regs: a(f"v_add_f32 v{v}, v{v}, v{v+2}")
    for m in ("quad_perm:[1,0,3,2]", "quad_perm:[2,3,0,1]", "row_half_mirror", "row_mirror"):
        for v in regs: a(f"v_add_f32 v{v}, v{v}, v{v} {m} {DPPM}")
    for v in regs: a(f"v_mov_b32 v{v+1}, v{v}")
    for v in regs: a(f"v_permlane16_swap_b32 v{v}, v{v+1}")
    for v in regs: a(f"v_add_f32 v{v}, v{v}, v{v+1}")
    a(f"v_mul_f32 v{S1}, 0x3a800000, v{S1}\nv_mul_f32 v{S2}, 0x3a800000, v{S2}")
    rne(a, S1+1, S1)
    a(f"v_fma_f32 v{S2}, -v{S1}, v{S1}, v{S2}\nv_max_f32 v{S2}, 0, v{S2}\nv_fma_f32 v{S3}, -v{S1+1}, v{S4}, v{S3}\ns_waitcnt vmcnt(0)")
    rne(a, S2, S2)
    a(f"v_add_f32 v{S2}, 0x3727c5ac, v{S2}")
    rne(a, S2, S2)
    a(f"v_sqrt_f32 v{S2}, v{S2}")
    rne(a, S2, S2)
    a(f"v_rcp_f32 v2, v{S2}\nv_lshrrev_b32 v3, 16, v{S1+1}\nv_or_b32 v160, v3, v{S2}\nv_mul_f32 v{S3}, v{S3}, v2")
    rne(a, S3, S3)
    a(f"v_ashrrev_i32 v2, 31, v{S3}\nv_or_b32 v2, 0x80000000, v2\nv_xor_b32 v2, v{S3}, v2\nv_and_b32 v2, 0xffff0000, v2")
    a(f"v_lshrrev_b32 v3, 5, v1\nv_add_u32 v161, s71, v3\nv_sub_u32 v161, 2047, v161\nv_or_b32 v162, v2, v161\nv_mov_b32 v2, v162\nv_mov_b32 v161, v160\nv_readfirstlane_b32 s86, v164\nv_mov_b32 v3, 0\ns_mul_i32 s86, s86, 1664525\ns_add_u32 s86, s86, 1013904223\nv_mov_b32 v163, s86")
    a(f"v_permlane32_swap_b32 v162, v2\nv_permlane32_swap_b32 v160, v161\nv_max_u32 v162, v162, v2\ns_lshl_b32 s3, s71, 3")
    a(f"s_mov_b64 exec, 1\nbuffer_store_dwordx4 v[160:163], v3, s[{SWS}:{SWS+3}], s3 offen sc1\ns_mov_b64 exec, -1")
    a("v_mov_b32 v251, s86")
    stamp(a,4)

def c_wo(a, pos):
    for w in PLC.get(pos,[]):
        c=int(w[1])
        a(f"s_add_u32 m0, s72, {c*16384}\ns_add_u32 s3, s73, {c*262144}")
        for e in range(4): a(f"buffer_load_dwordx4 v{216+e}, s[88:91], s3 offen offset:{e*1024} lds")
def c_waves(a):
    a("L_C:")
    a("s_and_b32 s64, s38, 1\ns_lshr_b32 s65, s38, 1")
    F=[104,144]; vA=184; vW=186
    a("v_and_b32 v3, 15, v1\nv_lshlrev_b32 v3, 7, v3\ns_lshl_b32 s3, s64, 13\nv_add_u32 v3, s3, v3\nv_bfe_u32 v5, v1, 1, 3\nv_lshrrev_b32 v6, 4, v1\nv_xor_b32 v6, v6, v5")
    a(f"v_lshl_add_u32 v{vA}, v6, 4, v3\nv_xor_b32 v{vA+1}, 64, v{vA}")
    a("v_lshrrev_b32 v6, 4, v1\nv_lshlrev_b32 v6, 3, v6\nv_bfe_u32 v7, v1, 2, 2\nv_add_u32 v6, v6, v7\nv_lshlrev_b32 v6, 7, v6\nv_and_b32 v7, 3, v1\nv_lshl_add_u32 v6, v7, 3, v6\nv_add_u32 v6, 16384, v6")
    a("v_bfe_u32 v7, v1, 3, 2\ns_lshl_b32 s3, s65, 1\nv_xor_b32 v7, s3, v7")
    a(f"v_lshl_add_u32 v{vW}, v7, 5, v6\nv_xor_b32 v{vW+1}, 32, v{vW}")
    for i in range(4): a(f"v_add_u32 v{vA+4+i}, {2*SLOT}, v{vA+i}")
    a("s_waitcnt lgkmcnt(0)")
    srd(a, SWS, 26, WS_SIZE); srd(a, SX, 4, 2048*2048); srd(a, 88, 10, 1024*1024*2)
    a(f"s_lshl_b32 s3, s36, 7\ns_lshl_b32 s28, s37, 3\ns_add_u32 s3, s3, s28\ns_lshl_b32 s28, s38, 1\ns_add_u32 s71, s3, s28\nv_lshlrev_b32 v2, 4, v1\nv_mov_b32 v164, {WS_EPO}")
    for i in range(4): a(f"v_mov_b32 v{4+i}, -1")
    a(f"s_lshl_b32 s28, s2, 2\ns_add_u32 s28, s28, s38\ns_mul_i32 s28, s28, 768\ns_add_u32 s28, s28, {WS_FILL-256}\ns_lshl_b32 s3, s37, 4\ns_add_u32 s3, s3, s36\ns_lshl_b32 s3, s3, 2\ns_add_u32 s3, s3, s38\ns_lshl_b32 s3, s3, 8\ns_add_u32 s3, s3, {WS_CSP}")
    a(f"v_cmp_gt_u32 vcc, 16, v1\nv_add_u32 v3, s3, v2\nv_add_u32 v2, s28, v2\nv_cndmask_b32 v2, v2, v3, vcc")
    a(f"buffer_store_dwordx4 v[4:7], v2, s[{SWS}:{SWS+3}], 0 offen sc1\nbuffer_load_dword v164, v164, s[{SWS}:{SWS+3}], 0 offen sc1")
    if STAMPS: a(f"v_mov_b32 v{VST-1}, 0\nv_writelane_b32 v{VST}, s96, 0")
    if 'nocpf' not in EXP:
        a("s_getpc_b64 s[92:93]")
        a.raw("L_pc:")
        a("s_sub_u32 s92, s92, L_pc-fused_kernel\ns_subb_u32 s93, s93, 0\ns_lshr_b32 s3, s2, 3\ns_lshl_b32 s3, s3, 2\ns_add_u32 s3, s3, s38\ns_lshl_b32 s3, s3, 8\nv_lshlrev_b32 v2, 7, v1\nv_add_u32 v2, s3, v2\ns_mov_b64 exec, 3")
        a("global_load_dword v165, v2, s[92:93]\ns_mov_b64 exec, -1")
    for i in range(0,96,2): a(f"v_mov_b64 {R(ACC+i,2)}, 0")
    def reads(sl, t2, fs):
        f=F[fs]; L=[]; b=4 if sl==2 else 0; o=SLOT if sl==1 else 0
        L.append(f"ds_read_b128 {R(f,4)}, v{vA+b+t2} offset:{o}")
        for c6 in range(6):
            for u in range(2):
                L.append(f"ds_read_b64_tr_b16 {R(f+16+4*c6+2*u,2)}, v{vW+b+(c6&1)} offset:{o+(32*t2+4*u)*128+(c6>>1)*8192}")
        for g in range(1,4): L.append(f"ds_read_b128 {R(f+4*g,4)}, v{vA+b+t2} offset:{o+g*2048}")
        return L
    def step(fs, rd, order=None):
        f=F[fs]; i=0
        for g,c6 in (order or [(g,c6) for g in range(4) for c6 in range(6)]):
            d=acc(g,c6)
            if c6<4: mfma(a, d, f+16+4*c6, f+4*g, d)
            else: mfma(a, d, f+4*g, f+16+4*c6, d)
            if rd is not None and i<len(rd): a(rd[i])
            i+=1
            if 'rd2' in EXP and rd is not None and i<len(rd) and i%3==0: a(rd[i]); i+=1
    a(f"s_lshl_b32 s3, s38, 2\ns_add_u32 s3, s3, {L_FLG}\nv_mov_b32 v2, s3\nv_mov_b32 v3, 0\nds_write_b32 v2, v3\nds_write_b32 v2, v3 offset:16")
    a("s_mov_b32 s86, 0\ns_mov_b32 s66, 0\ns_setprio 2\ns_waitcnt lgkmcnt(0)")
    AO=232
    ad = (f"v_and_b32 v2, 15, v1\nv_lshrrev_b32 v3, 4, v1\ns_lshl_b32 s3, s64, 8\ns_add_u32 s3, s3, {L_M}\nv_lshl_add_u32 v{AO}, v2, 2, s3\nv_lshl_add_u32 v{AO+1}, v3, 4, s3\n"
          f"v_lshrrev_b32 v7, 5, v1\nv_lshl_add_u32 v{AO+2}, v7, 6, v{AO}\n"
          f"s_lshl_b32 s3, s65, 7\ns_add_u32 s3, s3, {L_CS}\nv_lshl_add_u32 v{AO+3}, v3, 4, s3\nv_lshl_add_u32 v248, v2, 2, s3\n"
          f"s_lshl_b32 s3, s64, 7\ns_add_u32 s3, s3, {L_SQ}\nv_lshl_add_u32 v249, v3, 4, s3\nv_xor_b32 v253, 128, v249\n"
          f"v_lshrrev_b32 v250, 2, v1\nv_lshlrev_b32 v250, 6, v250\nv_and_b32 v251, 3, v1\nv_lshl_add_u32 v250, v251, 3, v250\ns_lshl_b32 s3, s65, 11\ns_add_u32 s3, s3, {L_PHI}\nv_add_u32 v252, s3, v250\n"
          f"v_bfe_u32 v5, v1, 1, 2\nv_lshlrev_b32 v5, 2, v5\nv_bfe_u32 v4, v1, 3, 1\nv_lshl_add_u32 v5, v4, 1, v5\nv_and_b32 v4, 1, v1\nv_add_u32 v5, v5, v4\nv_xor_b32 v5, v5, v3\n"
          f"s_lshl_b32 s3, s38, 13\ns_add_u32 s3, s3, {L_PHS}\nv_lshl_add_u32 v2, v2, 7, s3\nv_lshl_add_u32 v4, v5, 3, v2\nv_xor_b32 v5, 32, v4\nv_xor_b32 v6, 64, v4\nv_xor_b32 v7, 96, v4\n"
          f"v_bfe_u32 v2, v1, 3, 2\nv_lshlrev_b32 v2, 2, v2\nv_lshrrev_b32 v3, 5, v1\nv_lshl_add_u32 v2, v3, 1, v2\nv_bfe_u32 v3, v1, 2, 1\nv_add_u32 v2, v2, v3\nv_xor_b32 v2, v2, v251\n"
          f"v_lshrrev_b32 v3, 2, v1\nv_lshl_add_u32 v3, v3, 7, s3\nv_lshl_add_u32 v2, v2, 3, v3\ns_lshl_b32 s28, s64, 6\nv_xor_b32 v{vSR[0]}, s28, v2\nv_xor_b32 v{vSR[1]}, 32, v{vSR[0]}\n"
          f"s_lshl_b32 s3, s38, 12\ns_add_u32 s3, s3, {L_STG}\nv_lshlrev_b32 v{vLN}, 4, v1\nv_add_u32 v{vVS}, s3, v{vLN}\n"
          f"s_lshl_b32 s3, s37, 1\ns_add_u32 s67, s3, s65\ns_lshl_b32 s3, s67, 4\ns_add_u32 s3, s3, s36\ns_mul_i32 s3, s3, {KVS}\ns_add_u32 s75, s3, {WS_KVP}\ns_lshl_b32 s3, s64, 11\ns_add_u32 s74, s75, s3\ns_lshl_b32 s3, s64, 6\ns_add_u32 s75, s75, s3\ns_add_u32 s75, s75, 4096\n"
          f"s_lshl_b32 s3, s37, 4\ns_add_u32 s3, s3, s36\ns_lshl_b32 s3, s3, 7\ns_add_u32 s3, s3, {WS_RDY}\ns_cmp_lg_u32 s38, 0\ns_cselect_b32 s76, {WS_SIZE}, s3").split("\n")
    ad = a.capture(lambda: xaddr(a, 236, 237, 238)) + [f"v_xor_b32 v{236+ct}, {32*ct}, v236" for ct in range(1,4)] + ad
    for x in ad: a(x)
    stamp(a,1)
    ln_code(a)
    a("s_barrier")
    stamp2(a,8)
    for r in reads(0,0,0): a(r)
    a("s_branch L_cmid")
    a.raw(".p2align 6")
    a("L_cloop:")
    for sl in range(3):
        if sl==0 and False: a("s_cmp_eq_u32 s66, 1\ns_cbranch_scc1 L_ln\nL_lnr:")
        a("s_waitcnt lgkmcnt(0)\ns_barrier")
        step(1, reads(sl,0,0))
        if sl==0: a("L_cmid:")
        a("s_waitcnt lgkmcnt(0)\ns_nop 0")
        step(0, reads(sl,1,1)+(["s_add_u32 s66, s66, 1\ns_cmp_lt_u32 s66, 5"] if sl==2 else []))
    a("s_cbranch_scc1 L_cloop")
    xr = [f"ds_read_b64 {R(PX+2*ct,2)}, v{236+ct}" for ct in range(4)]
    r1=[]; r2=[]
    for g in range(4): r1.append(f"ds_read_b32 v{ML[g]}, v{AO} offset:{64*g}")
    for c in range(2): r1.append(f"ds_read_b128 {R(CSK+4*c,4)}, v{AO+3} offset:{256+64*c}")
    for c in range(2): r1.append(f"ds_read_b128 {R(CSQ+4*c,4)}, v{AO+3} offset:{64*c}")
    for ft in range(2):
        for v in range(2): r2.append(f"ds_read_b64_tr_b16 {R(PHI+4*ft+2*v,2)}, v252 offset:{1024*v+32*ft}")
    a("s_nop 0\ns_waitcnt lgkmcnt(0)\ns_barrier")
    step(1, reads(0,0,0)+r1)
    a("s_waitcnt lgkmcnt(8)\ns_nop 0")
    step(0, reads(0,1,1)+xr+r2)
    rd=["s_barrier"]
    for g in (0,2): rd.append(f"ds_read_b128 {R(MV+4*g,4)}, v{AO+1} offset:{64*g}\nds_read_b128 {R(MV+4*g+4,4)}, v{AO+1} offset:{64*g+64}")
    rd.append(f"ds_read_b32 v{CSV[1]}, v248 offset:576\nds_read_b32 v{CSV[0]}, v248 offset:512")
    for g in (0,2): rd.append(f"ds_read_b32 v{CC[g]}, v{AO} offset:{2048+64*g}\nds_read_b32 v{CC[g+1]}, v{AO} offset:{2048+64*g+64}")
    for h in range(2): rd.append(f"ds_read_b32 v{CCP[h]}, v{AO+2} offset:{2048+128*h}\nds_read_b32 v{RLP[h]}, v{AO+2} offset:{1024+128*h}")
    kc=[]
    for g in range(4):
        r=acc(g,2)
        kc+=[f"v_fma_f32 v{r+i}, -v{ML[g]}, v{CSK+i}, v{r+i}" for i in range(8)]
        kc+=[f"v_cvt_pk_bf16_f32 v{r+i}, v{r+2*i}, v{r+2*i+1}" for i in range(4)]
    for i in range(16): rd.append("\n".join(kc[3*i:3*i+3]))
    a("s_waitcnt lgkmcnt(4)")
    step(1, rd, [(g,c6) for cs in ((2,3),(4,5),(0,1)) for g in range(4) for c6 in cs])
    for ks in range(2): a(f"ds_read_b128 {R(SQF+4*ks,4)}, v249 offset:{64*ks}")
    a("s_waitcnt lgkmcnt(2)")
    stamp2(a,24)
    VL='vearly' not in EXP
    def vcorr():
        for g in range(4):
            for dt in range(2):
                for i in (0,2):
                    r=acc(g,4+dt)+i
                    a(f"v_pk_fma_f32 {R(r,2)}, {R(MV+4*g+i,2)}, {R(CSV[dt],2)}, {R(r,2)} op_sel_hi:[1,0,1] neg_lo:[1,0,0] neg_hi:[1,0,0]")
        for ks in range(2):
            for dt in range(2):
                d=acc(2*ks,4+dt); e=acc(2*ks+1,4+dt)
                a(f"v_cvt_pk_bf16_f32 v{d}, v{d}, v{d+1}\nv_cvt_pk_bf16_f32 v{d+1}, v{d+2}, v{d+3}\nv_cvt_pk_bf16_f32 v{d+2}, v{e}, v{e+1}\nv_cvt_pk_bf16_f32 v{d+3}, v{e+2}, v{e+3}")
                if not VL: a(f"ds_write_b128 v{vVS}, {R(d,4)} offset:{2048*ks+1024*dt}")
        for ks in range(2): a(f"ds_read_b128 {R(MV+4*ks,4)}, v253 offset:{64*ks}")
    AF=[232,CSK]; BK=None
    KVt=[144,152,acc(0,2)]
    PA_=128
    def tail(g, pm, Eb):
        for ft in range(2): a(f"ds_write_b64 v{4+2*pm+ft}, {R(Eb+2*ft,2)} offset:{2048*g}")
        if VL and g<2: a(f"ds_write_b128 v{vVS}, {R(acc(2*g,4+pm),4)} offset:{2048*g+1024*pm}")
        if g&1 and pm:
            ks=g>>1
            for ft in range(2):
                for v in range(2): a(f"ds_read_b64_tr_b16 {R(AF[ks]+4*ft+2*v,2)}, v{vSR[ft]} offset:{4096*ks+2048*v}")
    def kvm(k4):
        ks=k4&1; own=k4<2; L=[]
        for dt in range(3):
            for ft in range(2):
                d=KVt[dt]+4*ft
                Bo=(acc(2*ks+(0 if own else 1),4+dt) if dt<2 else (SQF if own else MV)+4*ks)
                L.append(f"v_mfma_f32_16x16x32_bf16 {R(d,4)}, {R((AF[ks] if own else PA_+8*ks)+4*ft,4)}, {R(Bo,4)}, {R(d,4) if k4 else '0'}")
        return L
    k0=kvm(0); k0[0]="s_waitcnt lgkmcnt(0)\ns_nop 0\n"+k0[0]
    CH=opt('ch',2)
    def hook(k):
        if k==CH: a(f"s_mov_b64 exec, 1\nbuffer_store_dword v251, v{vLN}, s[{SWS}:{SWS+3}], s76 offen sc1\ns_mov_b64 exec, -1")
    EP,EM = feature(a, BK, 2, True, mid1=vcorr, tail=tail, fillB=k0, hook=hook)
    stamp(a,34)
    a(f"v_xor_b32 v{vSR[0]}, 0x2000, v{vSR[0]}\nv_xor_b32 v{vSR[1]}, 0x2000, v{vSR[1]}\nv_xor_b32 v{vVS}, 0x1000, v{vVS}\ns_waitcnt lgkmcnt(4)\ns_barrier")
    for ks in range(2):
        for ft in range(2):
            for v in range(2): a(f"ds_read_b64_tr_b16 {R(PA_+8*ks+4*ft+2*v,2)}, v{vSR[ft]} offset:{4096*ks+2048*v}")
        for dt in range(2): a(f"ds_read_b128 {R(acc(2*ks+1,4+dt),4)}, v{vVS} offset:{2048*ks+1024*dt}")
    for k4 in range(1,4):
        a(f"s_waitcnt lgkmcnt({(12,6,0)[k4-1]})")
        for x in kvm(k4): a(x)
    stamp(a,33)
    for ft in range(2):
        for v in range(2): a(f"ds_read_b64_tr_b16 {R(PHI+4*ft+2*v,2)}, v252 offset:{L_PHQ-L_PHI+1024*v+32*ft}")
    a(f"s_xor_b32 s67, s67, {2*QX}\ns_lshl_b32 s3, s38, 2\ns_add_u32 s3, s3, {L_FLG}\nv_mov_b32 v4, s3\nv_mov_b32 v5, 1")
    for j in range(3):
        b=KVt[j]
        for i in range(4): a(f"v_cvt_pk_bf16_f32 v{b+i}, v{b+2*i}, v{b+2*i+1}")
        if j<2: a(f"buffer_store_dwordx4 {R(b,4)}, v{vLN}, s[{SWS}:{SWS+3}], s74 offen offset:{1024*j} sc1")
    a("s_mov_b32 exec_lo, 0x00010001\ns_mov_b32 exec_hi, 0x00010001")
    a(f"buffer_store_dwordx4 {R(KVt[2],4)}, v1, s[{SWS}:{SWS+3}], s75 offen sc1\ns_mov_b64 exec, -1\nds_write_b32 v4, v5")
    stamp(a,25)
    a("s_setprio 0")
    corrT(a, 0, CSQ, BK)
    a("s_waitcnt lgkmcnt(1)")
    EP,EM = feature(a, BK, 0, False)
    stamp(a,26)
    KF=104; ZF=120
    key_rd(a, 248)
    a("v_lshrrev_b32 v5, 3, v1\nv_lshlrev_b32 v6, 11, v5\nv_bfe_u32 v5, v1, 4, 2\nv_lshlrev_b32 v5, 1, v5\nv_and_b32 v7, 7, v1\nv_xor_b32 v5, v5, v7\nv_lshl_add_u32 v6, v5, 4, v6\ns_lshl_b32 s3, s35, 7\nv_add_u32 v6, s3, v6")
    for e in range(4): a(f"v_add_u32 v{216+e}, {e*15360}, v6")
    a("s_lshl_b32 s72, s38, 12\ns_lshl_b32 s73, s38, 16")
    stat3(a, 193, 192)
    a(f"s_mul_i32 s76, s67, {KVS}\ns_add_u32 s76, s76, {WS_KVR}\nv_lshlrev_b32 v5, 4, v1\nv_and_b32 v6, 48, v1\nv_add_u32 v6, 4096, v6")
    a(f"s_lshl_b32 s3, s38, 2\ns_add_u32 s3, s3, {L_FLG}\nv_mov_b32 v3, s3\nL_gw:\nds_read_b32 v2, v3\ns_waitcnt lgkmcnt(0)\nv_readfirstlane_b32 s3, v2\ns_cmp_eq_u32 s3, 3\ns_cbranch_scc1 L_gk\ns_sleep 1\ns_branch L_gw\nL_gk:")
    stamp(a,35)
    SG='slate' not in EXP
    if SG: silu_prep(a, PG, PX, 193, 192, 196)
    if opt('h2d',0): a(f"s_sleep {opt('h2d',0)}")
    def ld_h2():
        for j in range(4): a(f"buffer_load_dwordx4 {R(KF+4*j,4)}, v5, s[{SWS}:{SWS+3}], s76 offen offset:{1024*j} sc1")
        for pm in range(2): a(f"buffer_load_dwordx4 {R(ZF+4*pm,4)}, v6, s[{SWS}:{SWS+3}], s76 offen offset:{64*pm} sc1")
    ld_h2()
    key_fin(a, 248)
    a(f"s_lshl_b32 s3, s36, 3\ns_lshl_b32 s28, s64, 2\ns_add_u32 s3, s3, s28\ns_lshl_b32 s3, s3, 5\ns_add_u32 s3, s3, s67\ns_lshl_b32 s77, s3, 10\ns_add_u32 s77, s77, {WS_O}")
    a("s_waitcnt vmcnt(0)")
    stamp(a,36)
    if 'h2m' in EXP:
        L=a.capture(ld_h2)
        def rl():
            for j,x in enumerate(L):
                maxu(a, 2, range(KF+4*j,KF+4*j+4))
                a(f"v_cmp_eq_u32 vcc, -1, v2\ns_cbranch_vccz L_hm{j}\ns_mov_b64 exec, vcc\n{x}\ns_mov_b64 exec, -1\nL_hm{j}:")
        checked(a, "L_k7", range(KF,KF+24), rl, sleep=0)
    else: checked(a, "L_k7", range(KF,KF+24), ld_h2)
    a("s_setprio 2")
    c_wo(a,'c2')
    stamp(a,27)
    for g in range(4):
        N=acc(g,2)
        for pm,Eb in ((0,EP[g]),(1,EM[g])):
            mfma(a, N+8, ZF+4*pm, Eb, N+8 if pm else None)
            for dt in range(2): mfma(a, N+4*dt, KF+8*pm+4*dt, Eb, N+4*dt if pm else None)
    for g in range(4): a(f"v_add_f32 v{acc(g,2)+8}, 0x358637bd, v{acc(g,2)+8}")
    for g in range(4): a(f"v_rcp_f32 v{acc(g,2)+8}, v{acc(g,2)+8}")
    for g in range(4):
        N=acc(g,2)
        for i in range(0,8,2): a(f"v_pk_mul_f32 {R(N+i,2)}, {R(N+i,2)}, {R(N+8,2)} op_sel_hi:[1,0]")
        for i in range(4): a(f"v_cvt_pk_bf16_f32 v{N+i}, v{N+2*i}, v{N+2*i+1}")
        a(f"buffer_store_dwordx4 {R(N,4)}, v5, s[{SWS}:{SWS+3}], s77 offen sc1")
        if g<3: a("s_add_u32 s77, s77, 32768")
    a(f"v_mov_b32 v2, 7\nds_write_b32 v3, v2\ns_and_b32 s3, s68, 127\ns_lshl_b32 s3, s3, 2\ns_add_u32 s3, s3, {L_M}\nv_mov_b32 v2, s3\nds_read_b32 v250, v2\nds_read_b32 v251, v2 offset:1024")
    stamp(a,28)
    a("s_setprio 0")
    wait7(a, "L_cw")
    c_wo(a,'co')
    if not SG: silu_prep(a, PG, PX, 193, 192, 196)
    if opt('cpd',0): a(f"s_sleep {opt('cpd',0)}")
    stamp(a,29)

def p3(a):
    a("L_p3:")
    a.pad(4)
    D=opt('d3',5)
    PA=8; PB=40; PW=PB+8*D; vW=PW+32; vB=vW+4
    srd(a, SB, 22, 2048*2048)
    a(f"s_lshr_b32 s64, s39, 2\ns_lshl_b32 s3, s34, 2\ns_add_u32 s3, s3, s38\ns_lshl_b32 s3, s3, 16\ns_lshl_b32 s28, s64, 14\ns_add_u32 s3, s3, s28\ns_add_u32 s76, s3, {WS_O}")
    a(f"s_lshl_b32 s3, s64, 15\nv_lshlrev_b32 v2, 4, v1\nv_add_u32 v{vB}, s3, v2\nv_xor_b32 v{vB+1}, 0x8000, v{vB}")
    a(f"v_lshrrev_b32 v2, 2, v1\nv_lshlrev_b32 v2, 7, v2\nv_bfe_u32 v3, v1, 3, 2\nv_lshl_add_u32 v2, v3, 5, v2\nv_and_b32 v3, 3, v1\nv_lshl_add_u32 v2, v3, 3, v2\ns_lshl_b32 s3, s64, 16\nv_add_u32 v{vW}, s3, v2")
    for ct in range(1,4): a(f"v_xor_b32 v{vW+ct}, {32*ct}, v{vW}")
    ROT='prot' in EXP
    vWr=196
    if ROT:
        for k in range(4):
            a(f"s_and_b32 s3, s35, 3\ns_xor_b32 s3, s3, {k}\ns_lshl_b32 s{79+k}, s3, 10\ns_add_u32 s{79+k}, s{79+k}, s76\ns_lshl_b32 s3, s3, 12")
            for ct in range(4): a(f"v_add_u32 v{vWr+4*k+ct}, s3, v{vW+ct}")
    def ldx(j, b, sreg):
        if ROT: a(f"s_add_u32 s{sreg}, s{79+(j&3)}, {(j&~3)*1024}")
        for e in range(2): a(f"buffer_load_dwordx4 {R(b+4*e,4)}, v{vB+e}, s[{SWS}:{SWS+3}], s{sreg} offen offset:{0 if ROT else (j%4)*1024} sc1")
    def ld(j):
        b=PB+8*(j%D)
        if j%4==0 and not ROT: a(f"s_add_u32 s77, s76, {j*1024}")
        ldx(j,b,77)
    def wr(j):
        b=PW+16*(j%2)
        if ROT: return [f"ds_read_b64_tr_b16 {R(b+4*ct+2*v,2)}, v{vWr+4*(j&3)+ct} offset:{(j&~3)*4096+v*2048}" for ct in range(4) for v in range(2)]
        return [f"ds_read_b64_tr_b16 {R(b+4*ct+2*v,2)}, v{vW+ct} offset:{j*4096+v*2048}" for ct in range(4) for v in range(2)]
    for j in range(D-1): ld(j)
    stamp2(a,30)
    a(f"s_lshr_b32 s3, s68, 7\ns_xor_b32 s83, s3, s34\ns_or_b32 s83, s83, s39")
    YL=128; IS=250
    a("v_lshlrev_b32 v222, 4, v1")
    def ld_y():
        for j in range(16):
            if j%4==0: a(f"s_add_u32 s3, s78, {j*1024}")
            a(f"buffer_load_dwordx4 {R(YL+4*j,4)}, v222, s[{SWS}:{SWS+3}], s3 offen offset:{(j%4)*1024} sc1")
    def fix1():
        a(f"L_fx1:\ns_lshl_b32 s78, s35, 14\ns_add_u32 s78, s78, {WS_Y}")
        a(f"v_and_b32 v2, 15, v1\nv_lshrrev_b32 v3, 4, v1\nv_lshl_add_u32 v193, v2, 2, v3\nv_and_b32 v2, 7, v193\nv_lshrrev_b32 v193, 3, v193\nv_lshl_add_u32 v193, v2, 3, v193\nv_lshlrev_b32 v2, 1, v193\ns_lshl_b32 s3, s68, 11\ns_lshl_b32 s28, s35, 7\ns_add_u32 s3, s3, s28\nbuffer_load_ushort v194, v2, s[{SX}:{SX+3}], s3 offen")
        ld_y()
        a("s_branch L_fx1r")
    def fix2():
        a("L_fx2:\ns_and_b32 s3, s70, 0xffff0000\ns_xor_b32 s28, s3, 0x80000000\ns_not_b32 s29, s3\ns_and_b32 s29, s29, 0xffff0000\ns_bitcmp1_b32 s3, 31\ns_cselect_b32 s3, s28, s29")
        a(f"v_mov_b32 v195, s3\nv_mul_f32 v195, 0xbfb8aa3b, v195\nv_exp_f32 v195, v195\nv_add_f32 v195, 1.0, v195\nv_rcp_f32 v195, v195")
        rne(a,195,195)
        checked(a, "L_k6", range(YL,YL+64), ld_y, sleep=4)
        for k in (8,4,2,1):
            for i in range(0,4*k,2): a(f"v_pk_add_f32 {R(YL+i,2)}, {R(YL+i,2)}, {R(YL+4*k+i,2)}")
        for i in range(2): a(f"v_permlane32_swap_b32 v{YL+i}, v{YL+2+i}")
        for i in range(2): a(f"v_add_f32 v{YL+i}, v{YL+i}, v{YL+2+i}")
        a(f"v_permlane16_swap_b32 v{YL}, v{YL+1}\nv_add_f32 v{YL}, v{YL}, v{YL+1}")
        rne(a,YL,YL)
        a(f"v_mul_f32 v{YL}, v{YL}, v195\nv_lshlrev_b32 v194, 16, v194\nv_sub_f32 v194, v194, v{IS}")
        rne(a,YL,YL); rne(a,194,194)
        a(f"v_mul_f32 v194, v194, v{IS+1}")
        rne(a,194,194)
        a(f"v_add_f32 v{YL}, v{YL}, v194")
        rne(a,YL,YL)
        a(f"v_mul_f32 v2, 0xbfb8aa3b, v{YL}\nv_exp_f32 v2, v2\nv_add_f32 v2, 1.0, v2\nv_rcp_f32 v2, v2\nv_mul_f32 v2, v{YL}, v2\nv_lshlrev_b32 v3, 2, v193\nds_write_b32 v3, v2\ns_branch L_fx2r")
    for r in wr(0): a(r)
    a("s_mov_b32 s29, 0")
    BC=opt('bc',7)
    def chk(j):
        b=PB+8*(j%D)
        return a.capture(lambda: maxu(a, 2, range(b,b+8)))+["v_cmp_eq_u32 vcc, -1, v2"]
    a(f"s_waitcnt vmcnt({2*(D-2)})")
    for x in chk(0): a(x)
    for j in range(16):
        b=PB+8*(j%D); w=PW+16*(j%2)
        a(f"s_cbranch_vccnz L_r{j}\nL_g{j}:")
        if 'pst' in EXP and j%4==0: stamp2(a,40+j//4)
        if a.down and j==opt('jd',4): a("s_cmp_eq_u32 s64, 1\ns_cbranch_scc1 L_dn\nL_dnr:")
        if j==opt('fxj',14): a("s_cmp_eq_u32 s83, 0\ns_cbranch_scc1 L_fx1\nL_fx1r:")
        a("s_waitcnt lgkmcnt(0)")
        if 'bal' in EXP and j in (0,5,9,13): a(f"s_setprio {3-(j//4)}")
        if 'bal2' in EXP and j in (0,8,12,14): a(f"s_setprio {dict(zip((0,8,12,14),(3,2,1,0)))[j]}")
        if BC==3:
            if j==3: a("s_barrier")
        elif j in (opt('bh',3),BC): a(f"s_cmp_eq_u32 s64, {0 if j!=BC else 1}\ns_cbranch_scc1 L_nb{j}\ns_barrier\nL_nb{j}:")
        S=[[] for _ in range(8)]
        if j<15:
            rd=wr(j+1)
            for i in range(4): S[i]=rd[2*i:2*i+2]
            if j+D-1<16: S[4]=a.capture(lambda: ld(j+D-1))
            c=chk(j+1)
            S[5]=[f"s_waitcnt vmcnt({2*min(D-2,14-j)})"]+c[:1]; S[6]=c[1:3]; S[7]=c[3:]
        i=0
        for ct in range(4):
            for e in range(2):
                d=PA+16*e+4*ct
                mfma(a, d, w+4*ct, b+4*e, d if j else None)
                for x in S[i]: a(x)
                i+=1
    stamp2(a,31)
    if STAMPS: a(f"v_writelane_b32 v{VST-1}, s29, 58")
    a("s_cmp_eq_u32 s83, 0\ns_cbranch_scc1 L_fx2\nL_fx2r:")
    a(f"s_lshl_b32 s3, s39, 12\ns_add_u32 s3, s3, {L_STG}\nv_lshlrev_b32 v2, 4, v1\nv_add_u32 v2, s3, v2\nv_xor_b32 v3, 0x4000, v2\ns_xor_b32 s28, s3, 0x4000")
    for ct in range(4): a(f"ds_write_b128 v2, {R(PA+16+4*ct,4)} offset:{1024*ct}")
    XF=40
    for d in range(8): unpack(a, XF+2*d, PX+d)
    a(f"v_and_b32 v4, 15, v1\nv_lshrrev_b32 v5, 4, v1\nv_lshlrev_b32 v6, 1, v4\nv_and_b32 v6, 14, v6\nv_xor_b32 v5, v5, v6\nv_lshl_add_u32 v4, v4, 7, s28\nv_lshl_add_u32 v4, v5, 3, v4")
    a(f"v_lshrrev_b32 v5, 3, v1\nv_and_b32 v6, 7, v1\nv_xor_b32 v7, v6, v5\nv_lshl_add_u32 v7, v7, 4, s28\nv_lshl_add_u32 v7, v5, 7, v7")
    a(f"s_lshl_b32 s3, s34, 7\ns_add_u32 s3, s3, s69\nv_add_u32 v5, s3, v5\nv_lshlrev_b32 v5, 11, v5\nv_lshl_add_u32 v5, v6, 4, v5\ns_lshl_b32 s3, s35, 7\ns_add_u32 s28, s3, 16384")
    a(f"s_lshl_b32 s29, s34, 7\ns_add_u32 s29, s29, s69\ns_andn2_b32 s77, s68, 15\ns_cmp_lg_u32 s29, s77")
    a("s_waitcnt lgkmcnt(0)\ns_barrier")
    a(f"s_cbranch_scc1 L_nov\nv_and_b32 v2, 48, v1\ns_and_b32 s29, s68, 15\ns_lshl_b32 exec_lo, 0x00010001, s29\ns_mov_b32 exec_hi, exec_lo")
    for ct in range(4): a(f"ds_read_b128 {R(PG+4*ct,4)}, v2 offset:{64*ct}")
    a("s_mov_b64 exec, -1\nL_nov:")
    stamp(a,60)
    for ct in range(4): a(f"ds_read_b128 {R(PA+16+4*ct,4)}, v3 offset:{1024*ct}")
    for ct in range(4):
        a(f"s_waitcnt lgkmcnt({3-ct})")
        for i in (0,2): a(f"v_pk_add_f32 {R(PA+4*ct+i,2)}, {R(PA+4*ct+i,2)}, {R(PA+16+4*ct+i,2)}")
        for i in (0,2): a(f"v_pk_fma_f32 {R(XF+4*ct+i,2)}, {R(PA+4*ct+i,2)}, {R(PG+4*ct+i,2)}, {R(XF+4*ct+i,2)}")
        for i in (0,1): a(f"v_cvt_pk_bf16_f32 v{PA+2*ct+i}, v{XF+4*ct+2*i}, v{XF+4*ct+2*i+1}")
    for ct in range(4):
        if ct: a(f"v_xor_b32 v6, {32*ct}, v4")
        a(f"ds_write_b64 v{6 if ct else 4}, {R(PA+2*ct,2)}")
    for e in range(2): a(f"ds_read_b128 {R(PA+16+4*e,4)}, v7 offset:{1024*e}")
    OM = '' if 'outplain' in EXP else ' nt' if 'outnt' in EXP else ' sc1 nt' if 'outsn' in EXP else ' sc0 sc1' if 'outss' in EXP else ' sc1'
    for e in range(2):
        a(f"s_waitcnt lgkmcnt({1-e})\nbuffer_store_dwordx4 {R(PA+16+4*e,4)}, v5, s[{SB}:{SB+3}], s{28 if e else 3} offen{OM}")
    stamp(a,61)
    if STAMPS: a("s_waitcnt vmcnt(0)")
    stamp(a,32)
    dump(a)
    if LEAK>=0: a("s_memrealtime s[98:99]\ns_waitcnt lgkmcnt(0)\ns_sub_u32 s94, s94, s96\ns_add_u32 s94, s94, s98\nL_lk:\ns_sleep 1\ns_memrealtime s[98:99]\ns_waitcnt lgkmcnt(0)\ns_cmp_lt_u32 s98, s94\ns_cbranch_scc1 L_lk")
    a("L_done:\ns_endpgm")
    if False: ln_code(a)
    fix1(); fix2()
    if a.down:
        a("L_dn:")
        if 'dprio' in EXP: a("s_setprio 3")
        a.down('dprio' not in EXP)
        if 'dprio' in EXP: a("s_setprio 0")
        a("s_branch L_dnr")
    for j in range(16):
        b=PB+8*(j%D)
        a(f"L_r{j}:\ns_add_u32 s29, s29, 1\ns_cmp_ge_u32 s29, {SPIN}\ns_cbranch_scc1 L_g{j}\ns_add_u32 s3, s76, {(j&~3)*1024}")
        ldx(j,b,3)
        a("s_waitcnt vmcnt(0)")
        for x in chk(j): a(x)
        a(f"s_cbranch_vccnz L_r{j}\ns_branch L_g{j}")

def kern(a):
    kernel_header(a, "fused_kernel")
    a("s_cmp_ge_u32 s2, 256\ns_cbranch_scc1 L_done")
    a("s_load_dwordx16 s[4:19], s[0:1], 0\ns_load_dwordx8 s[20:27], s[0:1], 64")
    if STAMPS or LEAK>=0: a("s_memrealtime s[96:97]\ns_memrealtime s[94:95]")
    a("v_and_b32 v1, 63, v0\nv_lshrrev_b32 v2, 6, v0")
    a("v_readfirstlane_b32 s39, v2")
    a("s_and_b32 s34, s2, 1\ns_lshl_b32 s34, s34, 3\ns_bfe_u32 s3, s2, 0x30003\ns_add_u32 s36, s34, s3")
    a("s_bfe_u32 s37, s2, 0x20001\ns_lshl_b32 s37, s37, 2\ns_lshr_b32 s28, s2, 6\ns_add_u32 s37, s37, s28")
    a("s_and_b32 s80, s37, 12\ns_xor_b32 s80, s80, s34\ns_add_u32 s85, s36, s37\ns_and_b32 s85, s85, 3\ns_add_u32 s3, s85, 3\ns_and_b32 s3, s3, 3\ns_xor_b32 s35, s80, 12\ns_or_b32 s35, s35, s3\ns_mov_b32 s34, s36")
    a("s_and_b32 s38, s39, 3")
    a("s_cmp_lt_u32 s39, 4\ns_cbranch_scc1 L_C")
    h_waves(a)
    c_waves(a)
    p3(a)
    return kernel_desc("fused_kernel", 256, 102)

if __name__ == "__main__":
    a=CAsm()
    head = open('/code/%s.s.ref'%NAME).read().split('\n')
    hdr = [l for l in head if l.startswith(';') and '@launch' not in l and 'Override launch' not in l and 'grid=ceil' not in l]
    out='\n'.join(hdr)+"\n; @launch kernel=fused_kernel grid=(256,1,1) block=(512,1,1) lds=163840\n"
    out+='.amdgcn_target "amdgcn-amd-amdhsa--gfx950"\n.text\n'
    d=kern(a)
    if 'noal' not in EXP:
        import align
        a.lines,nw,nn = align.align(a.lines, '.amdgcn_target "amdgcn-amd-amdhsa--gfx950"\n.text\n')
    out+=a.text()+".p2align 8\n.fill 4096, 4, 0xbf800000\n"+'.section .rodata,"a"\n.p2align 6\n'+d
    if 'official' in EXP:
        out = out.replace("; @launch kernel=fused_kernel grid=", "; @launch grid=").replace("fused_kernel", NAME+"_kernel")
    open(sys.argv[1],"w").write(out)
```

```python
import sys, os
from asmgen import Asm, kernel_header, kernel_desc
NAME = "recurrent_scan__linear_kernel_hedgehog__moe_arch_mod__prompt"
EXP = os.environ.get('EXP','').split(',')
STAMPS = 'st' in EXP or 'lite' in EXP
LITE = 'lite' in EXP
def opt(name, default):
    for e in EXP:
        if e.startswith(name+'='): return int(e.split('=')[1])
    return default
WS_SIZE = 0x10000000
WS_REC  = 0x000000
WS_EPO  = 0x004000
WS_RDY  = 0x008000
KVS     = 4224
WS_FILL = 0x100000
WS_CSP  = 0x080000
WS_KVR  = WS_FILL
WS_GU   = WS_KVR + 32*KVS
WS_Y    = WS_GU + 16*3584*4
assert WS_Y + 16*64*256 <= WS_FILL + 1024*768
WS_O    = 0x400000
WS_KVP  = 0x800000
WS_DBG  = 0x3000000
SLOT = 40960
L_PHS  = 98304
L_WR   = 122880
L_STG  = 131072
LM     = 147456
L_PHI  = LM+256
L_M    = LM+4096+512
L_R    = L_M+1024
L_RC   = L_R+1024
L_SQ   = L_RC+512
L_CS   = L_SQ+256
L_PHQ  = LM+8192+256
L_KEY  = LM+8192+256+6144
L_FLG  = L_KEY+64
assert L_CS+768 <= LM+8192 and L_FLG+32 <= 163840
NT = opt('nt',1)
PLC = {}
for it_ in os.environ.get('PLC','i0:k0;i1:k1,k2;i3:a,p,t,G0004;i5:o0;i6:o1;i8:o2,o3;i9:b0;j10:b1;j14:G0412;x0:w0,w1,w4,G1219;x2:w2,w3,w5;h0:G1923;co:w6,w7').split(';'):
    PLC.setdefault(it_.split(':')[0],[]).extend(it_.split(':')[1].split(','))
FNT = '' if 'fplain' in EXP else ' nt'
TNT = ' nt' if 'tnt' in EXP else ''
STAG = 'nostag' not in EXP
def korder(c):
    TT=[[0,0,0,0],[4,1,2,3],[8,5,6,7],[12,9,10,11]] if opt('so',0)==0 else [[0,0,0,0],[4,2,3,4],[8,5,6,7],[12,9,10,11]] if opt('so',0)==1 else [[0,0,0,0],[4,4,4,4],[8,5,6,7],[12,9,10,11]]
    res=[None]*16
    for b in range(4): res[TT[b][c]]=4*b+c
    rest=sorted([(TT[b][k],(k-c)&3,4*b+k) for b in range(4) for k in range(4) if k!=c])
    for i in range(16):
        if res[i] is None:
            t,_,sl=rest.pop(0); assert t<i; res[i]=sl
    return res, TT[1][c]
ARR = opt('arr',8)
QX = opt('qx',4)
LNP = 3
DPPM = "row_mask:0xf bank_mask:0xf"
LOG2E = 0x3fb8aa3b
SPIN = 200000
SX, SW, SWS, SA, SB, SC = 40, 44, 48, 52, 56, 60
VST = 255
LNX = 192

def srd(a, d, base, size):
    a(f"s_mov_b32 s{d}, s{base}\ns_mov_b32 s{d+1}, s{base+1}\ns_mov_b32 s{d+2}, {size}\ns_mov_b32 s{d+3}, 0x00020000")
LEAK = opt('leak',-1)
def stamp(a, i):
    if i==LEAK: a("s_memrealtime s[94:95]")
    if STAMPS and (i==32 or not LITE): a(f"s_memrealtime s[100:101]\ns_waitcnt lgkmcnt(0)\nv_writelane_b32 v{VST}, s100, {i}")
def stamp2(a, i):
    if i==LEAK: a("s_memrealtime s[94:95]")
    if STAMPS and not LITE: a(f"s_memrealtime s[100:101]\ns_memtime s[98:99]\ns_waitcnt lgkmcnt(0)\nv_writelane_b32 v{VST}, s100, {i}\nv_writelane_b32 v{VST-1}, s98, {i}")
def dump(a):
    if STAMPS: a(f"s_lshl_b32 s3, s2, 3\ns_add_u32 s3, s3, s39\ns_lshl_b32 s3, s3, 9\ns_add_u32 s3, s3, {WS_DBG}\nv_lshlrev_b32 v2, 3, v1\nbuffer_store_dwordx2 v[{VST-1}:{VST}], v2, s[{SWS}:{SWS+3}], s3 offen")
def rne(a, dst, src):
    a(f"v_cvt_pk_bf16_f32 v{dst}, v{src}, v{src}\nv_lshlrev_b32 v{dst}, 16, v{dst}")
def R(b, n): return f"v[{b}:{b+n-1}]"
def unpack(a, dst, src):
    a(f"v_lshlrev_b32 v{dst}, 16, v{src}\nv_and_b32 v{dst+1}, 0xffff0000, v{src}")
def mfma(a, d, A, B, c=None):
    a(f"v_mfma_f32_16x16x32_bf16 {R(d,4)}, {R(A,4)}, {R(B,4)}, {'0' if c is None else R(c,4)}")

class CAsm(Asm):
    cap=None
    def __call__(self, text):
        if self.cap is not None: self.cap += [t for t in text.strip().split('\n') if t.strip()]
        else: super().__call__(text)
    def capture(self, f):
        self.cap=[]; f(); r=self.cap; self.cap=None; return r

class VM:
    def __init__(self, a, nt=1): self.a=a; self.nt=nt; self.q=[[] for _ in range(nt)]; self.only=None; self.nl=0
    def issue(self, tag, n=1):
        for c in range(self.nt):
            if self.only is None or c in self.only: self.q[c] += [tag]*n
    def wait(self, tag):
        need={}
        for c in range(self.nt):
            q=self.q[c]
            if tag in q and (self.only is None or c in self.only):
                idx=max(i for i,t in enumerate(q) if t==tag); need[c]=len(q)-1-idx; self.q[c]=q[idx+1:]
        if not need: return
        allc=[c for c in range(self.nt) if self.only is None or c in self.only]
        base=max(need.values()) if len(need)==len(allc) else None
        if base is not None: self.a(f"s_waitcnt vmcnt({min(base,63)})")
        for c,n in need.items():
            if n!=base:
                self.nl+=1
                self.a(f"s_cmp_lg_u32 s85, {c}\ns_cbranch_scc1 L_vw{self.nl}\ns_waitcnt vmcnt({min(n,63)})\nL_vw{self.nl}:")
    def drain(self): self.a("s_waitcnt vmcnt(0)"); self.q=[[] for _ in range(self.nt)]
    def cond(self, classes, f):
        classes=set(classes)
        if not classes: return
        if len(classes)==self.nt: f(); return
        self.nl+=1; l=f"L_vc{self.nl}"
        if len(classes)==1: self.a(f"s_cmp_lg_u32 s85, {list(classes)[0]}\ns_cbranch_scc1 {l}")
        else:
            for c in set(range(self.nt))-classes: self.a(f"s_cmp_eq_u32 s85, {c}\ns_cbranch_scc1 {l}")
        self.only=classes; f(); self.only=None
        self.a(f"{l}:")

def maxu(a, dst, regs):
    regs=list(regs)
    if len(regs)==1: a(f"v_mov_b32 v{dst}, v{regs[0]}"); return
    if len(regs)==2: a(f"v_max_u32 v{dst}, v{regs[0]}, v{regs[1]}"); return
    a(f"v_max3_u32 v{dst}, v{regs[0]}, v{regs[1]}, v{regs[2]}"); regs=regs[3:]
    while len(regs)>=2: a(f"v_max3_u32 v{dst}, v{dst}, v{regs[0]}, v{regs[1]}"); regs=regs[2:]
    if regs: a(f"v_max_u32 v{dst}, v{dst}, v{regs[0]}")

def checked(a, lbl, regs, reload, t=2, sleep=1):
    a(f"s_mov_b32 s29, 0\n{lbl}:")
    maxu(a, t, regs)
    a(f"v_cmp_eq_u32 vcc, -1, v{t}\ns_cbranch_vccz {lbl}k\ns_add_u32 s29, s29, 1\ns_cmp_ge_u32 s29, {SPIN}\ns_cbranch_scc1 {lbl}k")
    if sleep: a(f"s_sleep {sleep}")
    reload()
    a(f"s_waitcnt vmcnt(0)\ns_branch {lbl}\n{lbl}k:")
    if STAMPS: a(f"v_writelane_b32 v{VST-1}, s29, {50+int(lbl[3:])}")

def red8(a, e):
    for i in range(4): a(f"v_permlane32_swap_b32 v{e+i}, v{e+4+i}")
    for i in range(4): a(f"v_add_f32 v{e+i}, v{e+i}, v{e+4+i}")
    for i in range(2): a(f"v_permlane16_swap_b32 v{e+i}, v{e+2+i}")
    for i in range(2): a(f"v_add_f32 v{e+i}, v{e+i}, v{e+2+i}")
    for i in range(2): a(f"v_add_f32 v{e+i}, v{e+i}, v{e+i} row_ror:8 {DPPM}")

def silu_prep(a, PG, PX, vm_, vr, T):
    assert vr%2==0 and T%2==0
    a(f"v_mul_f32 v{T}, v{vm_}, v{vr}\nv_mov_b32 v{T+2}, 0xbfb8aa3b")
    E=T+4
    for d in range(8): unpack(a, PG+2*d, PX+d)
    for i in range(0,16,2): a(f"v_pk_fma_f32 {R(PG+i,2)}, {R(PG+i,2)}, {R(vr,2)}, {R(T,2)} op_sel_hi:[1,0,0] neg_lo:[0,0,1] neg_hi:[0,0,1]")
    for i in range(0,16,2): a(f"v_pk_mul_f32 {R(E+i,2)}, {R(PG+i,2)}, {R(T+2,2)} op_sel_hi:[1,0]")
    for i in range(16): a(f"v_exp_f32 v{E+i}, v{E+i}")
    for i in range(0,16,2): a(f"v_pk_add_f32 {R(E+i,2)}, {R(E+i,2)}, 1.0 op_sel_hi:[1,0]")
    for i in range(16): a(f"v_rcp_f32 v{E+i}, v{E+i}")
    for i in range(0,16,2): a(f"v_pk_mul_f32 {R(PG+i,2)}, {R(PG+i,2)}, {R(E+i,2)}")

PG, PX = 224, 240
def xaddr(a, dst, t0=2, t1=3):
    a(f"s_lshl_b32 s3, s38, 1\ns_lshr_b32 s28, s39, 2\ns_add_u32 s3, s3, s28\ns_lshl_b32 s69, s3, 4")
    a(f"v_and_b32 v{t0}, 15, v1\nv_add_u32 v{dst}, s69, v{t0}\nv_lshlrev_b32 v{dst}, 7, v{dst}\nv_lshrrev_b32 v{t0}, 1, v{t0}\nv_lshrrev_b32 v{t1}, 5, v1\nv_xor_b32 v{t0}, v{t0}, v{t1}\nv_lshl_add_u32 v{dst}, v{t0}, 4, v{dst}\nv_bfe_u32 v{t1}, v1, 4, 1\nv_lshl_add_u32 v{dst}, v{t1}, 3, v{dst}")
def stat3(a, vm_, vr):
    a(f"v_and_b32 v2, 15, v1\nv_add_u32 v2, s69, v2\nv_lshlrev_b32 v2, 2, v2\nv_add_u32 v2, {L_M}, v2\nds_read_b32 v{vm_}, v2\nds_read_b32 v{vr}, v2 offset:1024")

def wait7(a, l):
    a(f"v_and_b32 v3, 3, v1\nv_lshlrev_b32 v3, 2, v3\nv_add_u32 v3, {L_FLG}, v3\n{l}:\nds_read_b32 v2, v3\ns_waitcnt lgkmcnt(0)\nv_cmp_ne_u32 vcc, 7, v2\ns_cbranch_vccz {l}k\ns_sleep 1\ns_branch {l}\n{l}k:")
def key_rd(a, v):
    a(f"v_mov_b32 v2, {L_KEY}\nds_read_b32 v{v}, v2")
def key_fin(a, v):
    a(f"s_waitcnt lgkmcnt(0)\nv_readfirstlane_b32 s70, v{v}\ns_and_b32 s68, s70, 0x7ff\ns_sub_u32 s68, 2047, s68")

def h_waves(a):
    vm = VM(a, NT)
    vA=8; vW=12; vCS=18; vF=21; vD=22; vXo=23
    CSA=24; CSL=32; XF=80
    FW=128; DW=192; FA=120; SENT=248; vL16=252; vP64=253
    a("L_H:")
    a("v_and_b32 v4, 7, v1\ns_lshl_b32 s33, s37, 7\ns_lshl_b32 s87, s85, 7\ns_lshl_b32 s66, s80, 7")
    a("s_lshl_b32 s3, s36, 7\ns_lshl_b32 s28, s38, 5\ns_add_u32 s3, s3, s28")
    a("v_lshrrev_b32 v7, 3, v1\nv_add_u32 v3, s3, v7\nv_lshlrev_b32 v3, 11, v3")
    a("v_lshrrev_b32 v5, 4, v1\nv_xor_b32 v6, v4, v5\nv_xor_b32 v5, 4, v6")
    a("v_lshl_add_u32 v6, v6, 4, v3\nv_lshl_add_u32 v5, v5, 4, v3")
    for j in range(4): a(f"v_add_u32 v{vA+j}, {j*16384 - j*1024}, v{5 if j&1 else 6}")
    a("s_lshr_b32 s32, s36, 1\ns_and_b32 s32, s32, 2\ns_xor_b32 s32, s32, s38" if 'nowx' not in EXP else "s_mov_b32 s32, s38")
    a("s_lshl_b32 s3, s32, 4\nv_add_u32 v7, s3, v7\nv_mul_u32_u24 v7, 6144, v7")
    a("v_bfe_u32 v6, v1, 4, 1\nv_lshlrev_b32 v6, 1, v6\nv_xor_b32 v5, v4, v6\nv_add_u32 v7, s33, v7\nv_xor_b32 v6, 4, v5\nv_lshl_add_u32 v6, v6, 4, v7\nv_lshl_add_u32 v7, v5, 4, v7")
    for e in range(6): a(f"v_add_u32 v{vW+e}, {(e>>1)*2048 + (e&1)*(8*6144-1024)}, v{6 if e&1 else 7}")
    for e in range(2): a(f"v_xor_b32 v{vW+e}, {QX*128}, v{vW+e}")
    a(f"s_lshl_b32 s30, s38, 12\ns_lshl_b32 s31, s32, 11\ns_add_u32 s31, s31, 16384")
    a("s_waitcnt lgkmcnt(0)")
    srd(a, SW, 6, 1024*3072*2); srd(a, SX, 4, 2048*2048)
    def tiles(s, wfirst=False, part=None):
        sl=(s%3)*SLOT
        def A_():
            a(f"s_add_u32 m0, s30, {sl}")
            for j in range(4): a(f"buffer_load_dwordx4 v{vA+j}, s[{SX}:{SX+3}], s64 offen offset:{j*1024}{TNT if s%4==0 else ''} lds")
        def W_():
            for e in range(6):
                if e%2==0: a(f"s_add_u32 m0, s31, {sl+(e>>1)*8192}")
                a(f"buffer_load_dwordx4 v{vW+e}, s[{SW}:{SW+3}], s65 offen offset:{(e&1)*1024}{TNT if s%4==0 else ''} lds")
        if STAG and s>0: a(f"s_bfe_u32 s64, s{94+(s>>3)}, {(4<<16)|(4*(s&7))}\ns_lshl_b32 s64, s64, 7\ns_xor_b32 s64, s64, s66\ns_mul_i32 s65, s64, 3072")
        elif 'b2' in EXP and s<4: a(f"s_add_u32 s64, s87, {(s&1)*128}\ns_and_b32 s64, s64, 255\ns_or_b32 s64, s64, {(s>>1)*256}\ns_xor_b32 s64, s64, s66\ns_mul_i32 s65, s64, 3072")
        else: a(f"s_add_u32 s64, s87, {(s&3)*128}\ns_and_b32 s64, s64, 511\ns_or_b32 s64, s64, {(s>>2)*512}\ns_xor_b32 s64, s64, s66\ns_mul_i32 s65, s64, 3072")
        if part=='W': W_(); vm.issue(('t',s),6); return
        if part=='A': A_(); vm.issue(('t',s),4); return
        if wfirst: W_(); A_()
        else: A_(); W_()
        vm.issue(('t',s),10)
    def fill_addr():
        a(f"s_lshr_b32 s3, s38, 1\ns_lshl_b32 s28, s37, 1\ns_add_u32 s28, s28, s3\ns_and_b32 s29, s38, 1")
        a(f"s_lshl_b32 s3, s28, 4\ns_add_u32 s3, s3, s36\ns_mul_i32 s3, s3, {KVS}\ns_mul_i32 s78, s29, {KVS//2}\ns_add_u32 s78, s78, s3\ns_add_u32 s78, s78, {WS_KVP}")
        a(f"s_lshl_b32 s3, s36, 1\ns_add_u32 s29, s29, s3\ns_xor_b32 s28, s28, {2*QX}\ns_lshl_b32 s3, s29, 7\ns_add_u32 s3, s3, s28\ns_lshl_b32 s3, s3, 10\ns_add_u32 s79, s3, {WS_O}")
    def fillk(i0_,i1_):
        if 'nofill' in EXP: return
        for i in range(i0_,i1_):
            if i<2: a(f"buffer_store_dwordx4 {R(SENT,4)}, v{vL16}, s[{SWS}:{SWS+3}], s78 offen offset:{i*1024} sc1")
            else: a(f"s_mov_b64 exec, 15\nbuffer_store_dwordx4 {R(SENT,4)}, v{vL16}, s[{SWS}:{SWS+3}], s78 offen offset:2048 sc1\ns_mov_b64 exec, -1")
            vm.issue('own',1)
    def fillo(i):
        if 'nofill' in EXP: return
        a(f"s_add_u32 s3, s79, {i*32768}\nbuffer_store_dwordx4 {R(SENT,4)}, v{vL16}, s[{SWS}:{SWS+3}], s3 offen sc1")
        vm.issue('own',1)
    def xrows(h):
        a(f"s_lshl_b32 s3, s36, 7\ns_lshl_b32 s28, s37, 3\ns_add_u32 s3, s3, s28\ns_lshl_b32 s3, s3, 11\ns_add_u32 s3, s3, s30\ns_add_u32 m0, s30, {L_STG}")
        for i in (h,h+2): a(f"buffer_load_dwordx4 v{vL16}, s[{SX}:{SX+3}], s3 offen offset:{1024*i}{' nt' if 'xnt' in EXP else ''} lds")
        vm.issue('xr',2)
        if h==0: return
        srd(a, SC, 14, 2048)
        a(f"s_lshl_b32 s3, s38, 9\ns_add_u32 m0, s3, {L_WR}\ns_mov_b32 exec_hi, 0\nbuffer_load_dwordx4 v{vL16}, s[{SC}:{SC+3}], s3 offen lds\ns_mov_b64 exec, -1")
        vm.issue('xr',1)
    LN0=True
    if LN0: a(f"v_lshlrev_b32 v{vL16}, 4, v1")
    PRO=os.environ.get('PRO','e,W0,A0,s,t1' if 'ln4' in EXP else 'e,x,W0,s,A0,l,t1').split(',')
    def pro(L):
      for p in L:
        if p=='e':
            if STAMPS: a(f"v_mov_b32 v{VST-1}, 0\nv_writelane_b32 v{VST}, s96, 0")
            srd(a, SWS, 26, WS_SIZE)
            a(f"v_mov_b32 v19, {WS_EPO}\nbuffer_load_dword v19, v19, s[{SWS}:{SWS+3}], 0 offen sc1"); vm.issue('epo',1)
            stamp(a,1)
        elif p=='x': xrows(0); xrows(1)
        elif p=='l': vm.wait('xr'); a('s_barrier')
        elif p[0] in 'WA': tiles(int(p[1]), part=p[0])
        elif p[0]=='t' and len(p)==2: tiles(int(p[1]))
        else: place1(p)
    pro(PRO[:PRO.index('s')])
    for i in range(4): a(f"v_mov_b32 v{SENT+i}, -1")
    a(f"v_lshlrev_b32 v{vL16}, 4, v1\ns_and_b32 s85, s85, {NT-1}")
    a(f"s_lshl_b32 s3, s37, 4\ns_add_u32 s3, s3, s36\ns_lshl_b32 s67, s3, 10\ns_add_u32 s67, s67, {WS_CSP}\ns_lshl_b32 s3, s38, 8\ns_add_u32 s67, s67, s3")
    for i in range(8): a(f"v_mov_b32 v{CSA+i}, 0")
    a(f"v_lshlrev_b32 v{vP64}, 2, v1")
    KY=64; ST=72; CG=80; PW=224
    a("s_cmp_gt_u32 s37, 3\ns_subb_u32 s77, s37, 0\ns_cmp_gt_u32 s37, 11\ns_subb_u32 s77, s77, 0\ns_lshl_b32 s77, s77, 4\ns_add_u32 s77, s77, s36\ns_and_b32 s3, s37, 7\ns_cmp_eq_u32 s3, 3\ns_cselect_b32 s77, 224, s77")
    a(f"s_bitcmp1_b32 s38, 0\ns_cselect_b32 s{SA}, s18, s16\ns_cselect_b32 s{SA+1}, s19, s17\ns_cmp_lt_u32 s77, 224\ns_cselect_b32 s{SA+2}, {1024*3584*2}, 0\ns_mov_b32 s{SA+3}, 0x00020000")
    srd(a, SB, 20, 3584*1024*2)
    a("s_and_b32 s3, s77, 3\ns_lshl_b32 s3, s3, 8\ns_lshr_b32 s28, s38, 1\ns_lshl_b32 s28, s28, 7\ns_add_u32 s3, s3, s28\nv_lshrrev_b32 v5, 3, v1\nv_lshl_add_u32 v6, v5, 4, s3")
    a(f"v_mul_u32_u24 v6, 7168, v6\nv_lshl_add_u32 v6, v4, 4, v6\ns_lshr_b32 s3, s77, 2\ns_lshl_b32 s3, s3, 7\nv_add_u32 v{vF}, s3, v6")
    a("s_lshr_b32 s3, s2, 4\ns_mul_i32 s3, s3, 224\ns_mul_i32 s28, s38, 56\ns_add_u32 s71, s3, s28")
    a(f"v_lshlrev_b32 v6, 14, v5\nv_lshl_add_u32 v6, v4, 4, v6\ns_and_b32 s3, s2, 15\ns_lshl_b32 s3, s3, 7\nv_add_u32 v{vD}, s3, v6")

    def cs_addr():
        a(f"v_bfe_u32 v5, v1, 4, 1\nv_lshlrev_b32 v5, 5, v5\nv_xor_b32 v5, v5, v{vL16}\ns_min_u32 s3, s38, 2\ns_lshl_b32 s3, s3, 13\ns_and_b32 s28, s36, 4\ns_lshl_b32 s28, s28, 10\ns_add_u32 s3, s3, s28\ns_add_u32 s3, s3, 16384\nv_add_u32 v{vCS}, s3, v5")
    def cs_rd(s_):
        a(f"v_add_u32 v2, {(s_%3)*SLOT}, v{vCS}\nv_xor_b32 v3, 64, v2")
        for i in range(4): a(f"ds_read_b128 {R(CSL+16*(s_>>2)+4*i,4)}, v{2+(i&1)} offset:{1024*i}")
    def colsum(q):
        for j in range(2):
            for d in range(4):
                t=2+2*(d&1)
                unpack(a, t, CSL+8*q+4*j+d)
                a(f"v_add_f32 v{CSA+2*d}, v{CSA+2*d}, v{t}\nv_add_f32 v{CSA+2*d+1}, v{CSA+2*d+1}, v{t+1}")
    def cs_red():
        red8(a, CSA)
    def cs_pub():
        a(f"v_and_b32 v2, 8, v1\nv_cmp_eq_u32 vcc, 0, v2\nv_cndmask_b32 v{CSA}, v{CSA+1}, v{CSA}, vcc\ns_cmp_eq_u32 s38, 3\ns_cselect_b64 exec, -1, 0\nv_mov_b32 v{CSA}, s70\ns_mov_b64 exec, -1")
        a(f"buffer_store_dword v{CSA}, v{vP64}, s[{SWS}:{SWS+3}], s67 offen sc1")
        vm.issue('pub',1)
    RDY=118
    def nonce():
        vm.wait('epo')
        a("v_readfirstlane_b32 s86, v19\ns_mul_i32 s86, s86, 1664525\ns_add_u32 s86, s86, 1013904223")
    def ready_st():
        a(f"s_lshl_b32 s3, s37, 4\ns_add_u32 s3, s3, s36\ns_lshl_b32 s3, s3, 7\ns_add_u32 s3, s3, {WS_RDY}\ns_cmp_lg_u32 s38, 0\ns_cselect_b32 s3, {WS_SIZE}, s3\nv_mov_b32 v2, s86\ns_mov_b64 exec, 1\nbuffer_store_dword v2, v{vL16}, s[{SWS}:{SWS+3}], s3 offen sc1\ns_mov_b64 exec, -1")
        vm.issue('rs',1)
    def rdy_addr():
        a(f"v_and_b32 v2, 15, v1\nv_bfe_u32 v3, v1, 4, 1\nv_mul_u32_u24 v3, {QX}, v3\nv_xor_b32 v3, s37, v3\nv_lshl_add_u32 v3, v3, 4, v2\nv_lshl_add_u32 v2, v2, 4, s34\nv_cmp_gt_u32 vcc, 32, v1\nv_cndmask_b32 v2, v2, v3, vcc\nv_lshlrev_b32 v113, 7, v2")
    def ready_poll(l, lo, hi):
        a(f"s_mov_b32 s3, {WS_RDY}\ns_mov_b32 s29, 0\ns_mov_b32 exec_lo, {lo}\ns_mov_b32 exec_hi, {hi}\n{l}:\nbuffer_load_dword v{RDY}, v113, s[{SWS}:{SWS+3}], s3 offen sc1\ns_waitcnt vmcnt(0)")
        a(f"v_cmp_ne_u32 vcc, s86, v{RDY}\ns_cbranch_vccz {l}k\ns_mov_b64 exec, vcc\ns_add_u32 s29, s29, 1\ns_cmp_lt_u32 s29, {SPIN}\ns_cbranch_scc1 {l}\n{l}k:\ns_mov_b64 exec, -1")
        if STAMPS and lo: a(f"v_writelane_b32 v{VST-1}, s29, 50")
    def tagged(l, regs, reload, after=None):
        a(f"s_mov_b32 s29, 0\n{l}:\nv_cmp_ne_u32 vcc, s86, v{regs[0]}")
        for r in regs[1:]: a(f"v_cmp_ne_u32 s[92:93], s86, v{r}\ns_or_b64 vcc, vcc, s[92:93]")
        a(f"s_cbranch_vccz {l}k\ns_add_u32 s29, s29, 1\ns_cmp_ge_u32 s29, {SPIN}\ns_cbranch_scc1 {l}k\ns_sleep 2")
        reload()
        a("s_waitcnt vmcnt(0)")
        if after: after()
        a(f"s_branch {l}\n{l}k:")
        if STAMPS: a(f"v_writelane_b32 v{VST-1}, s29, {51 if l=='L_k1' else 50}")
    def epoch_st():
        a(f"s_or_b32 s3, s2, s38\ns_cmp_lg_u32 s3, 0\ns_cselect_b32 s3, {WS_SIZE}, {WS_EPO}" if 0 else f"s_or_b32 s3, s2, s38\ns_mov_b32 s28, {WS_EPO}\ns_cmp_lg_u32 s3, 0\ns_cselect_b32 s3, {WS_SIZE}, s28")
        a(f"v_mov_b32 v2, s86\ns_mov_b64 exec, 1\nbuffer_store_dword v2, v{vL16}, s[{SWS}:{SWS+3}], s3 offen sc1\ns_mov_b64 exec, -1")
        vm.issue('es',1)
    def ld_f1():
        a(f"s_lshl_b32 s3, s36, 10\nbuffer_load_dwordx4 {R(ST,4)}, v{vL16}, s[{SWS}:{SWS+3}], s3 offen sc1\ns_lshl_b32 s3, s37, 6\nbuffer_load_dword v{ST+4}, v{PW+8}, s[{SWS}:{SWS+3}], s3 offen offset:12 sc1")
    def fetch1(): ld_f1(); vm.issue('f1',2)
    def val1():
        vm.wait('f1'); tagged("L_k1", [ST+3,ST+4], ld_f1)
    def wmax(v, lanes=(0,16,32,48)):
        a(f"v_readlane_b32 s70, v{v}, {lanes[0]}\nv_readlane_b32 s3, v{v}, {lanes[1]}\nv_readlane_b32 s28, v{v}, {lanes[2]}\nv_readlane_b32 s29, v{v}, {lanes[3]}\ns_max_u32 s70, s70, s3\ns_max_u32 s28, s28, s29\ns_max_u32 s70, s70, s28")
    def proc1():
        for m in ("quad_perm:[1,0,3,2]", "quad_perm:[2,3,0,1]", "row_half_mirror", "row_mirror"):
            a(f"v_max_u32 v{ST+2}, v{ST+2}, v{ST+2} {m} {DPPM}")
        for e in range(2): a(f"v_and_b32 v{2+e}, 0xffff0000, v{ST+e}\nv_lshlrev_b32 v{PW+e}, 16, v{ST+e}")
        for e in range(2): a(f"v_rcp_f32 v{PW+2+e}, v{2+e}")
        a(f"v_lshrrev_b32 v2, 16, v2\nv_or_b32 v{PW+12}, v2, v3")
        for e in range(2): a(f"v_mul_f32 v{PW+4+e}, {LOG2E}, v{PW+2+e}")
        wmax(ST+2)
    def ld_cs(ks=range(4)):
        a(f"s_lshl_b32 s3, s37, 14\ns_add_u32 s3, s3, {WS_CSP}")
        for k in ks: a(f"s_add_u32 s28, s3, {4096*k}\nbuffer_load_dwordx4 {R(CG+4*k,4)}, v{PW+11}, s[{SWS}:{SWS+3}], s28 offen sc1")
    def fetch2(h):
        if h<2: ld_cs((2*h,2*h+1)); vm.issue('f2',2)
        else: ld_cs((h-2,)); vm.issue('f2',1)
    def addr1():
        a(f"v_lshrrev_b32 v2, 2, v1\nv_and_b32 v3, 3, v1\nv_lshlrev_b32 v3, 4, v3\nv_lshl_add_u32 v{PW+8}, v2, 10, v3\nv_lshlrev_b32 v2, 3, v1\nv_add_u32 v{PW+6}, {L_M}, v2")
        a(f"v_and_b32 v4, 49, v1\nv_bfe_u32 v7, v1, 1, 2\nv_lshl_add_u32 v4, v7, 2, v4\nv_bfe_u32 v7, v1, 3, 1\nv_lshl_add_u32 v4, v7, 1, v4\nv_lshlrev_b32 v4, 2, v4\nv_add_u32 v{PW+7}, {L_SQ}, v4")
    def addr2():
        a(f"s_mul_i32 s3, s38, 48\nv_and_b32 v2, 15, v1\nv_lshrrev_b32 v3, 4, v1\nv_cmp_gt_u32 vcc, 12, v2\nv_lshl_add_u32 v4, v2, 2, s3\nv_add_u32 v2, v4, v3\nv_mov_b32 v5, 192\nv_cndmask_b32 v4, v5, v4, vcc\nv_lshlrev_b32 v4, 2, v4\nv_lshl_add_u32 v{PW+11}, v3, 10, v4")
        a(f"v_and_b32 v5, 7, v2\nv_bfe_u32 v6, v2, 3, 3\nv_lshl_add_u32 v5, v5, 3, v6\nv_and_b32 v2, 0xc0, v2\nv_add_u32 v2, v2, v5\nv_lshlrev_b32 v2, 2, v2\nv_add_u32 v2, {L_CS}, v2\nv_mov_b32 v5, {L_KEY}\nv_cndmask_b32 v{PW+9}, v5, v2, vcc")
    def all_w():
        a(f"ds_write_b32 v{PW+9}, v{CG}\ns_lshl_b32 s3, s38, 4\ns_lshl_b64 exec, 0xffff, s3")
        a(f"ds_write_b64 v{PW+6}, {R(PW,2)}\nds_write_b64 v{PW+6}, {R(PW+2,2)} offset:1024\nds_write_b64 v{PW+6}, {R(PW+4,2)} offset:2048\nds_write_b32 v{PW+7}, v{PW+12}\ns_mov_b64 exec, -1")
    XR=64; IS=116; XSF=96
    def idx_xs():
        a("s_and_b32 s68, s70, 0x7ff\ns_sub_u32 s68, 2047, s68")
        a(f"s_lshl_b32 s3, s68, 11\ns_and_b32 s28, s77, 3\ns_lshl_b32 s28, s28, 9\ns_add_u32 s3, s3, s28\ns_lshr_b32 s28, s38, 1\ns_lshl_b32 s28, s28, 8\ns_add_u32 s3, s3, s28")
        a(f"v_lshrrev_b32 v3, 3, v1\nv_lshlrev_b32 v3, 5, v3\nbuffer_load_dwordx4 {R(XR,4)}, v3, s[{SX}:{SX+3}], s3 offen\nbuffer_load_dwordx4 {R(XR+4,4)}, v3, s[{SX}:{SX+3}], s3 offen offset:16")
        a(f"s_lshr_b32 s3, s68, 1\ns_lshl_b32 s3, s3, 4\ns_and_b32 s28, s68, 1\ns_lshl_b32 s28, s28, 2\ns_add_u32 s3, s3, s28\nv_mov_b32 v3, 0\nbuffer_load_dword v{IS}, v3, s[{SWS}:{SWS+3}], s3 offen sc1")
        vm.issue('xs',3)
    def val2():
        vm.wait('f2')
        checked(a, "L_k2", range(CG,CG+16), ld_cs)
    def proc2():
        maxu(a, 2, [CG,CG+4,CG+8,CG+12])
        for k in (2,1):
            for i in range(4*k): a(f"v_add_f32 v{CG+i}, v{CG+i}, v{CG+4*k+i}")
        wmax(2, (12,28,44,60))
        for i in range(2): a(f"v_permlane32_swap_b32 v{CG+i}, v{CG+2+i}")
        for i in range(2): a(f"v_add_f32 v{CG+i}, v{CG+i}, v{CG+2+i}")
        a(f"v_permlane16_swap_b32 v{CG}, v{CG+1}\nv_add_f32 v{CG}, v{CG}, v{CG+1}")
    def proc2b():
        a(f"s_mov_b32 exec_lo, 0xf000f000\ns_mov_b32 exec_hi, 0xf000f000\nv_mov_b32 v{CG}, s70\ns_mov_b64 exec, -1")
    def xs_norm(part):
        if part==0:
            vm.wait('xs')
            a(f"v_and_b32 v5, 0xffff0000, v{IS}\nv_lshlrev_b32 v{IS}, 16, v{IS}\nv_rcp_f32 v{IS+1}, v5")
            for d in range(8): unpack(a, XSF+2*d, XR+d)
            a(f"v_mul_f32 v119, v{IS}, v{IS+1}")
        else:
            for i in range(16): a(f"v_fma_f32 v{XSF+i}, v{XSF+i}, v{IS+1}, -v119")
            for i in range(8): a(f"v_mov_b32 v{FA+i}, 0")
    def ffn_ld(i0,i1):
        if 'noffn' in EXP: return
        for i in range(i0,i1):
            if i<16: a(f"s_mov_b32 s3, {i*7168}\nbuffer_load_dwordx4 {R(FW+4*i,4)}, v{vF}, s[{SA}:{SA+3}], s3 offen{FNT}")
            else: a(f"s_lshr_b32 s3, s71, 3\ns_add_u32 s3, s3, {i-16}\ns_and_b32 s28, s3, 7\ns_lshr_b32 s3, s3, 3\ns_lshl_b32 s3, s3, 6\ns_add_u32 s3, s3, s28\ns_lshl_b32 s3, s3, 11\nbuffer_load_dwordx4 {R(FW+4*i,4)}, v{vD}, s[{SB}:{SB+3}], s3 offen{FNT}")
            vm.issue(('g',i),1)
    def ffn_mac(i0,i1,pk=False):
        if i1<=i0: return
        vm.wait(('g',i1-1))
        for i in range(i0,i1):
            for d in range(4):
                t=2+2*(d&1)
                unpack(a, t, FW+4*i+d)
                if pk:
                    if i%2 and d==0: a(f"v_mov_b32 v{XSF+i-1}, v{XSF+i}")
                    a(f"v_pk_fma_f32 {R(FA+2*d,2)}, {R(t,2)}, {R(XSF+(i&~1),2)}, {R(FA+2*d,2)} op_sel_hi:[1,0,1]")
                else:
                    a(f"v_fmac_f32 v{FA+2*d}, v{t}, v{XSF+i}\nv_fmac_f32 v{FA+2*d+1}, v{t+1}, v{XSF+i}")
    def phi_ld():
        srd(a, SC, 8, 65536)
        a(f"s_lshl_b32 s3, s38, 10\ns_add_u32 m0, s3, {L_PHI}\ns_lshl_b32 s28, s37, 12\ns_add_u32 s3, s3, s28\nbuffer_load_dwordx4 v{vL16}, s[{SC}:{SC+3}], s3 offen lds")
        a(f"s_add_u32 m0, m0, {L_PHQ-L_PHI}\ns_xor_b32 s3, s3, {QX*4096}\nbuffer_load_dwordx4 v{vL16}, s[{SC}:{SC+3}], s3 offen lds")
        vm.issue('phi',2)
    def wo_touch():
        a(f"s_lshl_b32 s3, s2, 13\ns_lshl_b32 s28, s38, 11\ns_add_u32 s3, s3, s28\nv_lshlrev_b32 v3, 7, v1\ns_mov_b64 exec, 0xffff\nbuffer_load_dword v20, v3, s[88:91], s3 offen\ns_mov_b64 exec, -1")
        vm.issue('wt',1)
    def x3_ld():
        for ct in range(4): a(f"v_xor_b32 v{4+ct}, {32*ct}, v{vXo}\nds_read_b64 {R(PX+2*ct,2)}, v{4+ct}")
    vWo=220
    def wo_setup():
        a("v_lshrrev_b32 v5, 3, v1\nv_lshlrev_b32 v6, 11, v5\nv_bfe_u32 v5, v1, 4, 2\nv_lshlrev_b32 v5, 1, v5\nv_and_b32 v7, 7, v1\nv_xor_b32 v5, v5, v7\nv_lshl_add_u32 v6, v5, 4, v6\ns_lshl_b32 s3, s35, 7\nv_add_u32 v6, s3, v6")
        for e in range(4): a(f"v_add_u32 v{vWo+e}, {e*15360}, v6")
        a("s_lshl_b32 s72, s38, 12\ns_lshl_b32 s73, s38, 16")
    def wo(c):
        a(f"s_add_u32 m0, s72, {c*16384}\ns_add_u32 s3, s73, {c*262144}")
        for e in range(4): a(f"buffer_load_dwordx4 v{vWo+e}, s[88:91], s3 offen offset:{e*1024} lds")
        vm.issue(('wo',c),4)
    T='T'
    M15=opt('m15',4)
    HL=48; HZ=32
    def post_setup():
        a(f"s_lshl_b32 s3, s36, 2\ns_add_u32 s3, s3, s38\ns_lshr_b32 s28, s3, 5\ns_and_b32 s3, s3, 31\ns_lshl_b32 s74, s3, 7\ns_lshl_b32 s3, s37, 1\ns_add_u32 s75, s3, s28")
        a(f"v_lshrrev_b32 v5, 3, v1\nv_mul_u32_u24 v5, {KVS}, v5\nv_and_b32 v7, 7, v1\nv_lshl_add_u32 v112, v7, 4, v5")
        a(f"s_mul_i32 s76, s75, {16*KVS}\ns_add_u32 s76, s76, s74\ns_add_u32 s76, s76, {WS_KVP}\ns_mul_i32 s3, s75, {KVS}\ns_add_u32 s3, s3, s74\ns_add_u32 s74, s3, {WS_KVR}")
        a(f"s_lshl_b32 s75, s37, 1\ns_add_u32 s75, s75, s36\ns_mul_i32 s81, s75, {16*KVS}\ns_add_u32 s81, s81, {WS_KVP+4096}\ns_mul_i32 s82, s75, {KVS}\ns_add_u32 s82, s82, {WS_KVR+4096}")
        a(f"s_lshr_b32 s3, s36, 1\ns_or_b32 s83, s3, s38")
        a(f"s_and_b32 s3, s38, 1\ns_lshl_b32 s3, s3, 3\ns_and_b32 s28, s77, 3\ns_lshl_b32 s28, s28, 1\ns_add_u32 s3, s3, s28\ns_lshr_b32 s28, s38, 1\ns_add_u32 s3, s3, s28\ns_mul_i32 s3, s3, 14336\ns_lshr_b32 s28, s77, 2\ns_lshl_b32 s28, s28, 8\ns_add_u32 s3, s3, s28\ns_add_u32 s3, s3, {WS_GU}")
        a(f"s_cmp_lt_u32 s77, 224\ns_cselect_b32 s84, s3, {WS_SIZE}")
    P=lambda pos: (lambda: place(pos))
    def place(pos):
        for w in PLC.get(pos,[]): place1(w)
    def place1(w):
        if True:
            if w[0]=='w': wo(int(w[1]))
            elif w[0]=='k': fillk(int(w[1]),int(w[1])+1)
            elif w[0]=='o': fillo(int(w[1]))
            elif w[0]=='x': xrows(int(w[1]))
            elif w=='a': fetch1()
            elif w[0]=='b': fetch2(int(w[1]))
            elif w=='T':
                srd(a, SC, 22, 2048*2048)
                a(f"s_lshl_b32 s3, s34, 18\ns_mov_b64 exec, 1\nbuffer_load_dword v20, v{vL16}, s[{SC}:{SC+3}], s3 offen nt\ns_mov_b64 exec, -1"); vm.issue('tl',1)
            elif w=='U':
                a(f"s_mov_b32 exec_lo, 1\ns_mov_b32 exec_hi, 0x01000000\ns_lshl_b32 s3, s71, 11\nbuffer_load_dword v20, v{vF}, s[{SA}:{SA+3}], 0 offen nt\nbuffer_load_dword v20, v{vD}, s[{SB}:{SB+3}], s3 offen nt\nbuffer_load_dword v20, v{vWo}, s[88:91], 0 offen nt\ns_mov_b64 exec, -1"); vm.issue('tl',3)
            elif w[0]=='S': stamp(a,int(w[1:]))
            elif w=='D': vm.drain()
            elif w=='r': ready_st()
            elif w[0]=='s': a(f"s_sleep {int(w[1:])}")
            elif w[0]=='v': vm.wait(('wo',int(w[1])))
            elif w=='p': phi_ld()
            elif w=='t': wo_touch()
            elif w[0]=='G': ffn_ld(int(w[1:3]),int(w[3:5]))
            elif w[0]=='g': ffn_ld(8*int(w[1]), min(23,8*int(w[1])+8))
    M14=opt('m14',2)
    def lnbar():
        if LN0: return
        vm.wait('xr'); a("s_barrier")
    sched = {
        0: [lambda: cs_rd(0), T],
        1: [(lambda: colsum(0),)],
        2: [(lambda: colsum(1),)],
        3: [T],
        4: [lambda: cs_rd(4), T],
        5: [(lambda: colsum(2),)],
        6: [val1, (lambda: colsum(3),)],
        7: [proc1, cs_red, cs_pub, T],
        8: [T],
        9: [T],
        10:[T],
        11:[val2, proc2, proc2b, idx_xs, T],
        12:[T, epoch_st],
        13:[(lambda: xs_norm(0), lambda: xs_norm(1))],
        14:[P('j14'), (all_w if 'aw15' not in EXP else lambda: None), lambda: ffn_mac(0,M14), lambda: vm.wait('phi')],
        15:[(all_w if 'aw15' in EXP else lambda: None), x3_ld, P('j15'), lambda: ffn_mac(M14,M15), lambda: vm.wait('own'), lambda: vm.wait('phi')],
    }
    if 'ln4' in EXP:
        sched[opt('lnb',4)-2].append(lambda: vm.wait('xr'))
        if 'late' in EXP:
            sched[6]=[(lambda: colsum(3),)]; sched[7]=[cs_red, T]; sched[8]=[val1, (proc1,), cs_pub]
            sched[11]=[T]; sched[12]=[val2, (proc2,), proc2b, idx_xs]; sched[13]=[T, epoch_st]
            sched[14]=[P('j14'), all_w, lambda: xs_norm(0), lambda: xs_norm(1), lambda: vm.wait('phi')]
            M14=0
        else:
            sched[6]=[(lambda: colsum(3), cs_red)]; sched[7]=[val1, proc1, cs_pub, T]
    if 's2' in EXP:
        sched[7]=[(proc1, cs_red), cs_pub]; sched[11]=[val2, (proc2,), proc2b, idx_xs]
    if not set(EXP)&{'s1','s2','s3','s5','s6'}:
        sched[4]=[lambda: cs_rd(4), val1, proc1, T]; sched[6]=[(lambda: colsum(3),)]; sched[7]=[(cs_red,), cs_pub]
        sched[11]=[val2, (proc2,), proc2b]; sched[12]=[T, idx_xs]; sched[13]=[T, epoch_st]
        sched[14]=[P('j14'), all_w, lambda: xs_norm(0), lambda: xs_norm(1), lambda: vm.wait('phi')]; M14=0
    if 's5' in EXP:
        sched[4]=[lambda: cs_rd(4), val1, proc1, T]; sched[6]=[(lambda: colsum(3),)]; sched[7]=[(cs_red,), cs_pub]
        sched[11]=[T]; sched[12]=[val2, (proc2,), proc2b]; sched[13]=[idx_xs, T, epoch_st]
        sched[14]=[P('j14'), all_w, lambda: xs_norm(0), lambda: xs_norm(1), lambda: vm.wait('phi')]; M14=0
    if 's6' in EXP:
        sched[4]=[lambda: cs_rd(4), T]; sched[5]=[val1, (proc1,)]; sched[6]=[(lambda: colsum(2),)]; sched[7]=[(lambda: colsum(3),)]; sched[8]=[(cs_red,), cs_pub]
        sched[11]=[T]; sched[12]=[val2, (proc2,), proc2b]; sched[13]=[idx_xs, T, epoch_st]
        sched[14]=[P('j14'), all_w, lambda: xs_norm(0), lambda: xs_norm(1), lambda: vm.wait('phi')]; M14=0
    if 's3' in EXP:
        sched[7]=[proc1, T]; sched[8]=[(cs_red,), cs_pub]; sched[11]=[T]; sched[12]=[val2, (proc2,), proc2b, idx_xs]; sched[13]=[T, epoch_st]
        sched[14]=[P('j14'), all_w, lambda: xs_norm(0), lambda: xs_norm(1), lambda: ffn_mac(0,M14)]
    for k in range(14): sched[k].insert(0, P(f"j{k}"))
    if STAG:
        for c in range(4):
            v=sum(x<<(4*i) for i,x in enumerate(korder(c)[0]))
            if c==0: a(f"s_mov_b32 s94, {v&0xffffffff}\ns_mov_b32 s95, {v>>32}")
            else: a(f"s_cmp_eq_u32 s87, {128*c}\ns_cselect_b32 s94, {v&0xffffffff}, s94\ns_cselect_b32 s95, {v>>32}, s95")
        def cs_rd2(s_):
            cl=[c for c in range(4) if korder(c)[1]==s_]
            if not cl: return
            for c in set(range(4))-set(cl): a(f"s_cmp_eq_u32 s87, {128*c}\ns_cbranch_scc1 L_nc{s_}")
            a(f"v_add_u32 v2, {(s_%3)*SLOT}, v{vCS}\nv_xor_b32 v3, 64, v2")
            for i in range(4): a(f"ds_read_b128 {R(CSL+16+4*i,4)}, v{2+(i&1)} offset:{1024*i}")
            a(f"L_nc{s_}:")
        sched[4].pop(1)
        for k in range(1,5): sched[k].insert(1, lambda k=k: cs_rd2(k))
    sched[0]=[sched[0][0], T, x3_ld, lambda: cs_rd(0)]; sched[15].remove(x3_ld)
    addr1(); addr2(); wo_setup(); post_setup(); rdy_addr(); xaddr(a, vXo)
    cs_addr(); fill_addr(); srd(a, 88, 10, 1024*1024*2)
    pro(PRO[PRO.index('s')+1:]); nonce()
    for k in range(16): sched[k].append(P(f"i{k}"))
    CL=[]; nx=0
    for item in filter(None,os.environ.get('CL','').split(';')):
        b,what=item.split(':'); fs=[]
        for w in what.split(','):
            if True:
                n=int(w[1:]); fs.append(lambda i0=nx,i1=nx+n: ffn_ld(i0,i1)); nx+=n
        CL.append((int(b.rstrip('s')), b.endswith('s'), fs))
    NLOOP=nx
    DEF='defer' in EXP
    TS={k:[str(k+2)] if k+2<16 else [] for k in range(16)}
    for it_ in filter(None,os.environ.get('TS','').split(';')):
        k,v=it_.split(':'); TS[int(k)]=list(filter(None,v.split(',')))
    def tl(x): tiles(int(x.rstrip('AW')), part=x[-1] if x[-1] in 'AW' else None)
    sched[14].insert(0,T)
    def at(s):
        return [(c,fs) for b,same,fs in CL for c in range(NT) if b+(0 if same else c)==s]
    for s in range(16):
        vm.wait(('t',s))
        a("s_waitcnt lgkmcnt(0)")
        if s==0: stamp(a,2)
        a("s_barrier")
        if 'hst2' in EXP: stamp2(a,33+s)
        late={c for c,_ in at(s-2)} if DEF and s+1<16 else set()
        skip={c for c,_ in at(s-1)} if DEF else set()
        if s>=14: vm.cond(late, lambda: tiles(s+1))
        for f in sched[s]:
            if isinstance(f,tuple):
                J=a.capture(lambda: [g() for g in f]); D_=a.capture(lambda: [tl(x) for x in TS[s]])
                if 'noil' in EXP:
                    for x in D_+J: a(x)
                else:
                    while J and J[0].startswith('s_waitcnt'): a(J.pop(0))
                    n=-(-len(J)//9); k=0
                    for x in D_:
                        a(x)
                        if x.startswith('buffer_'):
                            k+=1
                            if k>=2:
                                for y in J[:n]: a(y)
                                J=J[n:]
                    for y in J: a(y)
            elif f==T:
                vm.cond(late, lambda: tiles(s+1))
                for x in TS[s]: tl(x)
            else: f()
        grp={}
        for c,fs in at(s): grp.setdefault(id(fs),(fs,[]))[1].append(c)
        for fs,cs_ in grp.values(): vm.cond(cs_, lambda: [f() for f in fs])
        if 'hst' in EXP: stamp(a,6+s)
    a("s_waitcnt lgkmcnt(0)\ns_barrier")
    stamp(a,24)
    MX=opt('mx',12)
    GL=80
    a(f"v_and_b32 v2, 15, v1\nv_min_u32 v2, 13, v2\nv_lshrrev_b32 v3, 4, v1\nv_mul_u32_u24 v3, 14336, v3\nv_lshl_add_u32 v13, v2, 4, v3\ns_lshl_b32 s75, s71, 2\ns_add_u32 s75, s75, {WS_GU}")
    def ld_gu():
        for j in range(4): a(f"s_add_u32 s3, s75, {4*j*14336}\nbuffer_load_dwordx4 {R(GL+4*j,4)}, v13, s[{SWS}:{SWS+3}], s3 offen sc1")
    def gu_fin():
        red8(a, FA)
        a(f"v_and_b32 v2, 8, v1\nv_cmp_eq_u32 vcc, 0, v2\nv_cndmask_b32 v{FA}, v{FA+1}, v{FA}, vcc")
        a(f"buffer_store_dword v{FA}, v{vP64}, s[{SWS}:{SWS+3}], s84 offen sc1")
        vm.issue('gu',1)
    place('x0')
    ffn_mac(M15,MX,True)
    if MX==16: gu_fin()
    place('x1')
    for c in (0,1,4): vm.wait(('wo',c))
    stamp(a,25)
    a("s_barrier")
    place('x2')
    a("s_setprio 3\ns_cmp_lg_u32 s38, 3\ns_cbranch_scc1 L_npl")
    NPP=opt('npp',1)
    if NPP==1: ready_poll("L_rp", -1, 0xffff)
    else:
        PS=opt('pps',2)
        a(f"s_mov_b32 s3, {WS_RDY}\ns_mov_b32 s29, 0\ns_mov_b32 exec_hi, 0xffff")
        for k in range(NPP-1): a(f"buffer_load_dword v{8+k}, v113, s[{SWS}:{SWS+3}], s3 offen sc1\ns_sleep {PS}")
        a("L_rp:")
        for k in range(NPP):
            a(f"buffer_load_dword v{8+(k+NPP-1)%NPP}, v113, s[{SWS}:{SWS+3}], s3 offen sc1\ns_waitcnt vmcnt({NPP-1})\nv_cmp_ne_u32 vcc, s86, v{8+k}\ns_cbranch_vccz L_rpk\ns_mov_b64 exec, vcc")
        a(f"s_add_u32 s29, s29, 1\ns_cmp_lt_u32 s29, {SPIN}\ns_cbranch_scc1 L_rp\nL_rpk:\ns_mov_b64 exec, -1")
    a(f"v_mov_b32 v4, {L_FLG+16}\nv_mov_b32 v5, 1\nds_write_b32 v4, v5\nL_npl:")
    stamp(a,54)
    a(f"v_min_u32 v3, 4, v1\nv_lshlrev_b32 v3, 2, v3\nv_add_u32 v3, {L_FLG}, v3\nL_fw:\nds_read_b32 v4, v3\ns_waitcnt lgkmcnt(0)\nv_cmp_eq_u32 vcc, 0, v4\ns_cbranch_vccz L_fk\ns_sleep 1\ns_branch L_fw\nL_fk:")
    stamp(a,26)
    place('k')
    vm.wait(('g',15))
    MY=opt('my',MX+2 if MX<16 else 16)
    ffn_mac(MX,MY,True)
    if opt('h1d',0): a(f"s_sleep {opt('h1d',0)}")
    stamp(a,49)
    def ld_h1():
        for j in range(2): a(f"s_add_u32 s3, s76, {8*j*KVS}\nbuffer_load_dwordx4 {R(HL+4*j,4)}, v112, s[{SWS}:{SWS+3}], s3 offen sc1")
    def ld_hz():
        for j in range(2): a(f"s_add_u32 s3, s81, {8*j*KVS}\nbuffer_load_dwordx4 {R(HZ+4*j,4)}, v112, s[{SWS}:{SWS+3}], s3 offen sc1")
    ld_h1()
    a("s_cmp_lg_u32 s83, 0\ns_cbranch_scc1 L_nz")
    ld_hz()
    a("L_nz:")
    if MX==16:
        ld_gu()
        a("s_waitcnt vmcnt(4)")
        vm.q=[['gl']*4 for _ in range(NT)]
    else:
        vm.q=[['h'] for _ in range(NT)]
        HK=min(16,MY+opt('h0k',2))
        ffn_mac(MY,HK,True)
        if HK==16: gu_fin()
        place('h0')
        ffn_mac(HK,16,True)
        if HK<16: gu_fin()
        vm.wait('h')
    stamp(a,50)
    def reduce_line(src, E, sdst):
        L=[]
        class C_:
            def __call__(self, t): L.extend(t.split("\n"))
        c=C_()
        for d in range(4): unpack(c, E+2*d, src+d)
        for d in range(4):
            unpack(c, E+8+2*d, src+4+d)
            c(f"v_pk_add_f32 {R(E+2*d,2)}, {R(E+2*d,2)}, {R(E+8+2*d,2)}")
        red8(c, E)
        c(f"v_cvt_pk_bf16_f32 v{E}, v{E}, v{E+1}\nv_mov_b32 v{E+1}, v{E}\nv_permlane16_swap_b32 v{E}, v{E+1}\nv_mov_b32 v{E+2}, v{E}\nv_mov_b32 v{E+3}, v{E+1}")
        c(f"v_permlane32_swap_b32 v{E}, v{E+2}\nv_permlane32_swap_b32 v{E+1}, v{E+3}")
        return L, f"buffer_store_dwordx4 {R(E,4)}, v{vL16}, s[{SWS}:{SWS+3}], s{sdst} offen sc1"
    A_,sa=reduce_line(HL,64,74); Z_,sz=reduce_line(HZ,96,82)
    a("s_cmp_eq_u32 s83, 0\ns_cbranch_scc1 L_hz")
    checked(a, "L_k4", range(HL,HL+8), ld_h1)
    for x in A_: a(x)
    a(f"s_mov_b64 exec, 0xff\n{sa}\ns_branch L_h1e\nL_hz:")
    checked(a, "L_k3", list(range(HL,HL+8))+list(range(HZ,HZ+8)), lambda: (ld_h1(), ld_hz()))
    for x in zipl(A_,Z_): a(x)
    a(f"s_mov_b64 exec, 0xff\n{sa}\n{sz}\nL_h1e:\ns_mov_b64 exec, -1")
    stamp(a,53)
    a(f"s_lshl_b32 s3, s38, 2\ns_add_u32 s3, s3, {L_FLG}\nv_mov_b32 v4, s3\nv_mov_b32 v5, 3\nds_write_b32 v4, v5\ns_setprio 0")
    vm.issue('h1',1)
    if PLC.get('h1s'): a("s_waitcnt lgkmcnt(0)")
    place('h1s')
    stamp(a,27)
    def hsilu():
        stat3(a, 9, 8)
        a("s_waitcnt lgkmcnt(0)")
        silu_prep(a, PG, PX, 9, 8, 28)
    if MX<16:
        hsilu()
        ld_gu(); vm.issue('gl',4)
    vm.wait('gl')
    stamp(a,51)
    checked(a, "L_k5", range(GL,GL+16), ld_gu)
    stamp(a,52)
    for b in (GL,GL+8):
        for i in (0,2): a(f"v_pk_add_f32 {R(b+i,2)}, {R(b+i,2)}, {R(b+4+i,2)}")
    for i in range(4): a(f"v_permlane32_swap_b32 v{GL+i}, v{GL+8+i}")
    for i in range(4): a(f"v_add_f32 v{GL+i}, v{GL+i}, v{GL+8+i}")
    for i in (0,2): a(f"v_permlane16_swap_b32 v{GL+i}, v{GL+i+1}")
    for i in (0,2): a(f"v_add_f32 v{GL+i}, v{GL+i}, v{GL+i+1}")
    a(f"v_permlane32_swap_b32 v{GL}, v{GL+2}")
    g,u=GL,GL+2
    rne(a,g,g); rne(a,u,u)
    a(f"v_mul_f32 v2, 0xbfb8aa3b, v{g}\nv_exp_f32 v2, v2\nv_add_f32 v2, 1.0, v2\nv_rcp_f32 v2, v2\nv_mul_f32 v{g}, v{g}, v2")
    rne(a,g,g)
    a(f"v_mul_f32 v{g}, v{g}, v{u}")
    rne(a,g,g)
    a(f"v_bfe_u32 v2, v1, 3, 2\nv_lshlrev_b32 v2, 6, v2\nv_lshrrev_b32 v3, 5, v1\nv_lshl_add_u32 v2, v3, 2, v2")
    HB=128
    for i in range(7): a(f"ds_bpermute_b32 v{HB+2*i}, v2, v{g} offset:{8*i}")
    for i in range(0,8,2): a(f"v_mov_b64 {R(FA+i,2)}, 0")
    a("s_waitcnt lgkmcnt(0)")
    place('gu')
    LD='g2' in PLC.get('ho',[])
    def down(plain=False):
        for i in range(7):
            for d in range(4):
                t=2+2*(d&1)
                unpack(a, t, DW+4*i+d)
                if plain: a(f"v_fmac_f32 v{FA+2*d}, v{t}, v{HB+2*i}\nv_fmac_f32 v{FA+2*d+1}, v{t+1}, v{HB+2*i}")
                else: a(f"v_pk_fma_f32 {R(FA+2*d,2)}, {R(t,2)}, {R(HB+2*i,2)}, {R(FA+2*d,2)} op_sel_hi:[1,0,1]")
        red8(a, FA)
        a(f"v_and_b32 v2, 8, v1\nv_cmp_eq_u32 vcc, 0, v2\ns_and_b32 s3, s2, 15\ns_lshl_b32 s3, s3, 4\ns_lshr_b32 s28, s2, 4\ns_add_u32 s3, s3, s28\ns_lshl_b32 s3, s3, 2\ns_add_u32 s3, s3, s38\ns_lshl_b32 s3, s3, 8\ns_add_u32 s3, s3, {WS_Y}")
        a(f"v_cndmask_b32 v{FA}, v{FA+1}, v{FA}, vcc\nbuffer_store_dword v{FA}, v{vP64}, s[{SWS}:{SWS+3}], s3 offen sc1")
    a.down = down if LD else None
    if not LD: down()
    vm.issue('ys',1)
    place('y')
    if MX==16: hsilu()
    stamp(a,28)
    wait7(a, "L_ow"); place('ho')
    if not LD and opt('hpd',0): a(f"s_sleep {opt('hpd',0)}")
    stamp(a,29)
    if opt('hp3',0): a(f"s_setprio {opt('hp3',0)}")
    a("s_branch L_p3")

ACC=8
def acc(g,c6): return ACC+24*g+4*c6
ML,CC,CSV = [192,194,196,198],[200,202,220,222],[248,250]
CCP,RLP = [193,221],[195,223]
CSK,CSQ,PHI,MV,SQF = 204,212,224,104,120
vVS,vLN,vSR = 197,199,[201,203]
def zipl(A, B, n=1):
    out=[]; B=list(B)
    for x in A:
        out.append(x); out+=B[:n]; B=B[n:]
    return out+B
def feature(a, B, c0, isK, mid1=None, tail=None, fillB=(), hook=None):
    P=144; T=176; U=128
    EP=[P+8*g for g in range(4)]; EM=[acc(g,c0) for g in range(4)]
    MX=[T+2*g for g in range(4)]; NM=[T+8+2*g for g in range(4)]
    for g in range(4):
        for ft in range(2): mfma(a, EP[g]+4*ft, PHI+4*ft, acc(g,c0))
    if mid1: mid1()
    FS='fst' in EXP; b_=40 if isK else 50
    def mx(h):
        L=[]
        for k in range(4):
            for g in (2*h,2*h+1):
                p=EP[g]
                if k==0: L+=[f"v_max3_f32 v{MX[g]}, v{p}, v{p+1}, v{p+2}", f"v_max3_f32 v{NM[g]}, -v{p}, -v{p+1}, -v{p+2}"]
                elif k<3: L+=[f"v_max3_f32 v{MX[g]}, v{MX[g]}, v{p+2*k+1}, v{p+2*k+2}", f"v_max3_f32 v{NM[g]}, v{NM[g]}, -v{p+2*k+1}, -v{p+2*k+2}"]
                else: L+=[f"v_max_f32_e64 v{MX[g]}, v{MX[g]}, v{p+7}", f"v_max_f32_e64 v{NM[g]}, v{NM[g]}, -v{p+7}"]
        return L
    def xl(h, op, fin):
        q=[MX[2*h],MX[2*h+1],NM[2*h],NM[2*h+1]]
        return [f"v_permlane32_swap_b32 v{q[0]}, v{q[1]}\nv_permlane32_swap_b32 v{q[2]}, v{q[3]}",
                f"{op} v{q[0]}, v{q[0]}, v{q[1]}\n{op} v{q[2]}, v{q[2]}, v{q[3]}",
                f"v_permlane16_swap_b32 v{q[0]}, v{q[2]}\n{op} v{q[0]}, v{q[0]}, v{q[2]}"]+fin(q[0],q[2])+[
                f"v_permlane16_swap_b32 v{q[0]}, v{q[2]}\nv_mov_b32 v{q[1]}, v{q[0]}", f"v_mov_b32_e64 v{q[3]}, v{q[2]}",
                f"v_permlane32_swap_b32 v{q[0]}, v{q[1]}\nv_permlane32_swap_b32 v{q[2]}, v{q[3]}"]
    x1=lambda h: xl(h, "v_max_f32", lambda x,y: [f"v_mul_f32 v{y}, v{x}, v{CCP[h]}\nv_mul_f32 v{x}, v{x}, v{CCP[h]}"])
    x2=lambda h: xl(h, "v_add_f32", lambda x,y: [f"v_rcp_f32_e64 v{x}, v{x}", f"v_mul_f32 v{y}, v{x}, v{RLP[h]}\nv_mul_f32 v{x}, v{x}, v{RLP[h]}" if isK else f"v_mov_b32_e64 v{y}, v{x}"])
    def fm(h):
        L=[]
        for g in (2*h,2*h+1):
            for i in range(0,8,2):
                L+=[f"v_pk_fma_f32 {R(EM[g]+i,2)}, {R(EP[g]+i,2)}, {R(CC[g],2)}, {R(NM[g],2)} op_sel_hi:[1,0,0] neg_lo:[1,0,1] neg_hi:[1,0,1]",
                    f"v_pk_fma_f32 {R(EP[g]+i,2)}, {R(EP[g]+i,2)}, {R(CC[g],2)}, {R(MX[g],2)} op_sel_hi:[1,0,0] neg_lo:[0,0,1] neg_hi:[0,0,1]"]
        return L
    def ex(h): return [f"v_exp_f32 v{EM[g]+i}, v{EM[g]+i}\nv_exp_f32 v{EP[g]+i}, v{EP[g]+i}" for g in (2*h,2*h+1) for i in range(8)]
    def sm(h):
        L=[]
        for k in range(3):
            for g in (2*h,2*h+1):
                for sg,Eb in ((0,EP[g]),(1,EM[g])):
                    t=U+4*g+2*sg
                    L.append(f"v_pk_add_f32 {R(t,2)}, {R(Eb,2)}, {R(Eb+2,2)}" if k==0 else f"v_pk_add_f32 {R(t,2)}, {R(t,2)}, {R(Eb+2*k+2,2)}")
        for g in (2*h,2*h+1): L.append(f"v_add_f32 v{MX[g]}, v{U+4*g}, v{U+4*g+1}\nv_add_f32 v{NM[g]}, v{U+4*g+2}, v{U+4*g+3}")
        return L
    def fin(h):
        for g in (2*h,2*h+1):
            for pm,(Eb,Q) in enumerate(((EP[g],MX),(EM[g],NM))):
                for i in range(0,8,2): a(f"v_pk_mul_f32 {R(Eb+i,2)}, {R(Eb+i,2)}, {R(Q[g],2)} op_sel_hi:[1,0]")
                for i in range(4): a(f"v_cvt_pk_bf16_f32 v{Eb+i}, v{Eb+2*i}, v{Eb+2*i+1}")
                if tail: tail(g, pm, Eb)
    def E(L):
        for x in L: a(x)
    a.raw(".p2align 3, 0xbf800000") if False else None
    if FS: stamp2(a,b_)
    E(mx(0)); E(zipl(x1(0), mx(1), 2))
    if FS: stamp2(a,b_+1)
    E(zipl(x1(1), fm(0), 2))
    if FS: stamp2(a,b_+2)
    E(ex(0)); E(sm(0))
    if hook: hook(0)
    if FS: stamp2(a,b_+3)
    E(zipl(x2(0), fm(1), 2)); fin(0)
    if FS: stamp2(a,b_+4)
    if hook: hook(1)
    E(ex(1))
    if hook: hook(2)
    E(sm(1))
    if FS: stamp2(a,b_+5)
    E(zipl(x2(1), fillB, 1))
    if FS: stamp2(a,b_+6)
    fin(1)
    if FS: stamp2(a,b_+7)
    return EP, EM
def corrT(a, c0, CS, B):
    for g in range(4):
        s=g&1
        for i in range(0,8,2):
            r=acc(g,c0)+i
            a(f"v_pk_fma_f32 {R(r,2)}, {R(ML[g],2)}, {R(CS+i,2)}, {R(r,2)} op_sel_hi:[0,1,1] neg_lo:[1,0,0] neg_hi:[1,0,0]")
        for i in range(4): a(f"v_cvt_pk_bf16_f32 v{acc(g,c0)+i}, v{acc(g,c0)+2*i}, v{acc(g,c0)+2*i+1}")

def ln_code(a):
    X=104; WR=120; S1=128; S2=132; S3=136; S4=140
    a(f"L_ln:\ns_lshl_b32 s3, s38, 12\ns_add_u32 s3, s3, {L_STG}\nv_lshlrev_b32 v2, 4, v1\nv_add_u32 v3, s3, v2\nv_add_u32 v2, {L_WR}, v2")
    if 'ln4' not in EXP: a("s_barrier")
    for i in range(2): a(f"ds_read_b128 {R(WR+4*i,4)}, v2 offset:{1024*i}")
    for i in range(4): a(f"ds_read_b128 {R(X+4*i,4)}, v3 offset:{1024*i}")
    stamp(a,3)
    a("v_mov_b32 v2, 0x3f803f80")
    for v in (S1,S2,S3,S4): a(f"v_mov_b32 v{v}, 0\nv_mov_b32 v{v+2}, 0")
    a("s_waitcnt lgkmcnt(2)")
    for r in range(2):
        if r: a("s_waitcnt lgkmcnt(0)")
        for d in range(8):
            x=X+8*r+d
            a(f"v_dot2c_f32_bf16 v{S1+2*r}, v{x}, v2\nv_dot2c_f32_bf16 v{S2+2*r}, v{x}, v{x}\nv_dot2c_f32_bf16 v{S3+2*r}, v{x}, v{WR+d}")
            a(f"v_dot2c_f32_bf16 v{S4+2*r}, v{WR+d}, v2")
    regs=[S1,S2,S3,S4]
    for v in regs: a(f"v_permlane32_swap_b32 v{v}, v{v+2}")
    for v in regs: a(f"v_add_f32 v{v}, v{v}, v{v+2}")
    for m in ("quad_perm:[1,0,3,2]", "quad_perm:[2,3,0,1]", "row_half_mirror", "row_mirror"):
        for v in regs: a(f"v_add_f32 v{v}, v{v}, v{v} {m} {DPPM}")
    for v in regs: a(f"v_mov_b32 v{v+1}, v{v}")
    for v in regs: a(f"v_permlane16_swap_b32 v{v}, v{v+1}")
    for v in regs: a(f"v_add_f32 v{v}, v{v}, v{v+1}")
    a(f"v_mul_f32 v{S1}, 0x3a800000, v{S1}\nv_mul_f32 v{S2}, 0x3a800000, v{S2}")
    rne(a, S1+1, S1)
    a(f"v_fma_f32 v{S2}, -v{S1}, v{S1}, v{S2}\nv_max_f32 v{S2}, 0, v{S2}\nv_fma_f32 v{S3}, -v{S1+1}, v{S4}, v{S3}\ns_waitcnt vmcnt(0)")
    rne(a, S2, S2)
    a(f"v_add_f32 v{S2}, 0x3727c5ac, v{S2}")
    rne(a, S2, S2)
    a(f"v_sqrt_f32 v{S2}, v{S2}")
    rne(a, S2, S2)
    a(f"v_rcp_f32 v2, v{S2}\nv_lshrrev_b32 v3, 16, v{S1+1}\nv_or_b32 v208, v3, v{S2}\nv_mul_f32 v{S3}, v{S3}, v2")
    rne(a, S3, S3)
    a(f"v_ashrrev_i32 v2, 31, v{S3}\nv_or_b32 v2, 0x80000000, v2\nv_xor_b32 v2, v{S3}, v2\nv_and_b32 v2, 0xffff0000, v2")
    a(f"v_lshrrev_b32 v3, 5, v1\nv_add_u32 v209, s71, v3\nv_sub_u32 v209, 2047, v209\nv_or_b32 v210, v2, v209\nv_mov_b32 v2, v210\nv_mov_b32 v209, v208\nv_readfirstlane_b32 s86, v212\nv_mov_b32 v3, 0\ns_mul_i32 s86, s86, 1664525\ns_add_u32 s86, s86, 1013904223\nv_mov_b32 v211, s86")
    a(f"v_permlane32_swap_b32 v210, v2\nv_permlane32_swap_b32 v208, v209\nv_max_u32 v210, v210, v2\ns_lshl_b32 s3, s71, 3")
    a(f"s_mov_b64 exec, 1\nbuffer_store_dwordx4 v[208:211], v3, s[{SWS}:{SWS+3}], s3 offen sc1\ns_mov_b64 exec, -1")
    a("v_mov_b32 v251, s86")
    stamp(a,4)
    if 'ln4' in EXP: a("s_branch L_lnr")

def c_wo(a, pos):
    for w in PLC.get(pos,[]):
        c=int(w[1])
        a(f"s_add_u32 m0, s72, {c*16384}\ns_add_u32 s3, s73, {c*262144}")
        for e in range(4): a(f"buffer_load_dwordx4 v{216+e}, s[88:91], s3 offen offset:{e*1024} lds")
def c_waves(a):
    a("L_C:")
    a("s_and_b32 s64, s38, 1\ns_lshr_b32 s65, s38, 1")
    F=[104,144]; vA=184; vW=186
    a("v_and_b32 v3, 15, v1\nv_lshlrev_b32 v3, 7, v3\ns_lshl_b32 s3, s64, 13\nv_add_u32 v3, s3, v3\nv_bfe_u32 v5, v1, 1, 3\nv_lshrrev_b32 v6, 4, v1\nv_xor_b32 v6, v6, v5")
    a(f"v_lshl_add_u32 v{vA}, v6, 4, v3\nv_xor_b32 v{vA+1}, 64, v{vA}")
    a("v_lshrrev_b32 v6, 4, v1\nv_lshlrev_b32 v6, 3, v6\nv_bfe_u32 v7, v1, 2, 2\nv_add_u32 v6, v6, v7\nv_lshlrev_b32 v6, 7, v6\nv_and_b32 v7, 3, v1\nv_lshl_add_u32 v6, v7, 3, v6\nv_add_u32 v6, 16384, v6")
    a("v_bfe_u32 v7, v1, 3, 2\ns_lshl_b32 s3, s65, 1\nv_xor_b32 v7, s3, v7")
    a(f"v_lshl_add_u32 v{vW}, v7, 5, v6\nv_xor_b32 v{vW+1}, 32, v{vW}")
    for i in range(4): a(f"v_add_u32 v{vA+4+i}, {2*SLOT}, v{vA+i}")
    a("s_waitcnt lgkmcnt(0)")
    srd(a, SWS, 26, WS_SIZE); srd(a, SX, 4, 2048*2048); srd(a, 88, 10, 1024*1024*2)
    a(f"s_lshl_b32 s3, s36, 7\ns_lshl_b32 s28, s37, 3\ns_add_u32 s3, s3, s28\ns_lshl_b32 s28, s38, 1\ns_add_u32 s71, s3, s28\nv_lshlrev_b32 v2, 4, v1\nv_mov_b32 v212, {WS_EPO}")
    for i in range(4): a(f"v_mov_b32 v{4+i}, -1")
    a(f"s_lshl_b32 s28, s2, 2\ns_add_u32 s28, s28, s38\ns_mul_i32 s28, s28, 768\ns_add_u32 s28, s28, {WS_FILL-256}\ns_lshl_b32 s3, s37, 4\ns_add_u32 s3, s3, s36\ns_lshl_b32 s3, s3, 2\ns_add_u32 s3, s3, s38\ns_lshl_b32 s3, s3, 8\ns_add_u32 s3, s3, {WS_CSP}")
    a(f"v_cmp_gt_u32 vcc, 16, v1\nv_add_u32 v3, s3, v2\nv_add_u32 v2, s28, v2\nv_cndmask_b32 v2, v2, v3, vcc")
    a(f"buffer_store_dwordx4 v[4:7], v2, s[{SWS}:{SWS+3}], 0 offen sc1\nbuffer_load_dword v212, v212, s[{SWS}:{SWS+3}], 0 offen sc1")
    if STAMPS: a(f"v_mov_b32 v{VST-1}, 0\nv_writelane_b32 v{VST}, s96, 0")
    if 'nocpf' not in EXP:
        a("s_getpc_b64 s[92:93]")
        a.raw("L_pc:")
        a("s_sub_u32 s92, s92, L_pc-fused_kernel\ns_subb_u32 s93, s93, 0\ns_lshr_b32 s3, s2, 3\ns_lshl_b32 s3, s3, 2\ns_add_u32 s3, s3, s38\ns_lshl_b32 s3, s3, 8\nv_lshlrev_b32 v2, 7, v1\nv_add_u32 v2, s3, v2\ns_mov_b64 exec, 3")
        a("global_load_dword v213, v2, s[92:93]\ns_mov_b64 exec, -1")
    for i in range(0,96,2): a(f"v_mov_b64 {R(ACC+i,2)}, 0")
    def reads(sl, t2, fs):
        f=F[fs]; L=[]; b=4 if sl==2 else 0; o=SLOT if sl==1 else 0
        L.append(f"ds_read_b128 {R(f,4)}, v{vA+b+t2} offset:{o}")
        for c6 in range(6):
            for u in range(2):
                L.append(f"ds_read_b64_tr_b16 {R(f+16+4*c6+2*u,2)}, v{vW+b+(c6&1)} offset:{o+(32*t2+4*u)*128+(c6>>1)*8192}")
        for g in range(1,4): L.append(f"ds_read_b128 {R(f+4*g,4)}, v{vA+b+t2} offset:{o+g*2048}")
        return L
    def step(fs, rd, order=None):
        f=F[fs]; i=0
        for g,c6 in (order or [(g,c6) for g in range(4) for c6 in range(6)]):
            d=acc(g,c6)
            if c6<4: mfma(a, d, f+16+4*c6, f+4*g, d)
            else: mfma(a, d, f+4*g, f+16+4*c6, d)
            if rd is not None and i<len(rd): a(rd[i])
            i+=1
            if 'rd2' in EXP and rd is not None and i<len(rd) and i%3==0: a(rd[i]); i+=1
    a(f"s_lshl_b32 s3, s38, 2\ns_add_u32 s3, s3, {L_FLG}\nv_mov_b32 v2, s3\nv_mov_b32 v3, 0\nds_write_b32 v2, v3\nds_write_b32 v2, v3 offset:16")
    a("s_mov_b32 s86, 0\ns_mov_b32 s66, 0\ns_setprio 2\ns_waitcnt lgkmcnt(0)")
    AO=232
    ad = (f"v_and_b32 v2, 15, v1\nv_lshrrev_b32 v3, 4, v1\ns_lshl_b32 s3, s64, 8\ns_add_u32 s3, s3, {L_M}\nv_lshl_add_u32 v{AO}, v2, 2, s3\nv_lshl_add_u32 v{AO+1}, v3, 4, s3\n"
          f"v_lshrrev_b32 v7, 5, v1\nv_lshl_add_u32 v{AO+2}, v7, 6, v{AO}\n"
          f"s_lshl_b32 s3, s65, 7\ns_add_u32 s3, s3, {L_CS}\nv_lshl_add_u32 v{AO+3}, v3, 4, s3\nv_lshl_add_u32 v248, v2, 2, s3\n"
          f"s_lshl_b32 s3, s64, 7\ns_add_u32 s3, s3, {L_SQ}\nv_lshl_add_u32 v249, v3, 4, s3\nv_xor_b32 v253, 128, v249\n"
          f"v_lshrrev_b32 v250, 2, v1\nv_lshlrev_b32 v250, 6, v250\nv_and_b32 v251, 3, v1\nv_lshl_add_u32 v250, v251, 3, v250\ns_lshl_b32 s3, s65, 11\ns_add_u32 s3, s3, {L_PHI}\nv_add_u32 v252, s3, v250\n"
          f"v_bfe_u32 v5, v1, 1, 2\nv_lshlrev_b32 v5, 2, v5\nv_bfe_u32 v4, v1, 3, 1\nv_lshl_add_u32 v5, v4, 1, v5\nv_and_b32 v4, 1, v1\nv_add_u32 v5, v5, v4\nv_xor_b32 v5, v5, v3\n"
          f"s_lshl_b32 s3, s38, 13\ns_add_u32 s3, s3, {L_PHS}\nv_lshl_add_u32 v2, v2, 7, s3\nv_lshl_add_u32 v4, v5, 3, v2\nv_xor_b32 v5, 32, v4\nv_xor_b32 v6, 64, v4\nv_xor_b32 v7, 96, v4\n"
          f"v_bfe_u32 v2, v1, 3, 2\nv_lshlrev_b32 v2, 2, v2\nv_lshrrev_b32 v3, 5, v1\nv_lshl_add_u32 v2, v3, 1, v2\nv_bfe_u32 v3, v1, 2, 1\nv_add_u32 v2, v2, v3\nv_xor_b32 v2, v2, v251\n"
          f"v_lshrrev_b32 v3, 2, v1\nv_lshl_add_u32 v3, v3, 7, s3\nv_lshl_add_u32 v2, v2, 3, v3\ns_lshl_b32 s28, s64, 6\nv_xor_b32 v{vSR[0]}, s28, v2\nv_xor_b32 v{vSR[1]}, 32, v{vSR[0]}\n"
          f"s_lshl_b32 s3, s38, 12\ns_add_u32 s3, s3, {L_STG}\nv_lshlrev_b32 v{vLN}, 4, v1\nv_add_u32 v{vVS}, s3, v{vLN}\n"
          f"s_lshl_b32 s3, s37, 1\ns_add_u32 s67, s3, s65\ns_lshl_b32 s3, s67, 4\ns_add_u32 s3, s3, s36\ns_mul_i32 s3, s3, {KVS}\ns_add_u32 s75, s3, {WS_KVP}\ns_lshl_b32 s3, s64, 11\ns_add_u32 s74, s75, s3\ns_lshl_b32 s3, s64, 6\ns_add_u32 s75, s75, s3\ns_add_u32 s75, s75, 4096\n"
          f"s_lshl_b32 s3, s37, 4\ns_add_u32 s3, s3, s36\ns_lshl_b32 s3, s3, 7\ns_add_u32 s3, s3, {WS_RDY}\ns_cmp_lg_u32 s38, 0\ns_cselect_b32 s76, {WS_SIZE}, s3").split("\n")
    ad = a.capture(lambda: xaddr(a, 236, 237, 238)) + [f"v_xor_b32 v{236+ct}, {32*ct}, v236" for ct in range(1,4)] + ad
    for x in ad: a(x)
    stamp(a,1)
    if 'ln4' not in EXP: ln_code(a)
    a("s_barrier")
    stamp2(a,8)
    for r in reads(0,0,0): a(r)
    for ct in range(4): a(f"ds_read_b64 {R(PX+2*ct,2)}, v{236+ct}")
    a("s_waitcnt lgkmcnt(4)\ns_branch L_cmid")
    a.raw(".p2align 6")
    a("L_cloop:")
    for sl in range(3):
        if sl==opt('lnb',4)%3 and 'ln4' in EXP: a(f"s_cmp_eq_u32 s66, {opt('lnb',4)//3}\ns_cbranch_scc1 L_ln\nL_lnr:")
        a("s_waitcnt lgkmcnt(0)\ns_barrier")
        step(1, reads(sl,0,0))
        a("s_waitcnt lgkmcnt(0)\ns_nop 0")
        if sl==0: a("L_cmid:")
        step(0, reads(sl,1,1)+(["s_add_u32 s66, s66, 1\ns_cmp_lt_u32 s66, 5"] if sl==2 else []))
    a("s_cbranch_scc1 L_cloop")
    xr = [f"ds_read_b64 {R(PX+2*ct,2)}, v{236+ct}" for ct in range(4)]
    r1=[]; r2=[]
    for g in range(4): r1.append(f"ds_read_b32 v{ML[g]}, v{AO} offset:{64*g}")
    for c in range(2): r1.append(f"ds_read_b128 {R(CSK+4*c,4)}, v{AO+3} offset:{256+64*c}")
    for c in range(2): r1.append(f"ds_read_b128 {R(CSQ+4*c,4)}, v{AO+3} offset:{64*c}")
    for ft in range(2):
        for v in range(2): r2.append(f"ds_read_b64_tr_b16 {R(PHI+4*ft+2*v,2)}, v252 offset:{1024*v+32*ft}")
    a("s_nop 0\ns_waitcnt lgkmcnt(0)\ns_barrier")
    step(1, reads(0,0,0)+r1)
    a("s_waitcnt lgkmcnt(8)\ns_nop 0")
    step(0, reads(0,1,1)+r2)
    rd=["s_barrier"]
    for g in (0,2): rd.append(f"ds_read_b128 {R(MV+4*g,4)}, v{AO+1} offset:{64*g}\nds_read_b128 {R(MV+4*g+4,4)}, v{AO+1} offset:{64*g+64}")
    rd.append(f"ds_read_b32 v{CSV[1]}, v248 offset:576\nds_read_b32 v{CSV[0]}, v248 offset:512")
    for g in (0,2): rd.append(f"ds_read_b32 v{CC[g]}, v{AO} offset:{2048+64*g}\nds_read_b32 v{CC[g+1]}, v{AO} offset:{2048+64*g+64}")
    for h in range(2): rd.append(f"ds_read_b32 v{CCP[h]}, v{AO+2} offset:{2048+128*h}\nds_read_b32 v{RLP[h]}, v{AO+2} offset:{1024+128*h}")
    kc=[]
    for g in range(4):
        r=acc(g,2)
        kc+=[f"v_fma_f32 v{r+i}, -v{ML[g]}, v{CSK+i}, v{r+i}" for i in range(8)]
        kc+=[f"v_cvt_pk_bf16_f32 v{r+i}, v{r+2*i}, v{r+2*i+1}" for i in range(4)]
    for i in range(16): rd.append("\n".join(kc[3*i:3*i+3]))
    a("s_waitcnt lgkmcnt(4)")
    step(1, rd, [(g,c6) for cs in ((2,3),(4,5),(0,1)) for g in range(4) for c6 in cs])
    for ks in range(2): a(f"ds_read_b128 {R(SQF+4*ks,4)}, v249 offset:{64*ks}")
    a("s_waitcnt lgkmcnt(2)")
    stamp2(a,24)
    VL='vearly' not in EXP
    def vcorr():
        for g in range(4):
            for dt in range(2):
                for i in (0,2):
                    r=acc(g,4+dt)+i
                    a(f"v_pk_fma_f32 {R(r,2)}, {R(MV+4*g+i,2)}, {R(CSV[dt],2)}, {R(r,2)} op_sel_hi:[1,0,1] neg_lo:[1,0,0] neg_hi:[1,0,0]")
        for ks in range(2):
            for dt in range(2):
                d=acc(2*ks,4+dt); e=acc(2*ks+1,4+dt)
                a(f"v_cvt_pk_bf16_f32 v{d}, v{d}, v{d+1}\nv_cvt_pk_bf16_f32 v{d+1}, v{d+2}, v{d+3}\nv_cvt_pk_bf16_f32 v{d+2}, v{e}, v{e+1}\nv_cvt_pk_bf16_f32 v{d+3}, v{e+2}, v{e+3}")
                if not VL: a(f"ds_write_b128 v{vVS}, {R(d,4)} offset:{2048*ks+1024*dt}")
        for ks in range(2): a(f"ds_read_b128 {R(MV+4*ks,4)}, v253 offset:{64*ks}")
    AF=[232,CSK]; BK=None
    KVt=[144,152,acc(0,2)]
    PA_=128
    def tail(g, pm, Eb):
        for ft in range(2): a(f"ds_write_b64 v{4+2*pm+ft}, {R(Eb+2*ft,2)} offset:{2048*g}")
        if VL and g<2: a(f"ds_write_b128 v{vVS}, {R(acc(2*g,4+pm),4)} offset:{2048*g+1024*pm}")
        if g&1 and pm:
            ks=g>>1
            for ft in range(2):
                for v in range(2): a(f"ds_read_b64_tr_b16 {R(AF[ks]+4*ft+2*v,2)}, v{vSR[ft]} offset:{4096*ks+2048*v}")
    def kvm(k4):
        ks=k4&1; own=k4<2; L=[]
        for dt in range(3):
            for ft in range(2):
                d=KVt[dt]+4*ft
                Bo=(acc(2*ks+(0 if own else 1),4+dt) if dt<2 else (SQF if own else MV)+4*ks)
                L.append(f"v_mfma_f32_16x16x32_bf16 {R(d,4)}, {R((AF[ks] if own else PA_+8*ks)+4*ft,4)}, {R(Bo,4)}, {R(d,4) if k4 else '0'}")
        return L
    k0=kvm(0); k0[0]="s_waitcnt lgkmcnt(0)\ns_nop 0\n"+k0[0]
    CH=opt('ch',2)
    def hook(k):
        if k==CH: a(f"s_mov_b64 exec, 1\nbuffer_store_dword v251, v{vLN}, s[{SWS}:{SWS+3}], s76 offen sc1\ns_mov_b64 exec, -1")
    EP,EM = feature(a, BK, 2, True, mid1=vcorr, tail=tail, fillB=k0, hook=hook)
    stamp(a,34)
    a(f"v_xor_b32 v{vSR[0]}, 0x2000, v{vSR[0]}\nv_xor_b32 v{vSR[1]}, 0x2000, v{vSR[1]}\nv_xor_b32 v{vVS}, 0x1000, v{vVS}\ns_waitcnt lgkmcnt(4)\ns_barrier")
    for ks in range(2):
        for ft in range(2):
            for v in range(2): a(f"ds_read_b64_tr_b16 {R(PA_+8*ks+4*ft+2*v,2)}, v{vSR[ft]} offset:{4096*ks+2048*v}")
        for dt in range(2): a(f"ds_read_b128 {R(acc(2*ks+1,4+dt),4)}, v{vVS} offset:{2048*ks+1024*dt}")
    for k4 in range(1,4):
        a(f"s_waitcnt lgkmcnt({(12,6,0)[k4-1]})")
        for x in kvm(k4): a(x)
    stamp(a,33)
    for ft in range(2):
        for v in range(2): a(f"ds_read_b64_tr_b16 {R(PHI+4*ft+2*v,2)}, v252 offset:{L_PHQ-L_PHI+1024*v+32*ft}")
    a(f"s_xor_b32 s67, s67, {2*QX}\ns_lshl_b32 s3, s38, 2\ns_add_u32 s3, s3, {L_FLG}\nv_mov_b32 v4, s3\nv_mov_b32 v5, 1")
    for j in range(3):
        b=KVt[j]
        for i in range(4): a(f"v_cvt_pk_bf16_f32 v{b+i}, v{b+2*i}, v{b+2*i+1}")
        if j<2: a(f"buffer_store_dwordx4 {R(b,4)}, v{vLN}, s[{SWS}:{SWS+3}], s74 offen offset:{1024*j} sc1")
    a("s_mov_b32 exec_lo, 0x00010001\ns_mov_b32 exec_hi, 0x00010001")
    a(f"buffer_store_dwordx4 {R(KVt[2],4)}, v1, s[{SWS}:{SWS+3}], s75 offen sc1\ns_mov_b64 exec, -1\nds_write_b32 v4, v5")
    stamp(a,25)
    a("s_setprio 0")
    corrT(a, 0, CSQ, BK)
    a("s_waitcnt lgkmcnt(1)")
    EP,EM = feature(a, BK, 0, False)
    stamp(a,26)
    KF=104; ZF=120
    key_rd(a, 248)
    a("v_lshrrev_b32 v5, 3, v1\nv_lshlrev_b32 v6, 11, v5\nv_bfe_u32 v5, v1, 4, 2\nv_lshlrev_b32 v5, 1, v5\nv_and_b32 v7, 7, v1\nv_xor_b32 v5, v5, v7\nv_lshl_add_u32 v6, v5, 4, v6\ns_lshl_b32 s3, s35, 7\nv_add_u32 v6, s3, v6")
    for e in range(4): a(f"v_add_u32 v{216+e}, {e*15360}, v6")
    a("s_lshl_b32 s72, s38, 12\ns_lshl_b32 s73, s38, 16")
    stat3(a, 193, 192)
    a(f"s_mul_i32 s76, s67, {KVS}\ns_add_u32 s76, s76, {WS_KVR}\nv_lshlrev_b32 v5, 4, v1\nv_and_b32 v6, 48, v1\nv_add_u32 v6, 4096, v6")
    a(f"s_lshl_b32 s3, s38, 2\ns_add_u32 s3, s3, {L_FLG}\nv_mov_b32 v3, s3\nL_gw:\nds_read_b32 v2, v3\ns_waitcnt lgkmcnt(0)\nv_readfirstlane_b32 s3, v2\ns_cmp_eq_u32 s3, 3\ns_cbranch_scc1 L_gk\ns_sleep 1\ns_branch L_gw\nL_gk:")
    stamp(a,35)
    SG='slate' not in EXP
    if SG: silu_prep(a, PG, PX, 193, 192, 196)
    if opt('h2d',0): a(f"s_sleep {opt('h2d',0)}")
    def ld_h2():
        for j in range(4): a(f"buffer_load_dwordx4 {R(KF+4*j,4)}, v5, s[{SWS}:{SWS+3}], s76 offen offset:{1024*j} sc1")
        for pm in range(2): a(f"buffer_load_dwordx4 {R(ZF+4*pm,4)}, v6, s[{SWS}:{SWS+3}], s76 offen offset:{64*pm} sc1")
    ld_h2()
    key_fin(a, 248)
    a(f"s_lshl_b32 s3, s36, 3\ns_lshl_b32 s28, s64, 2\ns_add_u32 s3, s3, s28\ns_lshl_b32 s3, s3, 5\ns_add_u32 s3, s3, s67\ns_lshl_b32 s77, s3, 10\ns_add_u32 s77, s77, {WS_O}")
    a("s_waitcnt vmcnt(0)")
    stamp(a,36)
    if 'h2m' in EXP:
        L=a.capture(ld_h2)
        def rl():
            for j,x in enumerate(L):
                maxu(a, 2, range(KF+4*j,KF+4*j+4))
                a(f"v_cmp_eq_u32 vcc, -1, v2\ns_cbranch_vccz L_hm{j}\ns_mov_b64 exec, vcc\n{x}\ns_mov_b64 exec, -1\nL_hm{j}:")
        checked(a, "L_k7", range(KF,KF+24), rl, sleep=0)
    else: checked(a, "L_k7", range(KF,KF+24), ld_h2)
    a("s_setprio 2")
    c_wo(a,'c2')
    stamp(a,27)
    for g in range(4):
        N=acc(g,2)
        for pm,Eb in ((0,EP[g]),(1,EM[g])):
            mfma(a, N+8, ZF+4*pm, Eb, N+8 if pm else None)
            for dt in range(2): mfma(a, N+4*dt, KF+8*pm+4*dt, Eb, N+4*dt if pm else None)
    for g in range(4): a(f"v_add_f32 v{acc(g,2)+8}, 0x358637bd, v{acc(g,2)+8}")
    for g in range(4): a(f"v_rcp_f32 v{acc(g,2)+8}, v{acc(g,2)+8}")
    for g in range(4):
        N=acc(g,2)
        for i in range(0,8,2): a(f"v_pk_mul_f32 {R(N+i,2)}, {R(N+i,2)}, {R(N+8,2)} op_sel_hi:[1,0]")
        for i in range(4): a(f"v_cvt_pk_bf16_f32 v{N+i}, v{N+2*i}, v{N+2*i+1}")
        a(f"buffer_store_dwordx4 {R(N,4)}, v5, s[{SWS}:{SWS+3}], s77 offen sc1")
        if g<3: a("s_add_u32 s77, s77, 32768")
    a(f"v_mov_b32 v2, 7\nds_write_b32 v3, v2\ns_and_b32 s3, s68, 127\ns_lshl_b32 s3, s3, 2\ns_add_u32 s3, s3, {L_M}\nv_mov_b32 v2, s3\nds_read_b32 v250, v2\nds_read_b32 v251, v2 offset:1024")
    stamp(a,28)
    a("s_setprio 0")
    wait7(a, "L_cw")
    c_wo(a,'co')
    if not SG: silu_prep(a, PG, PX, 193, 192, 196)
    if opt('cpd',0): a(f"s_sleep {opt('cpd',0)}")
    stamp(a,29)

def p3(a):
    a("L_p3:")
    a.pad(4)
    D=opt('d3',5)
    PA=8; PB=40; PW=PB+8*D; vW=PW+32; vB=vW+4
    srd(a, SB, 22, 2048*2048)
    a(f"s_lshr_b32 s64, s39, 2\ns_lshl_b32 s3, s34, 2\ns_add_u32 s3, s3, s38\ns_lshl_b32 s3, s3, 16\ns_lshl_b32 s28, s64, 14\ns_add_u32 s3, s3, s28\ns_add_u32 s76, s3, {WS_O}")
    a(f"s_lshl_b32 s3, s64, 15\nv_lshlrev_b32 v2, 4, v1\nv_add_u32 v{vB}, s3, v2\nv_xor_b32 v{vB+1}, 0x8000, v{vB}")
    a(f"v_lshrrev_b32 v2, 2, v1\nv_lshlrev_b32 v2, 7, v2\nv_bfe_u32 v3, v1, 3, 2\nv_lshl_add_u32 v2, v3, 5, v2\nv_and_b32 v3, 3, v1\nv_lshl_add_u32 v2, v3, 3, v2\ns_lshl_b32 s3, s64, 16\nv_add_u32 v{vW}, s3, v2")
    for ct in range(1,4): a(f"v_xor_b32 v{vW+ct}, {32*ct}, v{vW}")
    ROT='prot' in EXP
    vWr=196
    if ROT:
        for k in range(4):
            a(f"s_and_b32 s3, s35, 3\ns_xor_b32 s3, s3, {k}\ns_lshl_b32 s{79+k}, s3, 10\ns_add_u32 s{79+k}, s{79+k}, s76\ns_lshl_b32 s3, s3, 12")
            for ct in range(4): a(f"v_add_u32 v{vWr+4*k+ct}, s3, v{vW+ct}")
    def ldx(j, b, sreg):
        if ROT: a(f"s_add_u32 s{sreg}, s{79+(j&3)}, {(j&~3)*1024}")
        for e in range(2): a(f"buffer_load_dwordx4 {R(b+4*e,4)}, v{vB+e}, s[{SWS}:{SWS+3}], s{sreg} offen offset:{0 if ROT else (j%4)*1024} sc1")
    def ld(j):
        b=PB+8*(j%D)
        if j%4==0 and not ROT: a(f"s_add_u32 s77, s76, {j*1024}")
        ldx(j,b,77)
    def wr(j):
        b=PW+16*(j%2)
        if ROT: return [f"ds_read_b64_tr_b16 {R(b+4*ct+2*v,2)}, v{vWr+4*(j&3)+ct} offset:{(j&~3)*4096+v*2048}" for ct in range(4) for v in range(2)]
        return [f"ds_read_b64_tr_b16 {R(b+4*ct+2*v,2)}, v{vW+ct} offset:{j*4096+v*2048}" for ct in range(4) for v in range(2)]
    for j in range(D-1): ld(j)
    stamp2(a,30)
    a(f"s_lshr_b32 s3, s68, 7\ns_xor_b32 s83, s3, s34\ns_or_b32 s83, s83, s39")
    YL=128; IS=250
    a("v_lshlrev_b32 v222, 4, v1")
    def ld_y():
        for j in range(16):
            if j%4==0: a(f"s_add_u32 s3, s78, {j*1024}")
            a(f"buffer_load_dwordx4 {R(YL+4*j,4)}, v222, s[{SWS}:{SWS+3}], s3 offen offset:{(j%4)*1024} sc1")
    def fix1():
        a(f"L_fx1:\ns_lshl_b32 s78, s35, 14\ns_add_u32 s78, s78, {WS_Y}")
        a(f"v_and_b32 v2, 15, v1\nv_lshrrev_b32 v3, 4, v1\nv_lshl_add_u32 v193, v2, 2, v3\nv_and_b32 v2, 7, v193\nv_lshrrev_b32 v193, 3, v193\nv_lshl_add_u32 v193, v2, 3, v193\nv_lshlrev_b32 v2, 1, v193\ns_lshl_b32 s3, s68, 11\ns_lshl_b32 s28, s35, 7\ns_add_u32 s3, s3, s28\nbuffer_load_ushort v194, v2, s[{SX}:{SX+3}], s3 offen")
        ld_y()
        a("s_branch L_fx1r")
    def fix2():
        a("L_fx2:\ns_and_b32 s3, s70, 0xffff0000\ns_xor_b32 s28, s3, 0x80000000\ns_not_b32 s29, s3\ns_and_b32 s29, s29, 0xffff0000\ns_bitcmp1_b32 s3, 31\ns_cselect_b32 s3, s28, s29")
        a(f"v_mov_b32 v195, s3\nv_mul_f32 v195, 0xbfb8aa3b, v195\nv_exp_f32 v195, v195\nv_add_f32 v195, 1.0, v195\nv_rcp_f32 v195, v195")
        rne(a,195,195)
        checked(a, "L_k6", range(YL,YL+64), ld_y, sleep=4)
        for k in (8,4,2,1):
            for i in range(0,4*k,2): a(f"v_pk_add_f32 {R(YL+i,2)}, {R(YL+i,2)}, {R(YL+4*k+i,2)}")
        for i in range(2): a(f"v_permlane32_swap_b32 v{YL+i}, v{YL+2+i}")
        for i in range(2): a(f"v_add_f32 v{YL+i}, v{YL+i}, v{YL+2+i}")
        a(f"v_permlane16_swap_b32 v{YL}, v{YL+1}\nv_add_f32 v{YL}, v{YL}, v{YL+1}")
        rne(a,YL,YL)
        a(f"v_mul_f32 v{YL}, v{YL}, v195\nv_lshlrev_b32 v194, 16, v194\nv_sub_f32 v194, v194, v{IS}")
        rne(a,YL,YL); rne(a,194,194)
        a(f"v_mul_f32 v194, v194, v{IS+1}")
        rne(a,194,194)
        a(f"v_add_f32 v{YL}, v{YL}, v194")
        rne(a,YL,YL)
        a(f"v_mul_f32 v2, 0xbfb8aa3b, v{YL}\nv_exp_f32 v2, v2\nv_add_f32 v2, 1.0, v2\nv_rcp_f32 v2, v2\nv_mul_f32 v2, v{YL}, v2\nv_lshlrev_b32 v3, 2, v193\nds_write_b32 v3, v2\ns_branch L_fx2r")
    for r in wr(0): a(r)
    a("s_mov_b32 s29, 0")
    BC=opt('bc',7)
    def chk(j):
        b=PB+8*(j%D)
        return a.capture(lambda: maxu(a, 2, range(b,b+8)))+["v_cmp_eq_u32 vcc, -1, v2"]
    a(f"s_waitcnt vmcnt({2*(D-2)})")
    for x in chk(0): a(x)
    for j in range(16):
        b=PB+8*(j%D); w=PW+16*(j%2)
        a(f"s_cbranch_vccnz L_r{j}\nL_g{j}:")
        if 'pst' in EXP and j%4==0: stamp2(a,40+j//4)
        if a.down and j==opt('jd',4): a("s_cmp_eq_u32 s64, 1\ns_cbranch_scc1 L_dn\nL_dnr:")
        if j==opt('fxj',14): a("s_cmp_eq_u32 s83, 0\ns_cbranch_scc1 L_fx1\nL_fx1r:")
        a("s_waitcnt lgkmcnt(0)")
        if 'bal' in EXP and j in (0,5,9,13): a(f"s_setprio {3-(j//4)}")
        if 'bal2' in EXP and j in (0,8,12,14): a(f"s_setprio {dict(zip((0,8,12,14),(3,2,1,0)))[j]}")
        if BC==3:
            if j==3: a("s_barrier")
        elif j in (opt('bh',3),BC): a(f"s_cmp_eq_u32 s64, {0 if j!=BC else 1}\ns_cbranch_scc1 L_nb{j}\ns_barrier\nL_nb{j}:")
        S=[[] for _ in range(8)]
        if j<15:
            rd=wr(j+1)
            for i in range(4): S[i]=rd[2*i:2*i+2]
            if j+D-1<16: S[4]=a.capture(lambda: ld(j+D-1))
            c=chk(j+1)
            S[5]=[f"s_waitcnt vmcnt({2*min(D-2,14-j)})"]+c[:1]; S[6]=c[1:3]; S[7]=c[3:]
        i=0
        for ct in range(4):
            for e in range(2):
                d=PA+16*e+4*ct
                mfma(a, d, w+4*ct, b+4*e, d if j else None)
                for x in S[i]: a(x)
                i+=1
    stamp2(a,31)
    if STAMPS: a(f"v_writelane_b32 v{VST-1}, s29, 58")
    a("s_cmp_eq_u32 s83, 0\ns_cbranch_scc1 L_fx2\nL_fx2r:")
    a(f"s_lshl_b32 s3, s39, 12\ns_add_u32 s3, s3, {L_STG}\nv_lshlrev_b32 v2, 4, v1\nv_add_u32 v2, s3, v2\nv_xor_b32 v3, 0x4000, v2\ns_xor_b32 s28, s3, 0x4000")
    for ct in range(4): a(f"ds_write_b128 v2, {R(PA+16+4*ct,4)} offset:{1024*ct}")
    XF=40
    for d in range(8): unpack(a, XF+2*d, PX+d)
    a(f"v_and_b32 v4, 15, v1\nv_lshrrev_b32 v5, 4, v1\nv_lshlrev_b32 v6, 1, v4\nv_and_b32 v6, 14, v6\nv_xor_b32 v5, v5, v6\nv_lshl_add_u32 v4, v4, 7, s28\nv_lshl_add_u32 v4, v5, 3, v4")
    a(f"v_lshrrev_b32 v5, 3, v1\nv_and_b32 v6, 7, v1\nv_xor_b32 v7, v6, v5\nv_lshl_add_u32 v7, v7, 4, s28\nv_lshl_add_u32 v7, v5, 7, v7")
    a(f"s_lshl_b32 s3, s34, 7\ns_add_u32 s3, s3, s69\nv_add_u32 v5, s3, v5\nv_lshlrev_b32 v5, 11, v5\nv_lshl_add_u32 v5, v6, 4, v5\ns_lshl_b32 s3, s35, 7\ns_add_u32 s28, s3, 16384")
    a(f"s_lshl_b32 s29, s34, 7\ns_add_u32 s29, s29, s69\ns_andn2_b32 s77, s68, 15\ns_cmp_lg_u32 s29, s77")
    a("s_waitcnt lgkmcnt(0)\ns_barrier")
    a(f"s_cbranch_scc1 L_nov\nv_and_b32 v2, 48, v1\ns_and_b32 s29, s68, 15\ns_lshl_b32 exec_lo, 0x00010001, s29\ns_mov_b32 exec_hi, exec_lo")
    for ct in range(4): a(f"ds_read_b128 {R(PG+4*ct,4)}, v2 offset:{64*ct}")
    a("s_mov_b64 exec, -1\nL_nov:")
    stamp(a,60)
    for ct in range(4): a(f"ds_read_b128 {R(PA+16+4*ct,4)}, v3 offset:{1024*ct}")
    for ct in range(4):
        a(f"s_waitcnt lgkmcnt({3-ct})")
        for i in (0,2): a(f"v_pk_add_f32 {R(PA+4*ct+i,2)}, {R(PA+4*ct+i,2)}, {R(PA+16+4*ct+i,2)}")
        for i in (0,2): a(f"v_pk_fma_f32 {R(XF+4*ct+i,2)}, {R(PA+4*ct+i,2)}, {R(PG+4*ct+i,2)}, {R(XF+4*ct+i,2)}")
        for i in (0,1): a(f"v_cvt_pk_bf16_f32 v{PA+2*ct+i}, v{XF+4*ct+2*i}, v{XF+4*ct+2*i+1}")
    for ct in range(4):
        if ct: a(f"v_xor_b32 v6, {32*ct}, v4")
        a(f"ds_write_b64 v{6 if ct else 4}, {R(PA+2*ct,2)}")
    for e in range(2): a(f"ds_read_b128 {R(PA+16+4*e,4)}, v7 offset:{1024*e}")
    OM = '' if 'outplain' in EXP else ' nt' if 'outnt' in EXP else ' sc1 nt' if 'outsn' in EXP else ' sc0 sc1' if 'outss' in EXP else ' sc1'
    for e in range(2):
        a(f"s_waitcnt lgkmcnt({1-e})\nbuffer_store_dwordx4 {R(PA+16+4*e,4)}, v5, s[{SB}:{SB+3}], s{28 if e else 3} offen{OM}")
    stamp(a,61)
    if STAMPS: a("s_waitcnt vmcnt(0)")
    stamp(a,32)
    dump(a)
    if LEAK>=0: a("s_memrealtime s[98:99]\ns_waitcnt lgkmcnt(0)\ns_sub_u32 s94, s94, s96\ns_add_u32 s94, s94, s98\nL_lk:\ns_sleep 1\ns_memrealtime s[98:99]\ns_waitcnt lgkmcnt(0)\ns_cmp_lt_u32 s98, s94\ns_cbranch_scc1 L_lk")
    a("L_done:\ns_endpgm")
    if 'ln4' in EXP: ln_code(a)
    fix1(); fix2()
    if a.down:
        a("L_dn:")
        if 'dprio' in EXP: a("s_setprio 3")
        a.down('dprio' not in EXP)
        if 'dprio' in EXP: a("s_setprio 0")
        a("s_branch L_dnr")
    for j in range(16):
        b=PB+8*(j%D)
        a(f"L_r{j}:\ns_add_u32 s29, s29, 1\ns_cmp_ge_u32 s29, {SPIN}\ns_cbranch_scc1 L_g{j}\ns_add_u32 s3, s76, {(j&~3)*1024}")
        ldx(j,b,3)
        a("s_waitcnt vmcnt(0)")
        for x in chk(j): a(x)
        a(f"s_cbranch_vccnz L_r{j}\ns_branch L_g{j}")

def kern(a):
    kernel_header(a, "fused_kernel")
    a("s_cmp_ge_u32 s2, 256\ns_cbranch_scc1 L_done")
    a("s_load_dwordx16 s[4:19], s[0:1], 0\ns_load_dwordx8 s[20:27], s[0:1], 64")
    if STAMPS or LEAK>=0: a("s_memrealtime s[96:97]\ns_memrealtime s[94:95]")
    a("v_and_b32 v1, 63, v0\nv_lshrrev_b32 v2, 6, v0")
    a("v_readfirstlane_b32 s39, v2")
    a("s_and_b32 s34, s2, 1\ns_lshl_b32 s34, s34, 3\ns_bfe_u32 s3, s2, 0x30003\ns_add_u32 s36, s34, s3")
    a("s_bfe_u32 s37, s2, 0x20001\ns_lshl_b32 s37, s37, 2\ns_lshr_b32 s28, s2, 6\ns_add_u32 s37, s37, s28")
    a("s_and_b32 s80, s37, 12\ns_xor_b32 s80, s80, s34\ns_add_u32 s85, s36, s37\ns_and_b32 s85, s85, 3\ns_or_b32 s35, s80, s85\ns_mov_b32 s34, s36")
    a("s_and_b32 s38, s39, 3")
    a("s_cmp_lt_u32 s39, 4\ns_cbranch_scc1 L_C")
    h_waves(a)
    c_waves(a)
    p3(a)
    return kernel_desc("fused_kernel", 256, 102)

if __name__ == "__main__":
    a=CAsm()
    head = open('/code/%s.s.ref'%NAME).read().split('\n')
    hdr = [l for l in head if l.startswith(';') and '@launch' not in l and 'Override launch' not in l and 'grid=ceil' not in l]
    out='\n'.join(hdr)+"\n; @launch kernel=fused_kernel grid=(256,1,1) block=(512,1,1) lds=163840\n"
    out+='.amdgcn_target "amdgcn-amd-amdhsa--gfx950"\n.text\n'
    d=kern(a)
    if 'noal' not in EXP:
        import align
        a.lines,nw,nn = align.align(a.lines, '.amdgcn_target "amdgcn-amd-amdhsa--gfx950"\n.text\n')
    out+=a.text()+".p2align 8\n.fill 4096, 4, 0xbf800000\n"+'.section .rodata,"a"\n.p2align 6\n'+d
    if 'official' in EXP:
        out = out.replace("; @launch kernel=fused_kernel grid=", "; @launch grid=").replace("fused_kernel", NAME+"_kernel")
    open(sys.argv[1],"w").write(out)
```

```python
import sys, os
from asmgen import Asm, kernel_header, kernel_desc
NAME = "recurrent_scan__linear_kernel_hedgehog__moe_arch_mod__prompt"
EXP = os.environ.get('EXP','').split(',')
STAMPS = 'st' in EXP or 'lite' in EXP
LITE = 'lite' in EXP
def opt(name, default):
    for e in EXP:
        if e.startswith(name+'='): return int(e.split('=')[1])
    return default
WS_SIZE = 0x10000000
WS_REC  = 0x000000
WS_EPO  = 0x004000
WS_RDY  = 0x008000
KVS     = 4224
WS_FILL = 0x100000
WS_CSP  = 0x080000
WS_KVR  = WS_FILL
WS_GU   = WS_KVR + 32*KVS
WS_Y    = WS_GU + 16*3584*4
assert WS_Y + 16*64*256 <= WS_FILL + 1024*768
WS_O    = 0x400000
WS_KVP  = 0x800000
WS_DBG  = 0x3000000
SLOT = 40960
L_PHS  = 98304
L_WR   = 122880
L_STG  = 131072
LM     = 147456
L_PHI  = LM+256
L_M    = LM+4096+512
L_R    = L_M+1024
L_RC   = L_R+1024
L_SQ   = L_RC+512
L_CS   = L_SQ+256
L_PHQ  = LM+8192+256
L_KEY  = LM+8192+256+6144
L_FLG  = L_KEY+64
assert L_CS+768 <= LM+8192 and L_FLG+32 <= 163840
NT = opt('nt',1)
PLC = {}
for it_ in os.environ.get('PLC','i0:k0;i1:k1,k2;i3:a,p,t,G0004;i5:o0;i6:o1;i8:o2,o3;i9:b0;j10:b1;j14:G0412;x0:w0,w1,w4,G1219;x2:w2,w3,w5;h0:G1923;co:w6,w7').split(';'):
    PLC.setdefault(it_.split(':')[0],[]).extend(it_.split(':')[1].split(','))
FNT = '' if 'fplain' in EXP else ' nt'
TNT = ' nt' if 'tnt' in EXP else ''
STAG = 'nostag' not in EXP
def korder(c):
    TT=[[0,0,0,0],[4,1,2,3],[8,5,6,7],[12,9,10,11]] if opt('so',0)==0 else [[0,0,0,0],[4,2,3,4],[8,5,6,7],[12,9,10,11]] if opt('so',0)==1 else [[0,0,0,0],[4,4,4,4],[8,5,6,7],[12,9,10,11]]
    res=[None]*16
    for b in range(4): res[TT[b][c]]=4*b+c
    rest=sorted([(TT[b][k],(k-c)&3,4*b+k) for b in range(4) for k in range(4) if k!=c])
    for i in range(16):
        if res[i] is None:
            t,_,sl=rest.pop(0); assert t<i; res[i]=sl
    return res, TT[1][c]
LSL = '' if 'tight' in EXP else 's_sleep 1\n'
ARR = opt('arr',8)
QX = opt('qx',4)
LNP = 3
DPPM = "row_mask:0xf bank_mask:0xf"
LOG2E = 0x3fb8aa3b
SPIN = 200000
SX, SW, SWS, SA, SB, SC = 40, 44, 48, 52, 56, 60
VST = 255
LNX = 192

def srd(a, d, base, size):
    a(f"s_mov_b32 s{d}, s{base}\ns_mov_b32 s{d+1}, s{base+1}\ns_mov_b32 s{d+2}, {size}\ns_mov_b32 s{d+3}, 0x00020000")
LEAK = opt('leak',-1)
def stamp(a, i):
    if i==LEAK: a("s_memrealtime s[94:95]")
    if STAMPS and (i==32 or not LITE): a(f"s_memrealtime s[100:101]\ns_waitcnt lgkmcnt(0)\nv_writelane_b32 v{VST}, s100, {i}")
def stamp2(a, i):
    if i==LEAK: a("s_memrealtime s[94:95]")
    if STAMPS and not LITE: a(f"s_memrealtime s[100:101]\ns_memtime s[98:99]\ns_waitcnt lgkmcnt(0)\nv_writelane_b32 v{VST}, s100, {i}\nv_writelane_b32 v{VST-1}, s98, {i}")
def dump(a):
    if STAMPS: a(f"s_lshl_b32 s3, s2, 3\ns_add_u32 s3, s3, s39\ns_lshl_b32 s3, s3, 9\ns_add_u32 s3, s3, {WS_DBG}\nv_lshlrev_b32 v2, 3, v1\nbuffer_store_dwordx2 v[{VST-1}:{VST}], v2, s[{SWS}:{SWS+3}], s3 offen")
def rne(a, dst, src):
    a(f"v_cvt_pk_bf16_f32 v{dst}, v{src}, v{src}\nv_lshlrev_b32 v{dst}, 16, v{dst}")
def R(b, n): return f"v[{b}:{b+n-1}]"
def unpack(a, dst, src):
    a(f"v_lshlrev_b32 v{dst}, 16, v{src}\nv_and_b32 v{dst+1}, 0xffff0000, v{src}")
def mfma(a, d, A, B, c=None):
    a(f"v_mfma_f32_16x16x32_bf16 {R(d,4)}, {R(A,4)}, {R(B,4)}, {'0' if c is None else R(c,4)}")

class CAsm(Asm):
    cap=None
    def __call__(self, text):
        if self.cap is not None: self.cap += [t for t in text.strip().split('\n') if t.strip()]
        else: super().__call__(text)
    def capture(self, f):
        self.cap=[]; f(); r=self.cap; self.cap=None; return r

class VM:
    def __init__(self, a, nt=1): self.a=a; self.nt=nt; self.q=[[] for _ in range(nt)]; self.only=None; self.nl=0
    def issue(self, tag, n=1):
        for c in range(self.nt):
            if self.only is None or c in self.only: self.q[c] += [tag]*n
    def wait(self, tag):
        need={}
        for c in range(self.nt):
            q=self.q[c]
            if tag in q and (self.only is None or c in self.only):
                idx=max(i for i,t in enumerate(q) if t==tag); need[c]=len(q)-1-idx; self.q[c]=q[idx+1:]
        if not need: return
        allc=[c for c in range(self.nt) if self.only is None or c in self.only]
        base=max(need.values()) if len(need)==len(allc) else None
        if base is not None: self.a(f"s_waitcnt vmcnt({min(base,63)})")
        for c,n in need.items():
            if n!=base:
                self.nl+=1
                self.a(f"s_cmp_lg_u32 s85, {c}\ns_cbranch_scc1 L_vw{self.nl}\ns_waitcnt vmcnt({min(n,63)})\nL_vw{self.nl}:")
    def drain(self): self.a("s_waitcnt vmcnt(0)"); self.q=[[] for _ in range(self.nt)]
    def cond(self, classes, f):
        classes=set(classes)
        if not classes: return
        if len(classes)==self.nt: f(); return
        self.nl+=1; l=f"L_vc{self.nl}"
        if len(classes)==1: self.a(f"s_cmp_lg_u32 s85, {list(classes)[0]}\ns_cbranch_scc1 {l}")
        else:
            for c in set(range(self.nt))-classes: self.a(f"s_cmp_eq_u32 s85, {c}\ns_cbranch_scc1 {l}")
        self.only=classes; f(); self.only=None
        self.a(f"{l}:")

def maxu(a, dst, regs):
    regs=list(regs)
    if len(regs)==1: a(f"v_mov_b32 v{dst}, v{regs[0]}"); return
    if len(regs)==2: a(f"v_max_u32 v{dst}, v{regs[0]}, v{regs[1]}"); return
    a(f"v_max3_u32 v{dst}, v{regs[0]}, v{regs[1]}, v{regs[2]}"); regs=regs[3:]
    while len(regs)>=2: a(f"v_max3_u32 v{dst}, v{dst}, v{regs[0]}, v{regs[1]}"); regs=regs[2:]
    if regs: a(f"v_max_u32 v{dst}, v{dst}, v{regs[0]}")

def checked(a, lbl, regs, reload, t=2, sleep=1):
    a(f"s_mov_b32 s29, 0\n{lbl}:")
    maxu(a, t, regs)
    a(f"v_cmp_eq_u32 vcc, -1, v{t}\ns_cbranch_vccz {lbl}k\ns_add_u32 s29, s29, 1\ns_cmp_ge_u32 s29, {SPIN}\ns_cbranch_scc1 {lbl}k")
    if sleep: a(f"s_sleep {sleep}")
    reload()
    a(f"s_waitcnt vmcnt(0)\ns_branch {lbl}\n{lbl}k:")
    if STAMPS: a(f"v_writelane_b32 v{VST-1}, s29, {50+int(lbl[3:])}")

def red8(a, e):
    for i in range(4): a(f"v_permlane32_swap_b32 v{e+i}, v{e+4+i}")
    for i in range(4): a(f"v_add_f32 v{e+i}, v{e+i}, v{e+4+i}")
    for i in range(2): a(f"v_permlane16_swap_b32 v{e+i}, v{e+2+i}")
    for i in range(2): a(f"v_add_f32 v{e+i}, v{e+i}, v{e+2+i}")
    for i in range(2): a(f"v_add_f32 v{e+i}, v{e+i}, v{e+i} row_ror:8 {DPPM}")

def silu_prep(a, PG, PX, vm_, vr, T):
    assert vr%2==0 and T%2==0
    a(f"v_mul_f32 v{T}, v{vm_}, v{vr}\nv_mov_b32 v{T+2}, 0xbfb8aa3b")
    E=T+4
    for d in range(8): unpack(a, PG+2*d, PX+d)
    for i in range(0,16,2): a(f"v_pk_fma_f32 {R(PG+i,2)}, {R(PG+i,2)}, {R(vr,2)}, {R(T,2)} op_sel_hi:[1,0,0] neg_lo:[0,0,1] neg_hi:[0,0,1]")
    for i in range(0,16,2): a(f"v_pk_mul_f32 {R(E+i,2)}, {R(PG+i,2)}, {R(T+2,2)} op_sel_hi:[1,0]")
    for i in range(16): a(f"v_exp_f32 v{E+i}, v{E+i}")
    for i in range(0,16,2): a(f"v_pk_add_f32 {R(E+i,2)}, {R(E+i,2)}, 1.0 op_sel_hi:[1,0]")
    for i in range(16): a(f"v_rcp_f32 v{E+i}, v{E+i}")
    for i in range(0,16,2): a(f"v_pk_mul_f32 {R(PG+i,2)}, {R(PG+i,2)}, {R(E+i,2)}")

PG, PX = 224, 240
def xaddr(a, dst, t0=2, t1=3):
    a(f"s_lshl_b32 s3, s38, 1\ns_lshr_b32 s28, s39, 2\ns_add_u32 s3, s3, s28\ns_lshl_b32 s69, s3, 4")
    a(f"v_and_b32 v{t0}, 15, v1\nv_add_u32 v{dst}, s69, v{t0}\nv_lshlrev_b32 v{dst}, 7, v{dst}\nv_lshrrev_b32 v{t0}, 1, v{t0}\nv_lshrrev_b32 v{t1}, 5, v1\nv_xor_b32 v{t0}, v{t0}, v{t1}\nv_lshl_add_u32 v{dst}, v{t0}, 4, v{dst}\nv_bfe_u32 v{t1}, v1, 4, 1\nv_lshl_add_u32 v{dst}, v{t1}, 3, v{dst}")
def stat3(a, vm_, vr):
    a(f"v_and_b32 v2, 15, v1\nv_add_u32 v2, s69, v2\nv_lshlrev_b32 v2, 2, v2\nv_add_u32 v2, {L_M}, v2\nds_read_b32 v{vm_}, v2\nds_read_b32 v{vr}, v2 offset:1024")

def wait7(a, l):
    a(f"v_and_b32 v3, 3, v1\nv_lshlrev_b32 v3, 2, v3\nv_add_u32 v3, {L_FLG}, v3\n{l}:\nds_read_b32 v2, v3\ns_waitcnt lgkmcnt(0)\nv_cmp_ne_u32 vcc, 7, v2\ns_cbranch_vccz {l}k\n{LSL}s_branch {l}\n{l}k:")
def key_rd(a, v):
    a(f"v_mov_b32 v2, {L_KEY}\nds_read_b32 v{v}, v2")
def key_fin(a, v):
    a(f"s_waitcnt lgkmcnt(0)\nv_readfirstlane_b32 s70, v{v}\ns_and_b32 s68, s70, 0x7ff\ns_sub_u32 s68, 2047, s68")

def h_waves(a):
    vm = VM(a, NT)
    vA=8; vW=12; vCS=18; vF=21; vD=22; vXo=23
    CSA=24; CSL=32; XF=80
    FW=128; DW=192; FA=120; SENT=248; vL16=252; vP64=253
    a("L_H:")
    a("v_and_b32 v4, 7, v1\ns_lshl_b32 s33, s37, 7\ns_lshl_b32 s87, s85, 7\ns_lshl_b32 s66, s80, 7")
    def w_addr():
        a("s_lshr_b32 s32, s36, 1\ns_and_b32 s32, s32, 2\ns_xor_b32 s32, s32, s38\nv_lshrrev_b32 v3, 3, v1")
        a("s_lshl_b32 s3, s32, 4\nv_add_u32 v7, s3, v3\nv_mul_u32_u24 v7, 6144, v7")
        a("v_bfe_u32 v6, v1, 4, 1\nv_lshlrev_b32 v6, 1, v6\nv_xor_b32 v5, v4, v6\nv_add_u32 v7, s33, v7\nv_xor_b32 v6, 4, v5\nv_lshl_add_u32 v6, v6, 4, v7\nv_lshl_add_u32 v7, v5, 4, v7")
        for e in range(6): a(f"v_add_u32 v{vW+e}, {(e>>1)*2048 + (e&1)*(8*6144-1024)}, v{6 if e&1 else 7}")
        for e in range(2): a(f"v_xor_b32 v{vW+e}, {QX*128}, v{vW+e}")
        a(f"s_lshl_b32 s31, s32, 11\ns_add_u32 s31, s31, 16384")
    def a_addr():
        a("s_lshl_b32 s3, s36, 7\ns_lshl_b32 s28, s38, 5\ns_add_u32 s3, s3, s28")
        a("v_add_u32 v3, s3, v3\nv_lshlrev_b32 v3, 11, v3")
        a("v_lshrrev_b32 v5, 4, v1\nv_xor_b32 v6, v4, v5\nv_xor_b32 v5, 4, v6")
        a("v_lshl_add_u32 v6, v6, 4, v3\nv_lshl_add_u32 v5, v5, 4, v3")
        for j in range(4): a(f"v_add_u32 v{vA+j}, {j*16384 - j*1024}, v{5 if j&1 else 6}")
    a("s_lshl_b32 s30, s38, 12")
    FAST=opt('fast',2)
    if FAST<2: w_addr()
    if FAST<1: a_addr()
    a("s_waitcnt lgkmcnt(0)")
    srd(a, SX, 4, 2048*2048)
    if FAST<2: srd(a, SW, 6, 1024*3072*2)
    def tiles(s, wfirst=False, part=None):
        sl=(s%3)*SLOT
        def A_():
            a(f"s_add_u32 m0, s30, {sl}")
            for j in range(4): a(f"buffer_load_dwordx4 v{vA+j}, s[{SX}:{SX+3}], s64 offen offset:{j*1024}{TNT if s%4==0 else ''} lds")
        def W_():
            for e in range(6):
                if e%2==0: a(f"s_add_u32 m0, s31, {sl+(e>>1)*8192}")
                a(f"buffer_load_dwordx4 v{vW+e}, s[{SW}:{SW+3}], s65 offen offset:{(e&1)*1024}{TNT if s%4==0 else ''} lds")
        if STAG and s>0: a(f"s_bfe_u32 s64, s{94+(s>>3)}, {(4<<16)|(4*(s&7))}\ns_lshl_b32 s64, s64, 7\ns_xor_b32 s64, s64, s66\ns_mul_i32 s65, s64, 3072")
        elif 'b2' in EXP and s<4: a(f"s_add_u32 s64, s87, {(s&1)*128}\ns_and_b32 s64, s64, 255\ns_or_b32 s64, s64, {(s>>1)*256}\ns_xor_b32 s64, s64, s66\ns_mul_i32 s65, s64, 3072")
        else: a(f"s_add_u32 s64, s87, {(s&3)*128}\ns_and_b32 s64, s64, 511\ns_or_b32 s64, s64, {(s>>2)*512}\ns_xor_b32 s64, s64, s66\ns_mul_i32 s65, s64, 3072")
        if part=='W': W_(); vm.issue(('t',s),6); return
        if part=='A': A_(); vm.issue(('t',s),4); return
        if wfirst: W_(); A_()
        else: A_(); W_()
        vm.issue(('t',s),10)
    def fill_addr():
        a(f"s_lshr_b32 s3, s38, 1\ns_lshl_b32 s28, s37, 1\ns_add_u32 s28, s28, s3\ns_and_b32 s29, s38, 1")
        a(f"s_lshl_b32 s3, s28, 4\ns_add_u32 s3, s3, s36\ns_mul_i32 s3, s3, {KVS}\ns_mul_i32 s78, s29, {KVS//2}\ns_add_u32 s78, s78, s3\ns_add_u32 s78, s78, {WS_KVP}")
        a(f"s_lshl_b32 s3, s36, 1\ns_add_u32 s29, s29, s3\ns_xor_b32 s28, s28, {2*QX}\ns_lshl_b32 s3, s29, 7\ns_add_u32 s3, s3, s28\ns_lshl_b32 s3, s3, 10\ns_add_u32 s79, s3, {WS_O}")
    def fillk(i0_,i1_):
        if 'nofill' in EXP: return
        for i in range(i0_,i1_):
            if i<2: a(f"buffer_store_dwordx4 {R(SENT,4)}, v{vL16}, s[{SWS}:{SWS+3}], s78 offen offset:{i*1024} sc1")
            else: a(f"s_mov_b64 exec, 15\nbuffer_store_dwordx4 {R(SENT,4)}, v{vL16}, s[{SWS}:{SWS+3}], s78 offen offset:2048 sc1\ns_mov_b64 exec, -1")
            vm.issue('own',1)
    def fillo(i):
        if 'nofill' in EXP: return
        a(f"s_add_u32 s3, s79, {i*32768}\nbuffer_store_dwordx4 {R(SENT,4)}, v{vL16}, s[{SWS}:{SWS+3}], s3 offen sc1")
        vm.issue('own',1)
    def xrows(h):
        a(f"s_lshl_b32 s3, s36, 7\ns_lshl_b32 s28, s37, 3\ns_add_u32 s3, s3, s28\ns_lshl_b32 s3, s3, 11\ns_add_u32 s3, s3, s30\ns_add_u32 m0, s30, {L_STG}")
        for i in (h,h+2): a(f"buffer_load_dwordx4 v{vL16}, s[{SX}:{SX+3}], s3 offen offset:{1024*i}{' nt' if 'xnt' in EXP else ''} lds")
        vm.issue('xr',2)
        if h==0: return
        srd(a, SC, 14, 2048)
        a(f"s_lshl_b32 s3, s38, 9\ns_add_u32 m0, s3, {L_WR}\ns_mov_b32 exec_hi, 0\nbuffer_load_dwordx4 v{vL16}, s[{SC}:{SC+3}], s3 offen lds\ns_mov_b64 exec, -1")
        vm.issue('xr',1)
    LN0=True
    if LN0: a(f"v_lshlrev_b32 v{vL16}, 4, v1")
    PRO=os.environ.get('PRO','e,W0,A0,s,t1' if 'ln4' in EXP else 'e,x,W0,s,A0,l,t1').split(',')
    def pro(L):
      for p in L:
        if p=='e':
            if STAMPS: a(f"v_mov_b32 v{VST-1}, 0\nv_writelane_b32 v{VST}, s96, 0")
            srd(a, SWS, 26, WS_SIZE)
            a(f"v_mov_b32 v19, {WS_EPO}\nbuffer_load_dword v19, v19, s[{SWS}:{SWS+3}], 0 offen sc1"); vm.issue('epo',1)
            stamp(a,1)
        elif p=='x':
            xrows(0); xrows(1)
            if FAST==2: w_addr(); srd(a, SW, 6, 1024*3072*2)
        elif p=='l': vm.wait('xr'); a('s_barrier')
        elif p[0] in 'WA': tiles(int(p[1]), part=p[0])
        elif p[0]=='t' and len(p)==2: tiles(int(p[1]))
        else: place1(p)
    pro(PRO[:PRO.index('s')])
    if FAST>=1: a_addr()
    for i in range(4): a(f"v_mov_b32 v{SENT+i}, -1")
    a(f"v_lshlrev_b32 v{vL16}, 4, v1\ns_and_b32 s85, s85, {NT-1}")
    a(f"s_lshl_b32 s3, s37, 4\ns_add_u32 s3, s3, s36\ns_lshl_b32 s67, s3, 10\ns_add_u32 s67, s67, {WS_CSP}\ns_lshl_b32 s3, s38, 8\ns_add_u32 s67, s67, s3")
    for i in range(8): a(f"v_mov_b32 v{CSA+i}, 0")
    a(f"v_lshlrev_b32 v{vP64}, 2, v1")
    KY=64; ST=72; CG=80; PW=224
    a("s_cmp_gt_u32 s37, 3\ns_subb_u32 s77, s37, 0\ns_cmp_gt_u32 s37, 11\ns_subb_u32 s77, s77, 0\ns_lshl_b32 s77, s77, 4\ns_add_u32 s77, s77, s36\ns_and_b32 s3, s37, 7\ns_cmp_eq_u32 s3, 3\ns_cselect_b32 s77, 224, s77")
    a(f"s_bitcmp1_b32 s38, 0\ns_cselect_b32 s{SA}, s18, s16\ns_cselect_b32 s{SA+1}, s19, s17\ns_cmp_lt_u32 s77, 224\ns_cselect_b32 s{SA+2}, {1024*3584*2}, 0\ns_mov_b32 s{SA+3}, 0x00020000")
    srd(a, SB, 20, 3584*1024*2)
    a("s_and_b32 s3, s77, 3\ns_lshl_b32 s3, s3, 8\ns_lshr_b32 s28, s38, 1\ns_lshl_b32 s28, s28, 7\ns_add_u32 s3, s3, s28\nv_lshrrev_b32 v5, 3, v1\nv_lshl_add_u32 v6, v5, 4, s3")
    a(f"v_mul_u32_u24 v6, 7168, v6\nv_lshl_add_u32 v6, v4, 4, v6\ns_lshr_b32 s3, s77, 2\ns_lshl_b32 s3, s3, 7\nv_add_u32 v{vF}, s3, v6")
    a("s_lshr_b32 s3, s2, 4\ns_mul_i32 s3, s3, 224\ns_mul_i32 s28, s38, 56\ns_add_u32 s71, s3, s28")
    a(f"v_lshlrev_b32 v6, 14, v5\nv_lshl_add_u32 v6, v4, 4, v6\ns_and_b32 s3, s2, 15\ns_lshl_b32 s3, s3, 7\nv_add_u32 v{vD}, s3, v6")

    def cs_addr():
        a(f"v_bfe_u32 v5, v1, 4, 1\nv_lshlrev_b32 v5, 5, v5\nv_xor_b32 v5, v5, v{vL16}\ns_min_u32 s3, s38, 2\ns_lshl_b32 s3, s3, 13\ns_and_b32 s28, s36, 4\ns_lshl_b32 s28, s28, 10\ns_add_u32 s3, s3, s28\ns_add_u32 s3, s3, 16384\nv_add_u32 v{vCS}, s3, v5")
    def cs_rd(s_):
        a(f"v_add_u32 v2, {(s_%3)*SLOT}, v{vCS}\nv_xor_b32 v3, 64, v2")
        for i in range(4): a(f"ds_read_b128 {R(CSL+16*(s_>>2)+4*i,4)}, v{2+(i&1)} offset:{1024*i}")
    def colsum(q):
        for j in range(2):
            for d in range(4):
                t=2+2*(d&1)
                unpack(a, t, CSL+8*q+4*j+d)
                a(f"v_add_f32 v{CSA+2*d}, v{CSA+2*d}, v{t}\nv_add_f32 v{CSA+2*d+1}, v{CSA+2*d+1}, v{t+1}")
    def cs_red():
        red8(a, CSA)
    def cs_pub():
        a(f"v_and_b32 v2, 8, v1\nv_cmp_eq_u32 vcc, 0, v2\nv_cndmask_b32 v{CSA}, v{CSA+1}, v{CSA}, vcc\ns_cmp_eq_u32 s38, 3\ns_cselect_b64 exec, -1, 0\nv_mov_b32 v{CSA}, s70\ns_mov_b64 exec, -1")
        a(f"buffer_store_dword v{CSA}, v{vP64}, s[{SWS}:{SWS+3}], s67 offen sc1")
        vm.issue('pub',1)
    RDY=118
    def nonce():
        vm.wait('epo')
        a("v_readfirstlane_b32 s86, v19\ns_mul_i32 s86, s86, 1664525\ns_add_u32 s86, s86, 1013904223")
    def ready_st():
        a(f"s_lshl_b32 s3, s37, 4\ns_add_u32 s3, s3, s36\ns_lshl_b32 s3, s3, 7\ns_add_u32 s3, s3, {WS_RDY}\ns_cmp_lg_u32 s38, 0\ns_cselect_b32 s3, {WS_SIZE}, s3\nv_mov_b32 v2, s86\ns_mov_b64 exec, 1\nbuffer_store_dword v2, v{vL16}, s[{SWS}:{SWS+3}], s3 offen sc1\ns_mov_b64 exec, -1")
        vm.issue('rs',1)
    def rdy_addr():
        a(f"v_and_b32 v2, 15, v1\nv_bfe_u32 v3, v1, 4, 1\nv_mul_u32_u24 v3, {QX}, v3\nv_xor_b32 v3, s37, v3\nv_lshl_add_u32 v3, v3, 4, v2\nv_lshl_add_u32 v2, v2, 4, s34\nv_lshrrev_b32 v4, 1, v1\nv_and_b32 v4, 8, v4\nv_xor_b32 v2, v2, v4\nv_cmp_gt_u32 vcc, 32, v1\nv_cndmask_b32 v2, v2, v3, vcc\nv_lshlrev_b32 v113, 7, v2")
    def ready_poll(l, lo, hi):
        a(f"s_mov_b32 s3, {WS_RDY}\ns_mov_b32 s29, 0\ns_mov_b32 exec_lo, {lo}\ns_mov_b32 exec_hi, {hi}\n{l}:\nbuffer_load_dword v{RDY}, v113, s[{SWS}:{SWS+3}], s3 offen sc1\ns_waitcnt vmcnt(0)")
        a(f"v_cmp_ne_u32 vcc, s86, v{RDY}\ns_cbranch_vccz {l}k\ns_mov_b64 exec, vcc\ns_add_u32 s29, s29, 1\ns_cmp_lt_u32 s29, {SPIN}\ns_cbranch_scc1 {l}\n{l}k:\ns_mov_b64 exec, -1")
        if STAMPS and lo: a(f"v_writelane_b32 v{VST-1}, s29, 50")
    def tagged(l, regs, reload, after=None):
        a(f"s_mov_b32 s29, 0\n{l}:\nv_cmp_ne_u32 vcc, s86, v{regs[0]}")
        for r in regs[1:]: a(f"v_cmp_ne_u32 s[92:93], s86, v{r}\ns_or_b64 vcc, vcc, s[92:93]")
        a(f"s_cbranch_vccz {l}k\ns_add_u32 s29, s29, 1\ns_cmp_ge_u32 s29, {SPIN}\ns_cbranch_scc1 {l}k\ns_sleep 2")
        reload()
        a("s_waitcnt vmcnt(0)")
        if after: after()
        a(f"s_branch {l}\n{l}k:")
        if STAMPS: a(f"v_writelane_b32 v{VST-1}, s29, {51 if l=='L_k1' else 50}")
    def epoch_st():
        a(f"s_or_b32 s3, s2, s38\ns_cmp_lg_u32 s3, 0\ns_cselect_b32 s3, {WS_SIZE}, {WS_EPO}" if 0 else f"s_or_b32 s3, s2, s38\ns_mov_b32 s28, {WS_EPO}\ns_cmp_lg_u32 s3, 0\ns_cselect_b32 s3, {WS_SIZE}, s28")
        a(f"v_mov_b32 v2, s86\ns_mov_b64 exec, 1\nbuffer_store_dword v2, v{vL16}, s[{SWS}:{SWS+3}], s3 offen sc1\ns_mov_b64 exec, -1")
        vm.issue('es',1)
    def ld_f1():
        a(f"s_lshl_b32 s3, s36, 10\nbuffer_load_dwordx4 {R(ST,4)}, v{vL16}, s[{SWS}:{SWS+3}], s3 offen sc1\ns_lshl_b32 s3, s37, 6\nbuffer_load_dword v{ST+4}, v{PW+8}, s[{SWS}:{SWS+3}], s3 offen offset:12 sc1")
    def fetch1(): ld_f1(); vm.issue('f1',2)
    def val1():
        vm.wait('f1'); tagged("L_k1", [ST+3,ST+4], ld_f1)
    def wmax(v, lanes=(0,16,32,48)):
        a(f"v_readlane_b32 s70, v{v}, {lanes[0]}\nv_readlane_b32 s3, v{v}, {lanes[1]}\nv_readlane_b32 s28, v{v}, {lanes[2]}\nv_readlane_b32 s29, v{v}, {lanes[3]}\ns_max_u32 s70, s70, s3\ns_max_u32 s28, s28, s29\ns_max_u32 s70, s70, s28")
    def proc1():
        for m in ("quad_perm:[1,0,3,2]", "quad_perm:[2,3,0,1]", "row_half_mirror", "row_mirror"):
            a(f"v_max_u32 v{ST+2}, v{ST+2}, v{ST+2} {m} {DPPM}")
        for e in range(2): a(f"v_and_b32 v{2+e}, 0xffff0000, v{ST+e}\nv_lshlrev_b32 v{PW+e}, 16, v{ST+e}")
        for e in range(2): a(f"v_rcp_f32 v{PW+2+e}, v{2+e}")
        a(f"v_lshrrev_b32 v2, 16, v2\nv_or_b32 v{PW+12}, v2, v3")
        for e in range(2): a(f"v_mul_f32 v{PW+4+e}, {LOG2E}, v{PW+2+e}")
        wmax(ST+2)
    def ld_cs(ks=range(4)):
        a(f"s_lshl_b32 s3, s37, 14\ns_add_u32 s3, s3, {WS_CSP}")
        for k in ks: a(f"s_add_u32 s28, s3, {4096*k}\nbuffer_load_dwordx4 {R(CG+4*k,4)}, v{PW+11}, s[{SWS}:{SWS+3}], s28 offen sc1")
    def fetch2(h):
        if h<2: ld_cs((2*h,2*h+1)); vm.issue('f2',2)
        else: ld_cs((h-2,)); vm.issue('f2',1)
    def addr1():
        a(f"v_lshrrev_b32 v2, 2, v1\nv_and_b32 v3, 3, v1\nv_lshlrev_b32 v3, 4, v3\nv_lshl_add_u32 v{PW+8}, v2, 10, v3\nv_lshlrev_b32 v2, 3, v1\nv_add_u32 v{PW+6}, {L_M}, v2")
        a(f"v_and_b32 v4, 49, v1\nv_bfe_u32 v7, v1, 1, 2\nv_lshl_add_u32 v4, v7, 2, v4\nv_bfe_u32 v7, v1, 3, 1\nv_lshl_add_u32 v4, v7, 1, v4\nv_lshlrev_b32 v4, 2, v4\nv_add_u32 v{PW+7}, {L_SQ}, v4")
    def addr2():
        a(f"s_mul_i32 s3, s38, 48\nv_and_b32 v2, 15, v1\nv_lshrrev_b32 v3, 4, v1\nv_cmp_gt_u32 vcc, 12, v2\nv_lshl_add_u32 v4, v2, 2, s3\nv_add_u32 v2, v4, v3\nv_mov_b32 v5, 192\nv_cndmask_b32 v4, v5, v4, vcc\nv_lshlrev_b32 v4, 2, v4\nv_lshl_add_u32 v{PW+11}, v3, 10, v4")
        a(f"v_and_b32 v5, 7, v2\nv_bfe_u32 v6, v2, 3, 3\nv_lshl_add_u32 v5, v5, 3, v6\nv_and_b32 v2, 0xc0, v2\nv_add_u32 v2, v2, v5\nv_lshlrev_b32 v2, 2, v2\nv_add_u32 v2, {L_CS}, v2\nv_mov_b32 v5, {L_KEY}\nv_cndmask_b32 v{PW+9}, v5, v2, vcc")
    def all_w():
        a(f"ds_write_b32 v{PW+9}, v{CG}\ns_lshl_b32 s3, s38, 4\ns_lshl_b64 exec, 0xffff, s3")
        a(f"ds_write_b64 v{PW+6}, {R(PW,2)}\nds_write_b64 v{PW+6}, {R(PW+2,2)} offset:1024\nds_write_b64 v{PW+6}, {R(PW+4,2)} offset:2048\nds_write_b32 v{PW+7}, v{PW+12}\ns_mov_b64 exec, -1")
    XR=64; IS=116; XSF=96
    def idx_xs():
        a("s_and_b32 s68, s70, 0x7ff\ns_sub_u32 s68, 2047, s68")
        a(f"s_lshl_b32 s3, s68, 11\ns_and_b32 s28, s77, 3\ns_lshl_b32 s28, s28, 9\ns_add_u32 s3, s3, s28\ns_lshr_b32 s28, s38, 1\ns_lshl_b32 s28, s28, 8\ns_add_u32 s3, s3, s28")
        a(f"v_lshrrev_b32 v3, 3, v1\nv_lshlrev_b32 v3, 5, v3\nbuffer_load_dwordx4 {R(XR,4)}, v3, s[{SX}:{SX+3}], s3 offen\nbuffer_load_dwordx4 {R(XR+4,4)}, v3, s[{SX}:{SX+3}], s3 offen offset:16")
        a(f"s_lshr_b32 s3, s68, 1\ns_lshl_b32 s3, s3, 4\ns_and_b32 s28, s68, 1\ns_lshl_b32 s28, s28, 2\ns_add_u32 s3, s3, s28\nv_mov_b32 v3, 0\nbuffer_load_dword v{IS}, v3, s[{SWS}:{SWS+3}], s3 offen sc1")
        vm.issue('xs',3)
    def val2():
        vm.wait('f2')
        checked(a, "L_k2", range(CG,CG+16), ld_cs)
    def proc2():
        maxu(a, 2, [CG,CG+4,CG+8,CG+12])
        for k in (2,1):
            for i in range(4*k): a(f"v_add_f32 v{CG+i}, v{CG+i}, v{CG+4*k+i}")
        wmax(2, (12,28,44,60))
        for i in range(2): a(f"v_permlane32_swap_b32 v{CG+i}, v{CG+2+i}")
        for i in range(2): a(f"v_add_f32 v{CG+i}, v{CG+i}, v{CG+2+i}")
        a(f"v_permlane16_swap_b32 v{CG}, v{CG+1}\nv_add_f32 v{CG}, v{CG}, v{CG+1}")
    def proc2b():
        a(f"s_mov_b32 exec_lo, 0xf000f000\ns_mov_b32 exec_hi, 0xf000f000\nv_mov_b32 v{CG}, s70\ns_mov_b64 exec, -1")
    def xs_norm(part):
        if part==0:
            vm.wait('xs')
            a(f"v_and_b32 v5, 0xffff0000, v{IS}\nv_lshlrev_b32 v{IS}, 16, v{IS}\nv_rcp_f32 v{IS+1}, v5")
            for d in range(8): unpack(a, XSF+2*d, XR+d)
            a(f"v_mul_f32 v119, v{IS}, v{IS+1}")
        else:
            for i in range(16): a(f"v_fma_f32 v{XSF+i}, v{XSF+i}, v{IS+1}, -v119")
            for i in range(8): a(f"v_mov_b32 v{FA+i}, 0")
    def ffn_ld(i0,i1):
        if 'noffn' in EXP: return
        for i in range(i0,i1):
            if i<16: a(f"s_mov_b32 s3, {i*7168}\nbuffer_load_dwordx4 {R(FW+4*i,4)}, v{vF}, s[{SA}:{SA+3}], s3 offen{FNT}")
            else: a(f"s_lshr_b32 s3, s71, 3\ns_add_u32 s3, s3, {i-16}\ns_and_b32 s28, s3, 7\ns_lshr_b32 s3, s3, 3\ns_lshl_b32 s3, s3, 6\ns_add_u32 s3, s3, s28\ns_lshl_b32 s3, s3, 11\nbuffer_load_dwordx4 {R(FW+4*i,4)}, v{vD}, s[{SB}:{SB+3}], s3 offen{FNT}")
            vm.issue(('g',i),1)
    def ffn_mac(i0,i1,pk=False):
        if i1<=i0: return
        vm.wait(('g',i1-1))
        for i in range(i0,i1):
            for d in range(4):
                t=2+2*(d&1)
                unpack(a, t, FW+4*i+d)
                if pk:
                    if i%2 and d==0: a(f"v_mov_b32 v{XSF+i-1}, v{XSF+i}")
                    a(f"v_pk_fma_f32 {R(FA+2*d,2)}, {R(t,2)}, {R(XSF+(i&~1),2)}, {R(FA+2*d,2)} op_sel_hi:[1,0,1]")
                else:
                    a(f"v_fmac_f32 v{FA+2*d}, v{t}, v{XSF+i}\nv_fmac_f32 v{FA+2*d+1}, v{t+1}, v{XSF+i}")
    def phi_ld():
        srd(a, SC, 8, 65536)
        a(f"s_lshl_b32 s3, s38, 10\ns_add_u32 m0, s3, {L_PHI}\ns_lshl_b32 s28, s37, 12\ns_add_u32 s3, s3, s28\nbuffer_load_dwordx4 v{vL16}, s[{SC}:{SC+3}], s3 offen lds")
        a(f"s_add_u32 m0, m0, {L_PHQ-L_PHI}\ns_xor_b32 s3, s3, {QX*4096}\nbuffer_load_dwordx4 v{vL16}, s[{SC}:{SC+3}], s3 offen lds")
        vm.issue('phi',2)
    def wo_touch():
        a(f"s_lshl_b32 s3, s2, 13\ns_lshl_b32 s28, s38, 11\ns_add_u32 s3, s3, s28\nv_lshlrev_b32 v3, 7, v1\ns_mov_b64 exec, 0xffff\nbuffer_load_dword v20, v3, s[88:91], s3 offen\ns_mov_b64 exec, -1")
        vm.issue('wt',1)
    def x3_ld():
        for ct in range(4): a(f"v_xor_b32 v{4+ct}, {32*ct}, v{vXo}\nds_read_b64 {R(PX+2*ct,2)}, v{4+ct}")
    vWo=220
    def wo_setup():
        a("v_lshrrev_b32 v5, 3, v1\nv_lshlrev_b32 v6, 11, v5\nv_bfe_u32 v5, v1, 4, 2\nv_lshlrev_b32 v5, 1, v5\nv_and_b32 v7, 7, v1\nv_xor_b32 v5, v5, v7\nv_lshl_add_u32 v6, v5, 4, v6\ns_lshl_b32 s3, s35, 7\nv_add_u32 v6, s3, v6")
        for e in range(4): a(f"v_add_u32 v{vWo+e}, {e*15360}, v6")
        a("s_lshl_b32 s72, s38, 12\ns_lshl_b32 s73, s38, 16")
    def wo(c):
        a(f"s_add_u32 m0, s72, {c*16384}\ns_add_u32 s3, s73, {c*262144}")
        for e in range(4): a(f"buffer_load_dwordx4 v{vWo+e}, s[88:91], s3 offen offset:{e*1024} lds")
        vm.issue(('wo',c),4)
    T='T'
    M15=opt('m15',4)
    HL=48; HZ=32
    def post_setup():
        a(f"s_lshl_b32 s3, s36, 2\ns_add_u32 s3, s3, s38\ns_lshr_b32 s28, s3, 5\ns_and_b32 s3, s3, 31\ns_lshl_b32 s74, s3, 7\ns_lshl_b32 s3, s37, 1\ns_add_u32 s75, s3, s28")
        a(f"v_lshrrev_b32 v5, 3, v1\nv_mul_u32_u24 v5, {KVS}, v5\nv_and_b32 v7, 7, v1\nv_lshl_add_u32 v112, v7, 4, v5")
        a(f"s_mul_i32 s76, s75, {16*KVS}\ns_add_u32 s76, s76, s74\ns_add_u32 s76, s76, {WS_KVP}\ns_mul_i32 s3, s75, {KVS}\ns_add_u32 s3, s3, s74\ns_add_u32 s74, s3, {WS_KVR}")
        a(f"s_lshl_b32 s75, s37, 1\ns_add_u32 s75, s75, s36\ns_mul_i32 s81, s75, {16*KVS}\ns_add_u32 s81, s81, {WS_KVP+4096}\ns_mul_i32 s82, s75, {KVS}\ns_add_u32 s82, s82, {WS_KVR+4096}")
        a(f"s_lshr_b32 s3, s36, 1\ns_or_b32 s83, s3, s38")
        a(f"s_and_b32 s3, s38, 1\ns_lshl_b32 s3, s3, 3\ns_and_b32 s28, s77, 3\ns_lshl_b32 s28, s28, 1\ns_add_u32 s3, s3, s28\ns_lshr_b32 s28, s38, 1\ns_add_u32 s3, s3, s28\ns_mul_i32 s3, s3, 14336\ns_lshr_b32 s28, s77, 2\ns_lshl_b32 s28, s28, 8\ns_add_u32 s3, s3, s28\ns_add_u32 s3, s3, {WS_GU}")
        a(f"s_cmp_lt_u32 s77, 224\ns_cselect_b32 s84, s3, {WS_SIZE}")
    P=lambda pos: (lambda: place(pos))
    def place(pos):
        for w in PLC.get(pos,[]): place1(w)
    def place1(w):
        if True:
            if w[0]=='w': wo(int(w[1]))
            elif w[0]=='k': fillk(int(w[1]),int(w[1])+1)
            elif w[0]=='o': fillo(int(w[1]))
            elif w[0]=='x': xrows(int(w[1]))
            elif w=='a': fetch1()
            elif w[0]=='b': fetch2(int(w[1]))
            elif w=='T':
                srd(a, SC, 22, 2048*2048)
                a(f"s_lshl_b32 s3, s34, 18\ns_mov_b64 exec, 1\nbuffer_load_dword v20, v{vL16}, s[{SC}:{SC+3}], s3 offen nt\ns_mov_b64 exec, -1"); vm.issue('tl',1)
            elif w=='U':
                a(f"s_mov_b32 exec_lo, 1\ns_mov_b32 exec_hi, 0x01000000\ns_lshl_b32 s3, s71, 11\nbuffer_load_dword v20, v{vF}, s[{SA}:{SA+3}], 0 offen nt\nbuffer_load_dword v20, v{vD}, s[{SB}:{SB+3}], s3 offen nt\nbuffer_load_dword v20, v{vWo}, s[88:91], 0 offen nt\ns_mov_b64 exec, -1"); vm.issue('tl',3)
            elif w[0]=='S': stamp(a,int(w[1:]))
            elif w=='D': vm.drain()
            elif w=='r': ready_st()
            elif w[0]=='s': a(f"s_sleep {int(w[1:])}")
            elif w[0]=='v': vm.wait(('wo',int(w[1])))
            elif w=='p': phi_ld()
            elif w=='t': wo_touch()
            elif w[0]=='G': ffn_ld(int(w[1:3]),int(w[3:5]))
            elif w[0]=='g': ffn_ld(8*int(w[1]), min(23,8*int(w[1])+8))
    M14=opt('m14',2)
    def lnbar():
        if LN0: return
        vm.wait('xr'); a("s_barrier")
    sched = {
        0: [lambda: cs_rd(0), T],
        1: [(lambda: colsum(0),)],
        2: [(lambda: colsum(1),)],
        3: [T],
        4: [lambda: cs_rd(4), T],
        5: [(lambda: colsum(2),)],
        6: [val1, (lambda: colsum(3),)],
        7: [proc1, cs_red, cs_pub, T],
        8: [T],
        9: [T],
        10:[T],
        11:[val2, proc2, proc2b, idx_xs, T],
        12:[T, epoch_st],
        13:[(lambda: xs_norm(0), lambda: xs_norm(1))],
        14:[P('j14'), (all_w if 'aw15' not in EXP else lambda: None), lambda: ffn_mac(0,M14), lambda: vm.wait('phi')],
        15:[(all_w if 'aw15' in EXP else lambda: None), x3_ld, P('j15'), lambda: ffn_mac(M14,M15), lambda: vm.wait('own'), lambda: vm.wait('phi')],
    }
    if 'ln4' in EXP:
        sched[opt('lnb',4)-2].append(lambda: vm.wait('xr'))
        if 'late' in EXP:
            sched[6]=[(lambda: colsum(3),)]; sched[7]=[cs_red, T]; sched[8]=[val1, (proc1,), cs_pub]
            sched[11]=[T]; sched[12]=[val2, (proc2,), proc2b, idx_xs]; sched[13]=[T, epoch_st]
            sched[14]=[P('j14'), all_w, lambda: xs_norm(0), lambda: xs_norm(1), lambda: vm.wait('phi')]
            M14=0
        else:
            sched[6]=[(lambda: colsum(3), cs_red)]; sched[7]=[val1, proc1, cs_pub, T]
    if 's2' in EXP:
        sched[7]=[(proc1, cs_red), cs_pub]; sched[11]=[val2, (proc2,), proc2b, idx_xs]
    if not set(EXP)&{'s1','s2','s3','s5','s6'}:
        sched[4]=[lambda: cs_rd(4), val1, proc1, T]; sched[6]=[(lambda: colsum(3),)]; sched[7]=[(cs_red,), cs_pub]
        sched[11]=[val2, (proc2,), proc2b]; sched[12]=[T, idx_xs]; sched[13]=[T, epoch_st]
        sched[14]=[P('j14'), all_w, lambda: xs_norm(0), lambda: xs_norm(1), lambda: vm.wait('phi')]; M14=0
    if 's5' in EXP:
        sched[4]=[lambda: cs_rd(4), val1, proc1, T]; sched[6]=[(lambda: colsum(3),)]; sched[7]=[(cs_red,), cs_pub]
        sched[11]=[T]; sched[12]=[val2, (proc2,), proc2b]; sched[13]=[idx_xs, T, epoch_st]
        sched[14]=[P('j14'), all_w, lambda: xs_norm(0), lambda: xs_norm(1), lambda: vm.wait('phi')]; M14=0
    if 's6' in EXP:
        sched[4]=[lambda: cs_rd(4), T]; sched[5]=[val1, (proc1,)]; sched[6]=[(lambda: colsum(2),)]; sched[7]=[(lambda: colsum(3),)]; sched[8]=[(cs_red,), cs_pub]
        sched[11]=[T]; sched[12]=[val2, (proc2,), proc2b]; sched[13]=[idx_xs, T, epoch_st]
        sched[14]=[P('j14'), all_w, lambda: xs_norm(0), lambda: xs_norm(1), lambda: vm.wait('phi')]; M14=0
    if 's3' in EXP:
        sched[7]=[proc1, T]; sched[8]=[(cs_red,), cs_pub]; sched[11]=[T]; sched[12]=[val2, (proc2,), proc2b, idx_xs]; sched[13]=[T, epoch_st]
        sched[14]=[P('j14'), all_w, lambda: xs_norm(0), lambda: xs_norm(1), lambda: ffn_mac(0,M14)]
    for k in range(14): sched[k].insert(0, P(f"j{k}"))
    if STAG:
        for c in range(4):
            v=sum(x<<(4*i) for i,x in enumerate(korder(c)[0]))
            if c==0: a(f"s_mov_b32 s94, {v&0xffffffff}\ns_mov_b32 s95, {v>>32}")
            else: a(f"s_cmp_eq_u32 s87, {128*c}\ns_cselect_b32 s94, {v&0xffffffff}, s94\ns_cselect_b32 s95, {v>>32}, s95")
        def cs_rd2(s_):
            cl=[c for c in range(4) if korder(c)[1]==s_]
            if not cl: return
            for c in set(range(4))-set(cl): a(f"s_cmp_eq_u32 s87, {128*c}\ns_cbranch_scc1 L_nc{s_}")
            a(f"v_add_u32 v2, {(s_%3)*SLOT}, v{vCS}\nv_xor_b32 v3, 64, v2")
            for i in range(4): a(f"ds_read_b128 {R(CSL+16+4*i,4)}, v{2+(i&1)} offset:{1024*i}")
            a(f"L_nc{s_}:")
        sched[4].pop(1)
        for k in range(1,5): sched[k].insert(1, lambda k=k: cs_rd2(k))
    sched[0]=[sched[0][0], T, x3_ld, lambda: cs_rd(0)]; sched[15].remove(x3_ld)
    addr1(); xaddr(a, vXo)
    if 'eset' in EXP: addr2(); wo_setup(); post_setup(); rdy_addr()
    else: sched[4][1:1]=[addr2, wo_setup, post_setup, rdy_addr]
    cs_addr(); fill_addr(); srd(a, 88, 10, 1024*1024*2)
    pro(PRO[PRO.index('s')+1:]); nonce()
    for k in range(16): sched[k].append(P(f"i{k}"))
    CL=[]; nx=0
    for item in filter(None,os.environ.get('CL','').split(';')):
        b,what=item.split(':'); fs=[]
        for w in what.split(','):
            fs.append(lambda w=w: place1(w))
        CL.append((int(b.rstrip('s')), b.endswith('s'), fs))
    NLOOP=nx
    DEF='defer' in EXP
    TS={k:[str(k+2)] if k+2<16 else [] for k in range(16)}
    for it_ in filter(None,os.environ.get('TS','').split(';')):
        k,v=it_.split(':'); TS[int(k)]=list(filter(None,v.split(',')))
    def tl(x): tiles(int(x.rstrip('AW')), part=x[-1] if x[-1] in 'AW' else None)
    sched[14].insert(0,T)
    def at(s):
        return [(c,fs) for b,same,fs in CL for c in range(NT) if b+(0 if same else (c-1)&3)==s]
    for s in range(16):
        vm.wait(('t',s))
        a("s_waitcnt lgkmcnt(0)")
        if s==0: stamp(a,2)
        a("s_barrier")
        if 'hst2' in EXP: stamp2(a,33+s)
        late={c for c,_ in at(s-2)} if DEF and s+1<16 else set()
        skip={c for c,_ in at(s-1)} if DEF else set()
        if s>=14: vm.cond(late, lambda: tiles(s+1))
        for f in sched[s]:
            if isinstance(f,tuple):
                J=a.capture(lambda: [g() for g in f]); D_=a.capture(lambda: [tl(x) for x in TS[s]])
                if 'noil' in EXP:
                    for x in D_+J: a(x)
                else:
                    while J and J[0].startswith('s_waitcnt'): a(J.pop(0))
                    n=-(-len(J)//9); k=0
                    for x in D_:
                        a(x)
                        if x.startswith('buffer_'):
                            k+=1
                            if k>=2:
                                for y in J[:n]: a(y)
                                J=J[n:]
                    for y in J: a(y)
            elif f==T:
                vm.cond(late, lambda: tiles(s+1))
                for x in TS[s]: tl(x)
            else: f()
        grp={}
        for c,fs in at(s): grp.setdefault(id(fs),(fs,[]))[1].append(c)
        for fs,cs_ in grp.values(): vm.cond(cs_, lambda: [f() for f in fs])
        if 'hst' in EXP: stamp(a,6+s)
    a("s_waitcnt lgkmcnt(0)\ns_barrier")
    stamp(a,24)
    MX=opt('mx',12)
    GL=80
    a(f"v_and_b32 v2, 15, v1\nv_min_u32 v2, 13, v2\nv_lshrrev_b32 v3, 4, v1\nv_mul_u32_u24 v3, 14336, v3\nv_lshl_add_u32 v13, v2, 4, v3\ns_lshl_b32 s75, s71, 2\ns_add_u32 s75, s75, {WS_GU}")
    def ld_gu():
        for j in range(4): a(f"s_add_u32 s3, s75, {4*j*14336}\nbuffer_load_dwordx4 {R(GL+4*j,4)}, v13, s[{SWS}:{SWS+3}], s3 offen sc1")
    def gu_fin():
        red8(a, FA)
        a(f"v_and_b32 v2, 8, v1\nv_cmp_eq_u32 vcc, 0, v2\nv_cndmask_b32 v{FA}, v{FA+1}, v{FA}, vcc")
        a(f"buffer_store_dword v{FA}, v{vP64}, s[{SWS}:{SWS+3}], s84 offen sc1")
        vm.issue('gu',1)
    place('x0')
    ffn_mac(M15,MX,True)
    if MX==16: gu_fin()
    place('x1')
    for c in (0,1,4): vm.wait(('wo',c))
    stamp(a,25)
    a("s_barrier")
    EPL='ep' in EXP
    def cflags(n):
        a(f"v_min_u32 v3, {n}, v1\nv_lshlrev_b32 v3, 2, v3\nv_add_u32 v3, {L_FLG}, v3\nL_fw:\nds_read_b32 v4, v3\ns_waitcnt lgkmcnt(0)\nv_cmp_eq_u32 vcc, 0, v4\ns_cbranch_vccz L_fk\n{LSL}s_branch L_fw\nL_fk:")
    if EPL:
        a(f"s_mov_b32 s28, {WS_RDY}\ns_mov_b32 exec_hi, 0xffff\nbuffer_load_dword v{RDY}, v113, s[{SWS}:{SWS+3}], s28 offen sc1\ns_mov_b64 exec, -1"); vm.issue('rp',1)
        place('x2')
        vm.wait('rp')
        a(f"s_setprio 3\ns_mov_b32 s3, {WS_RDY}\ns_mov_b32 s29, 0\ns_mov_b32 exec_hi, 0xffff\nL_rp:\nv_cmp_ne_u32 vcc, s86, v{RDY}\ns_cbranch_vccz L_rpk\ns_mov_b64 exec, vcc\nbuffer_load_dword v{RDY}, v113, s[{SWS}:{SWS+3}], s3 offen sc1\ns_waitcnt vmcnt(0)")
        a(f"s_add_u32 s29, s29, 1\ns_cmp_lt_u32 s29, {SPIN}\ns_cbranch_scc1 L_rp\nL_rpk:\ns_mov_b64 exec, -1")
        if STAMPS: a(f"v_writelane_b32 v{VST-1}, s29, 50")
        stamp(a,54)
        if 'epf' in EXP: cflags(3)
        stamp(a,26)
    else:
        place('x2')
        a("s_setprio 3\ns_cmp_lg_u32 s38, 3\ns_cbranch_scc1 L_npl")
        NPP=opt('npp',1)
        if NPP==1: ready_poll("L_rp", 0xffff if 'g16' in EXP else -1, 0 if set(EXP)&{'g32','g16'} else -1 if 'g64' in EXP else 0xffff)
        else:
            PS=opt('pps',2)
            a(f"s_mov_b32 s3, {WS_RDY}\ns_mov_b32 s29, 0\ns_mov_b32 exec_hi, 0xffff")
            for k in range(NPP-1): a(f"buffer_load_dword v{8+k}, v113, s[{SWS}:{SWS+3}], s3 offen sc1\ns_sleep {PS}")
            a("L_rp:")
            for k in range(NPP):
                a(f"buffer_load_dword v{8+(k+NPP-1)%NPP}, v113, s[{SWS}:{SWS+3}], s3 offen sc1\ns_waitcnt vmcnt({NPP-1})\nv_cmp_ne_u32 vcc, s86, v{8+k}\ns_cbranch_vccz L_rpk\ns_mov_b64 exec, vcc")
            a(f"s_add_u32 s29, s29, 1\ns_cmp_lt_u32 s29, {SPIN}\ns_cbranch_scc1 L_rp\nL_rpk:\ns_mov_b64 exec, -1")
        a(f"v_mov_b32 v4, {L_FLG+16}\nv_mov_b32 v5, 1\nds_write_b32 v4, v5\nL_npl:")
        stamp(a,54)
        a(f"v_min_u32 v3, 4, v1\nv_lshlrev_b32 v3, 2, v3\nv_add_u32 v3, {L_FLG}, v3\nL_fw:\nds_read_b32 v4, v3\ns_waitcnt lgkmcnt(0)\nv_cmp_eq_u32 vcc, 0, v4\ns_cbranch_vccz L_fk\n{LSL}s_branch L_fw\nL_fk:")
        stamp(a,26)
    place('k')
    vm.wait(('g',15))
    MY=opt('my',MX+2 if MX<16 else 16)
    ffn_mac(MX,MY,True)
    if opt('h1d',0): a(f"s_sleep {opt('h1d',0)}")
    stamp(a,49)
    def ld_h1():
        for j in range(2): a(f"s_add_u32 s3, s76, {8*j*KVS}\nbuffer_load_dwordx4 {R(HL+4*j,4)}, v112, s[{SWS}:{SWS+3}], s3 offen sc1")
    def ld_hz():
        for j in range(2): a(f"s_add_u32 s3, s81, {8*j*KVS}\nbuffer_load_dwordx4 {R(HZ+4*j,4)}, v112, s[{SWS}:{SWS+3}], s3 offen sc1")
    G32=bool(set(EXP)&{'g32','g16'})
    ld_h1()
    if G32: a(f"s_mov_b32 s3, {WS_RDY}\ns_mov_b32 exec_lo, 0\ns_mov_b32 exec_hi, 0xffff\nbuffer_load_dword v{RDY}, v113, s[{SWS}:{SWS+3}], s3 offen sc1\ns_mov_b64 exec, -1")
    a("s_cmp_lg_u32 s83, 0\ns_cbranch_scc1 L_nz")
    ld_hz()
    a("L_nz:")
    if MX==16:
        ld_gu()
        a("s_waitcnt vmcnt(4)")
        vm.q=[['gl']*4 for _ in range(NT)]
    else:
        vm.q=[['h'] for _ in range(NT)]
        HK=min(16,MY+opt('h0k',2))
        ffn_mac(MY,HK,True)
        if HK==16: gu_fin()
        place('h0')
        ffn_mac(HK,16,True)
        if HK<16: gu_fin()
        vm.wait('h')
    stamp(a,50)
    def reduce_line(src, E, sdst):
        L=[]
        class C_:
            def __call__(self, t): L.extend(t.split("\n"))
        c=C_()
        for d in range(4): unpack(c, E+2*d, src+d)
        for d in range(4):
            unpack(c, E+8+2*d, src+4+d)
            c(f"v_pk_add_f32 {R(E+2*d,2)}, {R(E+2*d,2)}, {R(E+8+2*d,2)}")
        red8(c, E)
        c(f"v_cvt_pk_bf16_f32 v{E}, v{E}, v{E+1}\nv_mov_b32 v{E+1}, v{E}\nv_permlane16_swap_b32 v{E}, v{E+1}\nv_mov_b32 v{E+2}, v{E}\nv_mov_b32 v{E+3}, v{E+1}")
        c(f"v_permlane32_swap_b32 v{E}, v{E+2}\nv_permlane32_swap_b32 v{E+1}, v{E+3}")
        return L, f"buffer_store_dwordx4 {R(E,4)}, v{vL16}, s[{SWS}:{SWS+3}], s{sdst} offen sc1"
    A_,sa=reduce_line(HL,64,74); Z_,sz=reduce_line(HZ,96,82)
    a("s_cmp_eq_u32 s83, 0\ns_cbranch_scc1 L_hz")
    checked(a, "L_k4", range(HL,HL+8), ld_h1)
    for x in A_: a(x)
    a(f"s_mov_b64 exec, 0xff\n{sa}\ns_branch L_h1e\nL_hz:")
    checked(a, "L_k3", list(range(HL,HL+8))+list(range(HZ,HZ+8)), lambda: (ld_h1(), ld_hz()))
    for x in zipl(A_,Z_): a(x)
    a(f"s_mov_b64 exec, 0xff\n{sa}\n{sz}\nL_h1e:\ns_mov_b64 exec, -1")
    stamp(a,53)
    if EPL and 'epf' not in EXP: cflags(3)
    if G32:
        a(f"s_mov_b32 s3, {WS_RDY}\ns_mov_b32 s29, 0\ns_mov_b32 exec_lo, 0\ns_mov_b32 exec_hi, 0xffff\nL_ro:\nv_cmp_ne_u32 vcc, s86, v{RDY}\ns_cbranch_vccz L_rok\ns_mov_b64 exec, vcc\nbuffer_load_dword v{RDY}, v113, s[{SWS}:{SWS+3}], s3 offen sc1\ns_waitcnt vmcnt(0)")
        a(f"s_add_u32 s29, s29, 1\ns_cmp_lt_u32 s29, {SPIN}\ns_cbranch_scc1 L_ro\nL_rok:\ns_mov_b64 exec, -1")
    a(f"s_lshl_b32 s3, s38, 2\ns_add_u32 s3, s3, {L_FLG}\nv_mov_b32 v4, s3\nv_mov_b32 v5, 3\nds_write_b32 v4, v5\ns_setprio 0")
    vm.issue('h1',1)
    if PLC.get('h1s'): a("s_waitcnt lgkmcnt(0)")
    place('h1s')
    stamp(a,27)
    def hsilu():
        stat3(a, 9, 8)
        a("s_waitcnt lgkmcnt(0)")
        silu_prep(a, PG, PX, 9, 8, 28)
    if MX<16:
        hsilu()
        ld_gu(); vm.issue('gl',4)
    vm.wait('gl')
    stamp(a,51)
    checked(a, "L_k5", range(GL,GL+16), ld_gu)
    stamp(a,52)
    for b in (GL,GL+8):
        for i in (0,2): a(f"v_pk_add_f32 {R(b+i,2)}, {R(b+i,2)}, {R(b+4+i,2)}")
    for i in range(4): a(f"v_permlane32_swap_b32 v{GL+i}, v{GL+8+i}")
    for i in range(4): a(f"v_add_f32 v{GL+i}, v{GL+i}, v{GL+8+i}")
    for i in (0,2): a(f"v_permlane16_swap_b32 v{GL+i}, v{GL+i+1}")
    for i in (0,2): a(f"v_add_f32 v{GL+i}, v{GL+i}, v{GL+i+1}")
    a(f"v_permlane32_swap_b32 v{GL}, v{GL+2}")
    g,u=GL,GL+2
    rne(a,g,g); rne(a,u,u)
    a(f"v_mul_f32 v2, 0xbfb8aa3b, v{g}\nv_exp_f32 v2, v2\nv_add_f32 v2, 1.0, v2\nv_rcp_f32 v2, v2\nv_mul_f32 v{g}, v{g}, v2")
    rne(a,g,g)
    a(f"v_mul_f32 v{g}, v{g}, v{u}")
    rne(a,g,g)
    a(f"v_bfe_u32 v2, v1, 3, 2\nv_lshlrev_b32 v2, 6, v2\nv_lshrrev_b32 v3, 5, v1\nv_lshl_add_u32 v2, v3, 2, v2")
    HB=128
    for i in range(7): a(f"ds_bpermute_b32 v{HB+2*i}, v2, v{g} offset:{8*i}")
    for i in range(0,8,2): a(f"v_mov_b64 {R(FA+i,2)}, 0")
    a("s_waitcnt lgkmcnt(0)")
    place('gu')
    LD='g2' in PLC.get('ho',[])
    def down(plain=False):
        for i in range(7):
            for d in range(4):
                t=2+2*(d&1)
                unpack(a, t, DW+4*i+d)
                if plain: a(f"v_fmac_f32 v{FA+2*d}, v{t}, v{HB+2*i}\nv_fmac_f32 v{FA+2*d+1}, v{t+1}, v{HB+2*i}")
                else: a(f"v_pk_fma_f32 {R(FA+2*d,2)}, {R(t,2)}, {R(HB+2*i,2)}, {R(FA+2*d,2)} op_sel_hi:[1,0,1]")
        red8(a, FA)
        a(f"v_and_b32 v2, 8, v1\nv_cmp_eq_u32 vcc, 0, v2\ns_and_b32 s3, s2, 15\ns_lshl_b32 s3, s3, 4\ns_lshr_b32 s28, s2, 4\ns_add_u32 s3, s3, s28\ns_lshl_b32 s3, s3, 2\ns_add_u32 s3, s3, s38\ns_lshl_b32 s3, s3, 8\ns_add_u32 s3, s3, {WS_Y}")
        a(f"v_cndmask_b32 v{FA}, v{FA+1}, v{FA}, vcc\nbuffer_store_dword v{FA}, v{vP64}, s[{SWS}:{SWS+3}], s3 offen sc1")
    a.down = down if LD else None
    if not LD: down()
    vm.issue('ys',1)
    place('y')
    if MX==16: hsilu()
    stamp(a,28)
    wait7(a, "L_ow"); place('ho')
    if not LD and opt('hpd',0): a(f"s_sleep {opt('hpd',0)}")
    stamp(a,29)
    if opt('hp3',0): a(f"s_setprio {opt('hp3',0)}")
    a("s_branch L_p3")

ACC=8
def acc(g,c6): return ACC+24*g+4*c6
ML,CC,CSV = [192,194,196,198],[200,202,220,222],[248,250]
CCP,RLP = [193,221],[195,223]
CSK,CSQ,PHI,MV,SQF = 204,212,224,104,120
vVS,vLN,vSR = 197,199,[201,203]
def zipl(A, B, n=1):
    out=[]; B=list(B)
    for x in A:
        out.append(x); out+=B[:n]; B=B[n:]
    return out+B
def feature(a, B, c0, isK, mid1=None, tail=None, fillB=(), hook=None):
    P=144; T=176; U=128
    EP=[P+8*g for g in range(4)]; EM=[acc(g,c0) for g in range(4)]
    MX=[T+2*g for g in range(4)]; NM=[T+8+2*g for g in range(4)]
    for g in range(4):
        for ft in range(2): mfma(a, EP[g]+4*ft, PHI+4*ft, acc(g,c0))
    if mid1: mid1()
    FS='fst' in EXP; b_=40 if isK else 50
    def mx(h):
        L=[]
        for k in range(4):
            for g in (2*h,2*h+1):
                p=EP[g]
                if k==0: L+=[f"v_max3_f32 v{MX[g]}, v{p}, v{p+1}, v{p+2}", f"v_max3_f32 v{NM[g]}, -v{p}, -v{p+1}, -v{p+2}"]
                elif k<3: L+=[f"v_max3_f32 v{MX[g]}, v{MX[g]}, v{p+2*k+1}, v{p+2*k+2}", f"v_max3_f32 v{NM[g]}, v{NM[g]}, -v{p+2*k+1}, -v{p+2*k+2}"]
                else: L+=[f"v_max_f32_e64 v{MX[g]}, v{MX[g]}, v{p+7}", f"v_max_f32_e64 v{NM[g]}, v{NM[g]}, -v{p+7}"]
        return L
    def xl(h, op, fin):
        q=[MX[2*h],MX[2*h+1],NM[2*h],NM[2*h+1]]
        return [f"v_permlane32_swap_b32 v{q[0]}, v{q[1]}\nv_permlane32_swap_b32 v{q[2]}, v{q[3]}",
                f"{op} v{q[0]}, v{q[0]}, v{q[1]}\n{op} v{q[2]}, v{q[2]}, v{q[3]}",
                f"v_permlane16_swap_b32 v{q[0]}, v{q[2]}\n{op} v{q[0]}, v{q[0]}, v{q[2]}"]+fin(q[0],q[2])+[
                f"v_permlane16_swap_b32 v{q[0]}, v{q[2]}\nv_mov_b32 v{q[1]}, v{q[0]}", f"v_mov_b32_e64 v{q[3]}, v{q[2]}",
                f"v_permlane32_swap_b32 v{q[0]}, v{q[1]}\nv_permlane32_swap_b32 v{q[2]}, v{q[3]}"]
    x1=lambda h: xl(h, "v_max_f32", lambda x,y: [f"v_mul_f32 v{y}, v{x}, v{CCP[h]}\nv_mul_f32 v{x}, v{x}, v{CCP[h]}"])
    x2=lambda h: xl(h, "v_add_f32", lambda x,y: [f"v_rcp_f32_e64 v{x}, v{x}", f"v_mul_f32 v{y}, v{x}, v{RLP[h]}\nv_mul_f32 v{x}, v{x}, v{RLP[h]}" if isK else f"v_mov_b32_e64 v{y}, v{x}"])
    def fm(h):
        L=[]
        for g in (2*h,2*h+1):
            for i in range(0,8,2):
                L+=[f"v_pk_fma_f32 {R(EM[g]+i,2)}, {R(EP[g]+i,2)}, {R(CC[g],2)}, {R(NM[g],2)} op_sel_hi:[1,0,0] neg_lo:[1,0,1] neg_hi:[1,0,1]",
                    f"v_pk_fma_f32 {R(EP[g]+i,2)}, {R(EP[g]+i,2)}, {R(CC[g],2)}, {R(MX[g],2)} op_sel_hi:[1,0,0] neg_lo:[0,0,1] neg_hi:[0,0,1]"]
        return L
    def ex(h): return [f"v_exp_f32 v{EM[g]+i}, v{EM[g]+i}\nv_exp_f32 v{EP[g]+i}, v{EP[g]+i}" for g in (2*h,2*h+1) for i in range(8)]
    def sm(h):
        L=[]
        for k in range(3):
            for g in (2*h,2*h+1):
                for sg,Eb in ((0,EP[g]),(1,EM[g])):
                    t=U+4*g+2*sg
                    L.append(f"v_pk_add_f32 {R(t,2)}, {R(Eb,2)}, {R(Eb+2,2)}" if k==0 else f"v_pk_add_f32 {R(t,2)}, {R(t,2)}, {R(Eb+2*k+2,2)}")
        for g in (2*h,2*h+1): L.append(f"v_add_f32 v{MX[g]}, v{U+4*g}, v{U+4*g+1}\nv_add_f32 v{NM[g]}, v{U+4*g+2}, v{U+4*g+3}")
        return L
    def fin(h):
        for g in (2*h,2*h+1):
            for pm,(Eb,Q) in enumerate(((EP[g],MX),(EM[g],NM))):
                for i in range(0,8,2): a(f"v_pk_mul_f32 {R(Eb+i,2)}, {R(Eb+i,2)}, {R(Q[g],2)} op_sel_hi:[1,0]")
                for i in range(4): a(f"v_cvt_pk_bf16_f32 v{Eb+i}, v{Eb+2*i}, v{Eb+2*i+1}")
                if tail: tail(g, pm, Eb)
    def E(L):
        for x in L: a(x)
    a.raw(".p2align 3, 0xbf800000") if False else None
    if FS: stamp2(a,b_)
    E(mx(0)); E(zipl(x1(0), mx(1), 2))
    if FS: stamp2(a,b_+1)
    E(zipl(x1(1), fm(0), 2))
    if FS: stamp2(a,b_+2)
    E(ex(0)); E(sm(0))
    if hook: hook(0)
    if FS: stamp2(a,b_+3)
    E(zipl(x2(0), fm(1), 2)); fin(0)
    if FS: stamp2(a,b_+4)
    if hook: hook(1)
    E(ex(1))
    if hook: hook(2)
    E(sm(1))
    if FS: stamp2(a,b_+5)
    E(zipl(x2(1), fillB, 1))
    if FS: stamp2(a,b_+6)
    fin(1)
    if FS: stamp2(a,b_+7)
    return EP, EM
def corrT(a, c0, CS, B):
    for g in range(4):
        s=g&1
        for i in range(0,8,2):
            r=acc(g,c0)+i
            a(f"v_pk_fma_f32 {R(r,2)}, {R(ML[g],2)}, {R(CS+i,2)}, {R(r,2)} op_sel_hi:[0,1,1] neg_lo:[1,0,0] neg_hi:[1,0,0]")
        for i in range(4): a(f"v_cvt_pk_bf16_f32 v{acc(g,c0)+i}, v{acc(g,c0)+2*i}, v{acc(g,c0)+2*i+1}")

def ln_code(a):
    X=104; WR=120; S1=128; S2=132; S3=136; S4=140
    a(f"L_ln:\ns_lshl_b32 s3, s38, 12\ns_add_u32 s3, s3, {L_STG}\nv_lshlrev_b32 v2, 4, v1\nv_add_u32 v3, s3, v2\nv_add_u32 v2, {L_WR}, v2")
    if 'ln4' not in EXP: a("s_barrier")
    for i in range(2): a(f"ds_read_b128 {R(WR+4*i,4)}, v2 offset:{1024*i}")
    for i in range(4): a(f"ds_read_b128 {R(X+4*i,4)}, v3 offset:{1024*i}")
    stamp(a,3)
    a("v_mov_b32 v2, 0x3f803f80")
    for v in (S1,S2,S3,S4): a(f"v_mov_b32 v{v}, 0\nv_mov_b32 v{v+2}, 0")
    a("s_waitcnt lgkmcnt(2)")
    for r in range(2):
        if r: a("s_waitcnt lgkmcnt(0)")
        for d in range(8):
            x=X+8*r+d
            a(f"v_dot2c_f32_bf16 v{S1+2*r}, v{x}, v2\nv_dot2c_f32_bf16 v{S2+2*r}, v{x}, v{x}\nv_dot2c_f32_bf16 v{S3+2*r}, v{x}, v{WR+d}")
            a(f"v_dot2c_f32_bf16 v{S4+2*r}, v{WR+d}, v2")
    regs=[S1,S2,S3,S4]
    for v in regs: a(f"v_permlane32_swap_b32 v{v}, v{v+2}")
    for v in regs: a(f"v_add_f32 v{v}, v{v}, v{v+2}")
    for m in ("quad_perm:[1,0,3,2]", "quad_perm:[2,3,0,1]", "row_half_mirror", "row_mirror"):
        for v in regs: a(f"v_add_f32 v{v}, v{v}, v{v} {m} {DPPM}")
    for v in regs: a(f"v_mov_b32 v{v+1}, v{v}")
    for v in regs: a(f"v_permlane16_swap_b32 v{v}, v{v+1}")
    for v in regs: a(f"v_add_f32 v{v}, v{v}, v{v+1}")
    a(f"v_mul_f32 v{S1}, 0x3a800000, v{S1}\nv_mul_f32 v{S2}, 0x3a800000, v{S2}")
    rne(a, S1+1, S1)
    a(f"v_fma_f32 v{S2}, -v{S1}, v{S1}, v{S2}\nv_max_f32 v{S2}, 0, v{S2}\nv_fma_f32 v{S3}, -v{S1+1}, v{S4}, v{S3}\ns_waitcnt vmcnt(0)")
    rne(a, S2, S2)
    a(f"v_add_f32 v{S2}, 0x3727c5ac, v{S2}")
    rne(a, S2, S2)
    a(f"v_sqrt_f32 v{S2}, v{S2}")
    rne(a, S2, S2)
    a(f"v_rcp_f32 v2, v{S2}\nv_lshrrev_b32 v3, 16, v{S1+1}\nv_or_b32 v208, v3, v{S2}\nv_mul_f32 v{S3}, v{S3}, v2")
    rne(a, S3, S3)
    a(f"v_ashrrev_i32 v2, 31, v{S3}\nv_or_b32 v2, 0x80000000, v2\nv_xor_b32 v2, v{S3}, v2\nv_and_b32 v2, 0xffff0000, v2")
    a(f"v_lshrrev_b32 v3, 5, v1\nv_add_u32 v209, s71, v3\nv_sub_u32 v209, 2047, v209\nv_or_b32 v210, v2, v209\nv_mov_b32 v2, v210\nv_mov_b32 v209, v208\nv_readfirstlane_b32 s86, v212\nv_mov_b32 v3, 0\ns_mul_i32 s86, s86, 1664525\ns_add_u32 s86, s86, 1013904223\nv_mov_b32 v211, s86")
    a(f"v_permlane32_swap_b32 v210, v2\nv_permlane32_swap_b32 v208, v209\nv_max_u32 v210, v210, v2\ns_lshl_b32 s3, s71, 3")
    a(f"s_mov_b64 exec, 1\nbuffer_store_dwordx4 v[208:211], v3, s[{SWS}:{SWS+3}], s3 offen sc1\ns_mov_b64 exec, -1")
    a("v_mov_b32 v251, s86")
    stamp(a,4)
    if 'ln4' in EXP: a("s_branch L_lnr")

def c_wo(a, pos):
    for w in PLC.get(pos,[]):
        c=int(w[1])
        a(f"s_add_u32 m0, s72, {c*16384}\ns_add_u32 s3, s73, {c*262144}")
        for e in range(4): a(f"buffer_load_dwordx4 v{216+e}, s[88:91], s3 offen offset:{e*1024} lds")
def c_waves(a):
    a("L_C:")
    a("s_and_b32 s64, s38, 1\ns_lshr_b32 s65, s38, 1")
    F=[104,144]; vA=184; vW=186
    a("v_and_b32 v3, 15, v1\nv_lshlrev_b32 v3, 7, v3\ns_lshl_b32 s3, s64, 13\nv_add_u32 v3, s3, v3\nv_bfe_u32 v5, v1, 1, 3\nv_lshrrev_b32 v6, 4, v1\nv_xor_b32 v6, v6, v5")
    a(f"v_lshl_add_u32 v{vA}, v6, 4, v3\nv_xor_b32 v{vA+1}, 64, v{vA}")
    a("v_lshrrev_b32 v6, 4, v1\nv_lshlrev_b32 v6, 3, v6\nv_bfe_u32 v7, v1, 2, 2\nv_add_u32 v6, v6, v7\nv_lshlrev_b32 v6, 7, v6\nv_and_b32 v7, 3, v1\nv_lshl_add_u32 v6, v7, 3, v6\nv_add_u32 v6, 16384, v6")
    a("v_bfe_u32 v7, v1, 3, 2\ns_lshl_b32 s3, s65, 1\nv_xor_b32 v7, s3, v7")
    a(f"v_lshl_add_u32 v{vW}, v7, 5, v6\nv_xor_b32 v{vW+1}, 32, v{vW}")
    for i in range(4): a(f"v_add_u32 v{vA+4+i}, {2*SLOT}, v{vA+i}")
    a("s_waitcnt lgkmcnt(0)")
    srd(a, SWS, 26, WS_SIZE); srd(a, SX, 4, 2048*2048); srd(a, 88, 10, 1024*1024*2)
    a(f"s_lshl_b32 s3, s36, 7\ns_lshl_b32 s28, s37, 3\ns_add_u32 s3, s3, s28\ns_lshl_b32 s28, s38, 1\ns_add_u32 s71, s3, s28\nv_lshlrev_b32 v2, 4, v1\nv_mov_b32 v212, {WS_EPO}")
    for i in range(4): a(f"v_mov_b32 v{4+i}, -1")
    a(f"s_lshl_b32 s28, s2, 2\ns_add_u32 s28, s28, s38\ns_mul_i32 s28, s28, 768\ns_add_u32 s28, s28, {WS_FILL-256}\ns_lshl_b32 s3, s37, 4\ns_add_u32 s3, s3, s36\ns_lshl_b32 s3, s3, 2\ns_add_u32 s3, s3, s38\ns_lshl_b32 s3, s3, 8\ns_add_u32 s3, s3, {WS_CSP}")
    a(f"v_cmp_gt_u32 vcc, 16, v1\nv_add_u32 v3, s3, v2\nv_add_u32 v2, s28, v2\nv_cndmask_b32 v2, v2, v3, vcc")
    a(f"buffer_store_dwordx4 v[4:7], v2, s[{SWS}:{SWS+3}], 0 offen sc1\nbuffer_load_dword v212, v212, s[{SWS}:{SWS+3}], 0 offen sc1")
    if STAMPS: a(f"v_mov_b32 v{VST-1}, 0\nv_writelane_b32 v{VST}, s96, 0")
    if 'nocpf' not in EXP:
        a("s_getpc_b64 s[92:93]")
        a.raw("L_pc:")
        a("s_sub_u32 s92, s92, L_pc-fused_kernel\ns_subb_u32 s93, s93, 0\ns_lshr_b32 s3, s2, 3\ns_lshl_b32 s3, s3, 2\ns_add_u32 s3, s3, s38\ns_lshl_b32 s3, s3, 8\nv_lshlrev_b32 v2, 7, v1\nv_add_u32 v2, s3, v2\ns_mov_b64 exec, 3")
        a("global_load_dword v213, v2, s[92:93]\ns_mov_b64 exec, -1")
    for i in range(0,96,2): a(f"v_mov_b64 {R(ACC+i,2)}, 0")
    def reads(sl, t2, fs):
        f=F[fs]; L=[]; b=4 if sl==2 else 0; o=SLOT if sl==1 else 0
        L.append(f"ds_read_b128 {R(f,4)}, v{vA+b+t2} offset:{o}")
        for c6 in range(6):
            for u in range(2):
                L.append(f"ds_read_b64_tr_b16 {R(f+16+4*c6+2*u,2)}, v{vW+b+(c6&1)} offset:{o+(32*t2+4*u)*128+(c6>>1)*8192}")
        for g in range(1,4): L.append(f"ds_read_b128 {R(f+4*g,4)}, v{vA+b+t2} offset:{o+g*2048}")
        return L
    def step(fs, rd, order=None):
        f=F[fs]; i=0
        for g,c6 in (order or [(g,c6) for g in range(4) for c6 in range(6)]):
            d=acc(g,c6)
            if c6<4: mfma(a, d, f+16+4*c6, f+4*g, d)
            else: mfma(a, d, f+4*g, f+16+4*c6, d)
            if rd is not None and i<len(rd): a(rd[i])
            i+=1
            if 'rd2' in EXP and rd is not None and i<len(rd) and i%3==0: a(rd[i]); i+=1
    a(f"s_lshl_b32 s3, s38, 2\ns_add_u32 s3, s3, {L_FLG}\nv_mov_b32 v2, s3\nv_mov_b32 v3, 0\nds_write_b32 v2, v3\nds_write_b32 v2, v3 offset:16")
    a("s_mov_b32 s86, 0\ns_mov_b32 s66, 0\ns_setprio 2\ns_waitcnt lgkmcnt(0)")
    AO=232
    ad = (f"v_and_b32 v2, 15, v1\nv_lshrrev_b32 v3, 4, v1\ns_lshl_b32 s3, s64, 8\ns_add_u32 s3, s3, {L_M}\nv_lshl_add_u32 v{AO}, v2, 2, s3\nv_lshl_add_u32 v{AO+1}, v3, 4, s3\n"
          f"v_lshrrev_b32 v7, 5, v1\nv_lshl_add_u32 v{AO+2}, v7, 6, v{AO}\n"
          f"s_lshl_b32 s3, s65, 7\ns_add_u32 s3, s3, {L_CS}\nv_lshl_add_u32 v{AO+3}, v3, 4, s3\nv_lshl_add_u32 v248, v2, 2, s3\n"
          f"s_lshl_b32 s3, s64, 7\ns_add_u32 s3, s3, {L_SQ}\nv_lshl_add_u32 v249, v3, 4, s3\nv_xor_b32 v253, 128, v249\n"
          f"v_lshrrev_b32 v250, 2, v1\nv_lshlrev_b32 v250, 6, v250\nv_and_b32 v251, 3, v1\nv_lshl_add_u32 v250, v251, 3, v250\ns_lshl_b32 s3, s65, 11\ns_add_u32 s3, s3, {L_PHI}\nv_add_u32 v252, s3, v250\n"
          f"v_bfe_u32 v5, v1, 1, 2\nv_lshlrev_b32 v5, 2, v5\nv_bfe_u32 v4, v1, 3, 1\nv_lshl_add_u32 v5, v4, 1, v5\nv_and_b32 v4, 1, v1\nv_add_u32 v5, v5, v4\nv_xor_b32 v5, v5, v3\n"
          f"s_lshl_b32 s3, s38, 13\ns_add_u32 s3, s3, {L_PHS}\nv_lshl_add_u32 v2, v2, 7, s3\nv_lshl_add_u32 v4, v5, 3, v2\nv_xor_b32 v5, 32, v4\nv_xor_b32 v6, 64, v4\nv_xor_b32 v7, 96, v4\n"
          f"v_bfe_u32 v2, v1, 3, 2\nv_lshlrev_b32 v2, 2, v2\nv_lshrrev_b32 v3, 5, v1\nv_lshl_add_u32 v2, v3, 1, v2\nv_bfe_u32 v3, v1, 2, 1\nv_add_u32 v2, v2, v3\nv_xor_b32 v2, v2, v251\n"
          f"v_lshrrev_b32 v3, 2, v1\nv_lshl_add_u32 v3, v3, 7, s3\nv_lshl_add_u32 v2, v2, 3, v3\ns_lshl_b32 s28, s64, 6\nv_xor_b32 v{vSR[0]}, s28, v2\nv_xor_b32 v{vSR[1]}, 32, v{vSR[0]}\n"
          f"s_lshl_b32 s3, s38, 12\ns_add_u32 s3, s3, {L_STG}\nv_lshlrev_b32 v{vLN}, 4, v1\nv_add_u32 v{vVS}, s3, v{vLN}\n"
          f"s_lshl_b32 s3, s37, 1\ns_add_u32 s67, s3, s65\ns_lshl_b32 s3, s67, 4\ns_add_u32 s3, s3, s36\ns_mul_i32 s3, s3, {KVS}\ns_add_u32 s75, s3, {WS_KVP}\ns_lshl_b32 s3, s64, 11\ns_add_u32 s74, s75, s3\ns_lshl_b32 s3, s64, 6\ns_add_u32 s75, s75, s3\ns_add_u32 s75, s75, 4096\n"
          f"s_lshl_b32 s3, s37, 4\ns_add_u32 s3, s3, s36\ns_lshl_b32 s3, s3, 7\ns_add_u32 s3, s3, {WS_RDY}\ns_cmp_lg_u32 s38, 0\ns_cselect_b32 s76, {WS_SIZE}, s3").split("\n")
    ad = a.capture(lambda: xaddr(a, 236, 237, 238)) + [f"v_xor_b32 v{236+ct}, {32*ct}, v236" for ct in range(1,4)] + ad
    for x in ad: a(x)
    stamp(a,1)
    if 'ln4' not in EXP: ln_code(a)
    a("s_barrier")
    stamp2(a,8)
    for r in reads(0,0,0): a(r)
    for ct in range(4): a(f"ds_read_b64 {R(PX+2*ct,2)}, v{236+ct}")
    a("s_waitcnt lgkmcnt(4)\ns_branch L_cmid")
    a.raw(".p2align 6")
    a("L_cloop:")
    for sl in range(3):
        if sl==opt('lnb',4)%3 and 'ln4' in EXP: a(f"s_cmp_eq_u32 s66, {opt('lnb',4)//3}\ns_cbranch_scc1 L_ln\nL_lnr:")
        a("s_waitcnt lgkmcnt(0)\ns_barrier")
        step(1, reads(sl,0,0))
        a("s_waitcnt lgkmcnt(0)\ns_nop 0")
        if sl==0: a("L_cmid:")
        step(0, reads(sl,1,1)+(["s_add_u32 s66, s66, 1\ns_cmp_lt_u32 s66, 5"] if sl==2 else []))
    a("s_cbranch_scc1 L_cloop")
    xr = [f"ds_read_b64 {R(PX+2*ct,2)}, v{236+ct}" for ct in range(4)]
    r1=[]; r2=[]
    for g in range(4): r1.append(f"ds_read_b32 v{ML[g]}, v{AO} offset:{64*g}")
    for c in range(2): r1.append(f"ds_read_b128 {R(CSK+4*c,4)}, v{AO+3} offset:{256+64*c}")
    for c in range(2): r1.append(f"ds_read_b128 {R(CSQ+4*c,4)}, v{AO+3} offset:{64*c}")
    for ft in range(2):
        for v in range(2): r2.append(f"ds_read_b64_tr_b16 {R(PHI+4*ft+2*v,2)}, v252 offset:{1024*v+32*ft}")
    a("s_nop 0\ns_waitcnt lgkmcnt(0)\ns_barrier")
    step(1, reads(0,0,0)+r1)
    a("s_waitcnt lgkmcnt(8)\ns_nop 0")
    step(0, reads(0,1,1)+r2)
    rd=["s_barrier"]
    for g in (0,2): rd.append(f"ds_read_b128 {R(MV+4*g,4)}, v{AO+1} offset:{64*g}\nds_read_b128 {R(MV+4*g+4,4)}, v{AO+1} offset:{64*g+64}")
    rd.append(f"ds_read_b32 v{CSV[1]}, v248 offset:576\nds_read_b32 v{CSV[0]}, v248 offset:512")
    for g in (0,2): rd.append(f"ds_read_b32 v{CC[g]}, v{AO} offset:{2048+64*g}\nds_read_b32 v{CC[g+1]}, v{AO} offset:{2048+64*g+64}")
    for h in range(2): rd.append(f"ds_read_b32 v{CCP[h]}, v{AO+2} offset:{2048+128*h}\nds_read_b32 v{RLP[h]}, v{AO+2} offset:{1024+128*h}")
    kc=[]
    for g in range(4):
        r=acc(g,2)
        kc+=[f"v_fma_f32 v{r+i}, -v{ML[g]}, v{CSK+i}, v{r+i}" for i in range(8)]
        kc+=[f"v_cvt_pk_bf16_f32 v{r+i}, v{r+2*i}, v{r+2*i+1}" for i in range(4)]
    for i in range(16): rd.append("\n".join(kc[3*i:3*i+3]))
    a("s_waitcnt lgkmcnt(4)")
    step(1, rd, [(g,c6) for cs in ((2,3),(4,5),(0,1)) for g in range(4) for c6 in cs])
    for ks in range(2): a(f"ds_read_b128 {R(SQF+4*ks,4)}, v249 offset:{64*ks}")
    a("s_waitcnt lgkmcnt(2)")
    stamp2(a,24)
    VL='vearly' not in EXP
    def vcorr():
        for g in range(4):
            for dt in range(2):
                for i in (0,2):
                    r=acc(g,4+dt)+i
                    a(f"v_pk_fma_f32 {R(r,2)}, {R(MV+4*g+i,2)}, {R(CSV[dt],2)}, {R(r,2)} op_sel_hi:[1,0,1] neg_lo:[1,0,0] neg_hi:[1,0,0]")
        for ks in range(2):
            for dt in range(2):
                d=acc(2*ks,4+dt); e=acc(2*ks+1,4+dt)
                a(f"v_cvt_pk_bf16_f32 v{d}, v{d}, v{d+1}\nv_cvt_pk_bf16_f32 v{d+1}, v{d+2}, v{d+3}\nv_cvt_pk_bf16_f32 v{d+2}, v{e}, v{e+1}\nv_cvt_pk_bf16_f32 v{d+3}, v{e+2}, v{e+3}")
                if not VL: a(f"ds_write_b128 v{vVS}, {R(d,4)} offset:{2048*ks+1024*dt}")
        for ks in range(2): a(f"ds_read_b128 {R(MV+4*ks,4)}, v253 offset:{64*ks}")
    AF=[232,CSK]; BK=None
    KVt=[144,152,acc(0,2)]
    PA_=128
    def tail(g, pm, Eb):
        for ft in range(2): a(f"ds_write_b64 v{4+2*pm+ft}, {R(Eb+2*ft,2)} offset:{2048*g}")
        if VL and g<2: a(f"ds_write_b128 v{vVS}, {R(acc(2*g,4+pm),4)} offset:{2048*g+1024*pm}")
        if g&1 and pm:
            ks=g>>1
            for ft in range(2):
                for v in range(2): a(f"ds_read_b64_tr_b16 {R(AF[ks]+4*ft+2*v,2)}, v{vSR[ft]} offset:{4096*ks+2048*v}")
    def kvm(k4):
        ks=k4&1; own=k4<2; L=[]
        for dt in range(3):
            for ft in range(2):
                d=KVt[dt]+4*ft
                Bo=(acc(2*ks+(0 if own else 1),4+dt) if dt<2 else (SQF if own else MV)+4*ks)
                L.append(f"v_mfma_f32_16x16x32_bf16 {R(d,4)}, {R((AF[ks] if own else PA_+8*ks)+4*ft,4)}, {R(Bo,4)}, {R(d,4) if k4 else '0'}")
        return L
    k0=kvm(0); k0[0]="s_waitcnt lgkmcnt(0)\ns_nop 0\n"+k0[0]
    CH=opt('ch',2)
    def hook(k):
        if k==CH: a(f"s_mov_b64 exec, 1\nbuffer_store_dword v251, v{vLN}, s[{SWS}:{SWS+3}], s76 offen sc1\ns_mov_b64 exec, -1")
    EP,EM = feature(a, BK, 2, True, mid1=vcorr, tail=tail, fillB=k0, hook=hook)
    stamp(a,34)
    a(f"v_xor_b32 v{vSR[0]}, 0x2000, v{vSR[0]}\nv_xor_b32 v{vSR[1]}, 0x2000, v{vSR[1]}\nv_xor_b32 v{vVS}, 0x1000, v{vVS}\ns_waitcnt lgkmcnt(4)\ns_barrier")
    for ks in range(2):
        for ft in range(2):
            for v in range(2): a(f"ds_read_b64_tr_b16 {R(PA_+8*ks+4*ft+2*v,2)}, v{vSR[ft]} offset:{4096*ks+2048*v}")
        for dt in range(2): a(f"ds_read_b128 {R(acc(2*ks+1,4+dt),4)}, v{vVS} offset:{2048*ks+1024*dt}")
    for k4 in range(1,4):
        a(f"s_waitcnt lgkmcnt({(12,6,0)[k4-1]})")
        for x in kvm(k4): a(x)
    stamp(a,33)
    for ft in range(2):
        for v in range(2): a(f"ds_read_b64_tr_b16 {R(PHI+4*ft+2*v,2)}, v252 offset:{L_PHQ-L_PHI+1024*v+32*ft}")
    a(f"s_xor_b32 s67, s67, {2*QX}\ns_lshl_b32 s3, s38, 2\ns_add_u32 s3, s3, {L_FLG}\nv_mov_b32 v4, s3\nv_mov_b32 v5, 1")
    for j in range(3):
        b=KVt[j]
        for i in range(4): a(f"v_cvt_pk_bf16_f32 v{b+i}, v{b+2*i}, v{b+2*i+1}")
        if j<2: a(f"buffer_store_dwordx4 {R(b,4)}, v{vLN}, s[{SWS}:{SWS+3}], s74 offen offset:{1024*j} sc1")
    a("s_mov_b32 exec_lo, 0x00010001\ns_mov_b32 exec_hi, 0x00010001")
    a(f"buffer_store_dwordx4 {R(KVt[2],4)}, v1, s[{SWS}:{SWS+3}], s75 offen sc1\ns_mov_b64 exec, -1\nds_write_b32 v4, v5")
    stamp(a,25)
    a("s_setprio 0")
    corrT(a, 0, CSQ, BK)
    a("s_waitcnt lgkmcnt(1)")
    EP,EM = feature(a, BK, 0, False)
    stamp(a,26)
    KF=104; ZF=120
    key_rd(a, 248)
    a("v_lshrrev_b32 v5, 3, v1\nv_lshlrev_b32 v6, 11, v5\nv_bfe_u32 v5, v1, 4, 2\nv_lshlrev_b32 v5, 1, v5\nv_and_b32 v7, 7, v1\nv_xor_b32 v5, v5, v7\nv_lshl_add_u32 v6, v5, 4, v6\ns_lshl_b32 s3, s35, 7\nv_add_u32 v6, s3, v6")
    for e in range(4): a(f"v_add_u32 v{216+e}, {e*15360}, v6")
    a("s_lshl_b32 s72, s38, 12\ns_lshl_b32 s73, s38, 16")
    stat3(a, 193, 192)
    a(f"s_mul_i32 s76, s67, {KVS}\ns_add_u32 s76, s76, {WS_KVR}\nv_lshlrev_b32 v5, 4, v1\nv_and_b32 v6, 48, v1\nv_add_u32 v6, 4096, v6")
    a(f"s_lshl_b32 s3, s38, 2\ns_add_u32 s3, s3, {L_FLG}\nv_mov_b32 v3, s3\nL_gw:\nds_read_b32 v2, v3\ns_waitcnt lgkmcnt(0)\nv_readfirstlane_b32 s3, v2\ns_cmp_eq_u32 s3, 3\ns_cbranch_scc1 L_gk\n{LSL}s_branch L_gw\nL_gk:")
    stamp(a,35)
    SG='slate' not in EXP
    if SG: silu_prep(a, PG, PX, 193, 192, 196)
    if opt('h2d',0): a(f"s_sleep {opt('h2d',0)}")
    def ld_h2():
        for j in range(4): a(f"buffer_load_dwordx4 {R(KF+4*j,4)}, v5, s[{SWS}:{SWS+3}], s76 offen offset:{1024*j} sc1")
        for pm in range(2): a(f"buffer_load_dwordx4 {R(ZF+4*pm,4)}, v6, s[{SWS}:{SWS+3}], s76 offen offset:{64*pm} sc1")
    ld_h2()
    key_fin(a, 248)
    a(f"s_lshl_b32 s3, s36, 3\ns_lshl_b32 s28, s64, 2\ns_add_u32 s3, s3, s28\ns_lshl_b32 s3, s3, 5\ns_add_u32 s3, s3, s67\ns_lshl_b32 s77, s3, 10\ns_add_u32 s77, s77, {WS_O}")
    c_wo(a,'hb')
    a(f"s_waitcnt vmcnt({4*len(PLC.get('hb',[]))})")
    stamp(a,36)
    if 'h2m' in EXP:
        L=a.capture(ld_h2)
        def rl():
            for j,x in enumerate(L):
                maxu(a, 2, range(KF+4*j,KF+4*j+4))
                a(f"v_cmp_eq_u32 vcc, -1, v2\ns_cbranch_vccz L_hm{j}\ns_mov_b64 exec, vcc\n{x}\ns_mov_b64 exec, -1\nL_hm{j}:")
        checked(a, "L_k7", range(KF,KF+24), rl, sleep=0)
    else: checked(a, "L_k7", range(KF,KF+24), ld_h2)
    a("s_setprio 2")
    c_wo(a,'c2')
    stamp(a,27)
    def om(g):
        N=acc(g,2); L=[]
        for pm,Eb in ((0,EP[g]),(1,EM[g])): L.append(f"v_mfma_f32_16x16x32_bf16 {R(N+8,4)}, {R(ZF+4*pm,4)}, {R(Eb,4)}, {R(N+8,4) if pm else '0'}")
        for dt in range(2):
            for pm,Eb in ((0,EP[g]),(1,EM[g])): L.append(f"v_mfma_f32_16x16x32_bf16 {R(N+4*dt,4)}, {R(KF+8*pm+4*dt,4)}, {R(Eb,4)}, {R(N+4*dt,4) if pm else '0'}")
        return L
    def od(g): N=acc(g,2); return [f"v_add_f32 v{N+8}, 0x358637bd, v{N+8}", f"v_rcp_f32 v{N+8}, v{N+8}"]
    def ov(g, pk):
        N=acc(g,2)
        L=[f"v_pk_mul_f32 {R(N+i,2)}, {R(N+i,2)}, {R(N+8,2)} op_sel_hi:[1,0]" for i in range(0,8,2)] if pk else [f"v_mul_f32 v{N+i}, v{N+i}, v{N+8}" for i in range(8)]
        L+=[f"v_cvt_pk_bf16_f32 v{N+i}, v{N+2*i}, v{N+2*i+1}" for i in range(4)]
        L+=[f"buffer_store_dwordx4 {R(N,4)}, v5, s[{SWS}:{SWS+3}], s77 offen sc1"]+(["s_add_u32 s77, s77, 32768"] if g<3 else [])
        return L
    if 'noopipe' not in EXP:
        for x in om(0): a(x)
        for g in range(1,4):
            M=om(g); V_=od(g-1)+ov(g-1,False)
            for x in M[:2]+zipl(M[2:], V_, 3): a(x)
        for x in od(3)+ov(3,True): a(x)
    else:
        for g in range(4):
            N=acc(g,2)
            for pm,Eb in ((0,EP[g]),(1,EM[g])):
                mfma(a, N+8, ZF+4*pm, Eb, N+8 if pm else None)
                for dt in range(2): mfma(a, N+4*dt, KF+8*pm+4*dt, Eb, N+4*dt if pm else None)
        for g in range(4): a(f"v_add_f32 v{acc(g,2)+8}, 0x358637bd, v{acc(g,2)+8}")
        for g in range(4): a(f"v_rcp_f32 v{acc(g,2)+8}, v{acc(g,2)+8}")
        for g in range(4):
            N=acc(g,2)
            for i in range(0,8,2): a(f"v_pk_mul_f32 {R(N+i,2)}, {R(N+i,2)}, {R(N+8,2)} op_sel_hi:[1,0]")
            for i in range(4): a(f"v_cvt_pk_bf16_f32 v{N+i}, v{N+2*i}, v{N+2*i+1}")
            a(f"buffer_store_dwordx4 {R(N,4)}, v5, s[{SWS}:{SWS+3}], s77 offen sc1")
            if g<3: a("s_add_u32 s77, s77, 32768")
    a(f"v_mov_b32 v2, 7\nds_write_b32 v3, v2\ns_and_b32 s3, s68, 127\ns_lshl_b32 s3, s3, 2\ns_add_u32 s3, s3, {L_M}\nv_mov_b32 v2, s3\nds_read_b32 v250, v2\nds_read_b32 v251, v2 offset:1024")
    stamp(a,28)
    a("s_setprio 0")
    wait7(a, "L_cw")
    c_wo(a,'co')
    if not SG: silu_prep(a, PG, PX, 193, 192, 196)
    if opt('cpd',0): a(f"s_sleep {opt('cpd',0)}")
    stamp(a,29)

def p3(a):
    a("L_p3:")
    a.pad(4)
    D=opt('d3',5)
    PA=8; PB=40; PW=PB+8*D; vW=PW+32; vB=vW+4
    srd(a, SB, 22, 2048*2048)
    a(f"s_lshr_b32 s64, s39, 2\ns_lshl_b32 s3, s34, 2\ns_add_u32 s3, s3, s38\ns_lshl_b32 s3, s3, 16\ns_lshl_b32 s28, s64, 14\ns_add_u32 s3, s3, s28\ns_add_u32 s76, s3, {WS_O}")
    a(f"s_lshl_b32 s3, s64, 15\nv_lshlrev_b32 v2, 4, v1\nv_add_u32 v{vB}, s3, v2\nv_xor_b32 v{vB+1}, 0x8000, v{vB}")
    a(f"v_lshrrev_b32 v2, 2, v1\nv_lshlrev_b32 v2, 7, v2\nv_bfe_u32 v3, v1, 3, 2\nv_lshl_add_u32 v2, v3, 5, v2\nv_and_b32 v3, 3, v1\nv_lshl_add_u32 v2, v3, 3, v2\ns_lshl_b32 s3, s64, 16\nv_add_u32 v{vW}, s3, v2")
    for ct in range(1,4): a(f"v_xor_b32 v{vW+ct}, {32*ct}, v{vW}")
    ROT='prot' in EXP
    vWr=196
    if ROT:
        for k in range(4):
            a(f"s_and_b32 s3, s35, 3\ns_xor_b32 s3, s3, {k}\ns_lshl_b32 s{79+k}, s3, 10\ns_add_u32 s{79+k}, s{79+k}, s76\ns_lshl_b32 s3, s3, 12")
            for ct in range(4): a(f"v_add_u32 v{vWr+4*k+ct}, s3, v{vW+ct}")
    def ldx(j, b, sreg):
        if ROT: a(f"s_add_u32 s{sreg}, s{79+(j&3)}, {(j&~3)*1024}")
        for e in range(2): a(f"buffer_load_dwordx4 {R(b+4*e,4)}, v{vB+e}, s[{SWS}:{SWS+3}], s{sreg} offen offset:{0 if ROT else (j%4)*1024} sc1")
    def ld(j):
        b=PB+8*(j%D)
        if j%4==0 and not ROT: a(f"s_add_u32 s77, s76, {j*1024}")
        ldx(j,b,77)
    def wr(j):
        b=PW+16*(j%2)
        if ROT: return [f"ds_read_b64_tr_b16 {R(b+4*ct+2*v,2)}, v{vWr+4*(j&3)+ct} offset:{(j&~3)*4096+v*2048}" for ct in range(4) for v in range(2)]
        return [f"ds_read_b64_tr_b16 {R(b+4*ct+2*v,2)}, v{vW+ct} offset:{j*4096+v*2048}" for ct in range(4) for v in range(2)]
    for j in range(D-1): ld(j)
    stamp2(a,30)
    a(f"s_lshr_b32 s3, s68, 7\ns_xor_b32 s83, s3, s34\ns_or_b32 s83, s83, s39")
    YL=128; IS=250
    a("v_lshlrev_b32 v222, 4, v1")
    def ld_y():
        for j in range(16):
            if j%4==0: a(f"s_add_u32 s3, s78, {j*1024}")
            a(f"buffer_load_dwordx4 {R(YL+4*j,4)}, v222, s[{SWS}:{SWS+3}], s3 offen offset:{(j%4)*1024} sc1")
    def fix1():
        a(f"L_fx1:\ns_lshl_b32 s78, s35, 14\ns_add_u32 s78, s78, {WS_Y}")
        a(f"v_and_b32 v2, 15, v1\nv_lshrrev_b32 v3, 4, v1\nv_lshl_add_u32 v193, v2, 2, v3\nv_and_b32 v2, 7, v193\nv_lshrrev_b32 v193, 3, v193\nv_lshl_add_u32 v193, v2, 3, v193\nv_lshlrev_b32 v2, 1, v193\ns_lshl_b32 s3, s68, 11\ns_lshl_b32 s28, s35, 7\ns_add_u32 s3, s3, s28\nbuffer_load_ushort v194, v2, s[{SX}:{SX+3}], s3 offen")
        ld_y()
        a("s_branch L_fx1r")
    def fix2():
        a("L_fx2:\ns_and_b32 s3, s70, 0xffff0000\ns_xor_b32 s28, s3, 0x80000000\ns_not_b32 s29, s3\ns_and_b32 s29, s29, 0xffff0000\ns_bitcmp1_b32 s3, 31\ns_cselect_b32 s3, s28, s29")
        a(f"v_mov_b32 v195, s3\nv_mul_f32 v195, 0xbfb8aa3b, v195\nv_exp_f32 v195, v195\nv_add_f32 v195, 1.0, v195\nv_rcp_f32 v195, v195")
        rne(a,195,195)
        checked(a, "L_k6", range(YL,YL+64), ld_y, sleep=4)
        for k in (8,4,2,1):
            for i in range(0,4*k,2): a(f"v_pk_add_f32 {R(YL+i,2)}, {R(YL+i,2)}, {R(YL+4*k+i,2)}")
        for i in range(2): a(f"v_permlane32_swap_b32 v{YL+i}, v{YL+2+i}")
        for i in range(2): a(f"v_add_f32 v{YL+i}, v{YL+i}, v{YL+2+i}")
        a(f"v_permlane16_swap_b32 v{YL}, v{YL+1}\nv_add_f32 v{YL}, v{YL}, v{YL+1}")
        rne(a,YL,YL)
        a(f"v_mul_f32 v{YL}, v{YL}, v195\nv_lshlrev_b32 v194, 16, v194\nv_sub_f32 v194, v194, v{IS}")
        rne(a,YL,YL); rne(a,194,194)
        a(f"v_mul_f32 v194, v194, v{IS+1}")
        rne(a,194,194)
        a(f"v_add_f32 v{YL}, v{YL}, v194")
        rne(a,YL,YL)
        a(f"v_mul_f32 v2, 0xbfb8aa3b, v{YL}\nv_exp_f32 v2, v2\nv_add_f32 v2, 1.0, v2\nv_rcp_f32 v2, v2\nv_mul_f32 v2, v{YL}, v2\nv_lshlrev_b32 v3, 2, v193\nds_write_b32 v3, v2\ns_branch L_fx2r")
    for r in wr(0): a(r)
    a("s_mov_b32 s29, 0")
    BC=opt('bc',7)
    def chk(j):
        b=PB+8*(j%D)
        return a.capture(lambda: maxu(a, 2, range(b,b+8)))+["v_cmp_eq_u32 vcc, -1, v2"]
    a(f"s_waitcnt vmcnt({2*(D-2)})")
    for x in chk(0): a(x)
    for j in range(16):
        b=PB+8*(j%D); w=PW+16*(j%2)
        a(f"s_cbranch_vccnz L_r{j}\nL_g{j}:")
        if 'pst' in EXP and j%4==0: stamp2(a,40+j//4)
        if a.down and j==opt('jd',4): a("s_cmp_eq_u32 s64, 1\ns_cbranch_scc1 L_dn\nL_dnr:")
        if j==opt('fxj',14): a("s_cmp_eq_u32 s83, 0\ns_cbranch_scc1 L_fx1\nL_fx1r:")
        a("s_waitcnt lgkmcnt(0)")
        if 'bal' in EXP and j in (0,5,9,13): a(f"s_setprio {3-(j//4)}")
        if 'bal2' in EXP and j in (0,8,12,14): a(f"s_setprio {dict(zip((0,8,12,14),(3,2,1,0)))[j]}")
        if BC==3:
            if j==3: a("s_barrier")
        elif j in (opt('bh',3),BC): a(f"s_cmp_eq_u32 s64, {0 if j!=BC else 1}\ns_cbranch_scc1 L_nb{j}\ns_barrier\nL_nb{j}:")
        S=[[] for _ in range(8)]
        if j<15:
            rd=wr(j+1)
            for i in range(4): S[i]=rd[2*i:2*i+2]
            if j+D-1<16: S[4]=a.capture(lambda: ld(j+D-1))
            c=chk(j+1)
            S[5]=[f"s_waitcnt vmcnt({2*min(D-2,14-j)})"]+c[:1]; S[6]=c[1:3]; S[7]=c[3:]
        i=0
        for ct in range(4):
            for e in range(2):
                d=PA+16*e+4*ct
                mfma(a, d, w+4*ct, b+4*e, d if j else None)
                for x in S[i]: a(x)
                i+=1
    stamp2(a,31)
    if STAMPS: a(f"v_writelane_b32 v{VST-1}, s29, 58")
    a("s_cmp_eq_u32 s83, 0\ns_cbranch_scc1 L_fx2\nL_fx2r:")
    a(f"s_lshl_b32 s3, s39, 12\ns_add_u32 s3, s3, {L_STG}\nv_lshlrev_b32 v2, 4, v1\nv_add_u32 v2, s3, v2\nv_xor_b32 v3, 0x4000, v2\ns_xor_b32 s28, s3, 0x4000")
    for ct in range(4): a(f"ds_write_b128 v2, {R(PA+16+4*ct,4)} offset:{1024*ct}")
    XF=40
    for d in range(8): unpack(a, XF+2*d, PX+d)
    a(f"v_and_b32 v4, 15, v1\nv_lshrrev_b32 v5, 4, v1\nv_lshlrev_b32 v6, 1, v4\nv_and_b32 v6, 14, v6\nv_xor_b32 v5, v5, v6\nv_lshl_add_u32 v4, v4, 7, s28\nv_lshl_add_u32 v4, v5, 3, v4")
    a(f"v_lshrrev_b32 v5, 3, v1\nv_and_b32 v6, 7, v1\nv_xor_b32 v7, v6, v5\nv_lshl_add_u32 v7, v7, 4, s28\nv_lshl_add_u32 v7, v5, 7, v7")
    a(f"s_lshl_b32 s3, s34, 7\ns_add_u32 s3, s3, s69\nv_add_u32 v5, s3, v5\nv_lshlrev_b32 v5, 11, v5\nv_lshl_add_u32 v5, v6, 4, v5\ns_lshl_b32 s3, s35, 7\ns_add_u32 s28, s3, 16384")
    a(f"s_lshl_b32 s29, s34, 7\ns_add_u32 s29, s29, s69\ns_andn2_b32 s77, s68, 15\ns_cmp_lg_u32 s29, s77")
    a("s_waitcnt lgkmcnt(0)\ns_barrier")
    a(f"s_cbranch_scc1 L_nov\nv_and_b32 v2, 48, v1\ns_and_b32 s29, s68, 15\ns_lshl_b32 exec_lo, 0x00010001, s29\ns_mov_b32 exec_hi, exec_lo")
    for ct in range(4): a(f"ds_read_b128 {R(PG+4*ct,4)}, v2 offset:{64*ct}")
    a("s_mov_b64 exec, -1\nL_nov:")
    stamp(a,60)
    for ct in range(4): a(f"ds_read_b128 {R(PA+16+4*ct,4)}, v3 offset:{1024*ct}")
    for ct in range(4):
        a(f"s_waitcnt lgkmcnt({3-ct})")
        for i in (0,2): a(f"v_pk_add_f32 {R(PA+4*ct+i,2)}, {R(PA+4*ct+i,2)}, {R(PA+16+4*ct+i,2)}")
        for i in (0,2): a(f"v_pk_fma_f32 {R(XF+4*ct+i,2)}, {R(PA+4*ct+i,2)}, {R(PG+4*ct+i,2)}, {R(XF+4*ct+i,2)}")
        for i in (0,1): a(f"v_cvt_pk_bf16_f32 v{PA+2*ct+i}, v{XF+4*ct+2*i}, v{XF+4*ct+2*i+1}")
    for ct in range(4):
        if ct: a(f"v_xor_b32 v6, {32*ct}, v4")
        a(f"ds_write_b64 v{6 if ct else 4}, {R(PA+2*ct,2)}")
    for e in range(2): a(f"ds_read_b128 {R(PA+16+4*e,4)}, v7 offset:{1024*e}")
    OM = '' if 'outplain' in EXP else ' nt' if 'outnt' in EXP else ' sc1 nt' if 'outsn' in EXP else ' sc0 sc1' if 'outss' in EXP else ' sc1'
    for e in range(2):
        a(f"s_waitcnt lgkmcnt({1-e})\nbuffer_store_dwordx4 {R(PA+16+4*e,4)}, v5, s[{SB}:{SB+3}], s{28 if e else 3} offen{OM}")
    stamp(a,61)
    if STAMPS: a("s_waitcnt vmcnt(0)")
    stamp(a,32)
    dump(a)
    if LEAK>=0: a("s_memrealtime s[98:99]\ns_waitcnt lgkmcnt(0)\ns_sub_u32 s94, s94, s96\ns_add_u32 s94, s94, s98\nL_lk:\ns_sleep 1\ns_memrealtime s[98:99]\ns_waitcnt lgkmcnt(0)\ns_cmp_lt_u32 s98, s94\ns_cbranch_scc1 L_lk")
    a("L_done:\ns_endpgm")
    if 'ln4' in EXP: ln_code(a)
    fix1(); fix2()
    if a.down:
        a("L_dn:")
        if 'dprio' in EXP: a("s_setprio 3")
        a.down('dprio' not in EXP)
        if 'dprio' in EXP: a("s_setprio 0")
        a("s_branch L_dnr")
    for j in range(16):
        b=PB+8*(j%D)
        a(f"L_r{j}:\ns_add_u32 s29, s29, 1\ns_cmp_ge_u32 s29, {SPIN}\ns_cbranch_scc1 L_g{j}\ns_add_u32 s3, s76, {(j&~3)*1024}")
        ldx(j,b,3)
        a("s_waitcnt vmcnt(0)")
        for x in chk(j): a(x)
        a(f"s_cbranch_vccnz L_r{j}\ns_branch L_g{j}")

def kern(a):
    kernel_header(a, "fused_kernel")
    a("s_cmp_ge_u32 s2, 256\ns_cbranch_scc1 L_done")
    a("s_load_dwordx16 s[4:19], s[0:1], 0\ns_load_dwordx8 s[20:27], s[0:1], 64")
    if STAMPS or LEAK>=0: a("s_memrealtime s[96:97]\ns_memrealtime s[94:95]")
    a("v_and_b32 v1, 63, v0\nv_lshrrev_b32 v2, 6, v0")
    a("v_readfirstlane_b32 s39, v2")
    a("s_and_b32 s34, s2, 1\ns_lshl_b32 s34, s34, 3\ns_bfe_u32 s3, s2, 0x30003\ns_add_u32 s36, s34, s3")
    a("s_bfe_u32 s37, s2, 0x20001\ns_lshl_b32 s37, s37, 2\ns_lshr_b32 s28, s2, 6\ns_add_u32 s37, s37, s28")
    a("s_and_b32 s80, s37, 12\ns_xor_b32 s80, s80, s34\ns_add_u32 s85, s36, s37\ns_and_b32 s85, s85, 3\ns_or_b32 s35, s80, s85\ns_mov_b32 s34, s36")
    a("s_and_b32 s38, s39, 3")
    a("s_cmp_lt_u32 s39, 4\ns_cbranch_scc1 L_C")
    h_waves(a)
    c_waves(a)
    p3(a)
    return kernel_desc("fused_kernel", 256, 102)

if __name__ == "__main__":
    a=CAsm()
    head = open('/code/%s.s.ref'%NAME).read().split('\n')
    hdr = [l for l in head if l.startswith(';') and '@launch' not in l and 'Override launch' not in l and 'grid=ceil' not in l]
    out='\n'.join(hdr)+"\n; @launch kernel=fused_kernel grid=(256,1,1) block=(512,1,1) lds=163840\n"
    out+='.amdgcn_target "amdgcn-amd-amdhsa--gfx950"\n.text\n'
    d=kern(a)
    if 'noal' not in EXP:
        import align
        a.lines,nw,nn = align.align(a.lines, '.amdgcn_target "amdgcn-amd-amdhsa--gfx950"\n.text\n')
    out+=a.text()+".p2align 8\n.fill 4096, 4, 0xbf800000\n"+'.section .rodata,"a"\n.p2align 6\n'+d
    if 'official' in EXP:
        out = out.replace("; @launch kernel=fused_kernel grid=", "; @launch grid=").replace("fused_kernel", NAME+"_kernel")
    open(sys.argv[1],"w").write(out)
```

```python
import sys, os
from asmgen import Asm, kernel_header, kernel_desc
NAME = "recurrent_scan__linear_kernel_hedgehog__moe_arch_mod__prompt"
EXP = os.environ.get('EXP','').split(',')
STAMPS = 'st' in EXP or 'lite' in EXP
LITE = 'lite' in EXP
def opt(name, default):
    for e in EXP:
        if e.startswith(name+'='): return int(e.split('=')[1])
    return default
WS_SIZE = 0x10000000
WS_REC  = 0x000000
WS_EPO  = 0x004000
WS_RDY  = 0x008000
KVS     = 4224
WS_FILL = 0x100000
WS_CSP  = 0x080000
WS_KVR  = WS_FILL
WS_GU   = WS_KVR + 32*KVS
WS_Y    = WS_GU + 16*3584*4
WS_KV2  = WS_Y + 16*64*256
assert WS_KV2 + 32*KVS <= WS_FILL + 1024*768
WS_O    = 0x400000
WS_KVP  = 0x800000
WS_DBG  = 0x3000000
SLOT = 40960
L_PHS  = 98304
L_WR   = 122880
L_STG  = 131072
LM     = 147456
L_PHI  = LM+256
L_M    = LM+4096+512
L_R    = L_M+1024
L_RC   = L_R+1024
L_SQ   = L_RC+512
L_CS   = L_SQ+256
L_PHQ  = LM+8192+256
L_KEY  = LM+8192+256+6144
L_FLG  = L_KEY+64
assert L_CS+768 <= LM+8192 and L_FLG+32 <= 163840
NT = opt('nt',1)
PLC = {}
for it_ in os.environ.get('PLC','i0:k0;i1:k1,k2;i3:a,p,t,G0004;i5:o0;i6:o1;i8:o2,o3;i9:b0;j10:b1;j14:G0412;x0:w0,w1,w4,G1219;x2:w2,w3,w5;h0:G1923;co:w6,w7').split(';'):
    PLC.setdefault(it_.split(':')[0],[]).extend(it_.split(':')[1].split(','))
FNT = '' if 'fplain' in EXP else ' nt'
TNT = ' nt' if 'tnt' in EXP else ''
STAG = 'nostag' not in EXP
def korder(c):
    TT=[[0,0,0,0],[4,1,2,3],[8,5,6,7],[12,9,10,11]] if opt('so',0)==0 else [[0,0,0,0],[4,2,3,4],[8,5,6,7],[12,9,10,11]] if opt('so',0)==1 else [[0,0,0,0],[4,4,4,4],[8,5,6,7],[12,9,10,11]]
    res=[None]*16
    for b in range(4): res[TT[b][c]]=4*b+c
    rest=sorted([(TT[b][k],(k-c)&3,4*b+k) for b in range(4) for k in range(4) if k!=c])
    for i in range(16):
        if res[i] is None:
            t,_,sl=rest.pop(0); assert t<i; res[i]=sl
    return res, TT[1][c]
OWN = 'own' in EXP
def cmap(c): return ((c&3)<<1 | c>>2) if OWN else c
LSL = '' if 'tight' in EXP else 's_sleep 1\n'
ARR = opt('arr',8)
RX = opt('rx',0)
QX = opt('qx',4)
LNP = 3
DPPM = "row_mask:0xf bank_mask:0xf"
LOG2E = 0x3fb8aa3b
SPIN = 200000
SX, SW, SWS, SA, SB, SC = 40, 44, 48, 52, 56, 60
VST = 255
LNX = 192

def srd(a, d, base, size):
    a(f"s_mov_b32 s{d}, s{base}\ns_mov_b32 s{d+1}, s{base+1}\ns_mov_b32 s{d+2}, {size}\ns_mov_b32 s{d+3}, 0x00020000")
LEAK = opt('leak',-1)
def stamp(a, i):
    if i==LEAK: a("s_memrealtime s[94:95]")
    if STAMPS and (i==32 or not LITE): a(f"s_memrealtime s[100:101]\ns_waitcnt lgkmcnt(0)\nv_writelane_b32 v{VST}, s100, {i}")
def stamp2(a, i):
    if i==LEAK: a("s_memrealtime s[94:95]")
    if STAMPS and not LITE: a(f"s_memrealtime s[100:101]\ns_memtime s[98:99]\ns_waitcnt lgkmcnt(0)\nv_writelane_b32 v{VST}, s100, {i}\nv_writelane_b32 v{VST-1}, s98, {i}")
def dump(a):
    if STAMPS: a(f"s_lshl_b32 s3, s2, 3\ns_add_u32 s3, s3, s39\ns_lshl_b32 s3, s3, 9\ns_add_u32 s3, s3, {WS_DBG}\nv_lshlrev_b32 v2, 3, v1\nbuffer_store_dwordx2 v[{VST-1}:{VST}], v2, s[{SWS}:{SWS+3}], s3 offen")
def rne(a, dst, src):
    a(f"v_cvt_pk_bf16_f32 v{dst}, v{src}, v{src}\nv_lshlrev_b32 v{dst}, 16, v{dst}")
def R(b, n): return f"v[{b}:{b+n-1}]"
def unpack(a, dst, src):
    a(f"v_lshlrev_b32 v{dst}, 16, v{src}\nv_and_b32 v{dst+1}, 0xffff0000, v{src}")
def mfma(a, d, A, B, c=None):
    a(f"v_mfma_f32_16x16x32_bf16 {R(d,4)}, {R(A,4)}, {R(B,4)}, {'0' if c is None else R(c,4)}")

class CAsm(Asm):
    cap=None
    def __call__(self, text):
        if self.cap is not None: self.cap += [t for t in text.strip().split('\n') if t.strip()]
        else: super().__call__(text)
    def capture(self, f):
        self.cap=[]; f(); r=self.cap; self.cap=None; return r

class VM:
    def __init__(self, a, nt=1): self.a=a; self.nt=nt; self.q=[[] for _ in range(nt)]; self.only=None; self.nl=0
    def issue(self, tag, n=1):
        for c in range(self.nt):
            if self.only is None or c in self.only: self.q[c] += [tag]*n
    def wait(self, tag):
        need={}
        for c in range(self.nt):
            q=self.q[c]
            if tag in q and (self.only is None or c in self.only):
                idx=max(i for i,t in enumerate(q) if t==tag); need[c]=len(q)-1-idx; self.q[c]=q[idx+1:]
        if not need: return
        allc=[c for c in range(self.nt) if self.only is None or c in self.only]
        base=max(need.values()) if len(need)==len(allc) else None
        if base is not None: self.a(f"s_waitcnt vmcnt({min(base,63)})")
        for c,n in need.items():
            if n!=base:
                self.nl+=1
                self.a(f"s_cmp_lg_u32 s85, {c}\ns_cbranch_scc1 L_vw{self.nl}\ns_waitcnt vmcnt({min(n,63)})\nL_vw{self.nl}:")
    def drain(self): self.a("s_waitcnt vmcnt(0)"); self.q=[[] for _ in range(self.nt)]
    def cond(self, classes, f):
        classes=set(classes)
        if not classes: return
        if len(classes)==self.nt: f(); return
        self.nl+=1; l=f"L_vc{self.nl}"
        if len(classes)==1: self.a(f"s_cmp_lg_u32 s85, {list(classes)[0]}\ns_cbranch_scc1 {l}")
        else:
            for c in set(range(self.nt))-classes: self.a(f"s_cmp_eq_u32 s85, {c}\ns_cbranch_scc1 {l}")
        self.only=classes; f(); self.only=None
        self.a(f"{l}:")

def maxu(a, dst, regs):
    regs=list(regs)
    if len(regs)==1: a(f"v_mov_b32 v{dst}, v{regs[0]}"); return
    if len(regs)==2: a(f"v_max_u32 v{dst}, v{regs[0]}, v{regs[1]}"); return
    a(f"v_max3_u32 v{dst}, v{regs[0]}, v{regs[1]}, v{regs[2]}"); regs=regs[3:]
    while len(regs)>=2: a(f"v_max3_u32 v{dst}, v{dst}, v{regs[0]}, v{regs[1]}"); regs=regs[2:]
    if regs: a(f"v_max_u32 v{dst}, v{dst}, v{regs[0]}")

def checked(a, lbl, regs, reload, t=2, sleep=1):
    a(f"s_mov_b32 s29, 0\n{lbl}:")
    maxu(a, t, regs)
    a(f"v_cmp_eq_u32 vcc, -1, v{t}\ns_cbranch_vccz {lbl}k\ns_add_u32 s29, s29, 1\ns_cmp_ge_u32 s29, {SPIN}\ns_cbranch_scc1 {lbl}k")
    if sleep: a(f"s_sleep {sleep}")
    reload()
    a(f"s_waitcnt vmcnt(0)\ns_branch {lbl}\n{lbl}k:")
    if STAMPS: a(f"v_writelane_b32 v{VST-1}, s29, {50+int(lbl[3:])}")

def red8(a, e):
    for i in range(4): a(f"v_permlane32_swap_b32 v{e+i}, v{e+4+i}")
    for i in range(4): a(f"v_add_f32 v{e+i}, v{e+i}, v{e+4+i}")
    for i in range(2): a(f"v_permlane16_swap_b32 v{e+i}, v{e+2+i}")
    for i in range(2): a(f"v_add_f32 v{e+i}, v{e+i}, v{e+2+i}")
    for i in range(2): a(f"v_add_f32 v{e+i}, v{e+i}, v{e+i} row_ror:8 {DPPM}")

def silu_prep(a, PG, PX, vm_, vr, T):
    assert vr%2==0 and T%2==0
    a(f"v_mul_f32 v{T}, v{vm_}, v{vr}\nv_mov_b32 v{T+2}, 0xbfb8aa3b")
    E=T+4
    for d in range(8): unpack(a, PG+2*d, PX+d)
    for i in range(0,16,2): a(f"v_pk_fma_f32 {R(PG+i,2)}, {R(PG+i,2)}, {R(vr,2)}, {R(T,2)} op_sel_hi:[1,0,0] neg_lo:[0,0,1] neg_hi:[0,0,1]")
    for i in range(0,16,2): a(f"v_pk_mul_f32 {R(E+i,2)}, {R(PG+i,2)}, {R(T+2,2)} op_sel_hi:[1,0]")
    for i in range(16): a(f"v_exp_f32 v{E+i}, v{E+i}")
    for i in range(0,16,2): a(f"v_pk_add_f32 {R(E+i,2)}, {R(E+i,2)}, 1.0 op_sel_hi:[1,0]")
    for i in range(16): a(f"v_rcp_f32 v{E+i}, v{E+i}")
    for i in range(0,16,2): a(f"v_pk_mul_f32 {R(PG+i,2)}, {R(PG+i,2)}, {R(E+i,2)}")

PG, PX = 224, 240
def xaddr(a, dst, t0=2, t1=3):
    a(f"s_lshl_b32 s3, s38, 1\ns_lshr_b32 s28, s39, 2\ns_add_u32 s3, s3, s28\ns_lshl_b32 s69, s3, 4")
    a(f"v_and_b32 v{t0}, 15, v1\nv_add_u32 v{dst}, s69, v{t0}\nv_lshlrev_b32 v{dst}, 7, v{dst}\nv_lshrrev_b32 v{t0}, 1, v{t0}\nv_lshrrev_b32 v{t1}, 5, v1\nv_xor_b32 v{t0}, v{t0}, v{t1}\nv_lshl_add_u32 v{dst}, v{t0}, 4, v{dst}\nv_bfe_u32 v{t1}, v1, 4, 1\nv_lshl_add_u32 v{dst}, v{t1}, 3, v{dst}")
def stat3(a, vm_, vr):
    a(f"v_and_b32 v2, 15, v1\nv_add_u32 v2, s69, v2\nv_lshlrev_b32 v2, 2, v2\nv_add_u32 v2, {L_M}, v2\nds_read_b32 v{vm_}, v2\nds_read_b32 v{vr}, v2 offset:1024")

def rperm(a):
    rw=opt('rw',0); ro=opt('ro',0)
    if OWN: a(f"s_xor_b32 s3, s37, {QX}\ns_lshr_b32 s3, s3, 2\ns_lshl_b32 s3, s3, 1\ns_xor_b32 s3, s3, {opt('ox',0)}"); return
    a(f"s_and_b32 s3, s36, {rw}")
    if ro==1: a("s_and_b32 s28, s35, 1\ns_lshl_b32 s28, s28, 1\ns_xor_b32 s3, s3, s28")
    if ro==2: a("s_and_b32 s28, s35, 1\ns_xor_b32 s3, s3, s28")
    if ro==3: a("s_and_b32 s28, s35, 3\ns_xor_b32 s3, s3, s28")
def wait7(a, l):
    a(f"v_and_b32 v3, 3, v1\nv_lshlrev_b32 v3, 2, v3\nv_add_u32 v3, {L_FLG}, v3\n{l}:\nds_read_b32 v2, v3\ns_waitcnt lgkmcnt(0)\nv_cmp_ne_u32 vcc, 7, v2\ns_cbranch_vccz {l}k\n{LSL}s_branch {l}\n{l}k:")
def key_rd(a, v):
    a(f"v_mov_b32 v2, {L_KEY}\nds_read_b32 v{v}, v2")
def key_fin(a, v):
    a(f"s_waitcnt lgkmcnt(0)\nv_readfirstlane_b32 s70, v{v}\ns_and_b32 s68, s70, 0x7ff\ns_sub_u32 s68, 2047, s68")

def h_waves(a):
    vm = VM(a, NT)
    vA=8; vW=12; vCS=18; vF=21; vD=22; vXo=23
    CSA=24; CSL=32; XF=80
    FW=128; DW=192; FA=120; SENT=248; vL16=252; vP64=253
    a("L_H:")
    a("v_and_b32 v4, 7, v1\ns_lshl_b32 s33, s37, 7\ns_lshl_b32 s87, s85, 7\ns_lshl_b32 s66, s80, 7")
    def w_addr():
        a("s_lshr_b32 s32, s36, 1\ns_and_b32 s32, s32, 2\ns_xor_b32 s32, s32, s38\nv_lshrrev_b32 v3, 3, v1")
        a("s_lshl_b32 s3, s32, 4\nv_add_u32 v7, s3, v3\nv_mul_u32_u24 v7, 6144, v7")
        a("v_bfe_u32 v6, v1, 4, 1\nv_lshlrev_b32 v6, 1, v6\nv_xor_b32 v5, v4, v6\nv_add_u32 v7, s33, v7\nv_xor_b32 v6, 4, v5\nv_lshl_add_u32 v6, v6, 4, v7\nv_lshl_add_u32 v7, v5, 4, v7")
        for e in range(6): a(f"v_add_u32 v{vW+e}, {(e>>1)*2048 + (e&1)*(8*6144-1024)}, v{6 if e&1 else 7}")
        for e in range(2): a(f"v_xor_b32 v{vW+e}, {QX*128}, v{vW+e}")
        a(f"s_lshl_b32 s31, s32, 11\ns_add_u32 s31, s31, 16384")
    def a_addr():
        a("s_lshl_b32 s3, s36, 7\ns_lshl_b32 s28, s38, 5\ns_add_u32 s3, s3, s28")
        a("v_add_u32 v3, s3, v3\nv_lshlrev_b32 v3, 11, v3")
        a("v_lshrrev_b32 v5, 4, v1\nv_xor_b32 v6, v4, v5\nv_xor_b32 v5, 4, v6")
        a("v_lshl_add_u32 v6, v6, 4, v3\nv_lshl_add_u32 v5, v5, 4, v3")
        for j in range(4): a(f"v_add_u32 v{vA+j}, {j*16384 - j*1024}, v{5 if j&1 else 6}")
    a("s_lshl_b32 s30, s38, 12")
    FAST=opt('fast',2)
    if FAST<2: w_addr()
    if FAST<1: a_addr()
    a("s_waitcnt lgkmcnt(0)")
    srd(a, SX, 4, 2048*2048)
    if FAST<2: srd(a, SW, 6, 1024*3072*2)
    def tiles(s, wfirst=False, part=None):
        sl=(s%3)*SLOT
        def A_():
            a(f"s_add_u32 m0, s30, {sl}")
            for j in range(4): a(f"buffer_load_dwordx4 v{vA+j}, s[{SX}:{SX+3}], s64 offen offset:{j*1024}{TNT if s%4==0 else ''} lds")
        def W_():
            for e in range(6):
                if e%2==0: a(f"s_add_u32 m0, s31, {sl+(e>>1)*8192}")
                a(f"buffer_load_dwordx4 v{vW+e}, s[{SW}:{SW+3}], s65 offen offset:{(e&1)*1024}{TNT if s%4==0 else ''} lds")
        if STAG and s>0: a(f"s_bfe_u32 s64, s{94+(s>>3)}, {(4<<16)|(4*(s&7))}\ns_lshl_b32 s64, s64, 7\ns_xor_b32 s64, s64, s66\ns_mul_i32 s65, s64, 3072")
        elif 'b2' in EXP and s<4: a(f"s_add_u32 s64, s87, {(s&1)*128}\ns_and_b32 s64, s64, 255\ns_or_b32 s64, s64, {(s>>1)*256}\ns_xor_b32 s64, s64, s66\ns_mul_i32 s65, s64, 3072")
        else: a(f"s_add_u32 s64, s87, {(s&3)*128}\ns_and_b32 s64, s64, 511\ns_or_b32 s64, s64, {(s>>2)*512}\ns_xor_b32 s64, s64, s66\ns_mul_i32 s65, s64, 3072")
        if part=='W': W_(); vm.issue(('t',s),6); return
        if part=='A': A_(); vm.issue(('t',s),4); return
        if wfirst: W_(); A_()
        else: A_(); W_()
        vm.issue(('t',s),10)
    def fill_addr():
        a(f"s_lshr_b32 s3, s38, 1\ns_lshl_b32 s28, s37, 1\ns_add_u32 s28, s28, s3\ns_and_b32 s29, s38, 1")
        a(f"s_lshl_b32 s3, s28, 4\ns_add_u32 s3, s3, s36\ns_mul_i32 s3, s3, {KVS}\ns_mul_i32 s78, s29, {KVS//2}\ns_add_u32 s78, s78, s3\ns_add_u32 s78, s78, {WS_KVP}")
        a(f"s_lshl_b32 s3, s36, 1\ns_add_u32 s29, s29, s3\ns_xor_b32 s28, s28, {2*QX}\ns_lshl_b32 s3, s29, 7\ns_add_u32 s3, s3, s28\ns_lshl_b32 s3, s3, 10\ns_add_u32 s79, s3, {WS_O}")
    def fillk(i0_,i1_):
        if 'nofill' in EXP: return
        for i in range(i0_,i1_):
            if i<2: a(f"buffer_store_dwordx4 {R(SENT,4)}, v{vL16}, s[{SWS}:{SWS+3}], s78 offen offset:{i*1024} sc1")
            else: a(f"s_mov_b64 exec, 15\nbuffer_store_dwordx4 {R(SENT,4)}, v{vL16}, s[{SWS}:{SWS+3}], s78 offen offset:2048 sc1\ns_mov_b64 exec, -1")
            vm.issue('own',1)
    def fillo(i):
        if 'nofill' in EXP: return
        a(f"s_add_u32 s3, s79, {i*32768}\nbuffer_store_dwordx4 {R(SENT,4)}, v{vL16}, s[{SWS}:{SWS+3}], s3 offen sc1")
        vm.issue('own',1)
    def xrows(h):
        a(f"s_lshl_b32 s3, s36, 7\ns_lshl_b32 s28, s37, 3\ns_add_u32 s3, s3, s28\ns_lshl_b32 s3, s3, 11\ns_add_u32 s3, s3, s30\ns_add_u32 m0, s30, {L_STG}")
        for i in (h,h+2): a(f"buffer_load_dwordx4 v{vL16}, s[{SX}:{SX+3}], s3 offen offset:{1024*i}{' nt' if 'xnt' in EXP else ''} lds")
        vm.issue('xr',2)
        if h==0: return
        srd(a, SC, 14, 2048)
        a(f"s_lshl_b32 s3, s38, 9\ns_add_u32 m0, s3, {L_WR}\ns_mov_b32 exec_hi, 0\nbuffer_load_dwordx4 v{vL16}, s[{SC}:{SC+3}], s3 offen lds\ns_mov_b64 exec, -1")
        vm.issue('xr',1)
    LN0=True
    if LN0: a(f"v_lshlrev_b32 v{vL16}, 4, v1")
    PRO=os.environ.get('PRO','e,W0,A0,s,t1' if 'ln4' in EXP else 'e,x,W0,s,A0,l,t1').split(',')
    def pro(L):
      for p in L:
        if p=='e':
            if STAMPS: a(f"v_mov_b32 v{VST-1}, 0\nv_writelane_b32 v{VST}, s96, 0")
            srd(a, SWS, 26, WS_SIZE)
            a(f"v_mov_b32 v19, {WS_EPO}\nbuffer_load_dword v19, v19, s[{SWS}:{SWS+3}], 0 offen sc1"); vm.issue('epo',1)
            stamp(a,1)
        elif p=='x':
            xrows(0); xrows(1)
            if FAST==2: w_addr(); srd(a, SW, 6, 1024*3072*2)
        elif p=='l': vm.wait('xr'); a('s_barrier')
        elif p[0] in 'WA': tiles(int(p[1]), part=p[0])
        elif p[0]=='t' and len(p)==2: tiles(int(p[1]))
        else: place1(p)
    pro(PRO[:PRO.index('s')])
    if FAST>=1: a_addr()
    for i in range(4): a(f"v_mov_b32 v{SENT+i}, -1")
    a(f"v_lshlrev_b32 v{vL16}, 4, v1\ns_and_b32 s85, s85, {NT-1}")
    a(f"s_lshl_b32 s3, s37, 4\ns_add_u32 s3, s3, s36\ns_lshl_b32 s67, s3, 10\ns_add_u32 s67, s67, {WS_CSP}\ns_lshl_b32 s3, s38, 8\ns_add_u32 s67, s67, s3")
    for i in range(8): a(f"v_mov_b32 v{CSA+i}, 0")
    a(f"v_lshlrev_b32 v{vP64}, 2, v1")
    KY=64; ST=72; CG=80; PW=224
    a("s_cmp_gt_u32 s37, 3\ns_subb_u32 s77, s37, 0\ns_cmp_gt_u32 s37, 11\ns_subb_u32 s77, s77, 0\ns_lshl_b32 s77, s77, 4\ns_add_u32 s77, s77, s36\ns_and_b32 s3, s37, 7\ns_cmp_eq_u32 s3, 3\ns_cselect_b32 s77, 224, s77")
    a(f"s_bitcmp1_b32 s38, 0\ns_cselect_b32 s{SA}, s18, s16\ns_cselect_b32 s{SA+1}, s19, s17\ns_cmp_lt_u32 s77, 224\ns_cselect_b32 s{SA+2}, {1024*3584*2}, 0\ns_mov_b32 s{SA+3}, 0x00020000")
    srd(a, SB, 20, 3584*1024*2)
    a("s_and_b32 s3, s77, 3\ns_lshl_b32 s3, s3, 8\ns_lshr_b32 s28, s38, 1\ns_lshl_b32 s28, s28, 7\ns_add_u32 s3, s3, s28\nv_lshrrev_b32 v5, 3, v1\nv_lshl_add_u32 v6, v5, 4, s3")
    a(f"v_mul_u32_u24 v6, 7168, v6\nv_lshl_add_u32 v6, v4, 4, v6\ns_lshr_b32 s3, s77, 2\ns_lshl_b32 s3, s3, 7\nv_add_u32 v{vF}, s3, v6")
    a("s_lshr_b32 s3, s2, 4\ns_mul_i32 s3, s3, 224\ns_mul_i32 s28, s38, 56\ns_add_u32 s71, s3, s28")
    a(f"v_lshlrev_b32 v6, 14, v5\nv_lshl_add_u32 v6, v4, 4, v6\ns_and_b32 s3, s2, 15\ns_lshl_b32 s3, s3, 7\nv_add_u32 v{vD}, s3, v6")

    def cs_addr():
        a(f"v_bfe_u32 v5, v1, 4, 1\nv_lshlrev_b32 v5, 5, v5\nv_xor_b32 v5, v5, v{vL16}\ns_min_u32 s3, s38, 2\ns_lshl_b32 s3, s3, 13\ns_and_b32 s28, s36, 4\ns_lshl_b32 s28, s28, 10\ns_add_u32 s3, s3, s28\ns_add_u32 s3, s3, 16384\nv_add_u32 v{vCS}, s3, v5")
    def cs_rd(s_):
        a(f"v_add_u32 v2, {(s_%3)*SLOT}, v{vCS}\nv_xor_b32 v3, 64, v2")
        for i in range(4): a(f"ds_read_b128 {R(CSL+16*(s_>>2)+4*i,4)}, v{2+(i&1)} offset:{1024*i}")
    def colsum(q):
        for j in range(2):
            for d in range(4):
                t=2+2*(d&1)
                unpack(a, t, CSL+8*q+4*j+d)
                a(f"v_add_f32 v{CSA+2*d}, v{CSA+2*d}, v{t}\nv_add_f32 v{CSA+2*d+1}, v{CSA+2*d+1}, v{t+1}")
    def cs_red():
        red8(a, CSA)
    def cs_pub():
        a(f"v_and_b32 v2, 8, v1\nv_cmp_eq_u32 vcc, 0, v2\nv_cndmask_b32 v{CSA}, v{CSA+1}, v{CSA}, vcc\ns_cmp_eq_u32 s38, 3\ns_cselect_b64 exec, -1, 0\nv_mov_b32 v{CSA}, s70\ns_mov_b64 exec, -1")
        a(f"buffer_store_dword v{CSA}, v{vP64}, s[{SWS}:{SWS+3}], s67 offen sc1")
        vm.issue('pub',1)
    RDY=118
    def nonce():
        vm.wait('epo')
        a("v_readfirstlane_b32 s86, v19\ns_mul_i32 s86, s86, 1664525\ns_add_u32 s86, s86, 1013904223")
    def ready_st():
        a(f"s_lshl_b32 s3, s37, 4\ns_add_u32 s3, s3, s36\ns_lshl_b32 s3, s3, 7\ns_add_u32 s3, s3, {WS_RDY}\ns_cmp_lg_u32 s38, 0\ns_cselect_b32 s3, {WS_SIZE}, s3\nv_mov_b32 v2, s86\ns_mov_b64 exec, 1\nbuffer_store_dword v2, v{vL16}, s[{SWS}:{SWS+3}], s3 offen sc1\ns_mov_b64 exec, -1")
        vm.issue('rs',1)
    def rdy_addr():
        a(f"v_and_b32 v2, 15, v1\nv_bfe_u32 v3, v1, 4, 1\nv_mul_u32_u24 v3, {opt('hx',QX)^RX}, v3\nv_xor_b32 v3, s37, v3\nv_xor_b32 v3, {RX}, v3\nv_lshl_add_u32 v3, v3, 4, v2\nv_lshl_add_u32 v2, v2, 4, s34\nv_lshrrev_b32 v4, 1, v1\nv_and_b32 v4, 8, v4\nv_xor_b32 v2, v2, v4\nv_cmp_gt_u32 vcc, 32, v1\nv_cndmask_b32 v2, v2, v3, vcc\nv_lshlrev_b32 v113, 7, v2")
    def ready_poll(l, lo, hi):
        a(f"s_mov_b32 s3, {WS_RDY}\ns_mov_b32 s29, 0\ns_mov_b32 exec_lo, {lo}\ns_mov_b32 exec_hi, {hi}\n{l}:\nbuffer_load_dword v{RDY}, v113, s[{SWS}:{SWS+3}], s3 offen sc1\ns_waitcnt vmcnt(0)")
        a(f"v_cmp_ne_u32 vcc, s86, v{RDY}\ns_cbranch_vccz {l}k\ns_mov_b64 exec, vcc\ns_add_u32 s29, s29, 1\ns_cmp_lt_u32 s29, {SPIN}\ns_cbranch_scc1 {l}\n{l}k:\ns_mov_b64 exec, -1")
        if STAMPS and lo: a(f"v_writelane_b32 v{VST-1}, s29, 50")
    def tagged(l, regs, reload, after=None):
        a(f"s_mov_b32 s29, 0\n{l}:\nv_cmp_ne_u32 vcc, s86, v{regs[0]}")
        for r in regs[1:]: a(f"v_cmp_ne_u32 s[92:93], s86, v{r}\ns_or_b64 vcc, vcc, s[92:93]")
        a(f"s_cbranch_vccz {l}k\ns_add_u32 s29, s29, 1\ns_cmp_ge_u32 s29, {SPIN}\ns_cbranch_scc1 {l}k\ns_sleep 2")
        reload()
        a("s_waitcnt vmcnt(0)")
        if after: after()
        a(f"s_branch {l}\n{l}k:")
        if STAMPS: a(f"v_writelane_b32 v{VST-1}, s29, {51 if l=='L_k1' else 50}")
    def epoch_st():
        a(f"s_or_b32 s3, s2, s38\ns_cmp_lg_u32 s3, 0\ns_cselect_b32 s3, {WS_SIZE}, {WS_EPO}" if 0 else f"s_or_b32 s3, s2, s38\ns_mov_b32 s28, {WS_EPO}\ns_cmp_lg_u32 s3, 0\ns_cselect_b32 s3, {WS_SIZE}, s28")
        a(f"v_mov_b32 v2, s86\ns_mov_b64 exec, 1\nbuffer_store_dword v2, v{vL16}, s[{SWS}:{SWS+3}], s3 offen sc1\ns_mov_b64 exec, -1")
        vm.issue('es',1)
    def ld_f1():
        a(f"s_lshl_b32 s3, s36, 10\nbuffer_load_dwordx4 {R(ST,4)}, v{vL16}, s[{SWS}:{SWS+3}], s3 offen sc1\ns_lshl_b32 s3, s37, 6\nbuffer_load_dword v{ST+4}, v{PW+8}, s[{SWS}:{SWS+3}], s3 offen offset:12 sc1")
    def fetch1(): ld_f1(); vm.issue('f1',2)
    def val1():
        vm.wait('f1'); tagged("L_k1", [ST+3,ST+4], ld_f1)
    def wmax(v, lanes=(0,16,32,48)):
        a(f"v_readlane_b32 s70, v{v}, {lanes[0]}\nv_readlane_b32 s3, v{v}, {lanes[1]}\nv_readlane_b32 s28, v{v}, {lanes[2]}\nv_readlane_b32 s29, v{v}, {lanes[3]}\ns_max_u32 s70, s70, s3\ns_max_u32 s28, s28, s29\ns_max_u32 s70, s70, s28")
    def proc1():
        for m in ("quad_perm:[1,0,3,2]", "quad_perm:[2,3,0,1]", "row_half_mirror", "row_mirror"):
            a(f"v_max_u32 v{ST+2}, v{ST+2}, v{ST+2} {m} {DPPM}")
        for e in range(2): a(f"v_and_b32 v{2+e}, 0xffff0000, v{ST+e}\nv_lshlrev_b32 v{PW+e}, 16, v{ST+e}")
        for e in range(2): a(f"v_rcp_f32 v{PW+2+e}, v{2+e}")
        a(f"v_lshrrev_b32 v2, 16, v2\nv_or_b32 v{PW+12}, v2, v3")
        for e in range(2): a(f"v_mul_f32 v{PW+4+e}, {LOG2E}, v{PW+2+e}")
        wmax(ST+2)
    def ld_cs(ks=range(4)):
        a(f"s_lshl_b32 s3, s37, 14\ns_add_u32 s3, s3, {WS_CSP}")
        for k in ks: a(f"s_add_u32 s28, s3, {4096*k}\nbuffer_load_dwordx4 {R(CG+4*k,4)}, v{PW+11}, s[{SWS}:{SWS+3}], s28 offen sc1")
    def fetch2(h):
        if h<2: ld_cs((2*h,2*h+1)); vm.issue('f2',2)
        else: ld_cs((h-2,)); vm.issue('f2',1)
    def addr1():
        a(f"v_lshrrev_b32 v2, 2, v1\nv_and_b32 v3, 3, v1\nv_lshlrev_b32 v3, 4, v3\nv_lshl_add_u32 v{PW+8}, v2, 10, v3\nv_lshlrev_b32 v2, 3, v1\nv_add_u32 v{PW+6}, {L_M}, v2")
        a(f"v_and_b32 v4, 49, v1\nv_bfe_u32 v7, v1, 1, 2\nv_lshl_add_u32 v4, v7, 2, v4\nv_bfe_u32 v7, v1, 3, 1\nv_lshl_add_u32 v4, v7, 1, v4\nv_lshlrev_b32 v4, 2, v4\nv_add_u32 v{PW+7}, {L_SQ}, v4")
    def addr2():
        a(f"s_mul_i32 s3, s38, 48\nv_and_b32 v2, 15, v1\nv_lshrrev_b32 v3, 4, v1\nv_cmp_gt_u32 vcc, 12, v2\nv_lshl_add_u32 v4, v2, 2, s3\nv_add_u32 v2, v4, v3\nv_mov_b32 v5, 192\nv_cndmask_b32 v4, v5, v4, vcc\nv_lshlrev_b32 v4, 2, v4\nv_lshl_add_u32 v{PW+11}, v3, 10, v4")
        a(f"v_and_b32 v5, 7, v2\nv_bfe_u32 v6, v2, 3, 3\nv_lshl_add_u32 v5, v5, 3, v6\nv_and_b32 v2, 0xc0, v2\nv_add_u32 v2, v2, v5\nv_lshlrev_b32 v2, 2, v2\nv_add_u32 v2, {L_CS}, v2\nv_mov_b32 v5, {L_KEY}\nv_cndmask_b32 v{PW+9}, v5, v2, vcc")
    def all_w():
        a(f"ds_write_b32 v{PW+9}, v{CG}\ns_lshl_b32 s3, s38, 4\ns_lshl_b64 exec, 0xffff, s3")
        a(f"ds_write_b64 v{PW+6}, {R(PW,2)}\nds_write_b64 v{PW+6}, {R(PW+2,2)} offset:1024\nds_write_b64 v{PW+6}, {R(PW+4,2)} offset:2048\nds_write_b32 v{PW+7}, v{PW+12}\ns_mov_b64 exec, -1")
    XR=64; IS=116; XSF=96
    def idx_xs():
        a("s_and_b32 s68, s70, 0x7ff\ns_sub_u32 s68, 2047, s68")
        a(f"s_lshl_b32 s3, s68, 11\ns_and_b32 s28, s77, 3\ns_lshl_b32 s28, s28, 9\ns_add_u32 s3, s3, s28\ns_lshr_b32 s28, s38, 1\ns_lshl_b32 s28, s28, 8\ns_add_u32 s3, s3, s28")
        a(f"v_lshrrev_b32 v3, 3, v1\nv_lshlrev_b32 v3, 5, v3\nbuffer_load_dwordx4 {R(XR,4)}, v3, s[{SX}:{SX+3}], s3 offen\nbuffer_load_dwordx4 {R(XR+4,4)}, v3, s[{SX}:{SX+3}], s3 offen offset:16")
        a(f"s_lshr_b32 s3, s68, 1\ns_lshl_b32 s3, s3, 4\ns_and_b32 s28, s68, 1\ns_lshl_b32 s28, s28, 2\ns_add_u32 s3, s3, s28\nv_mov_b32 v3, 0\nbuffer_load_dword v{IS}, v3, s[{SWS}:{SWS+3}], s3 offen sc1")
        vm.issue('xs',3)
    def val2():
        vm.wait('f2')
        checked(a, "L_k2", range(CG,CG+16), ld_cs)
    def proc2():
        maxu(a, 2, [CG,CG+4,CG+8,CG+12])
        for k in (2,1):
            for i in range(4*k): a(f"v_add_f32 v{CG+i}, v{CG+i}, v{CG+4*k+i}")
        wmax(2, (12,28,44,60))
        for i in range(2): a(f"v_permlane32_swap_b32 v{CG+i}, v{CG+2+i}")
        for i in range(2): a(f"v_add_f32 v{CG+i}, v{CG+i}, v{CG+2+i}")
        a(f"v_permlane16_swap_b32 v{CG}, v{CG+1}\nv_add_f32 v{CG}, v{CG}, v{CG+1}")
    def proc2b():
        a(f"s_mov_b32 exec_lo, 0xf000f000\ns_mov_b32 exec_hi, 0xf000f000\nv_mov_b32 v{CG}, s70\ns_mov_b64 exec, -1")
    def xs_norm(part):
        if part==0:
            vm.wait('xs')
            a(f"v_and_b32 v5, 0xffff0000, v{IS}\nv_lshlrev_b32 v{IS}, 16, v{IS}\nv_rcp_f32 v{IS+1}, v5")
            for d in range(8): unpack(a, XSF+2*d, XR+d)
            a(f"v_mul_f32 v119, v{IS}, v{IS+1}")
        else:
            for i in range(16): a(f"v_fma_f32 v{XSF+i}, v{XSF+i}, v{IS+1}, -v119")
            for i in range(8): a(f"v_mov_b32 v{FA+i}, 0")
    def ffn_ld(i0,i1):
        if 'noffn' in EXP: return
        for i in range(i0,i1):
            if i<16: a(f"s_mov_b32 s3, {i*7168}\nbuffer_load_dwordx4 {R(FW+4*i,4)}, v{vF}, s[{SA}:{SA+3}], s3 offen{FNT}")
            else: a(f"s_lshr_b32 s3, s71, 3\ns_add_u32 s3, s3, {i-16}\ns_and_b32 s28, s3, 7\ns_lshr_b32 s3, s3, 3\ns_lshl_b32 s3, s3, 6\ns_add_u32 s3, s3, s28\ns_lshl_b32 s3, s3, 11\nbuffer_load_dwordx4 {R(FW+4*i,4)}, v{vD}, s[{SB}:{SB+3}], s3 offen{FNT}")
            vm.issue(('g',i),1)
    def ffn_mac(i0,i1,pk=False):
        if i1<=i0: return
        vm.wait(('g',i1-1))
        for i in range(i0,i1):
            for d in range(4):
                t=2+2*(d&1)
                unpack(a, t, FW+4*i+d)
                if pk:
                    if i%2 and d==0: a(f"v_mov_b32 v{XSF+i-1}, v{XSF+i}")
                    a(f"v_pk_fma_f32 {R(FA+2*d,2)}, {R(t,2)}, {R(XSF+(i&~1),2)}, {R(FA+2*d,2)} op_sel_hi:[1,0,1]")
                else:
                    a(f"v_fmac_f32 v{FA+2*d}, v{t}, v{XSF+i}\nv_fmac_f32 v{FA+2*d+1}, v{t+1}, v{XSF+i}")
    def phi_ld():
        srd(a, SC, 8, 65536)
        a(f"s_lshl_b32 s3, s38, 10\ns_add_u32 m0, s3, {L_PHI}\ns_lshl_b32 s28, s37, 12\ns_add_u32 s3, s3, s28\nbuffer_load_dwordx4 v{vL16}, s[{SC}:{SC+3}], s3 offen lds")
        if QX: a(f"s_add_u32 m0, m0, {L_PHQ-L_PHI}\ns_xor_b32 s3, s3, {QX*4096}\nbuffer_load_dwordx4 v{vL16}, s[{SC}:{SC+3}], s3 offen lds")
        vm.issue('phi',2 if QX else 1)
    def wo_touch():
        a(f"s_lshl_b32 s3, s2, 13\ns_lshl_b32 s28, s38, 11\ns_add_u32 s3, s3, s28\nv_lshlrev_b32 v3, 7, v1\ns_mov_b64 exec, 0xffff\nbuffer_load_dword v20, v3, s[88:91], s3 offen\ns_mov_b64 exec, -1")
        vm.issue('wt',1)
    def x3_ld():
        for ct in range(4): a(f"v_xor_b32 v{4+ct}, {32*ct}, v{vXo}\nds_read_b64 {R(PX+2*ct,2)}, v{4+ct}")
    vWo=220
    def wo_setup():
        a("v_lshrrev_b32 v5, 3, v1\nv_lshlrev_b32 v6, 11, v5\nv_bfe_u32 v5, v1, 4, 2\nv_lshlrev_b32 v5, 1, v5\nv_and_b32 v7, 7, v1\nv_xor_b32 v5, v5, v7\nv_lshl_add_u32 v6, v5, 4, v6\ns_lshl_b32 s3, s35, 7\nv_add_u32 v6, s3, v6")
        for e in range(4): a(f"v_add_u32 v{vWo+e}, {e*15360}, v6")
        a("s_lshl_b32 s72, s38, 12\ns_lshl_b32 s73, s38, 16"); rperm(a); a("s_lshl_b32 s3, s3, 18\ns_or_b32 s73, s73, s3")
    def wo(c):
        a(f"s_add_u32 m0, s72, {c*16384}\ns_xor_b32 s3, s73, {cmap(c)*262144}")
        for e in range(4): a(f"buffer_load_dwordx4 v{vWo+e}, s[88:91], s3 offen offset:{e*1024} lds")
        vm.issue(('wo',c),4)
    T='T'
    M15=opt('m15',4)
    HL=48; HZ=32
    def post_setup():
        a(f"s_lshl_b32 s3, s36, 2\ns_add_u32 s3, s3, s38\ns_lshr_b32 s28, s3, 5\ns_and_b32 s3, s3, 31\ns_lshl_b32 s74, s3, 7\ns_lshl_b32 s3, s37, 1\ns_add_u32 s75, s3, s28\ns_xor_b32 s75, s75, {2*RX}")
        a(f"v_lshrrev_b32 v5, 3, v1\nv_mul_u32_u24 v5, {KVS}, v5\nv_and_b32 v7, 7, v1\nv_lshl_add_u32 v112, v7, 4, v5\nv_bfe_u32 v5, v1, 3, 1\ns_mov_b32 s28, {WS_KV2-WS_KVR}\nv_mul_lo_u32 v5, v5, s28\nv_lshl_add_u32 v114, v7, 4, v5")
        a(f"s_mul_i32 s76, s75, {16*KVS}\ns_add_u32 s76, s76, s74\ns_add_u32 s76, s76, {WS_KVP}\ns_mul_i32 s3, s75, {KVS}\ns_add_u32 s3, s3, s74\ns_add_u32 s74, s3, {WS_KVR}")
        a(f"s_xor_b32 s75, s37, {RX}\ns_lshl_b32 s75, s75, 1\ns_add_u32 s75, s75, s36\ns_mul_i32 s81, s75, {16*KVS}\ns_add_u32 s81, s81, {WS_KVP+4096}\ns_mul_i32 s82, s75, {KVS}\ns_add_u32 s82, s82, {WS_KVR+4096}")
        a(f"s_lshr_b32 s3, s36, 1\ns_or_b32 s83, s3, s38")
        a(f"s_and_b32 s3, s38, 1\ns_lshl_b32 s3, s3, 3\ns_and_b32 s28, s77, 3\ns_lshl_b32 s28, s28, 1\ns_add_u32 s3, s3, s28\ns_lshr_b32 s28, s38, 1\ns_add_u32 s3, s3, s28\ns_mul_i32 s3, s3, 14336\ns_lshr_b32 s28, s77, 2\ns_lshl_b32 s28, s28, 8\ns_add_u32 s3, s3, s28\ns_add_u32 s3, s3, {WS_GU}")
        a(f"s_cmp_lt_u32 s77, 224\ns_cselect_b32 s84, s3, {WS_SIZE}")
    P=lambda pos: (lambda: place(pos))
    def place(pos):
        for w in PLC.get(pos,[]): place1(w)
    def place1(w):
        if True:
            if w[0]=='w': wo(int(w[1]))
            elif w[0]=='k': fillk(int(w[1]),int(w[1])+1)
            elif w[0]=='o': fillo(int(w[1]))
            elif w[0]=='x': xrows(int(w[1]))
            elif w=='a': fetch1()
            elif w[0]=='b': fetch2(int(w[1]))
            elif w=='T':
                srd(a, SC, 22, 2048*2048)
                a(f"s_lshl_b32 s3, s34, 18\ns_mov_b64 exec, 1\nbuffer_load_dword v20, v{vL16}, s[{SC}:{SC+3}], s3 offen nt\ns_mov_b64 exec, -1"); vm.issue('tl',1)
            elif w=='U':
                a(f"s_mov_b32 exec_lo, 1\ns_mov_b32 exec_hi, 0x01000000\ns_lshl_b32 s3, s71, 11\nbuffer_load_dword v20, v{vF}, s[{SA}:{SA+3}], 0 offen nt\nbuffer_load_dword v20, v{vD}, s[{SB}:{SB+3}], s3 offen nt\nbuffer_load_dword v20, v{vWo}, s[88:91], 0 offen nt\ns_mov_b64 exec, -1"); vm.issue('tl',3)
            elif w[0]=='S': stamp(a,int(w[1:]))
            elif w=='D': vm.drain()
            elif w=='r': ready_st()
            elif w[0]=='s': a(f"s_sleep {int(w[1:])}")
            elif w[0]=='v': vm.wait(('wo',int(w[1])))
            elif w=='p': phi_ld()
            elif w=='t': wo_touch()
            elif w[0]=='G': ffn_ld(int(w[1:3]),int(w[3:5]))
            elif w[0]=='g': ffn_ld(8*int(w[1]), min(23,8*int(w[1])+8))
    M14=opt('m14',2)
    def lnbar():
        if LN0: return
        vm.wait('xr'); a("s_barrier")
    sched = {
        0: [lambda: cs_rd(0), T],
        1: [(lambda: colsum(0),)],
        2: [(lambda: colsum(1),)],
        3: [T],
        4: [lambda: cs_rd(4), T],
        5: [(lambda: colsum(2),)],
        6: [val1, (lambda: colsum(3),)],
        7: [proc1, cs_red, cs_pub, T],
        8: [T],
        9: [T],
        10:[T],
        11:[val2, proc2, proc2b, idx_xs, T],
        12:[T, epoch_st],
        13:[(lambda: xs_norm(0), lambda: xs_norm(1))],
        14:[P('j14'), (all_w if 'aw15' not in EXP else lambda: None), lambda: ffn_mac(0,M14), lambda: vm.wait('phi')],
        15:[(all_w if 'aw15' in EXP else lambda: None), x3_ld, P('j15'), lambda: ffn_mac(M14,M15), lambda: vm.wait('own'), lambda: vm.wait('phi')],
    }
    if 'ln4' in EXP:
        sched[opt('lnb',4)-2].append(lambda: vm.wait('xr'))
        if 'late' in EXP:
            sched[6]=[(lambda: colsum(3),)]; sched[7]=[cs_red, T]; sched[8]=[val1, (proc1,), cs_pub]
            sched[11]=[T]; sched[12]=[val2, (proc2,), proc2b, idx_xs]; sched[13]=[T, epoch_st]
            sched[14]=[P('j14'), all_w, lambda: xs_norm(0), lambda: xs_norm(1), lambda: vm.wait('phi')]
            M14=0
        else:
            sched[6]=[(lambda: colsum(3), cs_red)]; sched[7]=[val1, proc1, cs_pub, T]
    if 's2' in EXP:
        sched[7]=[(proc1, cs_red), cs_pub]; sched[11]=[val2, (proc2,), proc2b, idx_xs]
    if not set(EXP)&{'s1','s2','s3','s5','s6'}:
        sched[4]=[lambda: cs_rd(4), val1, proc1, T]; sched[6]=[(lambda: colsum(3),)]; sched[7]=[(cs_red,), cs_pub]
        sched[11]=[val2, (proc2,), proc2b]; sched[12]=[T, idx_xs]; sched[13]=[T, epoch_st]
        sched[14]=[P('j14'), all_w, lambda: xs_norm(0), lambda: xs_norm(1), lambda: vm.wait('phi')]; M14=0
    if 'v1' in EXP:
        sched[12]=[idx_xs, T, epoch_st]; sched[13]=[(lambda: xs_norm(0), lambda: xs_norm(1))]; sched[14]=[P('j14'), all_w, lambda: vm.wait('phi')]
    if 'v2' in EXP:
        sched[14]=[P('j14'), all_w, lambda: xs_norm(0), lambda: vm.wait('phi')]; sched[15].insert(1, lambda: xs_norm(1))
    if 'v3' in EXP:
        sched[12]=[idx_xs, T, epoch_st]; sched[13]=[(lambda: xs_norm(0), lambda: xs_norm(1))]; sched[14]=[all_w, P('j14'), lambda: vm.wait('phi')]
    if 's5' in EXP:
        sched[4]=[lambda: cs_rd(4), val1, proc1, T]; sched[6]=[(lambda: colsum(3),)]; sched[7]=[(cs_red,), cs_pub]
        sched[11]=[T]; sched[12]=[val2, (proc2,), proc2b]; sched[13]=[idx_xs, T, epoch_st]
        sched[14]=[P('j14'), all_w, lambda: xs_norm(0), lambda: xs_norm(1), lambda: vm.wait('phi')]; M14=0
    if 's6' in EXP:
        sched[4]=[lambda: cs_rd(4), T]; sched[5]=[val1, (proc1,)]; sched[6]=[(lambda: colsum(2),)]; sched[7]=[(lambda: colsum(3),)]; sched[8]=[(cs_red,), cs_pub]
        sched[11]=[T]; sched[12]=[val2, (proc2,), proc2b]; sched[13]=[idx_xs, T, epoch_st]
        sched[14]=[P('j14'), all_w, lambda: xs_norm(0), lambda: xs_norm(1), lambda: vm.wait('phi')]; M14=0
    if 's3' in EXP:
        sched[7]=[proc1, T]; sched[8]=[(cs_red,), cs_pub]; sched[11]=[T]; sched[12]=[val2, (proc2,), proc2b, idx_xs]; sched[13]=[T, epoch_st]
        sched[14]=[P('j14'), all_w, lambda: xs_norm(0), lambda: xs_norm(1), lambda: ffn_mac(0,M14)]
    for k in range(14): sched[k].insert(0, P(f"j{k}"))
    if STAG:
        for c in range(4):
            v=sum(x<<(4*i) for i,x in enumerate(korder(c)[0]))
            if c==0: a(f"s_mov_b32 s94, {v&0xffffffff}\ns_mov_b32 s95, {v>>32}")
            else: a(f"s_cmp_eq_u32 s87, {128*c}\ns_cselect_b32 s94, {v&0xffffffff}, s94\ns_cselect_b32 s95, {v>>32}, s95")
        def cs_rd2(s_):
            cl=[c for c in range(4) if korder(c)[1]==s_]
            if not cl: return
            for c in set(range(4))-set(cl): a(f"s_cmp_eq_u32 s87, {128*c}\ns_cbranch_scc1 L_nc{s_}")
            a(f"v_add_u32 v2, {(s_%3)*SLOT}, v{vCS}\nv_xor_b32 v3, 64, v2")
            for i in range(4): a(f"ds_read_b128 {R(CSL+16+4*i,4)}, v{2+(i&1)} offset:{1024*i}")
            a(f"L_nc{s_}:")
        sched[4].pop(1)
        for k in range(1,5): sched[k].insert(1, lambda k=k: cs_rd2(k))
    sched[0]=[sched[0][0], T, x3_ld, lambda: cs_rd(0)]; sched[15].remove(x3_ld)
    addr1(); xaddr(a, vXo)
    if 'eset' in EXP: addr2(); wo_setup(); post_setup(); rdy_addr()
    else: sched[4][1:1]=[addr2, wo_setup, post_setup, rdy_addr]
    cs_addr(); fill_addr(); srd(a, 88, 10, 1024*1024*2)
    pro(PRO[PRO.index('s')+1:]); nonce()
    for k in range(16): sched[k].append(P(f"i{k}"))
    CL=[]; nx=0
    for item in filter(None,os.environ.get('CL','').split(';')):
        b,what=item.split(':'); fs=[]
        for w in what.split(','):
            fs.append(lambda w=w: place1(w))
        CL.append((int(b.rstrip('s')), b.endswith('s'), fs))
    NLOOP=nx
    DEF='defer' in EXP
    TS={k:[str(k+2)] if k+2<16 else [] for k in range(16)}
    for it_ in filter(None,os.environ.get('TS','').split(';')):
        k,v=it_.split(':'); TS[int(k)]=list(filter(None,v.split(',')))
    def tl(x): tiles(int(x.rstrip('AW')), wfirst='wf' in EXP, part=x[-1] if x[-1] in 'AW' else None)
    sched[14].insert(0,T)
    if opt('hpl',3): a(f"s_setprio {opt('hpl',3)}"); sched[15].append(lambda: a('s_setprio 0'))
    def at(s):
        return [(c,fs) for b,same,fs in CL for c in range(NT) if b+(0 if same else (c-1)&3)==s]
    for s in range(16):
        vm.wait(('t',s))
        a("s_waitcnt lgkmcnt(0)")
        if s==0: stamp(a,2)
        a("s_barrier")
        if 'hst2' in EXP: stamp2(a,33+s)
        late={c for c,_ in at(s-2)} if DEF and s+1<16 else set()
        skip={c for c,_ in at(s-1)} if DEF else set()
        if s>=14: vm.cond(late, lambda: tiles(s+1))
        for f in sched[s]:
            if isinstance(f,tuple):
                J=a.capture(lambda: [g() for g in f]); D_=a.capture(lambda: [tl(x) for x in TS[s]])
                if 'noil' in EXP:
                    for x in D_+J: a(x)
                else:
                    while J and J[0].startswith('s_waitcnt'): a(J.pop(0))
                    n=-(-len(J)//9); k=0
                    for x in D_:
                        a(x)
                        if x.startswith('buffer_'):
                            k+=1
                            if k>=2:
                                for y in J[:n]: a(y)
                                J=J[n:]
                    for y in J: a(y)
            elif f==T:
                vm.cond(late, lambda: tiles(s+1))
                for x in TS[s]: tl(x)
            else: f()
        grp={}
        for c,fs in at(s): grp.setdefault(id(fs),(fs,[]))[1].append(c)
        for fs,cs_ in grp.values(): vm.cond(cs_, lambda: [f() for f in fs])
        if 'hst' in EXP: stamp(a,6+s)
    a("s_waitcnt lgkmcnt(0)\ns_barrier")
    stamp(a,24)
    MX=opt('mx',12)
    GL=80
    a(f"v_and_b32 v2, 15, v1\nv_min_u32 v2, 13, v2\nv_lshrrev_b32 v3, 4, v1\nv_mul_u32_u24 v3, 14336, v3\nv_lshl_add_u32 v13, v2, 4, v3\ns_lshl_b32 s75, s71, 2\ns_add_u32 s75, s75, {WS_GU}")
    def ld_gu():
        for j in range(4): a(f"s_add_u32 s3, s75, {4*j*14336}\nbuffer_load_dwordx4 {R(GL+4*j,4)}, v13, s[{SWS}:{SWS+3}], s3 offen sc1")
    def gu_fin():
        red8(a, FA)
        a(f"v_and_b32 v2, 8, v1\nv_cmp_eq_u32 vcc, 0, v2\nv_cndmask_b32 v{FA}, v{FA+1}, v{FA}, vcc")
        a(f"buffer_store_dword v{FA}, v{vP64}, s[{SWS}:{SWS+3}], s84 offen sc1")
        vm.issue('gu',1)
    place('x0')
    ffn_mac(M15,MX,True)
    if MX==16: gu_fin()
    place('x1')
    for c in (0,1,4): vm.wait(('wo',c))
    stamp(a,25)
    a("s_barrier")
    EPL='ep' in EXP
    def cflags(n):
        a(f"v_min_u32 v3, {n}, v1\nv_lshlrev_b32 v3, 2, v3\nv_add_u32 v3, {L_FLG}, v3\nL_fw:\nds_read_b32 v4, v3\ns_waitcnt lgkmcnt(0)\nv_cmp_eq_u32 vcc, 0, v4\ns_cbranch_vccz L_fk\n{LSL}s_branch L_fw\nL_fk:")
    if EPL:
        a(f"s_mov_b32 s28, {WS_RDY}\ns_mov_b32 exec_hi, 0xffff\nbuffer_load_dword v{RDY}, v113, s[{SWS}:{SWS+3}], s28 offen sc1\ns_mov_b64 exec, -1"); vm.issue('rp',1)
        place('x2')
        vm.wait('rp')
        a(f"s_setprio 3\ns_mov_b32 s3, {WS_RDY}\ns_mov_b32 s29, 0\ns_mov_b32 exec_hi, 0xffff\nL_rp:\nv_cmp_ne_u32 vcc, s86, v{RDY}\ns_cbranch_vccz L_rpk\ns_mov_b64 exec, vcc\nbuffer_load_dword v{RDY}, v113, s[{SWS}:{SWS+3}], s3 offen sc1\ns_waitcnt vmcnt(0)")
        a(f"s_add_u32 s29, s29, 1\ns_cmp_lt_u32 s29, {SPIN}\ns_cbranch_scc1 L_rp\nL_rpk:\ns_mov_b64 exec, -1")
        if STAMPS: a(f"v_writelane_b32 v{VST-1}, s29, 50")
        stamp(a,54)
        if 'epf' in EXP: cflags(3)
        stamp(a,26)
    else:
        if 'pf' not in EXP: place('x2')
        a(f"s_setprio 3\ns_cmp_lg_u32 s38, {0 if 'pf' in EXP else 3}\ns_cbranch_scc1 L_npl")
        NPP=opt('npp',1)
        if NPP==1: ready_poll("L_rp", 0xffff if 'g16' in EXP else -1, 0 if set(EXP)&{'g32','g16'} else -1 if 'g64' in EXP else 0xffff)
        else:
            PS=opt('pps',2)
            a(f"s_mov_b32 s3, {WS_RDY}\ns_mov_b32 s29, 0\ns_mov_b32 exec_hi, 0xffff")
            for k in range(NPP-1): a(f"buffer_load_dword v{8+k}, v113, s[{SWS}:{SWS+3}], s3 offen sc1\ns_sleep {PS}")
            a("L_rp:")
            for k in range(NPP):
                a(f"buffer_load_dword v{8+(k+NPP-1)%NPP}, v113, s[{SWS}:{SWS+3}], s3 offen sc1\ns_waitcnt vmcnt({NPP-1})\nv_cmp_ne_u32 vcc, s86, v{8+k}\ns_cbranch_vccz L_rpk\ns_mov_b64 exec, vcc")
            a(f"s_add_u32 s29, s29, 1\ns_cmp_lt_u32 s29, {SPIN}\ns_cbranch_scc1 L_rp\nL_rpk:\ns_mov_b64 exec, -1")
        a(f"v_mov_b32 v4, {L_FLG+16}\nv_mov_b32 v5, 1\nds_write_b32 v4, v5\nL_npl:")
        if 'pf' in EXP: place('x2')
        stamp(a,54)
        if 'nof' in EXP: a(f"v_mov_b32 v3, {L_FLG+16}\nL_fv:\nds_read_b32 v4, v3\ns_waitcnt lgkmcnt(0)\nv_cmp_eq_u32 vcc, 0, v4\ns_cbranch_vccz L_fj\n{LSL}s_branch L_fv\nL_fj:")
        else: a(f"v_min_u32 v3, 4, v1\nv_lshlrev_b32 v3, 2, v3\nv_add_u32 v3, {L_FLG}, v3\nL_fw:\nds_read_b32 v4, v3\ns_waitcnt lgkmcnt(0)\nv_cmp_eq_u32 vcc, 0, v4\ns_cbranch_vccz L_fk\n{LSL}s_branch L_fw\nL_fk:")
        stamp(a,26)
    place('k')
    vm.wait(('g',15))
    MY=opt('my',MX+2 if MX<16 else 16)
    ffn_mac(MX,MY,True)
    if opt('h1d',0): a(f"s_sleep {opt('h1d',0)}")
    stamp(a,49)
    def ld_h1():
        for j in range(2): a(f"s_add_u32 s3, s76, {8*j*KVS}\nbuffer_load_dwordx4 {R(HL+4*j,4)}, v112, s[{SWS}:{SWS+3}], s3 offen sc1")
    def ld_hz():
        for j in range(2): a(f"s_add_u32 s3, s81, {8*j*KVS}\nbuffer_load_dwordx4 {R(HZ+4*j,4)}, v112, s[{SWS}:{SWS+3}], s3 offen sc1")
    G32=bool(set(EXP)&{'g32','g16'}); LLO='0xffff0000' if 'g16' in EXP else '0'
    ld_h1()
    if G32: a(f"s_mov_b32 s3, {WS_RDY}\ns_mov_b32 exec_lo, {LLO}\ns_mov_b32 exec_hi, 0xffff\nbuffer_load_dword v{RDY}, v113, s[{SWS}:{SWS+3}], s3 offen sc1\ns_mov_b64 exec, -1")
    a("s_cmp_lg_u32 s83, 0\ns_cbranch_scc1 L_nz")
    ld_hz()
    a("L_nz:")
    if MX==16:
        ld_gu()
        a("s_waitcnt vmcnt(4)")
        vm.q=[['gl']*4 for _ in range(NT)]
    else:
        vm.q=[['h'] for _ in range(NT)]
        HK=min(16,MY+opt('h0k',2))
        ffn_mac(MY,HK,True)
        if HK==16: gu_fin()
        place('h0')
        ffn_mac(HK,16,True)
        if HK<16: gu_fin()
        vm.wait('h')
    stamp(a,50)
    def reduce_line(src, E, sdst):
        L=[]
        class C_:
            def __call__(self, t): L.extend(t.split("\n"))
        c=C_()
        for d in range(4): unpack(c, E+2*d, src+d)
        for d in range(4):
            unpack(c, E+8+2*d, src+4+d)
            c(f"v_pk_add_f32 {R(E+2*d,2)}, {R(E+2*d,2)}, {R(E+8+2*d,2)}")
        red8(c, E)
        c(f"v_cvt_pk_bf16_f32 v{E}, v{E}, v{E+1}\nv_mov_b32 v{E+1}, v{E}\nv_permlane16_swap_b32 v{E}, v{E+1}\nv_mov_b32 v{E+2}, v{E}\nv_mov_b32 v{E+3}, v{E+1}")
        c(f"v_permlane32_swap_b32 v{E}, v{E+2}\nv_permlane32_swap_b32 v{E+1}, v{E+3}")
        return L, f"buffer_store_dwordx4 {R(E,4)}, v{114 if DUP else vL16}, s[{SWS}:{SWS+3}], s{sdst} offen sc1"
    DUP='nodup' not in EXP; XM='0xffff' if DUP else '0xff'
    A_,sa=reduce_line(HL,64,74); Z_,sz=reduce_line(HZ,96,82)
    a("s_cmp_eq_u32 s83, 0\ns_cbranch_scc1 L_hz")
    checked(a, "L_k4", range(HL,HL+8), ld_h1)
    for x in A_: a(x)
    a(f"s_mov_b64 exec, {XM}\n{sa}\ns_branch L_h1e\nL_hz:")
    checked(a, "L_k3", list(range(HL,HL+8))+list(range(HZ,HZ+8)), lambda: (ld_h1(), ld_hz()))
    for x in zipl(A_,Z_): a(x)
    a(f"s_mov_b64 exec, {XM}\n{sa}\n{sz}\nL_h1e:\ns_mov_b64 exec, -1")
    stamp(a,53)
    if (EPL and 'epf' not in EXP) or 'nof' in EXP: cflags(3)
    if G32:
        a(f"s_mov_b32 s3, {WS_RDY}\ns_mov_b32 s29, 0\ns_mov_b32 exec_lo, {LLO}\ns_mov_b32 exec_hi, 0xffff\nL_ro:\nv_cmp_ne_u32 vcc, s86, v{RDY}\ns_cbranch_vccz L_rok\ns_mov_b64 exec, vcc\nbuffer_load_dword v{RDY}, v113, s[{SWS}:{SWS+3}], s3 offen sc1\ns_waitcnt vmcnt(0)")
        a(f"s_add_u32 s29, s29, 1\ns_cmp_lt_u32 s29, {SPIN}\ns_cbranch_scc1 L_ro\nL_rok:\ns_mov_b64 exec, -1")
    a(f"s_lshl_b32 s3, s38, 2\ns_add_u32 s3, s3, {L_FLG}\nv_mov_b32 v4, s3\nv_mov_b32 v5, 3\nds_write_b32 v4, v5\ns_setprio 0")
    vm.issue('h1',1)
    if PLC.get('h1s'): a("s_waitcnt lgkmcnt(0)")
    place('h1s')
    stamp(a,27)
    def hsilu():
        stat3(a, 9, 8)
        a("s_waitcnt lgkmcnt(0)")
        silu_prep(a, PG, PX, 9, 8, 28)
    if MX<16:
        hsilu()
        ld_gu(); vm.issue('gl',4)
    vm.wait('gl')
    stamp(a,51)
    checked(a, "L_k5", range(GL,GL+16), ld_gu)
    stamp(a,52)
    for b in (GL,GL+8):
        for i in (0,2): a(f"v_pk_add_f32 {R(b+i,2)}, {R(b+i,2)}, {R(b+4+i,2)}")
    for i in range(4): a(f"v_permlane32_swap_b32 v{GL+i}, v{GL+8+i}")
    for i in range(4): a(f"v_add_f32 v{GL+i}, v{GL+i}, v{GL+8+i}")
    for i in (0,2): a(f"v_permlane16_swap_b32 v{GL+i}, v{GL+i+1}")
    for i in (0,2): a(f"v_add_f32 v{GL+i}, v{GL+i}, v{GL+i+1}")
    a(f"v_permlane32_swap_b32 v{GL}, v{GL+2}")
    g,u=GL,GL+2
    rne(a,g,g); rne(a,u,u)
    a(f"v_mul_f32 v2, 0xbfb8aa3b, v{g}\nv_exp_f32 v2, v2\nv_add_f32 v2, 1.0, v2\nv_rcp_f32 v2, v2\nv_mul_f32 v{g}, v{g}, v2")
    rne(a,g,g)
    a(f"v_mul_f32 v{g}, v{g}, v{u}")
    rne(a,g,g)
    a(f"v_bfe_u32 v2, v1, 3, 2\nv_lshlrev_b32 v2, 6, v2\nv_lshrrev_b32 v3, 5, v1\nv_lshl_add_u32 v2, v3, 2, v2")
    HB=128
    for i in range(7): a(f"ds_bpermute_b32 v{HB+2*i}, v2, v{g} offset:{8*i}")
    for i in range(0,8,2): a(f"v_mov_b64 {R(FA+i,2)}, 0")
    a("s_waitcnt lgkmcnt(0)")
    place('gu')
    LD='g2' in PLC.get('ho',[])
    def down(plain=False):
        for i in range(7):
            for d in range(4):
                t=2+2*(d&1)
                unpack(a, t, DW+4*i+d)
                if plain: a(f"v_fmac_f32 v{FA+2*d}, v{t}, v{HB+2*i}\nv_fmac_f32 v{FA+2*d+1}, v{t+1}, v{HB+2*i}")
                else: a(f"v_pk_fma_f32 {R(FA+2*d,2)}, {R(t,2)}, {R(HB+2*i,2)}, {R(FA+2*d,2)} op_sel_hi:[1,0,1]")
        red8(a, FA)
        a(f"v_and_b32 v2, 8, v1\nv_cmp_eq_u32 vcc, 0, v2\ns_and_b32 s3, s2, 15\ns_lshl_b32 s3, s3, 4\ns_lshr_b32 s28, s2, 4\ns_add_u32 s3, s3, s28\ns_lshl_b32 s3, s3, 2\ns_add_u32 s3, s3, s38\ns_lshl_b32 s3, s3, 8\ns_add_u32 s3, s3, {WS_Y}")
        a(f"v_cndmask_b32 v{FA}, v{FA+1}, v{FA}, vcc\nbuffer_store_dword v{FA}, v{vP64}, s[{SWS}:{SWS+3}], s3 offen sc1")
    a.down = down if LD else None
    if not LD: down()
    vm.issue('ys',1)
    place('y')
    if MX==16: hsilu()
    stamp(a,28)
    wait7(a, "L_ow"); place('ho')
    if not LD and opt('hpd',0): a(f"s_sleep {opt('hpd',0)}")
    stamp(a,29)
    if opt('hp3',0): a(f"s_setprio {opt('hp3',0)}")
    a("s_branch L_p3")

ACC=8
def acc(g,c6): return ACC+24*g+4*c6
ML,CC,CSV = [192,194,196,198],[200,202,220,222],[248,250]
CCP,RLP = [193,221],[195,223]
CSK,CSQ,PHI,MV,SQF = 204,212,224,104,120
vVS,vLN,vSR = 197,199,[201,203]
def zipl(A, B, n=1):
    out=[]; B=list(B)
    for x in A:
        out.append(x); out+=B[:n]; B=B[n:]
    return out+B
def feature(a, B, c0, isK, mid1=None, tail=None, fillB=(), hook=None):
    P=144; T=176; U=128
    EP=[P+8*g for g in range(4)]; EM=[acc(g,c0) for g in range(4)]
    MX=[T+2*g for g in range(4)]; NM=[T+8+2*g for g in range(4)]
    for g in range(4):
        for ft in range(2): mfma(a, EP[g]+4*ft, PHI+4*ft, acc(g,c0))
    if mid1: mid1()
    FS='fst' in EXP; b_=40 if isK else 50
    def mx(h):
        L=[]
        for k in range(4):
            for g in (2*h,2*h+1):
                p=EP[g]
                if k==0: L+=[f"v_max3_f32 v{MX[g]}, v{p}, v{p+1}, v{p+2}", f"v_max3_f32 v{NM[g]}, -v{p}, -v{p+1}, -v{p+2}"]
                elif k<3: L+=[f"v_max3_f32 v{MX[g]}, v{MX[g]}, v{p+2*k+1}, v{p+2*k+2}", f"v_max3_f32 v{NM[g]}, v{NM[g]}, -v{p+2*k+1}, -v{p+2*k+2}"]
                else: L+=[f"v_max_f32_e64 v{MX[g]}, v{MX[g]}, v{p+7}", f"v_max_f32_e64 v{NM[g]}, v{NM[g]}, -v{p+7}"]
        return L
    def xl(h, op, fin):
        q=[MX[2*h],MX[2*h+1],NM[2*h],NM[2*h+1]]
        return [f"v_permlane32_swap_b32 v{q[0]}, v{q[1]}\nv_permlane32_swap_b32 v{q[2]}, v{q[3]}",
                f"{op} v{q[0]}, v{q[0]}, v{q[1]}\n{op} v{q[2]}, v{q[2]}, v{q[3]}",
                f"v_permlane16_swap_b32 v{q[0]}, v{q[2]}\n{op} v{q[0]}, v{q[0]}, v{q[2]}"]+fin(q[0],q[2])+[
                f"v_permlane16_swap_b32 v{q[0]}, v{q[2]}\nv_mov_b32 v{q[1]}, v{q[0]}", f"v_mov_b32_e64 v{q[3]}, v{q[2]}",
                f"v_permlane32_swap_b32 v{q[0]}, v{q[1]}\nv_permlane32_swap_b32 v{q[2]}, v{q[3]}"]
    x1=lambda h: xl(h, "v_max_f32", lambda x,y: [f"v_mul_f32 v{y}, v{x}, v{CCP[h]}\nv_mul_f32 v{x}, v{x}, v{CCP[h]}"])
    x2=lambda h: xl(h, "v_add_f32", lambda x,y: [f"v_rcp_f32_e64 v{x}, v{x}", f"v_mul_f32 v{y}, v{x}, v{RLP[h]}\nv_mul_f32 v{x}, v{x}, v{RLP[h]}" if isK else f"v_mov_b32_e64 v{y}, v{x}"])
    def fm(h):
        L=[]
        for g in (2*h,2*h+1):
            for i in range(0,8,2):
                L+=[f"v_pk_fma_f32 {R(EM[g]+i,2)}, {R(EP[g]+i,2)}, {R(CC[g],2)}, {R(NM[g],2)} op_sel_hi:[1,0,0] neg_lo:[1,0,1] neg_hi:[1,0,1]",
                    f"v_pk_fma_f32 {R(EP[g]+i,2)}, {R(EP[g]+i,2)}, {R(CC[g],2)}, {R(MX[g],2)} op_sel_hi:[1,0,0] neg_lo:[0,0,1] neg_hi:[0,0,1]"]
        return L
    def ex(h): return [f"v_exp_f32 v{EM[g]+i}, v{EM[g]+i}\nv_exp_f32 v{EP[g]+i}, v{EP[g]+i}" for g in (2*h,2*h+1) for i in range(8)]
    def sm(h):
        L=[]
        for k in range(3):
            for g in (2*h,2*h+1):
                for sg,Eb in ((0,EP[g]),(1,EM[g])):
                    t=U+4*g+2*sg
                    L.append(f"v_pk_add_f32 {R(t,2)}, {R(Eb,2)}, {R(Eb+2,2)}" if k==0 else f"v_pk_add_f32 {R(t,2)}, {R(t,2)}, {R(Eb+2*k+2,2)}")
        for g in (2*h,2*h+1): L.append(f"v_add_f32 v{MX[g]}, v{U+4*g}, v{U+4*g+1}\nv_add_f32 v{NM[g]}, v{U+4*g+2}, v{U+4*g+3}")
        return L
    def fin(h):
        for g in (2*h,2*h+1):
            for pm,(Eb,Q) in enumerate(((EP[g],MX),(EM[g],NM))):
                for i in range(0,8,2): a(f"v_pk_mul_f32 {R(Eb+i,2)}, {R(Eb+i,2)}, {R(Q[g],2)} op_sel_hi:[1,0]")
                for i in range(4): a(f"v_cvt_pk_bf16_f32 v{Eb+i}, v{Eb+2*i}, v{Eb+2*i+1}")
                if tail: tail(g, pm, Eb)
    def E(L):
        for x in L: a(x)
    a.raw(".p2align 3, 0xbf800000") if False else None
    if FS: stamp2(a,b_)
    E(mx(0)); E(zipl(x1(0), mx(1), 2))
    if FS: stamp2(a,b_+1)
    E(zipl(x1(1), fm(0), 2))
    if FS: stamp2(a,b_+2)
    E(ex(0)); E(sm(0))
    if hook: hook(0)
    if FS: stamp2(a,b_+3)
    E(zipl(x2(0), fm(1), 2)); fin(0)
    if FS: stamp2(a,b_+4)
    if hook: hook(1)
    E(ex(1))
    if hook: hook(2)
    E(sm(1))
    if FS: stamp2(a,b_+5)
    E(zipl(x2(1), fillB, 1))
    if FS: stamp2(a,b_+6)
    fin(1)
    if FS: stamp2(a,b_+7)
    return EP, EM
def corrT(a, c0, CS, B):
    for g in range(4):
        s=g&1
        for i in range(0,8,2):
            r=acc(g,c0)+i
            a(f"v_pk_fma_f32 {R(r,2)}, {R(ML[g],2)}, {R(CS+i,2)}, {R(r,2)} op_sel_hi:[0,1,1] neg_lo:[1,0,0] neg_hi:[1,0,0]")
        for i in range(4): a(f"v_cvt_pk_bf16_f32 v{acc(g,c0)+i}, v{acc(g,c0)+2*i}, v{acc(g,c0)+2*i+1}")

def ln_code(a):
    X=104; WR=120; S1=128; S2=132; S3=136; S4=140
    a(f"L_ln:\ns_lshl_b32 s3, s38, 12\ns_add_u32 s3, s3, {L_STG}\nv_lshlrev_b32 v2, 4, v1\nv_add_u32 v3, s3, v2\nv_add_u32 v2, {L_WR}, v2")
    if 'ln4' not in EXP: a("s_barrier")
    for i in range(2): a(f"ds_read_b128 {R(WR+4*i,4)}, v2 offset:{1024*i}")
    for i in range(4): a(f"ds_read_b128 {R(X+4*i,4)}, v3 offset:{1024*i}")
    stamp(a,3)
    a("v_mov_b32 v2, 0x3f803f80")
    for v in (S1,S2,S3,S4): a(f"v_mov_b32 v{v}, 0\nv_mov_b32 v{v+2}, 0")
    a("s_waitcnt lgkmcnt(2)")
    for r in range(2):
        if r: a("s_waitcnt lgkmcnt(0)")
        for d in range(8):
            x=X+8*r+d
            a(f"v_dot2c_f32_bf16 v{S1+2*r}, v{x}, v2\nv_dot2c_f32_bf16 v{S2+2*r}, v{x}, v{x}\nv_dot2c_f32_bf16 v{S3+2*r}, v{x}, v{WR+d}")
            a(f"v_dot2c_f32_bf16 v{S4+2*r}, v{WR+d}, v2")
    regs=[S1,S2,S3,S4]
    for v in regs: a(f"v_permlane32_swap_b32 v{v}, v{v+2}")
    for v in regs: a(f"v_add_f32 v{v}, v{v}, v{v+2}")
    for m in ("quad_perm:[1,0,3,2]", "quad_perm:[2,3,0,1]", "row_half_mirror", "row_mirror"):
        for v in regs: a(f"v_add_f32 v{v}, v{v}, v{v} {m} {DPPM}")
    for v in regs: a(f"v_mov_b32 v{v+1}, v{v}")
    for v in regs: a(f"v_permlane16_swap_b32 v{v}, v{v+1}")
    for v in regs: a(f"v_add_f32 v{v}, v{v}, v{v+1}")
    a(f"v_mul_f32 v{S1}, 0x3a800000, v{S1}\nv_mul_f32 v{S2}, 0x3a800000, v{S2}")
    rne(a, S1+1, S1)
    a(f"v_fma_f32 v{S2}, -v{S1}, v{S1}, v{S2}\nv_max_f32 v{S2}, 0, v{S2}\nv_fma_f32 v{S3}, -v{S1+1}, v{S4}, v{S3}\ns_waitcnt vmcnt(0)")
    rne(a, S2, S2)
    a(f"v_add_f32 v{S2}, 0x3727c5ac, v{S2}")
    rne(a, S2, S2)
    a(f"v_sqrt_f32 v{S2}, v{S2}")
    rne(a, S2, S2)
    a(f"v_rcp_f32 v2, v{S2}\nv_lshrrev_b32 v3, 16, v{S1+1}\nv_or_b32 v208, v3, v{S2}\nv_mul_f32 v{S3}, v{S3}, v2")
    rne(a, S3, S3)
    a(f"v_ashrrev_i32 v2, 31, v{S3}\nv_or_b32 v2, 0x80000000, v2\nv_xor_b32 v2, v{S3}, v2\nv_and_b32 v2, 0xffff0000, v2")
    a(f"v_lshrrev_b32 v3, 5, v1\nv_add_u32 v209, s71, v3\nv_sub_u32 v209, 2047, v209\nv_or_b32 v210, v2, v209\nv_mov_b32 v2, v210\nv_mov_b32 v209, v208\nv_readfirstlane_b32 s86, v212\nv_mov_b32 v3, 0\ns_mul_i32 s86, s86, 1664525\ns_add_u32 s86, s86, 1013904223\nv_mov_b32 v211, s86")
    a(f"v_permlane32_swap_b32 v210, v2\nv_permlane32_swap_b32 v208, v209\nv_max_u32 v210, v210, v2\ns_lshl_b32 s3, s71, 3")
    a(f"s_mov_b64 exec, 1\nbuffer_store_dwordx4 v[208:211], v3, s[{SWS}:{SWS+3}], s3 offen sc1\ns_mov_b64 exec, -1")
    a("v_mov_b32 v251, s86")
    stamp(a,4)
    if 'ln4' in EXP: a("s_branch L_lnr")

def c_wo(a, pos):
    for w in PLC.get(pos,[]):
        c=int(w[1])
        a(f"s_add_u32 m0, s72, {c*16384}\ns_xor_b32 s3, s73, {cmap(c)*262144}")
        for e in range(4): a(f"buffer_load_dwordx4 v{216+e}, s[88:91], s3 offen offset:{e*1024} lds")
def c_waves(a):
    a("L_C:")
    a("s_and_b32 s64, s38, 1\ns_lshr_b32 s65, s38, 1")
    F=[104,144]; vA=184; vW=186
    a("v_and_b32 v3, 15, v1\nv_lshlrev_b32 v3, 7, v3\ns_lshl_b32 s3, s64, 13\nv_add_u32 v3, s3, v3\nv_bfe_u32 v5, v1, 1, 3\nv_lshrrev_b32 v6, 4, v1\nv_xor_b32 v6, v6, v5")
    a(f"v_lshl_add_u32 v{vA}, v6, 4, v3\nv_xor_b32 v{vA+1}, 64, v{vA}")
    a("v_lshrrev_b32 v6, 4, v1\nv_lshlrev_b32 v6, 3, v6\nv_bfe_u32 v7, v1, 2, 2\nv_add_u32 v6, v6, v7\nv_lshlrev_b32 v6, 7, v6\nv_and_b32 v7, 3, v1\nv_lshl_add_u32 v6, v7, 3, v6\nv_add_u32 v6, 16384, v6")
    a("v_bfe_u32 v7, v1, 3, 2\ns_lshl_b32 s3, s65, 1\nv_xor_b32 v7, s3, v7")
    a(f"v_lshl_add_u32 v{vW}, v7, 5, v6\nv_xor_b32 v{vW+1}, 32, v{vW}")
    for i in range(4): a(f"v_add_u32 v{vA+4+i}, {2*SLOT}, v{vA+i}")
    a("s_waitcnt lgkmcnt(0)")
    srd(a, SWS, 26, WS_SIZE); srd(a, SX, 4, 2048*2048); srd(a, 88, 10, 1024*1024*2)
    a(f"s_lshl_b32 s3, s36, 7\ns_lshl_b32 s28, s37, 3\ns_add_u32 s3, s3, s28\ns_lshl_b32 s28, s38, 1\ns_add_u32 s71, s3, s28\nv_lshlrev_b32 v2, 4, v1\nv_mov_b32 v212, {WS_EPO}")
    for i in range(4): a(f"v_mov_b32 v{4+i}, -1")
    a(f"s_lshl_b32 s28, s2, 2\ns_add_u32 s28, s28, s38\ns_mul_i32 s28, s28, 768\ns_add_u32 s28, s28, {WS_FILL-256}\ns_lshl_b32 s3, s37, 4\ns_add_u32 s3, s3, s36\ns_lshl_b32 s3, s3, 2\ns_add_u32 s3, s3, s38\ns_lshl_b32 s3, s3, 8\ns_add_u32 s3, s3, {WS_CSP}")
    a(f"v_cmp_gt_u32 vcc, 16, v1\nv_add_u32 v3, s3, v2\nv_add_u32 v2, s28, v2\nv_cndmask_b32 v2, v2, v3, vcc")
    a(f"buffer_store_dwordx4 v[4:7], v2, s[{SWS}:{SWS+3}], 0 offen sc1\nbuffer_load_dword v212, v212, s[{SWS}:{SWS+3}], 0 offen sc1")
    if STAMPS: a(f"v_mov_b32 v{VST-1}, 0\nv_writelane_b32 v{VST}, s96, 0")
    if 'nocpf' not in EXP:
        a("s_getpc_b64 s[92:93]")
        a.raw("L_pc:")
        a("s_sub_u32 s92, s92, L_pc-fused_kernel\ns_subb_u32 s93, s93, 0\ns_lshr_b32 s3, s2, 3\ns_lshl_b32 s3, s3, 2\ns_add_u32 s3, s3, s38\ns_lshl_b32 s3, s3, 8\nv_lshlrev_b32 v2, 7, v1\nv_add_u32 v2, s3, v2\ns_mov_b64 exec, 3")
        a("global_load_dword v213, v2, s[92:93]\ns_mov_b64 exec, -1")
    for i in range(0,96,2): a(f"v_mov_b64 {R(ACC+i,2)}, 0")
    def reads(sl, t2, fs):
        f=F[fs]; L=[]; b=4 if sl==2 else 0; o=SLOT if sl==1 else 0
        L.append(f"ds_read_b128 {R(f,4)}, v{vA+b+t2} offset:{o}")
        for c6 in range(6):
            for u in range(2):
                L.append(f"ds_read_b64_tr_b16 {R(f+16+4*c6+2*u,2)}, v{vW+b+(c6&1)} offset:{o+(32*t2+4*u)*128+(c6>>1)*8192}")
        for g in range(1,4): L.append(f"ds_read_b128 {R(f+4*g,4)}, v{vA+b+t2} offset:{o+g*2048}")
        return L
    def step(fs, rd, order=None):
        f=F[fs]; i=0
        for g,c6 in (order or [(g,c6) for g in range(4) for c6 in range(6)]):
            d=acc(g,c6)
            if c6<4: mfma(a, d, f+16+4*c6, f+4*g, d)
            else: mfma(a, d, f+4*g, f+16+4*c6, d)
            if rd is not None and i<len(rd): a(rd[i])
            i+=1
            if 'rd2' in EXP and rd is not None and i<len(rd) and i%3==0: a(rd[i]); i+=1
    a(f"s_lshl_b32 s3, s38, 2\ns_add_u32 s3, s3, {L_FLG}\nv_mov_b32 v2, s3\nv_mov_b32 v3, 0\nds_write_b32 v2, v3\nds_write_b32 v2, v3 offset:16")
    a("s_mov_b32 s86, 0\ns_mov_b32 s66, 0\ns_setprio 2\ns_waitcnt lgkmcnt(0)")
    AO=232
    ad = (f"v_and_b32 v2, 15, v1\nv_lshrrev_b32 v3, 4, v1\ns_lshl_b32 s3, s64, 8\ns_add_u32 s3, s3, {L_M}\nv_lshl_add_u32 v{AO}, v2, 2, s3\nv_lshl_add_u32 v{AO+1}, v3, 4, s3\n"
          f"v_lshrrev_b32 v7, 5, v1\nv_lshl_add_u32 v{AO+2}, v7, 6, v{AO}\n"
          f"s_lshl_b32 s3, s65, 7\ns_add_u32 s3, s3, {L_CS}\nv_lshl_add_u32 v{AO+3}, v3, 4, s3\nv_lshl_add_u32 v248, v2, 2, s3\n"
          f"s_lshl_b32 s3, s64, 7\ns_add_u32 s3, s3, {L_SQ}\nv_lshl_add_u32 v249, v3, 4, s3\nv_xor_b32 v253, 128, v249\n"
          f"v_lshrrev_b32 v250, 2, v1\nv_lshlrev_b32 v250, 6, v250\nv_and_b32 v251, 3, v1\nv_lshl_add_u32 v250, v251, 3, v250\ns_lshl_b32 s3, s65, 11\ns_add_u32 s3, s3, {L_PHI}\nv_add_u32 v252, s3, v250\n"
          f"v_bfe_u32 v5, v1, 1, 2\nv_lshlrev_b32 v5, 2, v5\nv_bfe_u32 v4, v1, 3, 1\nv_lshl_add_u32 v5, v4, 1, v5\nv_and_b32 v4, 1, v1\nv_add_u32 v5, v5, v4\nv_xor_b32 v5, v5, v3\n"
          f"s_lshl_b32 s3, s38, 13\ns_add_u32 s3, s3, {L_PHS}\nv_lshl_add_u32 v2, v2, 7, s3\nv_lshl_add_u32 v4, v5, 3, v2\nv_xor_b32 v5, 32, v4\nv_xor_b32 v6, 64, v4\nv_xor_b32 v7, 96, v4\n"
          f"v_bfe_u32 v2, v1, 3, 2\nv_lshlrev_b32 v2, 2, v2\nv_lshrrev_b32 v3, 5, v1\nv_lshl_add_u32 v2, v3, 1, v2\nv_bfe_u32 v3, v1, 2, 1\nv_add_u32 v2, v2, v3\nv_xor_b32 v2, v2, v251\n"
          f"v_lshrrev_b32 v3, 2, v1\nv_lshl_add_u32 v3, v3, 7, s3\nv_lshl_add_u32 v2, v2, 3, v3\ns_lshl_b32 s28, s64, 6\nv_xor_b32 v{vSR[0]}, s28, v2\nv_xor_b32 v{vSR[1]}, 32, v{vSR[0]}\n"
          f"s_lshl_b32 s3, s38, 12\ns_add_u32 s3, s3, {L_STG}\nv_lshlrev_b32 v{vLN}, 4, v1\nv_add_u32 v{vVS}, s3, v{vLN}\n"
          f"s_lshl_b32 s3, s37, 1\ns_add_u32 s67, s3, s65\ns_lshl_b32 s3, s67, 4\ns_add_u32 s3, s3, s36\ns_mul_i32 s3, s3, {KVS}\ns_add_u32 s75, s3, {WS_KVP}\ns_lshl_b32 s3, s64, 11\ns_add_u32 s74, s75, s3\ns_lshl_b32 s3, s64, 6\ns_add_u32 s75, s75, s3\ns_add_u32 s75, s75, 4096\n"
          f"s_lshl_b32 s3, s37, 4\ns_add_u32 s3, s3, s36\ns_lshl_b32 s3, s3, 7\ns_add_u32 s3, s3, {WS_RDY}\ns_cmp_lg_u32 s38, 0\ns_cselect_b32 s76, {WS_SIZE}, s3").split("\n")
    ad = a.capture(lambda: xaddr(a, 236, 237, 238)) + [f"v_xor_b32 v{236+ct}, {32*ct}, v236" for ct in range(1,4)] + ad
    for x in ad: a(x)
    stamp(a,1)
    if 'ln4' not in EXP: ln_code(a)
    a("s_barrier")
    stamp2(a,8)
    for r in reads(0,0,0): a(r)
    for ct in range(4): a(f"ds_read_b64 {R(PX+2*ct,2)}, v{236+ct}")
    a("s_waitcnt lgkmcnt(4)\ns_branch L_cmid")
    a.raw(".p2align 6")
    a("L_cloop:")
    for sl in range(3):
        if sl==opt('lnb',4)%3 and 'ln4' in EXP: a(f"s_cmp_eq_u32 s66, {opt('lnb',4)//3}\ns_cbranch_scc1 L_ln\nL_lnr:")
        a("s_waitcnt lgkmcnt(0)\ns_barrier")
        step(1, reads(sl,0,0))
        a("s_waitcnt lgkmcnt(0)\ns_nop 0")
        if sl==0: a("L_cmid:")
        step(0, reads(sl,1,1)+(["s_add_u32 s66, s66, 1\ns_cmp_lt_u32 s66, 5"] if sl==2 else []))
    a("s_cbranch_scc1 L_cloop")
    xr = [f"ds_read_b64 {R(PX+2*ct,2)}, v{236+ct}" for ct in range(4)]
    r1=[]; r2=[]
    for g in range(4): r1.append(f"ds_read_b32 v{ML[g]}, v{AO} offset:{64*g}")
    for c in range(2): r1.append(f"ds_read_b128 {R(CSK+4*c,4)}, v{AO+3} offset:{256+64*c}")
    for c in range(2): r1.append(f"ds_read_b128 {R(CSQ+4*c,4)}, v{AO+3} offset:{64*c}")
    for ft in range(2):
        for v in range(2): r2.append(f"ds_read_b64_tr_b16 {R(PHI+4*ft+2*v,2)}, v252 offset:{1024*v+32*ft}")
    a("s_nop 0\ns_waitcnt lgkmcnt(0)\ns_barrier")
    step(1, reads(0,0,0)+r1)
    a("s_waitcnt lgkmcnt(8)\ns_nop 0")
    step(0, reads(0,1,1)+r2)
    rd=["s_barrier"]
    for g in (0,2): rd.append(f"ds_read_b128 {R(MV+4*g,4)}, v{AO+1} offset:{64*g}\nds_read_b128 {R(MV+4*g+4,4)}, v{AO+1} offset:{64*g+64}")
    rd.append(f"ds_read_b32 v{CSV[1]}, v248 offset:576\nds_read_b32 v{CSV[0]}, v248 offset:512")
    for g in (0,2): rd.append(f"ds_read_b32 v{CC[g]}, v{AO} offset:{2048+64*g}\nds_read_b32 v{CC[g+1]}, v{AO} offset:{2048+64*g+64}")
    for h in range(2): rd.append(f"ds_read_b32 v{CCP[h]}, v{AO+2} offset:{2048+128*h}\nds_read_b32 v{RLP[h]}, v{AO+2} offset:{1024+128*h}")
    kc=[]
    for g in range(4):
        r=acc(g,2)
        kc+=[f"v_fma_f32 v{r+i}, -v{ML[g]}, v{CSK+i}, v{r+i}" for i in range(8)]
        kc+=[f"v_cvt_pk_bf16_f32 v{r+i}, v{r+2*i}, v{r+2*i+1}" for i in range(4)]
    for i in range(16): rd.append("\n".join(kc[3*i:3*i+3]))
    a("s_waitcnt lgkmcnt(4)")
    step(1, rd, [(g,c6) for cs in ((2,3),(4,5),(0,1)) for g in range(4) for c6 in cs])
    for ks in range(2): a(f"ds_read_b128 {R(SQF+4*ks,4)}, v249 offset:{64*ks}")
    a("s_waitcnt lgkmcnt(2)")
    stamp2(a,24)
    VL='vearly' not in EXP
    def vcorr():
        for g in range(4):
            for dt in range(2):
                for i in (0,2):
                    r=acc(g,4+dt)+i
                    a(f"v_pk_fma_f32 {R(r,2)}, {R(MV+4*g+i,2)}, {R(CSV[dt],2)}, {R(r,2)} op_sel_hi:[1,0,1] neg_lo:[1,0,0] neg_hi:[1,0,0]")
        for ks in range(2):
            for dt in range(2):
                d=acc(2*ks,4+dt); e=acc(2*ks+1,4+dt)
                a(f"v_cvt_pk_bf16_f32 v{d}, v{d}, v{d+1}\nv_cvt_pk_bf16_f32 v{d+1}, v{d+2}, v{d+3}\nv_cvt_pk_bf16_f32 v{d+2}, v{e}, v{e+1}\nv_cvt_pk_bf16_f32 v{d+3}, v{e+2}, v{e+3}")
                if not VL: a(f"ds_write_b128 v{vVS}, {R(d,4)} offset:{2048*ks+1024*dt}")
        for ks in range(2): a(f"ds_read_b128 {R(MV+4*ks,4)}, v253 offset:{64*ks}")
    AF=[232,CSK]; BK=None
    KVt=[144,152,acc(0,2)]
    PA_=128
    def tail(g, pm, Eb):
        for ft in range(2): a(f"ds_write_b64 v{4+2*pm+ft}, {R(Eb+2*ft,2)} offset:{2048*g}")
        if VL and g<2: a(f"ds_write_b128 v{vVS}, {R(acc(2*g,4+pm),4)} offset:{2048*g+1024*pm}")
        if g&1 and pm:
            ks=g>>1
            for ft in range(2):
                for v in range(2): a(f"ds_read_b64_tr_b16 {R(AF[ks]+4*ft+2*v,2)}, v{vSR[ft]} offset:{4096*ks+2048*v}")
    def kvm(k4):
        ks=k4&1; own=k4<2; L=[]
        for dt in range(3):
            for ft in range(2):
                d=KVt[dt]+4*ft
                Bo=(acc(2*ks+(0 if own else 1),4+dt) if dt<2 else (SQF if own else MV)+4*ks)
                L.append(f"v_mfma_f32_16x16x32_bf16 {R(d,4)}, {R((AF[ks] if own else PA_+8*ks)+4*ft,4)}, {R(Bo,4)}, {R(d,4) if k4 else '0'}")
        return L
    k0=kvm(0); k0[0]="s_waitcnt lgkmcnt(0)\ns_nop 0\n"+k0[0]
    CH=opt('ch',2)
    def hook(k):
        if k==CH: a(f"s_mov_b64 exec, 1\nbuffer_store_dword v251, v{vLN}, s[{SWS}:{SWS+3}], s76 offen sc1\ns_mov_b64 exec, -1")
    EP,EM = feature(a, BK, 2, True, mid1=vcorr, tail=tail, fillB=k0, hook=hook)
    stamp(a,34)
    a(f"v_xor_b32 v{vSR[0]}, 0x2000, v{vSR[0]}\nv_xor_b32 v{vSR[1]}, 0x2000, v{vSR[1]}\nv_xor_b32 v{vVS}, 0x1000, v{vVS}\ns_waitcnt lgkmcnt(4)\ns_barrier")
    for ks in range(2):
        for ft in range(2):
            for v in range(2): a(f"ds_read_b64_tr_b16 {R(PA_+8*ks+4*ft+2*v,2)}, v{vSR[ft]} offset:{4096*ks+2048*v}")
        for dt in range(2): a(f"ds_read_b128 {R(acc(2*ks+1,4+dt),4)}, v{vVS} offset:{2048*ks+1024*dt}")
    for k4 in range(1,4):
        a(f"s_waitcnt lgkmcnt({(12,6,0)[k4-1]})")
        for x in kvm(k4): a(x)
    stamp(a,33)
    for ft in range(2 if QX else 0):
        for v in range(2): a(f"ds_read_b64_tr_b16 {R(PHI+4*ft+2*v,2)}, v252 offset:{L_PHQ-L_PHI+1024*v+32*ft}")
    a(f"s_xor_b32 s67, s67, {2*QX}\ns_lshl_b32 s3, s38, 2\ns_add_u32 s3, s3, {L_FLG}\nv_mov_b32 v4, s3\nv_mov_b32 v5, 1")
    for j in range(3):
        b=KVt[j]
        for i in range(4): a(f"v_cvt_pk_bf16_f32 v{b+i}, v{b+2*i}, v{b+2*i+1}")
        if j<2: a(f"buffer_store_dwordx4 {R(b,4)}, v{vLN}, s[{SWS}:{SWS+3}], s74 offen offset:{1024*j} sc1")
    a("s_mov_b32 exec_lo, 0x00010001\ns_mov_b32 exec_hi, 0x00010001")
    a(f"buffer_store_dwordx4 {R(KVt[2],4)}, v1, s[{SWS}:{SWS+3}], s75 offen sc1\ns_mov_b64 exec, -1\nds_write_b32 v4, v5")
    stamp(a,25)
    a("s_setprio 0")
    corrT(a, 0, CSQ, BK)
    a("s_waitcnt lgkmcnt(1)")
    EP,EM = feature(a, BK, 0, False)
    stamp(a,26)
    KF=104; ZF=120
    key_rd(a, 248)
    a("v_lshrrev_b32 v5, 3, v1\nv_lshlrev_b32 v6, 11, v5\nv_bfe_u32 v5, v1, 4, 2\nv_lshlrev_b32 v5, 1, v5\nv_and_b32 v7, 7, v1\nv_xor_b32 v5, v5, v7\nv_lshl_add_u32 v6, v5, 4, v6\ns_lshl_b32 s3, s35, 7\nv_add_u32 v6, s3, v6")
    for e in range(4): a(f"v_add_u32 v{216+e}, {e*15360}, v6")
    a("s_lshl_b32 s72, s38, 12\ns_lshl_b32 s73, s38, 16"); rperm(a); a("s_lshl_b32 s3, s3, 18\ns_or_b32 s73, s73, s3")
    stat3(a, 193, 192)
    a(f"s_mul_i32 s76, s67, {KVS}\ns_add_u32 s76, s76, {WS_KVR}\nv_lshlrev_b32 v5, 4, v1\nv_and_b32 v6, 48, v1\nv_add_u32 v6, 4096, v6")
    a(f"s_lshl_b32 s3, s38, 2\ns_add_u32 s3, s3, {L_FLG}\nv_mov_b32 v3, s3\nL_gw:\nds_read_b32 v2, v3\ns_waitcnt lgkmcnt(0)\nv_readfirstlane_b32 s3, v2\ns_cmp_eq_u32 s3, 3\ns_cbranch_scc1 L_gk\n{LSL}s_branch L_gw\nL_gk:")
    stamp(a,35)
    SG='slate' not in EXP
    if SG: silu_prep(a, PG, PX, 193, 192, 196)
    if opt('h2d',0): a(f"s_sleep {opt('h2d',0)}")
    def ld_h2():
        for j in range(4): a(f"buffer_load_dwordx4 {R(KF+4*j,4)}, v5, s[{SWS}:{SWS+3}], s76 offen offset:{1024*j} sc1")
        for pm in range(2): a(f"buffer_load_dwordx4 {R(ZF+4*pm,4)}, v6, s[{SWS}:{SWS+3}], s76 offen offset:{64*pm} sc1")
    ld_h2()
    key_fin(a, 248)
    a(f"s_lshl_b32 s3, s36, 3\ns_lshl_b32 s28, s64, 2\ns_add_u32 s3, s3, s28\ns_lshl_b32 s3, s3, 5\ns_add_u32 s3, s3, s67\ns_lshl_b32 s77, s3, 10\ns_add_u32 s77, s77, {WS_O}")
    c_wo(a,'hb')
    a(f"s_waitcnt vmcnt({4*len(PLC.get('hb',[]))})")
    stamp(a,36)
    if 'nodup' not in EXP: a(f"s_add_u32 s76, s76, {WS_KV2-WS_KVR}")
    if 'noh2m' not in EXP:
        L=a.capture(ld_h2)
        def rl():
            for j,x in enumerate(L):
                maxu(a, 2, range(KF+4*j,KF+4*j+4))
                a(f"v_cmp_eq_u32 vcc, -1, v2\ns_cbranch_vccz L_hm{j}\ns_mov_b64 exec, vcc\n{x}\ns_mov_b64 exec, -1\nL_hm{j}:")
        checked(a, "L_k7", range(KF,KF+24), rl, sleep=0)
    else: checked(a, "L_k7", range(KF,KF+24), ld_h2)
    a("s_setprio 2")
    c_wo(a,'c2')
    stamp(a,27)
    def om(g):
        N=acc(g,2); L=[]
        for pm,Eb in ((0,EP[g]),(1,EM[g])): L.append(f"v_mfma_f32_16x16x32_bf16 {R(N+8,4)}, {R(ZF+4*pm,4)}, {R(Eb,4)}, {R(N+8,4) if pm else '0'}")
        for dt in range(2):
            for pm,Eb in ((0,EP[g]),(1,EM[g])): L.append(f"v_mfma_f32_16x16x32_bf16 {R(N+4*dt,4)}, {R(KF+8*pm+4*dt,4)}, {R(Eb,4)}, {R(N+4*dt,4) if pm else '0'}")
        return L
    def od(g): N=acc(g,2); return [f"v_add_f32 v{N+8}, 0x358637bd, v{N+8}", f"v_rcp_f32 v{N+8}, v{N+8}"]
    def ov(g, pk):
        N=acc(g,2)
        L=[f"v_pk_mul_f32 {R(N+i,2)}, {R(N+i,2)}, {R(N+8,2)} op_sel_hi:[1,0]" for i in range(0,8,2)] if pk else [f"v_mul_f32 v{N+i}, v{N+i}, v{N+8}" for i in range(8)]
        L+=[f"v_cvt_pk_bf16_f32 v{N+i}, v{N+2*i}, v{N+2*i+1}" for i in range(4)]
        L+=[f"buffer_store_dwordx4 {R(N,4)}, v5, s[{SWS}:{SWS+3}], s77 offen sc1"]+(["s_add_u32 s77, s77, 32768"] if g<3 else [])
        return L
    if 'noopipe' not in EXP:
        for x in om(0): a(x)
        for g in range(1,4):
            M=om(g); V_=od(g-1)+ov(g-1,False)
            for x in M[:2]+zipl(M[2:], V_, 3): a(x)
        for x in od(3)+ov(3,True): a(x)
    else:
        for g in range(4):
            N=acc(g,2)
            for pm,Eb in ((0,EP[g]),(1,EM[g])):
                mfma(a, N+8, ZF+4*pm, Eb, N+8 if pm else None)
                for dt in range(2): mfma(a, N+4*dt, KF+8*pm+4*dt, Eb, N+4*dt if pm else None)
        for g in range(4): a(f"v_add_f32 v{acc(g,2)+8}, 0x358637bd, v{acc(g,2)+8}")
        for g in range(4): a(f"v_rcp_f32 v{acc(g,2)+8}, v{acc(g,2)+8}")
        for g in range(4):
            N=acc(g,2)
            for i in range(0,8,2): a(f"v_pk_mul_f32 {R(N+i,2)}, {R(N+i,2)}, {R(N+8,2)} op_sel_hi:[1,0]")
            for i in range(4): a(f"v_cvt_pk_bf16_f32 v{N+i}, v{N+2*i}, v{N+2*i+1}")
            a(f"buffer_store_dwordx4 {R(N,4)}, v5, s[{SWS}:{SWS+3}], s77 offen sc1")
            if g<3: a("s_add_u32 s77, s77, 32768")
    a(f"v_mov_b32 v2, 7\nds_write_b32 v3, v2\ns_and_b32 s3, s68, 127\ns_lshl_b32 s3, s3, 2\ns_add_u32 s3, s3, {L_M}\nv_mov_b32 v2, s3\nds_read_b32 v250, v2\nds_read_b32 v251, v2 offset:1024")
    stamp(a,28)
    a("s_setprio 0")
    wait7(a, "L_cw")
    c_wo(a,'co')
    if not SG: silu_prep(a, PG, PX, 193, 192, 196)
    if opt('cpd',0): a(f"s_sleep {opt('cpd',0)}")
    stamp(a,29)

def p3(a):
    a("L_p3:")
    a.pad(4)
    D=opt('d3',5)
    PA=8; PB=40; PW=PB+8*D; vW=PW+32; vB=vW+4
    srd(a, SB, 22, 2048*2048)
    a(f"s_lshr_b32 s64, s39, 2\ns_lshl_b32 s3, s34, 2\ns_add_u32 s3, s3, s38\ns_lshl_b32 s3, s3, 16\ns_lshl_b32 s28, s64, {12 if OWN else 14}\ns_add_u32 s3, s3, s28\ns_add_u32 s76, s3, {WS_O}\ns_lshr_b32 s3, s73, 18\ns_lshl_b32 s3, s3, 12\ns_xor_b32 s76, s76, s3")
    a(f"s_lshl_b32 s3, s64, 15\nv_lshlrev_b32 v2, 4, v1\nv_add_u32 v{vB}, s3, v2\nv_xor_b32 v{vB+1}, 0x8000, v{vB}")
    a(f"v_lshrrev_b32 v2, 2, v1\nv_lshlrev_b32 v2, 7, v2\nv_bfe_u32 v3, v1, 3, 2\nv_lshl_add_u32 v2, v3, 5, v2\nv_and_b32 v3, 3, v1\nv_lshl_add_u32 v2, v3, 3, v2\ns_lshl_b32 s3, s64, 16\nv_add_u32 v{vW}, s3, v2")
    for ct in range(1,4): a(f"v_xor_b32 v{vW+ct}, {32*ct}, v{vW}")
    ROT='prot' in EXP
    vWr=196
    if ROT:
        for k in range(4):
            a(f"s_and_b32 s3, s35, 3\ns_xor_b32 s3, s3, {k}\ns_lshl_b32 s{79+k}, s3, 10\ns_add_u32 s{79+k}, s{79+k}, s76\ns_lshl_b32 s3, s3, 12")
            for ct in range(4): a(f"v_add_u32 v{vWr+4*k+ct}, s3, v{vW+ct}")
    def ldx(j, b, sreg):
        if ROT: a(f"s_add_u32 s{sreg}, s{79+(j&3)}, {(j&~3)*1024}")
        for e in range(2): a(f"buffer_load_dwordx4 {R(b+4*e,4)}, v{vB+e}, s[{SWS}:{SWS+3}], s{sreg} offen offset:{0 if ROT else (j%4)*1024} sc1")
    def ld(j):
        b=PB+8*(j%D)
        if j%4==0 and not ROT: a(f"s_xor_b32 s77, s76, {cmap(j>>2)*4096}")
        ldx(j,b,77)
    def wr(j):
        b=PW+16*(j%2)
        if ROT: return [f"ds_read_b64_tr_b16 {R(b+4*ct+2*v,2)}, v{vWr+4*(j&3)+ct} offset:{(j&~3)*4096+v*2048}" for ct in range(4) for v in range(2)]
        return [f"ds_read_b64_tr_b16 {R(b+4*ct+2*v,2)}, v{vW+ct} offset:{j*4096+v*2048}" for ct in range(4) for v in range(2)]
    for j in range(D-1): ld(j)
    stamp2(a,30)
    a(f"s_lshr_b32 s3, s68, 7\ns_xor_b32 s83, s3, s34\ns_or_b32 s83, s83, s39")
    YL=128; IS=250
    a("v_lshlrev_b32 v222, 4, v1")
    def ld_y():
        for j in range(16):
            if j%4==0: a(f"s_add_u32 s3, s78, {j*1024}")
            a(f"buffer_load_dwordx4 {R(YL+4*j,4)}, v222, s[{SWS}:{SWS+3}], s3 offen offset:{(j%4)*1024} sc1")
    def fix1():
        a(f"L_fx1:\ns_lshl_b32 s78, s35, 14\ns_add_u32 s78, s78, {WS_Y}")
        a(f"v_and_b32 v2, 15, v1\nv_lshrrev_b32 v3, 4, v1\nv_lshl_add_u32 v193, v2, 2, v3\nv_and_b32 v2, 7, v193\nv_lshrrev_b32 v193, 3, v193\nv_lshl_add_u32 v193, v2, 3, v193\nv_lshlrev_b32 v2, 1, v193\ns_lshl_b32 s3, s68, 11\ns_lshl_b32 s28, s35, 7\ns_add_u32 s3, s3, s28\nbuffer_load_ushort v194, v2, s[{SX}:{SX+3}], s3 offen")
        ld_y()
        a("s_branch L_fx1r")
    def fix2():
        a("L_fx2:\ns_and_b32 s3, s70, 0xffff0000\ns_xor_b32 s28, s3, 0x80000000\ns_not_b32 s29, s3\ns_and_b32 s29, s29, 0xffff0000\ns_bitcmp1_b32 s3, 31\ns_cselect_b32 s3, s28, s29")
        a(f"v_mov_b32 v195, s3\nv_mul_f32 v195, 0xbfb8aa3b, v195\nv_exp_f32 v195, v195\nv_add_f32 v195, 1.0, v195\nv_rcp_f32 v195, v195")
        rne(a,195,195)
        checked(a, "L_k6", range(YL,YL+64), ld_y, sleep=4)
        for k in (8,4,2,1):
            for i in range(0,4*k,2): a(f"v_pk_add_f32 {R(YL+i,2)}, {R(YL+i,2)}, {R(YL+4*k+i,2)}")
        for i in range(2): a(f"v_permlane32_swap_b32 v{YL+i}, v{YL+2+i}")
        for i in range(2): a(f"v_add_f32 v{YL+i}, v{YL+i}, v{YL+2+i}")
        a(f"v_permlane16_swap_b32 v{YL}, v{YL+1}\nv_add_f32 v{YL}, v{YL}, v{YL+1}")
        rne(a,YL,YL)
        a(f"v_mul_f32 v{YL}, v{YL}, v195\nv_lshlrev_b32 v194, 16, v194\nv_sub_f32 v194, v194, v{IS}")
        rne(a,YL,YL); rne(a,194,194)
        a(f"v_mul_f32 v194, v194, v{IS+1}")
        rne(a,194,194)
        a(f"v_add_f32 v{YL}, v{YL}, v194")
        rne(a,YL,YL)
        a(f"v_mul_f32 v2, 0xbfb8aa3b, v{YL}\nv_exp_f32 v2, v2\nv_add_f32 v2, 1.0, v2\nv_rcp_f32 v2, v2\nv_mul_f32 v2, v{YL}, v2\nv_lshlrev_b32 v3, 2, v193\nds_write_b32 v3, v2\ns_branch L_fx2r")
    for r in wr(0): a(r)
    a("s_mov_b32 s29, 0")
    BC=opt('bc',7)
    def chk(j):
        b=PB+8*(j%D)
        return a.capture(lambda: maxu(a, 2, range(b,b+8)))+["v_cmp_eq_u32 vcc, -1, v2"]
    a(f"s_waitcnt vmcnt({2*(D-2)})")
    for x in chk(0): a(x)
    for j in range(16):
        b=PB+8*(j%D); w=PW+16*(j%2)
        a(f"s_cbranch_vccnz L_r{j}\nL_g{j}:")
        if 'pst' in EXP and j%4==0: stamp2(a,40+j//4)
        if a.down and j==opt('jd',4): a("s_cmp_eq_u32 s64, 1\ns_cbranch_scc1 L_dn\nL_dnr:")
        if j==opt('fxj',14): a("s_cmp_eq_u32 s83, 0\ns_cbranch_scc1 L_fx1\nL_fx1r:")
        a("s_waitcnt lgkmcnt(0)")
        if 'bal' in EXP and j in (0,5,9,13): a(f"s_setprio {3-(j//4)}")
        if 'bal2' in EXP and j in (0,8,12,14): a(f"s_setprio {dict(zip((0,8,12,14),(3,2,1,0)))[j]}")
        if BC==3:
            if j==3: a("s_barrier")
        elif j in (opt('bh',3),BC): a(f"s_cmp_eq_u32 s64, {0 if j!=BC else 1}\ns_cbranch_scc1 L_nb{j}\ns_barrier\nL_nb{j}:")
        S=[[] for _ in range(8)]
        if j<15:
            rd=wr(j+1)
            for i in range(4): S[i]=rd[2*i:2*i+2]
            if j+D-1<16: S[4]=a.capture(lambda: ld(j+D-1))
            c=chk(j+1)
            S[5]=[f"s_waitcnt vmcnt({2*min(D-2,14-j)})"]+c[:1]; S[6]=c[1:3]; S[7]=c[3:]
        i=0
        for ct in range(4):
            for e in range(2):
                d=PA+16*e+4*ct
                mfma(a, d, w+4*ct, b+4*e, d if j else None)
                for x in S[i]: a(x)
                i+=1
    stamp2(a,31)
    if STAMPS: a(f"v_writelane_b32 v{VST-1}, s29, 58")
    a("s_cmp_eq_u32 s83, 0\ns_cbranch_scc1 L_fx2\nL_fx2r:")
    a(f"s_lshl_b32 s3, s39, 12\ns_add_u32 s3, s3, {L_STG}\nv_lshlrev_b32 v2, 4, v1\nv_add_u32 v2, s3, v2\nv_xor_b32 v3, 0x4000, v2\ns_xor_b32 s28, s3, 0x4000")
    for ct in range(4): a(f"ds_write_b128 v2, {R(PA+16+4*ct,4)} offset:{1024*ct}")
    XF=40
    for d in range(8): unpack(a, XF+2*d, PX+d)
    a(f"v_and_b32 v4, 15, v1\nv_lshrrev_b32 v5, 4, v1\nv_lshlrev_b32 v6, 1, v4\nv_and_b32 v6, 14, v6\nv_xor_b32 v5, v5, v6\nv_lshl_add_u32 v4, v4, 7, s28\nv_lshl_add_u32 v4, v5, 3, v4")
    a(f"v_lshrrev_b32 v5, 3, v1\nv_and_b32 v6, 7, v1\nv_xor_b32 v7, v6, v5\nv_lshl_add_u32 v7, v7, 4, s28\nv_lshl_add_u32 v7, v5, 7, v7")
    a(f"s_lshl_b32 s3, s34, 7\ns_add_u32 s3, s3, s69\nv_add_u32 v5, s3, v5\nv_lshlrev_b32 v5, 11, v5\nv_lshl_add_u32 v5, v6, 4, v5\ns_lshl_b32 s3, s35, 7\ns_add_u32 s28, s3, 16384")
    a(f"s_lshl_b32 s29, s34, 7\ns_add_u32 s29, s29, s69\ns_andn2_b32 s77, s68, 15\ns_cmp_lg_u32 s29, s77")
    a("s_waitcnt lgkmcnt(0)\ns_barrier")
    a(f"s_cbranch_scc1 L_nov\nv_and_b32 v2, 48, v1\ns_and_b32 s29, s68, 15\ns_lshl_b32 exec_lo, 0x00010001, s29\ns_mov_b32 exec_hi, exec_lo")
    for ct in range(4): a(f"ds_read_b128 {R(PG+4*ct,4)}, v2 offset:{64*ct}")
    a("s_mov_b64 exec, -1\nL_nov:")
    stamp(a,60)
    for ct in range(4): a(f"ds_read_b128 {R(PA+16+4*ct,4)}, v3 offset:{1024*ct}")
    for ct in range(4):
        a(f"s_waitcnt lgkmcnt({3-ct})")
        for i in (0,2): a(f"v_pk_add_f32 {R(PA+4*ct+i,2)}, {R(PA+4*ct+i,2)}, {R(PA+16+4*ct+i,2)}")
        for i in (0,2): a(f"v_pk_fma_f32 {R(XF+4*ct+i,2)}, {R(PA+4*ct+i,2)}, {R(PG+4*ct+i,2)}, {R(XF+4*ct+i,2)}")
        for i in (0,1): a(f"v_cvt_pk_bf16_f32 v{PA+2*ct+i}, v{XF+4*ct+2*i}, v{XF+4*ct+2*i+1}")
    for ct in range(4):
        if ct: a(f"v_xor_b32 v6, {32*ct}, v4")
        a(f"ds_write_b64 v{6 if ct else 4}, {R(PA+2*ct,2)}")
    for e in range(2): a(f"ds_read_b128 {R(PA+16+4*e,4)}, v7 offset:{1024*e}")
    OM = '' if 'outplain' in EXP else ' nt' if 'outnt' in EXP else ' sc1 nt' if 'outsn' in EXP else ' sc0 sc1' if 'outss' in EXP else ' sc1'
    for e in range(2):
        a(f"s_waitcnt lgkmcnt({1-e})\nbuffer_store_dwordx4 {R(PA+16+4*e,4)}, v5, s[{SB}:{SB+3}], s{28 if e else 3} offen{OM}")
    stamp(a,61)
    if STAMPS: a("s_waitcnt vmcnt(0)")
    stamp(a,32)
    dump(a)
    if LEAK>=0: a("s_memrealtime s[98:99]\ns_waitcnt lgkmcnt(0)\ns_sub_u32 s94, s94, s96\ns_add_u32 s94, s94, s98\nL_lk:\ns_sleep 1\ns_memrealtime s[98:99]\ns_waitcnt lgkmcnt(0)\ns_cmp_lt_u32 s98, s94\ns_cbranch_scc1 L_lk")
    a("L_done:\ns_endpgm")
    if 'ln4' in EXP: ln_code(a)
    fix1(); fix2()
    if a.down:
        a("L_dn:")
        if 'dprio' in EXP: a("s_setprio 3")
        a.down('dprio' not in EXP)
        if 'dprio' in EXP: a("s_setprio 0")
        a("s_branch L_dnr")
    for j in range(16):
        b=PB+8*(j%D)
        a(f"L_r{j}:\ns_add_u32 s29, s29, 1\ns_cmp_ge_u32 s29, {SPIN}\ns_cbranch_scc1 L_g{j}\ns_xor_b32 s3, s76, {cmap(j>>2)*4096}")
        ldx(j,b,3)
        a("s_waitcnt vmcnt(0)")
        for x in chk(j): a(x)
        a(f"s_cbranch_vccnz L_r{j}\ns_branch L_g{j}")

def kern(a):
    kernel_header(a, "fused_kernel")
    a("s_cmp_ge_u32 s2, 256\ns_cbranch_scc1 L_done")
    a("s_load_dwordx16 s[4:19], s[0:1], 0\ns_load_dwordx8 s[20:27], s[0:1], 64")
    if STAMPS or LEAK>=0: a("s_memrealtime s[96:97]\ns_memrealtime s[94:95]")
    a("v_and_b32 v1, 63, v0\nv_lshrrev_b32 v2, 6, v0")
    a("v_readfirstlane_b32 s39, v2")
    a("s_and_b32 s34, s2, 1\ns_lshl_b32 s34, s34, 3\ns_bfe_u32 s3, s2, 0x30003\ns_add_u32 s36, s34, s3")
    a("s_bfe_u32 s37, s2, 0x20001\ns_lshl_b32 s37, s37, 2\ns_lshr_b32 s28, s2, 6\ns_add_u32 s37, s37, s28")
    a("s_and_b32 s80, s37, 12\ns_xor_b32 s80, s80, s34\ns_add_u32 s85, s36, s37\ns_and_b32 s85, s85, 3\ns_or_b32 s35, s80, s85\ns_mov_b32 s34, s36")
    a("s_and_b32 s38, s39, 3")
    a("s_cmp_lt_u32 s39, 4\ns_cbranch_scc1 L_C")
    h_waves(a)
    c_waves(a)
    p3(a)
    return kernel_desc("fused_kernel", 256, 102)

if __name__ == "__main__":
    a=CAsm()
    head = open('/code/%s.s.ref'%NAME).read().split('\n')
    hdr = [l for l in head if l.startswith(';') and '@launch' not in l and 'Override launch' not in l and 'grid=ceil' not in l]
    out='\n'.join(hdr)+"\n; @launch kernel=fused_kernel grid=(256,1,1) block=(512,1,1) lds=163840\n"
    out+='.amdgcn_target "amdgcn-amd-amdhsa--gfx950"\n.text\n'
    d=kern(a)
    if 'noal' not in EXP:
        import align
        a.lines,nw,nn = align.align(a.lines, '.amdgcn_target "amdgcn-amd-amdhsa--gfx950"\n.text\n')
    out+=a.text()+".p2align 8\n.fill 4096, 4, 0xbf800000\n"+'.section .rodata,"a"\n.p2align 6\n'+d
    if 'official' in EXP:
        out = out.replace("; @launch kernel=fused_kernel grid=", "; @launch grid=").replace("fused_kernel", NAME+"_kernel")
    open(sys.argv[1],"w").write(out)
```

```python
import sys, os
from asmgen import Asm, kernel_header, kernel_desc
NAME = "recurrent_scan__linear_kernel_hedgehog__moe_arch_mod__prompt"
EXP = os.environ.get('EXP','').split(',')
STAMPS = 'st' in EXP or 'lite' in EXP
LITE = 'lite' in EXP
def opt(name, default):
    for e in EXP:
        if e.startswith(name+'='): return int(e.split('=')[1])
    return default
WS_SIZE = 0x10000000
WS_REC  = 0x000000
WS_EPO  = 0x004000
WS_RDY  = 0x008000
KVS     = 4224
WS_FILL = 0x100000
WS_CSP  = 0x080000
WS_KVR  = WS_FILL
WS_GU   = WS_KVR + 32*KVS
WS_Y    = WS_GU + 16*3584*4
WS_KV2  = WS_Y + 16*64*256
assert WS_KV2 + 32*KVS <= WS_FILL + 1024*768
WS_O    = 0x400000
WS_KVP  = 0x800000
WS_DBG  = 0x3000000
SLOT = 40960
L_PHS  = 32768
L_VS   = 65536
def LC(c): return c*16384 + (16384 if c>=4 else 0)
L_WR   = 122880
L_STG  = 131072
LM     = 147456
L_PHI  = LM+256
L_M    = LM+4096+512
L_R    = L_M+1024
L_RC   = L_R+1024
L_SQ   = L_RC+512
L_CS   = L_SQ+256
L_PHQ  = LM+8192+256
L_KEY  = LM+8192+256+6144
L_FLG  = L_KEY+64
assert L_CS+768 <= LM+8192 and L_FLG+32 <= 163840
NT = opt('nt',1)
PLC = {}
for it_ in os.environ.get('PLC','i0:k0;i1:k1,k2;i3:a,p,t,G0004;i5:o0;i6:o1,w70;i7:w71;i8:o2,o3;i9:b0;j10:b1;i11:w72,w73;i13:u6;j14:G0412;x0:w0,w1,w4,G1219;x2:w5,l6;h0:G1923;co:w2,w3').split(';'):
    PLC.setdefault(it_.split(':')[0],[]).extend(it_.split(':')[1].split(','))
FNT = '' if 'fplain' in EXP else ' nt'
TNT = ' nt' if 'tnt' in EXP else ''
STAG = 'nostag' not in EXP
def korder(c):
    TT=[[0,0,0,0],[4,1,2,3],[8,5,6,7],[12,9,10,11]] if opt('so',0)==0 else [[0,0,0,0],[4,2,3,4],[8,5,6,7],[12,9,10,11]] if opt('so',0)==1 else [[0,0,0,0],[4,4,4,4],[8,5,6,7],[12,9,10,11]]
    res=[None]*16
    for b in range(4): res[TT[b][c]]=4*b+c
    rest=sorted([(TT[b][k],(k-c)&3,4*b+k) for b in range(4) for k in range(4) if k!=c])
    for i in range(16):
        if res[i] is None:
            t,_,sl=rest.pop(0); assert t<i; res[i]=sl
    return res, TT[1][c]
OWN = 'own' in EXP
def cmap(c): return ((c&3)<<1 | c>>2) if OWN else c
LSL = '' if 'tight' in EXP else 's_sleep 1\n'
ARR = opt('arr',8)
RX = opt('rx',0)
QX = opt('qx',4)
LNP = 3
DPPM = "row_mask:0xf bank_mask:0xf"
LOG2E = 0x3fb8aa3b
SPIN = 200000
SX, SW, SWS, SA, SB, SC = 40, 44, 48, 52, 56, 60
VST = 255
LNX = 192

def srd(a, d, base, size):
    a(f"s_mov_b32 s{d}, s{base}\ns_mov_b32 s{d+1}, s{base+1}\ns_mov_b32 s{d+2}, {size}\ns_mov_b32 s{d+3}, 0x00020000")
LEAK = opt('leak',-1)
def stamp(a, i):
    if i==LEAK: a("s_memrealtime s[94:95]")
    if STAMPS and (i==32 or not LITE): a(f"s_memrealtime s[100:101]\ns_waitcnt lgkmcnt(0)\nv_writelane_b32 v{VST}, s100, {i}")
def stamp2(a, i):
    if i==LEAK: a("s_memrealtime s[94:95]")
    if STAMPS and not LITE: a(f"s_memrealtime s[100:101]\ns_memtime s[98:99]\ns_waitcnt lgkmcnt(0)\nv_writelane_b32 v{VST}, s100, {i}\nv_writelane_b32 v{VST-1}, s98, {i}")
def dump(a):
    if STAMPS: a(f"s_lshl_b32 s3, s2, 3\ns_add_u32 s3, s3, s39\ns_lshl_b32 s3, s3, 9\ns_add_u32 s3, s3, {WS_DBG}\nv_lshlrev_b32 v2, 3, v1\nbuffer_store_dwordx2 v[{VST-1}:{VST}], v2, s[{SWS}:{SWS+3}], s3 offen")
def rne(a, dst, src):
    a(f"v_cvt_pk_bf16_f32 v{dst}, v{src}, v{src}\nv_lshlrev_b32 v{dst}, 16, v{dst}")
def R(b, n): return f"v[{b}:{b+n-1}]"
def unpack(a, dst, src):
    a(f"v_lshlrev_b32 v{dst}, 16, v{src}\nv_and_b32 v{dst+1}, 0xffff0000, v{src}")
def mfma(a, d, A, B, c=None):
    a(f"v_mfma_f32_16x16x32_bf16 {R(d,4)}, {R(A,4)}, {R(B,4)}, {'0' if c is None else R(c,4)}")

class CAsm(Asm):
    cap=None
    def __call__(self, text):
        if self.cap is not None: self.cap += [t for t in text.strip().split('\n') if t.strip()]
        else: super().__call__(text)
    def capture(self, f):
        self.cap=[]; f(); r=self.cap; self.cap=None; return r

class VM:
    def __init__(self, a, nt=1): self.a=a; self.nt=nt; self.q=[[] for _ in range(nt)]; self.only=None; self.nl=0
    def issue(self, tag, n=1):
        for c in range(self.nt):
            if self.only is None or c in self.only: self.q[c] += [tag]*n
    def wait(self, tag):
        need={}
        for c in range(self.nt):
            q=self.q[c]
            if tag in q and (self.only is None or c in self.only):
                idx=max(i for i,t in enumerate(q) if t==tag); need[c]=len(q)-1-idx; self.q[c]=q[idx+1:]
        if not need: return
        allc=[c for c in range(self.nt) if self.only is None or c in self.only]
        base=max(need.values()) if len(need)==len(allc) else None
        if base is not None: self.a(f"s_waitcnt vmcnt({min(base,63)})")
        for c,n in need.items():
            if n!=base:
                self.nl+=1
                self.a(f"s_cmp_lg_u32 s85, {c}\ns_cbranch_scc1 L_vw{self.nl}\ns_waitcnt vmcnt({min(n,63)})\nL_vw{self.nl}:")
    def drain(self): self.a("s_waitcnt vmcnt(0)"); self.q=[[] for _ in range(self.nt)]
    def cond(self, classes, f):
        classes=set(classes)
        if not classes: return
        if len(classes)==self.nt: f(); return
        self.nl+=1; l=f"L_vc{self.nl}"
        if len(classes)==1: self.a(f"s_cmp_lg_u32 s85, {list(classes)[0]}\ns_cbranch_scc1 {l}")
        else:
            for c in set(range(self.nt))-classes: self.a(f"s_cmp_eq_u32 s85, {c}\ns_cbranch_scc1 {l}")
        self.only=classes; f(); self.only=None
        self.a(f"{l}:")

def maxu(a, dst, regs):
    regs=list(regs)
    if len(regs)==1: a(f"v_mov_b32 v{dst}, v{regs[0]}"); return
    if len(regs)==2: a(f"v_max_u32 v{dst}, v{regs[0]}, v{regs[1]}"); return
    a(f"v_max3_u32 v{dst}, v{regs[0]}, v{regs[1]}, v{regs[2]}"); regs=regs[3:]
    while len(regs)>=2: a(f"v_max3_u32 v{dst}, v{dst}, v{regs[0]}, v{regs[1]}"); regs=regs[2:]
    if regs: a(f"v_max_u32 v{dst}, v{dst}, v{regs[0]}")

def checked(a, lbl, regs, reload, t=2, sleep=1):
    a(f"s_mov_b32 s29, 0\n{lbl}:")
    maxu(a, t, regs)
    a(f"v_cmp_eq_u32 vcc, -1, v{t}\ns_cbranch_vccz {lbl}k\ns_add_u32 s29, s29, 1\ns_cmp_ge_u32 s29, {SPIN}\ns_cbranch_scc1 {lbl}k")
    if sleep: a(f"s_sleep {sleep}")
    reload()
    a(f"s_waitcnt vmcnt(0)\ns_branch {lbl}\n{lbl}k:")
    if STAMPS: a(f"v_writelane_b32 v{VST-1}, s29, {50+int(lbl[3:])}")

def red8(a, e):
    for i in range(4): a(f"v_permlane32_swap_b32 v{e+i}, v{e+4+i}")
    for i in range(4): a(f"v_add_f32 v{e+i}, v{e+i}, v{e+4+i}")
    for i in range(2): a(f"v_permlane16_swap_b32 v{e+i}, v{e+2+i}")
    for i in range(2): a(f"v_add_f32 v{e+i}, v{e+i}, v{e+2+i}")
    for i in range(2): a(f"v_add_f32 v{e+i}, v{e+i}, v{e+i} row_ror:8 {DPPM}")

def silu_prep(a, PG, PX, vm_, vr, T):
    assert vr%2==0 and T%2==0
    a(f"v_mul_f32 v{T}, v{vm_}, v{vr}\nv_mov_b32 v{T+2}, 0xbfb8aa3b")
    E=T+4
    for d in range(8): unpack(a, PG+2*d, PX+d)
    for i in range(0,16,2): a(f"v_pk_fma_f32 {R(PG+i,2)}, {R(PG+i,2)}, {R(vr,2)}, {R(T,2)} op_sel_hi:[1,0,0] neg_lo:[0,0,1] neg_hi:[0,0,1]")
    for i in range(0,16,2): a(f"v_pk_mul_f32 {R(E+i,2)}, {R(PG+i,2)}, {R(T+2,2)} op_sel_hi:[1,0]")
    for i in range(16): a(f"v_exp_f32 v{E+i}, v{E+i}")
    for i in range(0,16,2): a(f"v_pk_add_f32 {R(E+i,2)}, {R(E+i,2)}, 1.0 op_sel_hi:[1,0]")
    for i in range(16): a(f"v_rcp_f32 v{E+i}, v{E+i}")
    for i in range(0,16,2): a(f"v_pk_mul_f32 {R(PG+i,2)}, {R(PG+i,2)}, {R(E+i,2)}")

PG, PX = 224, 240
def xaddr(a, dst, t0=2, t1=3):
    a(f"s_lshl_b32 s3, s38, 1\ns_lshr_b32 s28, s39, 2\ns_add_u32 s3, s3, s28\ns_lshl_b32 s69, s3, 4")
    a(f"v_and_b32 v{t0}, 15, v1\nv_add_u32 v{dst}, s69, v{t0}\nv_lshlrev_b32 v{dst}, 7, v{dst}\nv_lshrrev_b32 v{t0}, 1, v{t0}\nv_lshrrev_b32 v{t1}, 5, v1\nv_xor_b32 v{t0}, v{t0}, v{t1}\nv_lshl_add_u32 v{dst}, v{t0}, 4, v{dst}\nv_bfe_u32 v{t1}, v1, 4, 1\nv_lshl_add_u32 v{dst}, v{t1}, 3, v{dst}")
def stat3(a, vm_, vr):
    a(f"v_and_b32 v2, 15, v1\nv_add_u32 v2, s69, v2\nv_lshlrev_b32 v2, 2, v2\nv_add_u32 v2, {L_M}, v2\nds_read_b32 v{vm_}, v2\nds_read_b32 v{vr}, v2 offset:1024")

def rperm(a):
    rw=opt('rw',0); ro=opt('ro',0)
    if OWN: a(f"s_xor_b32 s3, s37, {QX}\ns_lshr_b32 s3, s3, 2\ns_lshl_b32 s3, s3, 1\ns_xor_b32 s3, s3, {opt('ox',0)}"); return
    a(f"s_and_b32 s3, s36, {rw}")
    if ro==1: a("s_and_b32 s28, s35, 1\ns_lshl_b32 s28, s28, 1\ns_xor_b32 s3, s3, s28")
    if ro==2: a("s_and_b32 s28, s35, 1\ns_xor_b32 s3, s3, s28")
    if ro==3: a("s_and_b32 s28, s35, 3\ns_xor_b32 s3, s3, s28")
def wait7(a, l):
    a(f"v_and_b32 v3, 3, v1\nv_lshlrev_b32 v3, 2, v3\nv_add_u32 v3, {L_FLG}, v3\n{l}:\nds_read_b32 v2, v3\ns_waitcnt lgkmcnt(0)\nv_cmp_ne_u32 vcc, 7, v2\ns_cbranch_vccz {l}k\n{LSL}s_branch {l}\n{l}k:")
def key_rd(a, v):
    a(f"v_mov_b32 v2, {L_KEY}\nds_read_b32 v{v}, v2")
def key_fin(a, v):
    a(f"s_waitcnt lgkmcnt(0)\nv_readfirstlane_b32 s70, v{v}\ns_and_b32 s68, s70, 0x7ff\ns_sub_u32 s68, 2047, s68")

def h_waves(a):
    vm = VM(a, NT)
    vA=8; vW=12; vCS=18; vF=21; vD=22; vXo=23
    CSA=24; CSL=32; XF=80
    FW=128; DW=192; FA=120; SENT=248; vL16=252; vP64=253
    a("L_H:")
    a("v_and_b32 v4, 7, v1\ns_lshl_b32 s33, s37, 7\ns_lshl_b32 s87, s85, 7\ns_lshl_b32 s66, s80, 7")
    def w_addr():
        a("s_lshr_b32 s32, s36, 1\ns_and_b32 s32, s32, 2\ns_xor_b32 s32, s32, s38\nv_lshrrev_b32 v3, 3, v1")
        a("s_lshl_b32 s3, s32, 4\nv_add_u32 v7, s3, v3\nv_mul_u32_u24 v7, 6144, v7")
        a("v_bfe_u32 v6, v1, 4, 1\nv_lshlrev_b32 v6, 1, v6\nv_xor_b32 v5, v4, v6\nv_add_u32 v7, s33, v7\nv_xor_b32 v6, 4, v5\nv_lshl_add_u32 v6, v6, 4, v7\nv_lshl_add_u32 v7, v5, 4, v7")
        for e in range(6): a(f"v_add_u32 v{vW+e}, {(e>>1)*2048 + (e&1)*(8*6144-1024)}, v{6 if e&1 else 7}")
        for e in range(2): a(f"v_xor_b32 v{vW+e}, {QX*128}, v{vW+e}")
        a(f"s_lshl_b32 s31, s32, 11\ns_add_u32 s31, s31, 16384")
    def a_addr():
        a("s_lshl_b32 s3, s36, 7\ns_lshl_b32 s28, s38, 5\ns_add_u32 s3, s3, s28")
        a("v_add_u32 v3, s3, v3\nv_lshlrev_b32 v3, 11, v3")
        a("v_lshrrev_b32 v5, 4, v1\nv_xor_b32 v6, v4, v5\nv_xor_b32 v5, 4, v6")
        a("v_lshl_add_u32 v6, v6, 4, v3\nv_lshl_add_u32 v5, v5, 4, v3")
        for j in range(4): a(f"v_add_u32 v{vA+j}, {j*16384 - j*1024}, v{5 if j&1 else 6}")
    a("s_lshl_b32 s30, s38, 12")
    FAST=opt('fast',2)
    if FAST<2: w_addr()
    if FAST<1: a_addr()
    a("s_waitcnt lgkmcnt(0)")
    srd(a, SX, 4, 2048*2048)
    if FAST<2: srd(a, SW, 6, 1024*3072*2)
    def tiles(s, wfirst=False, part=None):
        sl=(s%3)*SLOT
        def A_():
            a(f"s_add_u32 m0, s30, {sl}")
            for j in range(4): a(f"buffer_load_dwordx4 v{vA+j}, s[{SX}:{SX+3}], s64 offen offset:{j*1024}{TNT if s%4==0 else ''} lds")
        def W_():
            for e in range(6):
                if e%2==0: a(f"s_add_u32 m0, s31, {sl+(e>>1)*8192}")
                a(f"buffer_load_dwordx4 v{vW+e}, s[{SW}:{SW+3}], s65 offen offset:{(e&1)*1024}{TNT if s%4==0 else ''} lds")
        if STAG and s>0: a(f"s_bfe_u32 s64, s{94+(s>>3)}, {(4<<16)|(4*(s&7))}\ns_lshl_b32 s64, s64, 7\ns_xor_b32 s64, s64, s66\ns_mul_i32 s65, s64, 3072")
        elif 'b2' in EXP and s<4: a(f"s_add_u32 s64, s87, {(s&1)*128}\ns_and_b32 s64, s64, 255\ns_or_b32 s64, s64, {(s>>1)*256}\ns_xor_b32 s64, s64, s66\ns_mul_i32 s65, s64, 3072")
        else: a(f"s_add_u32 s64, s87, {(s&3)*128}\ns_and_b32 s64, s64, 511\ns_or_b32 s64, s64, {(s>>2)*512}\ns_xor_b32 s64, s64, s66\ns_mul_i32 s65, s64, 3072")
        if part=='W': W_(); vm.issue(('t',s),6); return
        if part=='A': A_(); vm.issue(('t',s),4); return
        if wfirst: W_(); A_()
        else: A_(); W_()
        vm.issue(('t',s),10)
    def fill_addr():
        a(f"s_lshr_b32 s3, s38, 1\ns_lshl_b32 s28, s37, 1\ns_add_u32 s28, s28, s3\ns_and_b32 s29, s38, 1")
        a(f"s_lshl_b32 s3, s28, 4\ns_add_u32 s3, s3, s36\ns_mul_i32 s3, s3, {KVS}\ns_mul_i32 s78, s29, {KVS//2}\ns_add_u32 s78, s78, s3\ns_add_u32 s78, s78, {WS_KVP}")
        a(f"s_lshl_b32 s3, s36, 1\ns_add_u32 s29, s29, s3\ns_xor_b32 s28, s28, {2*QX}\ns_lshl_b32 s3, s29, 7\ns_add_u32 s3, s3, s28\ns_lshl_b32 s3, s3, 10\ns_add_u32 s79, s3, {WS_O}")
    def fillk(i0_,i1_):
        if 'nofill' in EXP: return
        for i in range(i0_,i1_):
            if i<2: a(f"buffer_store_dwordx4 {R(SENT,4)}, v{vL16}, s[{SWS}:{SWS+3}], s78 offen offset:{i*1024} sc1")
            else: a(f"s_mov_b64 exec, 15\nbuffer_store_dwordx4 {R(SENT,4)}, v{vL16}, s[{SWS}:{SWS+3}], s78 offen offset:2048 sc1\ns_mov_b64 exec, -1")
            vm.issue('own',1)
    def fillo(i):
        if 'nofill' in EXP: return
        a(f"s_add_u32 s3, s79, {i*32768}\nbuffer_store_dwordx4 {R(SENT,4)}, v{vL16}, s[{SWS}:{SWS+3}], s3 offen sc1")
        vm.issue('own',1)
    def xrows(h):
        a(f"s_lshl_b32 s3, s36, 7\ns_lshl_b32 s28, s37, 3\ns_add_u32 s3, s3, s28\ns_lshl_b32 s3, s3, 11\ns_add_u32 s3, s3, s30\ns_add_u32 m0, s30, {L_STG}")
        for i in (h,h+2): a(f"buffer_load_dwordx4 v{vL16}, s[{SX}:{SX+3}], s3 offen offset:{1024*i}{' nt' if 'xnt' in EXP else ''} lds")
        vm.issue('xr',2)
        if h==0: return
        srd(a, SC, 14, 2048)
        a(f"s_lshl_b32 s3, s38, 9\ns_add_u32 m0, s3, {L_WR}\ns_mov_b32 exec_hi, 0\nbuffer_load_dwordx4 v{vL16}, s[{SC}:{SC+3}], s3 offen lds\ns_mov_b64 exec, -1")
        vm.issue('xr',1)
    LN0=True
    if LN0: a(f"v_lshlrev_b32 v{vL16}, 4, v1")
    PRO=os.environ.get('PRO','e,W0,A0,s,t1' if 'ln4' in EXP else 'e,x,W0,s,A0,l,t1').split(',')
    def pro(L):
      for p in L:
        if p=='e':
            if STAMPS: a(f"v_mov_b32 v{VST-1}, 0\nv_writelane_b32 v{VST}, s96, 0")
            srd(a, SWS, 26, WS_SIZE)
            a(f"v_mov_b32 v19, {WS_EPO}\nbuffer_load_dword v19, v19, s[{SWS}:{SWS+3}], 0 offen sc1"); vm.issue('epo',1)
            stamp(a,1)
        elif p=='x':
            xrows(0); xrows(1)
            if FAST==2: w_addr(); srd(a, SW, 6, 1024*3072*2)
        elif p=='l': vm.wait('xr'); a('s_barrier')
        elif p[0] in 'WA': tiles(int(p[1]), part=p[0])
        elif p[0]=='t' and len(p)==2: tiles(int(p[1]))
        else: place1(p)
    pro(PRO[:PRO.index('s')])
    if FAST>=1: a_addr()
    for i in range(4): a(f"v_mov_b32 v{SENT+i}, -1")
    a(f"v_lshlrev_b32 v{vL16}, 4, v1\ns_and_b32 s85, s85, {NT-1}")
    a(f"s_lshl_b32 s3, s37, 4\ns_add_u32 s3, s3, s36\ns_lshl_b32 s67, s3, 10\ns_add_u32 s67, s67, {WS_CSP}\ns_lshl_b32 s3, s38, 8\ns_add_u32 s67, s67, s3")
    for i in range(8): a(f"v_mov_b32 v{CSA+i}, 0")
    a(f"v_lshlrev_b32 v{vP64}, 2, v1")
    KY=64; ST=72; CG=80; PW=224
    a("s_cmp_gt_u32 s37, 3\ns_subb_u32 s77, s37, 0\ns_cmp_gt_u32 s37, 11\ns_subb_u32 s77, s77, 0\ns_lshl_b32 s77, s77, 4\ns_add_u32 s77, s77, s36\ns_and_b32 s3, s37, 7\ns_cmp_eq_u32 s3, 3\ns_cselect_b32 s77, 224, s77")
    a(f"s_bitcmp1_b32 s38, 0\ns_cselect_b32 s{SA}, s18, s16\ns_cselect_b32 s{SA+1}, s19, s17\ns_cmp_lt_u32 s77, 224\ns_cselect_b32 s{SA+2}, {1024*3584*2}, 0\ns_mov_b32 s{SA+3}, 0x00020000")
    srd(a, SB, 20, 3584*1024*2)
    a("s_and_b32 s3, s77, 3\ns_lshl_b32 s3, s3, 8\ns_lshr_b32 s28, s38, 1\ns_lshl_b32 s28, s28, 7\ns_add_u32 s3, s3, s28\nv_lshrrev_b32 v5, 3, v1\nv_lshl_add_u32 v6, v5, 4, s3")
    a(f"v_mul_u32_u24 v6, 7168, v6\nv_lshl_add_u32 v6, v4, 4, v6\ns_lshr_b32 s3, s77, 2\ns_lshl_b32 s3, s3, 7\nv_add_u32 v{vF}, s3, v6")
    a("s_lshr_b32 s3, s2, 4\ns_mul_i32 s3, s3, 224\ns_mul_i32 s28, s38, 56\ns_add_u32 s71, s3, s28")
    a(f"v_lshlrev_b32 v6, 14, v5\nv_lshl_add_u32 v6, v4, 4, v6\ns_and_b32 s3, s2, 15\ns_lshl_b32 s3, s3, 7\nv_add_u32 v{vD}, s3, v6")

    def cs_addr():
        a(f"v_bfe_u32 v5, v1, 4, 1\nv_lshlrev_b32 v5, 5, v5\nv_xor_b32 v5, v5, v{vL16}\ns_min_u32 s3, s38, 2\ns_lshl_b32 s3, s3, 13\ns_and_b32 s28, s36, 4\ns_lshl_b32 s28, s28, 10\ns_add_u32 s3, s3, s28\ns_add_u32 s3, s3, 16384\nv_add_u32 v{vCS}, s3, v5")
    def cs_rd(s_):
        a(f"v_add_u32 v2, {(s_%3)*SLOT}, v{vCS}\nv_xor_b32 v3, 64, v2")
        for i in range(4): a(f"ds_read_b128 {R(CSL+16*(s_>>2)+4*i,4)}, v{2+(i&1)} offset:{1024*i}")
    def colsum(q):
        for j in range(2):
            for d in range(4):
                t=2+2*(d&1)
                unpack(a, t, CSL+8*q+4*j+d)
                a(f"v_add_f32 v{CSA+2*d}, v{CSA+2*d}, v{t}\nv_add_f32 v{CSA+2*d+1}, v{CSA+2*d+1}, v{t+1}")
    def cs_red():
        red8(a, CSA)
    def cs_pub():
        a(f"v_and_b32 v2, 8, v1\nv_cmp_eq_u32 vcc, 0, v2\nv_cndmask_b32 v{CSA}, v{CSA+1}, v{CSA}, vcc\ns_cmp_eq_u32 s38, 3\ns_cselect_b64 exec, -1, 0\nv_mov_b32 v{CSA}, s70\ns_mov_b64 exec, -1")
        a(f"buffer_store_dword v{CSA}, v{vP64}, s[{SWS}:{SWS+3}], s67 offen sc1")
        vm.issue('pub',1)
    RDY=118
    def nonce():
        vm.wait('epo')
        a("v_readfirstlane_b32 s86, v19\ns_mul_i32 s86, s86, 1664525\ns_add_u32 s86, s86, 1013904223")
    def ready_st():
        a(f"s_lshl_b32 s3, s37, 4\ns_add_u32 s3, s3, s36\ns_lshl_b32 s3, s3, 7\ns_add_u32 s3, s3, {WS_RDY}\ns_cmp_lg_u32 s38, 0\ns_cselect_b32 s3, {WS_SIZE}, s3\nv_mov_b32 v2, s86\ns_mov_b64 exec, 1\nbuffer_store_dword v2, v{vL16}, s[{SWS}:{SWS+3}], s3 offen sc1\ns_mov_b64 exec, -1")
        vm.issue('rs',1)
    def rdy_addr():
        a(f"v_and_b32 v2, 15, v1\nv_bfe_u32 v3, v1, 4, 1\nv_mul_u32_u24 v3, {opt('hx',QX)^RX}, v3\nv_xor_b32 v3, s37, v3\nv_xor_b32 v3, {RX}, v3\nv_lshl_add_u32 v3, v3, 4, v2\nv_lshl_add_u32 v2, v2, 4, s34\nv_lshrrev_b32 v4, 1, v1\nv_and_b32 v4, 8, v4\nv_xor_b32 v2, v2, v4\nv_cmp_gt_u32 vcc, 32, v1\nv_cndmask_b32 v2, v2, v3, vcc\nv_lshlrev_b32 v113, 7, v2")
    def ready_poll(l, lo, hi):
        a(f"s_mov_b32 s3, {WS_RDY}\ns_mov_b32 s29, 0\ns_mov_b32 exec_lo, {lo}\ns_mov_b32 exec_hi, {hi}\n{l}:\nbuffer_load_dword v{RDY}, v113, s[{SWS}:{SWS+3}], s3 offen sc1\ns_waitcnt vmcnt(0)")
        a(f"v_cmp_ne_u32 vcc, s86, v{RDY}\ns_cbranch_vccz {l}k\ns_mov_b64 exec, vcc\ns_add_u32 s29, s29, 1\ns_cmp_lt_u32 s29, {SPIN}\ns_cbranch_scc1 {l}\n{l}k:\ns_mov_b64 exec, -1")
        if STAMPS and lo: a(f"v_writelane_b32 v{VST-1}, s29, 50")
    def tagged(l, regs, reload, after=None):
        a(f"s_mov_b32 s29, 0\n{l}:\nv_cmp_ne_u32 vcc, s86, v{regs[0]}")
        for r in regs[1:]: a(f"v_cmp_ne_u32 s[92:93], s86, v{r}\ns_or_b64 vcc, vcc, s[92:93]")
        a(f"s_cbranch_vccz {l}k\ns_add_u32 s29, s29, 1\ns_cmp_ge_u32 s29, {SPIN}\ns_cbranch_scc1 {l}k\ns_sleep 2")
        reload()
        a("s_waitcnt vmcnt(0)")
        if after: after()
        a(f"s_branch {l}\n{l}k:")
        if STAMPS: a(f"v_writelane_b32 v{VST-1}, s29, {51 if l=='L_k1' else 50}")
    def epoch_st():
        a(f"s_or_b32 s3, s2, s38\ns_cmp_lg_u32 s3, 0\ns_cselect_b32 s3, {WS_SIZE}, {WS_EPO}" if 0 else f"s_or_b32 s3, s2, s38\ns_mov_b32 s28, {WS_EPO}\ns_cmp_lg_u32 s3, 0\ns_cselect_b32 s3, {WS_SIZE}, s28")
        a(f"v_mov_b32 v2, s86\ns_mov_b64 exec, 1\nbuffer_store_dword v2, v{vL16}, s[{SWS}:{SWS+3}], s3 offen sc1\ns_mov_b64 exec, -1")
        vm.issue('es',1)
    def ld_f1():
        a(f"s_lshl_b32 s3, s36, 10\nbuffer_load_dwordx4 {R(ST,4)}, v{vL16}, s[{SWS}:{SWS+3}], s3 offen sc1\ns_lshl_b32 s3, s37, 6\nbuffer_load_dword v{ST+4}, v{PW+8}, s[{SWS}:{SWS+3}], s3 offen offset:12 sc1")
    def fetch1(): ld_f1(); vm.issue('f1',2)
    def val1():
        vm.wait('f1'); tagged("L_k1", [ST+3,ST+4], ld_f1)
    def wmax(v, lanes=(0,16,32,48)):
        a(f"v_readlane_b32 s70, v{v}, {lanes[0]}\nv_readlane_b32 s3, v{v}, {lanes[1]}\nv_readlane_b32 s28, v{v}, {lanes[2]}\nv_readlane_b32 s29, v{v}, {lanes[3]}\ns_max_u32 s70, s70, s3\ns_max_u32 s28, s28, s29\ns_max_u32 s70, s70, s28")
    def proc1():
        for m in ("quad_perm:[1,0,3,2]", "quad_perm:[2,3,0,1]", "row_half_mirror", "row_mirror"):
            a(f"v_max_u32 v{ST+2}, v{ST+2}, v{ST+2} {m} {DPPM}")
        for e in range(2): a(f"v_and_b32 v{2+e}, 0xffff0000, v{ST+e}\nv_lshlrev_b32 v{PW+e}, 16, v{ST+e}")
        for e in range(2): a(f"v_rcp_f32 v{PW+2+e}, v{2+e}")
        a(f"v_lshrrev_b32 v2, 16, v2\nv_or_b32 v{PW+12}, v2, v3")
        for e in range(2): a(f"v_mul_f32 v{PW+4+e}, {LOG2E}, v{PW+2+e}")
        wmax(ST+2)
    def ld_cs(ks=range(4)):
        a(f"s_lshl_b32 s3, s37, 14\ns_add_u32 s3, s3, {WS_CSP}")
        for k in ks: a(f"s_add_u32 s28, s3, {4096*k}\nbuffer_load_dwordx4 {R(CG+4*k,4)}, v{PW+11}, s[{SWS}:{SWS+3}], s28 offen sc1")
    def fetch2(h):
        if h<2: ld_cs((2*h,2*h+1)); vm.issue('f2',2)
        else: ld_cs((h-2,)); vm.issue('f2',1)
    def addr1():
        a(f"v_lshrrev_b32 v2, 2, v1\nv_and_b32 v3, 3, v1\nv_lshlrev_b32 v3, 4, v3\nv_lshl_add_u32 v{PW+8}, v2, 10, v3\nv_lshlrev_b32 v2, 3, v1\nv_add_u32 v{PW+6}, {L_M}, v2")
        a(f"v_and_b32 v4, 49, v1\nv_bfe_u32 v7, v1, 1, 2\nv_lshl_add_u32 v4, v7, 2, v4\nv_bfe_u32 v7, v1, 3, 1\nv_lshl_add_u32 v4, v7, 1, v4\nv_lshlrev_b32 v4, 2, v4\nv_add_u32 v{PW+7}, {L_SQ}, v4")
    def addr2():
        a(f"s_mul_i32 s3, s38, 48\nv_and_b32 v2, 15, v1\nv_lshrrev_b32 v3, 4, v1\nv_cmp_gt_u32 vcc, 12, v2\nv_lshl_add_u32 v4, v2, 2, s3\nv_add_u32 v2, v4, v3\nv_mov_b32 v5, 192\nv_cndmask_b32 v4, v5, v4, vcc\nv_lshlrev_b32 v4, 2, v4\nv_lshl_add_u32 v{PW+11}, v3, 10, v4")
        a(f"v_and_b32 v5, 7, v2\nv_bfe_u32 v6, v2, 3, 3\nv_lshl_add_u32 v5, v5, 3, v6\nv_and_b32 v2, 0xc0, v2\nv_add_u32 v2, v2, v5\nv_lshlrev_b32 v2, 2, v2\nv_add_u32 v2, {L_CS}, v2\nv_mov_b32 v5, {L_KEY}\nv_cndmask_b32 v{PW+9}, v5, v2, vcc")
    def all_w():
        a(f"ds_write_b32 v{PW+9}, v{CG}\ns_lshl_b32 s3, s38, 4\ns_lshl_b64 exec, 0xffff, s3")
        a(f"ds_write_b64 v{PW+6}, {R(PW,2)}\nds_write_b64 v{PW+6}, {R(PW+2,2)} offset:1024\nds_write_b64 v{PW+6}, {R(PW+4,2)} offset:2048\nds_write_b32 v{PW+7}, v{PW+12}\ns_mov_b64 exec, -1")
    XR=64; IS=116; XSF=96
    def idx_xs():
        a("s_and_b32 s68, s70, 0x7ff\ns_sub_u32 s68, 2047, s68")
        a(f"s_lshl_b32 s3, s68, 11\ns_and_b32 s28, s77, 3\ns_lshl_b32 s28, s28, 9\ns_add_u32 s3, s3, s28\ns_lshr_b32 s28, s38, 1\ns_lshl_b32 s28, s28, 8\ns_add_u32 s3, s3, s28")
        a(f"v_lshrrev_b32 v3, 3, v1\nv_lshlrev_b32 v3, 5, v3\nbuffer_load_dwordx4 {R(XR,4)}, v3, s[{SX}:{SX+3}], s3 offen\nbuffer_load_dwordx4 {R(XR+4,4)}, v3, s[{SX}:{SX+3}], s3 offen offset:16")
        a(f"s_lshr_b32 s3, s68, 1\ns_lshl_b32 s3, s3, 4\ns_and_b32 s28, s68, 1\ns_lshl_b32 s28, s28, 2\ns_add_u32 s3, s3, s28\nv_mov_b32 v3, 0\nbuffer_load_dword v{IS}, v3, s[{SWS}:{SWS+3}], s3 offen sc1")
        vm.issue('xs',3)
    def val2():
        vm.wait('f2')
        checked(a, "L_k2", range(CG,CG+16), ld_cs)
    def proc2():
        maxu(a, 2, [CG,CG+4,CG+8,CG+12])
        for k in (2,1):
            for i in range(4*k): a(f"v_add_f32 v{CG+i}, v{CG+i}, v{CG+4*k+i}")
        wmax(2, (12,28,44,60))
        for i in range(2): a(f"v_permlane32_swap_b32 v{CG+i}, v{CG+2+i}")
        for i in range(2): a(f"v_add_f32 v{CG+i}, v{CG+i}, v{CG+2+i}")
        a(f"v_permlane16_swap_b32 v{CG}, v{CG+1}\nv_add_f32 v{CG}, v{CG}, v{CG+1}")
    def proc2b():
        a(f"s_mov_b32 exec_lo, 0xf000f000\ns_mov_b32 exec_hi, 0xf000f000\nv_mov_b32 v{CG}, s70\ns_mov_b64 exec, -1")
    def xs_norm(part):
        if part==0:
            vm.wait('xs')
            a(f"v_and_b32 v5, 0xffff0000, v{IS}\nv_lshlrev_b32 v{IS}, 16, v{IS}\nv_rcp_f32 v{IS+1}, v5")
            for d in range(8): unpack(a, XSF+2*d, XR+d)
            a(f"v_mul_f32 v119, v{IS}, v{IS+1}")
        else:
            for i in range(16): a(f"v_fma_f32 v{XSF+i}, v{XSF+i}, v{IS+1}, -v119")
            for i in range(8): a(f"v_mov_b32 v{FA+i}, 0")
    def ffn_ld(i0,i1):
        if 'noffn' in EXP: return
        for i in range(i0,i1):
            if i<16: a(f"s_mov_b32 s3, {i*7168}\nbuffer_load_dwordx4 {R(FW+4*i,4)}, v{vF}, s[{SA}:{SA+3}], s3 offen{FNT}")
            else: a(f"s_lshr_b32 s3, s71, 3\ns_add_u32 s3, s3, {i-16}\ns_and_b32 s28, s3, 7\ns_lshr_b32 s3, s3, 3\ns_lshl_b32 s3, s3, 6\ns_add_u32 s3, s3, s28\ns_lshl_b32 s3, s3, 11\nbuffer_load_dwordx4 {R(FW+4*i,4)}, v{vD}, s[{SB}:{SB+3}], s3 offen{FNT}")
            vm.issue(('g',i),1)
    def ffn_mac(i0,i1,pk=False):
        if i1<=i0: return
        vm.wait(('g',i1-1))
        for i in range(i0,i1):
            for d in range(4):
                t=2+2*(d&1)
                unpack(a, t, FW+4*i+d)
                if pk:
                    if i%2 and d==0: a(f"v_mov_b32 v{XSF+i-1}, v{XSF+i}")
                    a(f"v_pk_fma_f32 {R(FA+2*d,2)}, {R(t,2)}, {R(XSF+(i&~1),2)}, {R(FA+2*d,2)} op_sel_hi:[1,0,1]")
                else:
                    a(f"v_fmac_f32 v{FA+2*d}, v{t}, v{XSF+i}\nv_fmac_f32 v{FA+2*d+1}, v{t+1}, v{XSF+i}")
    def phi_ld():
        srd(a, SC, 8, 65536)
        a(f"s_lshl_b32 s3, s38, 10\ns_add_u32 m0, s3, {L_PHI}\ns_lshl_b32 s28, s37, 12\ns_add_u32 s3, s3, s28\nbuffer_load_dwordx4 v{vL16}, s[{SC}:{SC+3}], s3 offen lds")
        if QX: a(f"s_add_u32 m0, m0, {L_PHQ-L_PHI}\ns_xor_b32 s3, s3, {QX*4096}\nbuffer_load_dwordx4 v{vL16}, s[{SC}:{SC+3}], s3 offen lds")
        vm.issue('phi',2 if QX else 1)
    def wo_touch():
        a(f"s_lshl_b32 s3, s2, 13\ns_lshl_b32 s28, s38, 11\ns_add_u32 s3, s3, s28\nv_lshlrev_b32 v3, 7, v1\ns_mov_b64 exec, 0xffff\nbuffer_load_dword v20, v3, s[88:91], s3 offen\ns_mov_b64 exec, -1")
        vm.issue('wt',1)
    def x3_ld():
        for ct in range(4): a(f"v_xor_b32 v{4+ct}, {32*ct}, v{vXo}\nds_read_b64 {R(PX+2*ct,2)}, v{4+ct}")
    vWo=220
    def wo_setup():
        a("v_lshrrev_b32 v5, 3, v1\nv_lshlrev_b32 v6, 11, v5\nv_bfe_u32 v5, v1, 4, 2\nv_lshlrev_b32 v5, 1, v5\nv_and_b32 v7, 7, v1\nv_xor_b32 v5, v5, v7\nv_lshl_add_u32 v6, v5, 4, v6\ns_lshl_b32 s3, s35, 7\nv_add_u32 v6, s3, v6")
        for e in range(4): a(f"v_add_u32 v{vWo+e}, {e*15360}, v6")
        a("s_lshl_b32 s72, s38, 12\ns_lshl_b32 s73, s38, 16"); rperm(a); a("s_lshl_b32 s3, s3, 18\ns_or_b32 s73, s73, s3")
    def wo(c):
        a(f"s_add_u32 m0, s72, {LC(c)}\ns_xor_b32 s3, s73, {cmap(c)*262144}")
        for e in range(4): a(f"buffer_load_dwordx4 v{vWo+e}, s[88:91], s3 offen offset:{e*1024} lds")
        vm.issue(('wo',c),4)
    def wop(c, e):
        a(f"s_add_u32 m0, s72, {LC(c)}\ns_xor_b32 s3, s73, {cmap(c)*262144}\nbuffer_load_dwordx4 v{vWo+e}, s[88:91], s3 offen offset:{e*1024} lds"); vm.issue(('wo',c),1)
    def woh(c, hb, es=(0,1)):
        a(f"s_lshr_b32 s28, s72, 1\ns_add_u32 m0, s28, {LC(c)+8192*hb}\ns_andn2_b32 s3, s73, 0x30000\ns_lshl_b32 s28, s72, 3\ns_add_u32 s3, s3, s28\ns_xor_b32 s3, s3, {cmap(c)*262144+131072*hb}")
        for e in es: a(f"buffer_load_dwordx4 v{vWo+e}, s[88:91], s3 offen offset:{e*1024} lds"); vm.issue(('wo',c),1)
    T='T'
    M15=opt('m15',4)
    HL=48; HZ=32
    def post_setup():
        a(f"s_lshl_b32 s3, s36, 2\ns_add_u32 s3, s3, s38\ns_lshr_b32 s28, s3, 5\ns_and_b32 s3, s3, 31\ns_lshl_b32 s74, s3, 7\ns_lshl_b32 s3, s37, 1\ns_add_u32 s75, s3, s28\ns_xor_b32 s75, s75, {2*RX}")
        a(f"v_lshrrev_b32 v5, 3, v1\nv_mul_u32_u24 v5, {KVS}, v5\nv_and_b32 v7, 7, v1\nv_lshl_add_u32 v112, v7, 4, v5\nv_bfe_u32 v5, v1, 3, 1\ns_mov_b32 s28, {WS_KV2-WS_KVR}\nv_mul_lo_u32 v5, v5, s28\nv_lshl_add_u32 v114, v7, 4, v5")
        a(f"s_mul_i32 s76, s75, {16*KVS}\ns_add_u32 s76, s76, s74\ns_add_u32 s76, s76, {WS_KVP}\ns_mul_i32 s3, s75, {KVS}\ns_add_u32 s3, s3, s74\ns_add_u32 s74, s3, {WS_KVR}")
        a(f"s_xor_b32 s75, s37, {RX}\ns_lshl_b32 s75, s75, 1\ns_add_u32 s75, s75, s36\ns_mul_i32 s81, s75, {16*KVS}\ns_add_u32 s81, s81, {WS_KVP+4096}\ns_mul_i32 s82, s75, {KVS}\ns_add_u32 s82, s82, {WS_KVR+4096}")
        a(f"s_lshr_b32 s3, s36, 1\ns_or_b32 s83, s3, s38")
        a(f"s_and_b32 s3, s38, 1\ns_lshl_b32 s3, s3, 3\ns_and_b32 s28, s77, 3\ns_lshl_b32 s28, s28, 1\ns_add_u32 s3, s3, s28\ns_lshr_b32 s28, s38, 1\ns_add_u32 s3, s3, s28\ns_mul_i32 s3, s3, 14336\ns_lshr_b32 s28, s77, 2\ns_lshl_b32 s28, s28, 8\ns_add_u32 s3, s3, s28\ns_add_u32 s3, s3, {WS_GU}")
        a(f"s_cmp_lt_u32 s77, 224\ns_cselect_b32 s84, s3, {WS_SIZE}")
    P=lambda pos: (lambda: place(pos))
    def place(pos):
        for w in PLC.get(pos,[]): place1(w)
    def place1(w):
        if True:
            if w[0]=='w' and len(w)==3: wop(int(w[1]),int(w[2]))
            elif w[0] in 'ul': woh(int(w[1]), 1 if w[0]=='u' else 0, (0,1) if len(w)==2 else (int(w[2]),))
            elif w[0]=='w': wo(int(w[1]))
            elif w[0]=='k': fillk(int(w[1]),int(w[1])+1)
            elif w[0]=='o': fillo(int(w[1]))
            elif w[0]=='x': xrows(int(w[1]))
            elif w=='a': fetch1()
            elif w[0]=='b': fetch2(int(w[1]))
            elif w=='T':
                srd(a, SC, 22, 2048*2048)
                a(f"s_lshl_b32 s3, s34, 18\ns_mov_b64 exec, 1\nbuffer_load_dword v20, v{vL16}, s[{SC}:{SC+3}], s3 offen nt\ns_mov_b64 exec, -1"); vm.issue('tl',1)
            elif w=='U':
                a(f"s_mov_b32 exec_lo, 1\ns_mov_b32 exec_hi, 0x01000000\ns_lshl_b32 s3, s71, 11\nbuffer_load_dword v20, v{vF}, s[{SA}:{SA+3}], 0 offen nt\nbuffer_load_dword v20, v{vD}, s[{SB}:{SB+3}], s3 offen nt\nbuffer_load_dword v20, v{vWo}, s[88:91], 0 offen nt\ns_mov_b64 exec, -1"); vm.issue('tl',3)
            elif w[0]=='S': stamp(a,int(w[1:]))
            elif w=='D': vm.drain()
            elif w=='r': ready_st()
            elif w[0]=='s': a(f"s_sleep {int(w[1:])}")
            elif w[0]=='v': vm.wait(('wo',int(w[1])))
            elif w=='p': phi_ld()
            elif w=='t': wo_touch()
            elif w[0]=='G': ffn_ld(int(w[1:3]),int(w[3:5]))
            elif w[0]=='g': ffn_ld(8*int(w[1]), min(23,8*int(w[1])+8))
    M14=opt('m14',2)
    def lnbar():
        if LN0: return
        vm.wait('xr'); a("s_barrier")
    sched = {
        0: [lambda: cs_rd(0), T],
        1: [(lambda: colsum(0),)],
        2: [(lambda: colsum(1),)],
        3: [T],
        4: [lambda: cs_rd(4), T],
        5: [(lambda: colsum(2),)],
        6: [val1, (lambda: colsum(3),)],
        7: [proc1, cs_red, cs_pub, T],
        8: [T],
        9: [T],
        10:[T],
        11:[val2, proc2, proc2b, idx_xs, T],
        12:[T, epoch_st],
        13:[(lambda: xs_norm(0), lambda: xs_norm(1))],
        14:[P('j14'), (all_w if 'aw15' not in EXP else lambda: None), lambda: ffn_mac(0,M14), lambda: vm.wait('phi')],
        15:[(all_w if 'aw15' in EXP else lambda: None), x3_ld, P('j15'), lambda: ffn_mac(M14,M15), lambda: vm.wait('own'), lambda: vm.wait('phi')],
    }
    if 'ln4' in EXP:
        sched[opt('lnb',4)-2].append(lambda: vm.wait('xr'))
        if 'late' in EXP:
            sched[6]=[(lambda: colsum(3),)]; sched[7]=[cs_red, T]; sched[8]=[val1, (proc1,), cs_pub]
            sched[11]=[T]; sched[12]=[val2, (proc2,), proc2b, idx_xs]; sched[13]=[T, epoch_st]
            sched[14]=[P('j14'), all_w, lambda: xs_norm(0), lambda: xs_norm(1), lambda: vm.wait('phi')]
            M14=0
        else:
            sched[6]=[(lambda: colsum(3), cs_red)]; sched[7]=[val1, proc1, cs_pub, T]
    if 's2' in EXP:
        sched[7]=[(proc1, cs_red), cs_pub]; sched[11]=[val2, (proc2,), proc2b, idx_xs]
    if not set(EXP)&{'s1','s2','s3','s5','s6'}:
        sched[4]=[lambda: cs_rd(4), val1, proc1, T]; sched[6]=[(lambda: colsum(3),)]; sched[7]=[(cs_red,), cs_pub]
        sched[11]=[val2, (proc2,), proc2b]; sched[12]=[T, idx_xs]; sched[13]=[T, epoch_st]
        sched[14]=[P('j14'), all_w, lambda: xs_norm(0), lambda: xs_norm(1), lambda: vm.wait('phi')]; M14=0
    if 'v1' in EXP:
        sched[12]=[idx_xs, T, epoch_st]; sched[13]=[(lambda: xs_norm(0), lambda: xs_norm(1))]; sched[14]=[P('j14'), all_w, lambda: vm.wait('phi')]
    if 'v2' in EXP:
        sched[14]=[P('j14'), all_w, lambda: xs_norm(0), lambda: vm.wait('phi')]; sched[15].insert(1, lambda: xs_norm(1))
    if 'v3' in EXP:
        sched[12]=[idx_xs, T, epoch_st]; sched[13]=[(lambda: xs_norm(0), lambda: xs_norm(1))]; sched[14]=[all_w, P('j14'), lambda: vm.wait('phi')]
    if 's5' in EXP:
        sched[4]=[lambda: cs_rd(4), val1, proc1, T]; sched[6]=[(lambda: colsum(3),)]; sched[7]=[(cs_red,), cs_pub]
        sched[11]=[T]; sched[12]=[val2, (proc2,), proc2b]; sched[13]=[idx_xs, T, epoch_st]
        sched[14]=[P('j14'), all_w, lambda: xs_norm(0), lambda: xs_norm(1), lambda: vm.wait('phi')]; M14=0
    if 's6' in EXP:
        sched[4]=[lambda: cs_rd(4), T]; sched[5]=[val1, (proc1,)]; sched[6]=[(lambda: colsum(2),)]; sched[7]=[(lambda: colsum(3),)]; sched[8]=[(cs_red,), cs_pub]
        sched[11]=[T]; sched[12]=[val2, (proc2,), proc2b]; sched[13]=[idx_xs, T, epoch_st]
        sched[14]=[P('j14'), all_w, lambda: xs_norm(0), lambda: xs_norm(1), lambda: vm.wait('phi')]; M14=0
    if 's3' in EXP:
        sched[7]=[proc1, T]; sched[8]=[(cs_red,), cs_pub]; sched[11]=[T]; sched[12]=[val2, (proc2,), proc2b, idx_xs]; sched[13]=[T, epoch_st]
        sched[14]=[P('j14'), all_w, lambda: xs_norm(0), lambda: xs_norm(1), lambda: ffn_mac(0,M14)]
    for k in range(14): sched[k].insert(0, P(f"j{k}"))
    if STAG:
        for c in range(4):
            v=sum(x<<(4*i) for i,x in enumerate(korder(c)[0]))
            if c==0: a(f"s_mov_b32 s94, {v&0xffffffff}\ns_mov_b32 s95, {v>>32}")
            else: a(f"s_cmp_eq_u32 s87, {128*c}\ns_cselect_b32 s94, {v&0xffffffff}, s94\ns_cselect_b32 s95, {v>>32}, s95")
        def cs_rd2(s_):
            cl=[c for c in range(4) if korder(c)[1]==s_]
            if not cl: return
            for c in set(range(4))-set(cl): a(f"s_cmp_eq_u32 s87, {128*c}\ns_cbranch_scc1 L_nc{s_}")
            a(f"v_add_u32 v2, {(s_%3)*SLOT}, v{vCS}\nv_xor_b32 v3, 64, v2")
            for i in range(4): a(f"ds_read_b128 {R(CSL+16+4*i,4)}, v{2+(i&1)} offset:{1024*i}")
            a(f"L_nc{s_}:")
        sched[4].pop(1)
        for k in range(1,5): sched[k].insert(1, lambda k=k: cs_rd2(k))
    sched[0]=[sched[0][0], T, x3_ld, lambda: cs_rd(0)]; sched[15].remove(x3_ld)
    addr1(); xaddr(a, vXo)
    if 'eset' in EXP: addr2(); wo_setup(); post_setup(); rdy_addr()
    else: sched[4][1:1]=[addr2, wo_setup, post_setup, rdy_addr]
    cs_addr(); fill_addr(); srd(a, 88, 10, 1024*1024*2)
    pro(PRO[PRO.index('s')+1:]); nonce()
    for k in range(16): sched[k].append(P(f"i{k}"))
    CL=[]; nx=0
    for item in filter(None,os.environ.get('CL','').split(';')):
        b,what=item.split(':'); fs=[]
        for w in what.split(','):
            fs.append(lambda w=w: place1(w))
        CL.append((int(b.rstrip('s')), b.endswith('s'), fs))
    NLOOP=nx
    DEF='defer' in EXP
    TS={k:[str(k+2)] if k+2<16 else [] for k in range(16)}
    for it_ in filter(None,os.environ.get('TS','').split(';')):
        k,v=it_.split(':'); TS[int(k)]=list(filter(None,v.split(',')))
    def tl(x): tiles(int(x.rstrip('AW')), wfirst='wf' in EXP, part=x[-1] if x[-1] in 'AW' else None)
    sched[14].insert(0,T)
    if opt('hpl',3): a(f"s_setprio {opt('hpl',3)}"); sched[15].append(lambda: a('s_setprio 0'))
    def at(s):
        return [(c,fs) for b,same,fs in CL for c in range(NT) if b+(0 if same else (c-1)&3)==s]
    for s in range(16):
        vm.wait(('t',s))
        a("s_waitcnt lgkmcnt(0)")
        if s==0: stamp(a,2)
        a("s_barrier")
        if 'hst2' in EXP: stamp2(a,33+s)
        late={c for c,_ in at(s-2)} if DEF and s+1<16 else set()
        skip={c for c,_ in at(s-1)} if DEF else set()
        if s>=14: vm.cond(late, lambda: tiles(s+1))
        for f in sched[s]:
            if isinstance(f,tuple):
                J=a.capture(lambda: [g() for g in f]); D_=a.capture(lambda: [tl(x) for x in TS[s]])
                if 'noil' in EXP:
                    for x in D_+J: a(x)
                else:
                    while J and J[0].startswith('s_waitcnt'): a(J.pop(0))
                    n=-(-len(J)//9); k=0
                    for x in D_:
                        a(x)
                        if x.startswith('buffer_'):
                            k+=1
                            if k>=2:
                                for y in J[:n]: a(y)
                                J=J[n:]
                    for y in J: a(y)
            elif f==T:
                vm.cond(late, lambda: tiles(s+1))
                for x in TS[s]: tl(x)
            else: f()
        grp={}
        for c,fs in at(s): grp.setdefault(id(fs),(fs,[]))[1].append(c)
        for fs,cs_ in grp.values(): vm.cond(cs_, lambda: [f() for f in fs])
        if 'hst' in EXP: stamp(a,6+s)
    a("s_waitcnt lgkmcnt(0)\ns_barrier")
    stamp(a,24)
    MX=opt('mx',12)
    GL=80
    a(f"v_and_b32 v2, 15, v1\nv_min_u32 v2, 13, v2\nv_lshrrev_b32 v3, 4, v1\nv_mul_u32_u24 v3, 14336, v3\nv_lshl_add_u32 v13, v2, 4, v3\ns_lshl_b32 s75, s71, 2\ns_add_u32 s75, s75, {WS_GU}")
    def ld_gu():
        for j in range(4): a(f"s_add_u32 s3, s75, {4*j*14336}\nbuffer_load_dwordx4 {R(GL+4*j,4)}, v13, s[{SWS}:{SWS+3}], s3 offen sc1")
    def gu_fin():
        red8(a, FA)
        a(f"v_and_b32 v2, 8, v1\nv_cmp_eq_u32 vcc, 0, v2\nv_cndmask_b32 v{FA}, v{FA+1}, v{FA}, vcc")
        a(f"buffer_store_dword v{FA}, v{vP64}, s[{SWS}:{SWS+3}], s84 offen sc1")
        vm.issue('gu',1)
    place('x0')
    ffn_mac(M15,MX,True)
    if MX==16: gu_fin()
    place('x1')
    for c in (0,1,4): vm.wait(('wo',c))
    stamp(a,25)
    a("s_barrier")
    EPL='ep' in EXP
    def cflags(n):
        a(f"v_min_u32 v3, {n}, v1\nv_lshlrev_b32 v3, 2, v3\nv_add_u32 v3, {L_FLG}, v3\nL_fw:\nds_read_b32 v4, v3\ns_waitcnt lgkmcnt(0)\nv_cmp_eq_u32 vcc, 0, v4\ns_cbranch_vccz L_fk\n{LSL}s_branch L_fw\nL_fk:")
    if EPL:
        a(f"s_mov_b32 s28, {WS_RDY}\ns_mov_b32 exec_hi, 0xffff\nbuffer_load_dword v{RDY}, v113, s[{SWS}:{SWS+3}], s28 offen sc1\ns_mov_b64 exec, -1"); vm.issue('rp',1)
        place('x2')
        vm.wait('rp')
        a(f"s_setprio 3\ns_mov_b32 s3, {WS_RDY}\ns_mov_b32 s29, 0\ns_mov_b32 exec_hi, 0xffff\nL_rp:\nv_cmp_ne_u32 vcc, s86, v{RDY}\ns_cbranch_vccz L_rpk\ns_mov_b64 exec, vcc\nbuffer_load_dword v{RDY}, v113, s[{SWS}:{SWS+3}], s3 offen sc1\ns_waitcnt vmcnt(0)")
        a(f"s_add_u32 s29, s29, 1\ns_cmp_lt_u32 s29, {SPIN}\ns_cbranch_scc1 L_rp\nL_rpk:\ns_mov_b64 exec, -1")
        if STAMPS: a(f"v_writelane_b32 v{VST-1}, s29, 50")
        stamp(a,54)
        if 'epf' in EXP: cflags(3)
        stamp(a,26)
    else:
        if 'pf' not in EXP: place('x2')
        a(f"s_setprio 3\ns_cmp_lg_u32 s38, {0 if 'pf' in EXP else 3}\ns_cbranch_scc1 L_npl")
        NPP=opt('npp',1)
        if NPP==1: ready_poll("L_rp", 0xffff if 'g16' in EXP else -1, 0 if set(EXP)&{'g32','g16'} else -1 if 'g64' in EXP else 0xffff)
        else:
            PS=opt('pps',2)
            a(f"s_mov_b32 s3, {WS_RDY}\ns_mov_b32 s29, 0\ns_mov_b32 exec_hi, 0xffff")
            for k in range(NPP-1): a(f"buffer_load_dword v{8+k}, v113, s[{SWS}:{SWS+3}], s3 offen sc1\ns_sleep {PS}")
            a("L_rp:")
            for k in range(NPP):
                a(f"buffer_load_dword v{8+(k+NPP-1)%NPP}, v113, s[{SWS}:{SWS+3}], s3 offen sc1\ns_waitcnt vmcnt({NPP-1})\nv_cmp_ne_u32 vcc, s86, v{8+k}\ns_cbranch_vccz L_rpk\ns_mov_b64 exec, vcc")
            a(f"s_add_u32 s29, s29, 1\ns_cmp_lt_u32 s29, {SPIN}\ns_cbranch_scc1 L_rp\nL_rpk:\ns_mov_b64 exec, -1")
        a(f"v_mov_b32 v4, {L_FLG+16}\nv_mov_b32 v5, 1\nds_write_b32 v4, v5\nL_npl:")
        if 'pf' in EXP: place('x2')
        stamp(a,54)
        if 'nof' in EXP: a(f"v_mov_b32 v3, {L_FLG+16}\nL_fv:\nds_read_b32 v4, v3\ns_waitcnt lgkmcnt(0)\nv_cmp_eq_u32 vcc, 0, v4\ns_cbranch_vccz L_fj\n{LSL}s_branch L_fv\nL_fj:")
        else: a(f"v_min_u32 v3, 4, v1\nv_lshlrev_b32 v3, 2, v3\nv_add_u32 v3, {L_FLG}, v3\nL_fw:\nds_read_b32 v4, v3\ns_waitcnt lgkmcnt(0)\nv_cmp_eq_u32 vcc, 0, v4\ns_cbranch_vccz L_fk\n{LSL}s_branch L_fw\nL_fk:")
        stamp(a,26)
    place('k')
    vm.wait(('g',15))
    MY=opt('my',MX+2 if MX<16 else 16)
    ffn_mac(MX,MY,True)
    if opt('h1d',0): a(f"s_sleep {opt('h1d',0)}")
    stamp(a,49)
    def ld_h1():
        for j in range(2): a(f"s_add_u32 s3, s76, {8*j*KVS}\nbuffer_load_dwordx4 {R(HL+4*j,4)}, v112, s[{SWS}:{SWS+3}], s3 offen sc1")
    def ld_hz():
        for j in range(2): a(f"s_add_u32 s3, s81, {8*j*KVS}\nbuffer_load_dwordx4 {R(HZ+4*j,4)}, v112, s[{SWS}:{SWS+3}], s3 offen sc1")
    G32=bool(set(EXP)&{'g32','g16'}); LLO='0xffff0000' if 'g16' in EXP else '0'
    ld_h1()
    if G32: a(f"s_mov_b32 s3, {WS_RDY}\ns_mov_b32 exec_lo, {LLO}\ns_mov_b32 exec_hi, 0xffff\nbuffer_load_dword v{RDY}, v113, s[{SWS}:{SWS+3}], s3 offen sc1\ns_mov_b64 exec, -1")
    a("s_cmp_lg_u32 s83, 0\ns_cbranch_scc1 L_nz")
    ld_hz()
    a("L_nz:")
    if MX==16:
        ld_gu()
        a("s_waitcnt vmcnt(4)")
        vm.q=[['gl']*4 for _ in range(NT)]
    else:
        vm.q=[['h'] for _ in range(NT)]
        HK=min(16,MY+opt('h0k',2))
        ffn_mac(MY,HK,True)
        if HK==16: gu_fin()
        place('h0')
        ffn_mac(HK,16,True)
        if HK<16: gu_fin()
        vm.wait('h')
    stamp(a,50)
    def reduce_line(src, E, sdst):
        L=[]
        class C_:
            def __call__(self, t): L.extend(t.split("\n"))
        c=C_()
        for d in range(4): unpack(c, E+2*d, src+d)
        for d in range(4):
            unpack(c, E+8+2*d, src+4+d)
            c(f"v_pk_add_f32 {R(E+2*d,2)}, {R(E+2*d,2)}, {R(E+8+2*d,2)}")
        red8(c, E)
        c(f"v_cvt_pk_bf16_f32 v{E}, v{E}, v{E+1}\nv_mov_b32 v{E+1}, v{E}\nv_permlane16_swap_b32 v{E}, v{E+1}\nv_mov_b32 v{E+2}, v{E}\nv_mov_b32 v{E+3}, v{E+1}")
        c(f"v_permlane32_swap_b32 v{E}, v{E+2}\nv_permlane32_swap_b32 v{E+1}, v{E+3}")
        return L, f"buffer_store_dwordx4 {R(E,4)}, v{114 if DUP else vL16}, s[{SWS}:{SWS+3}], s{sdst} offen sc1"
    DUP='nodup' not in EXP; XM='0xffff' if DUP else '0xff'
    A_,sa=reduce_line(HL,64,74); Z_,sz=reduce_line(HZ,96,82)
    a("s_cmp_eq_u32 s83, 0\ns_cbranch_scc1 L_hz")
    checked(a, "L_k4", range(HL,HL+8), ld_h1)
    for x in A_: a(x)
    a(f"s_mov_b64 exec, {XM}\n{sa}\ns_branch L_h1e\nL_hz:")
    checked(a, "L_k3", list(range(HL,HL+8))+list(range(HZ,HZ+8)), lambda: (ld_h1(), ld_hz()))
    for x in zipl(A_,Z_): a(x)
    a(f"s_mov_b64 exec, {XM}\n{sa}\n{sz}\nL_h1e:\ns_mov_b64 exec, -1")
    stamp(a,53)
    if (EPL and 'epf' not in EXP) or 'nof' in EXP: cflags(3)
    if G32:
        a(f"s_mov_b32 s3, {WS_RDY}\ns_mov_b32 s29, 0\ns_mov_b32 exec_lo, {LLO}\ns_mov_b32 exec_hi, 0xffff\nL_ro:\nv_cmp_ne_u32 vcc, s86, v{RDY}\ns_cbranch_vccz L_rok\ns_mov_b64 exec, vcc\nbuffer_load_dword v{RDY}, v113, s[{SWS}:{SWS+3}], s3 offen sc1\ns_waitcnt vmcnt(0)")
        a(f"s_add_u32 s29, s29, 1\ns_cmp_lt_u32 s29, {SPIN}\ns_cbranch_scc1 L_ro\nL_rok:\ns_mov_b64 exec, -1")
    a(f"s_lshl_b32 s3, s38, 2\ns_add_u32 s3, s3, {L_FLG}\nv_mov_b32 v4, s3\nv_mov_b32 v5, 3\nds_write_b32 v4, v5\ns_setprio 0")
    vm.issue('h1',1)
    if PLC.get('h1s'): a("s_waitcnt lgkmcnt(0)")
    place('h1s')
    stamp(a,27)
    def hsilu():
        stat3(a, 9, 8)
        a("s_waitcnt lgkmcnt(0)")
        silu_prep(a, PG, PX, 9, 8, 28)
    if MX<16:
        hsilu()
        ld_gu(); vm.issue('gl',4)
    vm.wait('gl')
    stamp(a,51)
    checked(a, "L_k5", range(GL,GL+16), ld_gu)
    stamp(a,52)
    for b in (GL,GL+8):
        for i in (0,2): a(f"v_pk_add_f32 {R(b+i,2)}, {R(b+i,2)}, {R(b+4+i,2)}")
    for i in range(4): a(f"v_permlane32_swap_b32 v{GL+i}, v{GL+8+i}")
    for i in range(4): a(f"v_add_f32 v{GL+i}, v{GL+i}, v{GL+8+i}")
    for i in (0,2): a(f"v_permlane16_swap_b32 v{GL+i}, v{GL+i+1}")
    for i in (0,2): a(f"v_add_f32 v{GL+i}, v{GL+i}, v{GL+i+1}")
    a(f"v_permlane32_swap_b32 v{GL}, v{GL+2}")
    g,u=GL,GL+2
    rne(a,g,g); rne(a,u,u)
    a(f"v_mul_f32 v2, 0xbfb8aa3b, v{g}\nv_exp_f32 v2, v2\nv_add_f32 v2, 1.0, v2\nv_rcp_f32 v2, v2\nv_mul_f32 v{g}, v{g}, v2")
    rne(a,g,g)
    a(f"v_mul_f32 v{g}, v{g}, v{u}")
    rne(a,g,g)
    a(f"v_bfe_u32 v2, v1, 3, 2\nv_lshlrev_b32 v2, 6, v2\nv_lshrrev_b32 v3, 5, v1\nv_lshl_add_u32 v2, v3, 2, v2")
    HB=128
    for i in range(7): a(f"ds_bpermute_b32 v{HB+2*i}, v2, v{g} offset:{8*i}")
    for i in range(0,8,2): a(f"v_mov_b64 {R(FA+i,2)}, 0")
    a("s_waitcnt lgkmcnt(0)")
    place('gu')
    LD='g2' in PLC.get('ho',[])
    def down(plain=False):
        for i in range(7):
            for d in range(4):
                t=2+2*(d&1)
                unpack(a, t, DW+4*i+d)
                if plain: a(f"v_fmac_f32 v{FA+2*d}, v{t}, v{HB+2*i}\nv_fmac_f32 v{FA+2*d+1}, v{t+1}, v{HB+2*i}")
                else: a(f"v_pk_fma_f32 {R(FA+2*d,2)}, {R(t,2)}, {R(HB+2*i,2)}, {R(FA+2*d,2)} op_sel_hi:[1,0,1]")
        red8(a, FA)
        a(f"v_and_b32 v2, 8, v1\nv_cmp_eq_u32 vcc, 0, v2\ns_and_b32 s3, s2, 15\ns_lshl_b32 s3, s3, 4\ns_lshr_b32 s28, s2, 4\ns_add_u32 s3, s3, s28\ns_lshl_b32 s3, s3, 2\ns_add_u32 s3, s3, s38\ns_lshl_b32 s3, s3, 8\ns_add_u32 s3, s3, {WS_Y}")
        a(f"v_cndmask_b32 v{FA}, v{FA+1}, v{FA}, vcc\nbuffer_store_dword v{FA}, v{vP64}, s[{SWS}:{SWS+3}], s3 offen sc1")
    a.down = down if LD else None
    if not LD: down()
    vm.issue('ys',1)
    place('y')
    if MX==16: hsilu()
    stamp(a,28)
    wait7(a, "L_ow"); place('ho')
    if not LD and opt('hpd',0): a(f"s_sleep {opt('hpd',0)}")
    stamp(a,29)
    if opt('hp3',0): a(f"s_setprio {opt('hp3',0)}")
    a("s_branch L_p3")

ACC=8
def acc(g,c6): return ACC+24*g+4*c6
ML,CC,CSV = [192,194,196,198],[200,202,220,222],[248,250]
CCP,RLP = [193,221],[195,223]
CSK,CSQ,PHI,MV,SQF = 204,212,224,104,120
vVS,vLN,vSR = 197,199,[201,203]
def zipl(A, B, n=1):
    out=[]; B=list(B)
    for x in A:
        out.append(x); out+=B[:n]; B=B[n:]
    return out+B
def feature(a, B, c0, isK, mid1=None, tail=None, fillB=(), hook=None):
    P=144; T=176; U=128
    EP=[P+8*g for g in range(4)]; EM=[acc(g,c0) for g in range(4)]
    MX=[T+2*g for g in range(4)]; NM=[T+8+2*g for g in range(4)]
    for g in range(4):
        for ft in range(2): mfma(a, EP[g]+4*ft, PHI+4*ft, acc(g,c0))
    if mid1: mid1()
    FS='fst' in EXP; b_=40 if isK else 50
    def mx(h):
        L=[]
        for k in range(4):
            for g in (2*h,2*h+1):
                p=EP[g]
                if k==0: L+=[f"v_max3_f32 v{MX[g]}, v{p}, v{p+1}, v{p+2}", f"v_max3_f32 v{NM[g]}, -v{p}, -v{p+1}, -v{p+2}"]
                elif k<3: L+=[f"v_max3_f32 v{MX[g]}, v{MX[g]}, v{p+2*k+1}, v{p+2*k+2}", f"v_max3_f32 v{NM[g]}, v{NM[g]}, -v{p+2*k+1}, -v{p+2*k+2}"]
                else: L+=[f"v_max_f32_e64 v{MX[g]}, v{MX[g]}, v{p+7}", f"v_max_f32_e64 v{NM[g]}, v{NM[g]}, -v{p+7}"]
        return L
    def xl(h, op, fin):
        q=[MX[2*h],MX[2*h+1],NM[2*h],NM[2*h+1]]
        return [f"v_permlane32_swap_b32 v{q[0]}, v{q[1]}\nv_permlane32_swap_b32 v{q[2]}, v{q[3]}",
                f"{op} v{q[0]}, v{q[0]}, v{q[1]}\n{op} v{q[2]}, v{q[2]}, v{q[3]}",
                f"v_permlane16_swap_b32 v{q[0]}, v{q[2]}\n{op} v{q[0]}, v{q[0]}, v{q[2]}"]+fin(q[0],q[2])+[
                f"v_permlane16_swap_b32 v{q[0]}, v{q[2]}\nv_mov_b32 v{q[1]}, v{q[0]}", f"v_mov_b32_e64 v{q[3]}, v{q[2]}",
                f"v_permlane32_swap_b32 v{q[0]}, v{q[1]}\nv_permlane32_swap_b32 v{q[2]}, v{q[3]}"]
    x1=lambda h: xl(h, "v_max_f32", lambda x,y: [f"v_mul_f32 v{y}, v{x}, v{CCP[h]}\nv_mul_f32 v{x}, v{x}, v{CCP[h]}"])
    x2=lambda h: xl(h, "v_add_f32", lambda x,y: [f"v_rcp_f32_e64 v{x}, v{x}", f"v_mul_f32 v{y}, v{x}, v{RLP[h]}\nv_mul_f32 v{x}, v{x}, v{RLP[h]}" if isK else f"v_mov_b32_e64 v{y}, v{x}"])
    def fm(h):
        L=[]
        for g in (2*h,2*h+1):
            for i in range(0,8,2):
                L+=[f"v_pk_fma_f32 {R(EM[g]+i,2)}, {R(EP[g]+i,2)}, {R(CC[g],2)}, {R(NM[g],2)} op_sel_hi:[1,0,0] neg_lo:[1,0,1] neg_hi:[1,0,1]",
                    f"v_pk_fma_f32 {R(EP[g]+i,2)}, {R(EP[g]+i,2)}, {R(CC[g],2)}, {R(MX[g],2)} op_sel_hi:[1,0,0] neg_lo:[0,0,1] neg_hi:[0,0,1]"]
        return L
    def ex(h): return [f"v_exp_f32 v{EM[g]+i}, v{EM[g]+i}\nv_exp_f32 v{EP[g]+i}, v{EP[g]+i}" for g in (2*h,2*h+1) for i in range(8)]
    def sm(h):
        L=[]
        for k in range(3):
            for g in (2*h,2*h+1):
                for sg,Eb in ((0,EP[g]),(1,EM[g])):
                    t=U+4*g+2*sg
                    L.append(f"v_pk_add_f32 {R(t,2)}, {R(Eb,2)}, {R(Eb+2,2)}" if k==0 else f"v_pk_add_f32 {R(t,2)}, {R(t,2)}, {R(Eb+2*k+2,2)}")
        for g in (2*h,2*h+1): L.append(f"v_add_f32 v{MX[g]}, v{U+4*g}, v{U+4*g+1}\nv_add_f32 v{NM[g]}, v{U+4*g+2}, v{U+4*g+3}")
        return L
    def fin(h):
        for g in (2*h,2*h+1):
            for pm,(Eb,Q) in enumerate(((EP[g],MX),(EM[g],NM))):
                for i in range(0,8,2): a(f"v_pk_mul_f32 {R(Eb+i,2)}, {R(Eb+i,2)}, {R(Q[g],2)} op_sel_hi:[1,0]")
                for i in range(4): a(f"v_cvt_pk_bf16_f32 v{Eb+i}, v{Eb+2*i}, v{Eb+2*i+1}")
                if tail: tail(g, pm, Eb)
    def E(L):
        for x in L: a(x)
    a.raw(".p2align 3, 0xbf800000") if False else None
    if FS: stamp2(a,b_)
    E(mx(0)); E(zipl(x1(0), mx(1), 2))
    if FS: stamp2(a,b_+1)
    E(zipl(x1(1), fm(0), 2))
    if FS: stamp2(a,b_+2)
    E(ex(0)); E(sm(0))
    if hook: hook(0)
    if FS: stamp2(a,b_+3)
    E(zipl(x2(0), fm(1), 2)); fin(0)
    if FS: stamp2(a,b_+4)
    if hook: hook(1)
    E(ex(1))
    if hook: hook(2)
    E(sm(1))
    if FS: stamp2(a,b_+5)
    E(zipl(x2(1), fillB, 1))
    if FS: stamp2(a,b_+6)
    fin(1)
    if FS: stamp2(a,b_+7)
    return EP, EM
def corrT(a, c0, CS, B):
    for g in range(4):
        s=g&1
        for i in range(0,8,2):
            r=acc(g,c0)+i
            a(f"v_pk_fma_f32 {R(r,2)}, {R(ML[g],2)}, {R(CS+i,2)}, {R(r,2)} op_sel_hi:[0,1,1] neg_lo:[1,0,0] neg_hi:[1,0,0]")
        for i in range(4): a(f"v_cvt_pk_bf16_f32 v{acc(g,c0)+i}, v{acc(g,c0)+2*i}, v{acc(g,c0)+2*i+1}")

def ln_code(a):
    X=104; WR=120; S1=128; S2=132; S3=136; S4=140
    a(f"L_ln:\ns_lshl_b32 s3, s38, 12\ns_add_u32 s3, s3, {L_STG}\nv_lshlrev_b32 v2, 4, v1\nv_add_u32 v3, s3, v2\nv_add_u32 v2, {L_WR}, v2")
    if 'ln4' not in EXP: a("s_barrier")
    for i in range(2): a(f"ds_read_b128 {R(WR+4*i,4)}, v2 offset:{1024*i}")
    for i in range(4): a(f"ds_read_b128 {R(X+4*i,4)}, v3 offset:{1024*i}")
    stamp(a,3)
    a("v_mov_b32 v2, 0x3f803f80")
    for v in (S1,S2,S3,S4): a(f"v_mov_b32 v{v}, 0\nv_mov_b32 v{v+2}, 0")
    a("s_waitcnt lgkmcnt(2)")
    for r in range(2):
        if r: a("s_waitcnt lgkmcnt(0)")
        for d in range(8):
            x=X+8*r+d
            a(f"v_dot2c_f32_bf16 v{S1+2*r}, v{x}, v2\nv_dot2c_f32_bf16 v{S2+2*r}, v{x}, v{x}\nv_dot2c_f32_bf16 v{S3+2*r}, v{x}, v{WR+d}")
            a(f"v_dot2c_f32_bf16 v{S4+2*r}, v{WR+d}, v2")
    regs=[S1,S2,S3,S4]
    for v in regs: a(f"v_permlane32_swap_b32 v{v}, v{v+2}")
    for v in regs: a(f"v_add_f32 v{v}, v{v}, v{v+2}")
    for m in ("quad_perm:[1,0,3,2]", "quad_perm:[2,3,0,1]", "row_half_mirror", "row_mirror"):
        for v in regs: a(f"v_add_f32 v{v}, v{v}, v{v} {m} {DPPM}")
    for v in regs: a(f"v_mov_b32 v{v+1}, v{v}")
    for v in regs: a(f"v_permlane16_swap_b32 v{v}, v{v+1}")
    for v in regs: a(f"v_add_f32 v{v}, v{v}, v{v+1}")
    a(f"v_mul_f32 v{S1}, 0x3a800000, v{S1}\nv_mul_f32 v{S2}, 0x3a800000, v{S2}")
    rne(a, S1+1, S1)
    a(f"v_fma_f32 v{S2}, -v{S1}, v{S1}, v{S2}\nv_max_f32 v{S2}, 0, v{S2}\nv_fma_f32 v{S3}, -v{S1+1}, v{S4}, v{S3}\ns_waitcnt vmcnt(0)")
    rne(a, S2, S2)
    a(f"v_add_f32 v{S2}, 0x3727c5ac, v{S2}")
    rne(a, S2, S2)
    a(f"v_sqrt_f32 v{S2}, v{S2}")
    rne(a, S2, S2)
    a(f"v_rcp_f32 v2, v{S2}\nv_lshrrev_b32 v3, 16, v{S1+1}\nv_or_b32 v208, v3, v{S2}\nv_mul_f32 v{S3}, v{S3}, v2")
    rne(a, S3, S3)
    a(f"v_ashrrev_i32 v2, 31, v{S3}\nv_or_b32 v2, 0x80000000, v2\nv_xor_b32 v2, v{S3}, v2\nv_and_b32 v2, 0xffff0000, v2")
    a(f"v_lshrrev_b32 v3, 5, v1\nv_add_u32 v209, s71, v3\nv_sub_u32 v209, 2047, v209\nv_or_b32 v210, v2, v209\nv_mov_b32 v2, v210\nv_mov_b32 v209, v208\nv_readfirstlane_b32 s86, v212\nv_mov_b32 v3, 0\ns_mul_i32 s86, s86, 1664525\ns_add_u32 s86, s86, 1013904223\nv_mov_b32 v211, s86")
    a(f"v_permlane32_swap_b32 v210, v2\nv_permlane32_swap_b32 v208, v209\nv_max_u32 v210, v210, v2\ns_lshl_b32 s3, s71, 3")
    a(f"s_mov_b64 exec, 1\nbuffer_store_dwordx4 v[208:211], v3, s[{SWS}:{SWS+3}], s3 offen sc1\ns_mov_b64 exec, -1")
    a("v_mov_b32 v251, s86")
    stamp(a,4)
    if 'ln4' in EXP: a("s_branch L_lnr")

def c_wo(a, pos):
    for w in PLC.get(pos,[]):
        c=int(w[1])
        a(f"s_add_u32 m0, s72, {LC(c)}\ns_xor_b32 s3, s73, {cmap(c)*262144}")
        for e in range(4): a(f"buffer_load_dwordx4 v{216+e}, s[88:91], s3 offen offset:{e*1024} lds")
def c_waves(a):
    a("L_C:")
    a("s_and_b32 s64, s38, 1\ns_lshr_b32 s65, s38, 1")
    F=[104,144]; vA=184; vW=186
    a("v_and_b32 v3, 15, v1\nv_lshlrev_b32 v3, 7, v3\ns_lshl_b32 s3, s64, 13\nv_add_u32 v3, s3, v3\nv_bfe_u32 v5, v1, 1, 3\nv_lshrrev_b32 v6, 4, v1\nv_xor_b32 v6, v6, v5")
    a(f"v_lshl_add_u32 v{vA}, v6, 4, v3\nv_xor_b32 v{vA+1}, 64, v{vA}")
    a("v_lshrrev_b32 v6, 4, v1\nv_lshlrev_b32 v6, 3, v6\nv_bfe_u32 v7, v1, 2, 2\nv_add_u32 v6, v6, v7\nv_lshlrev_b32 v6, 7, v6\nv_and_b32 v7, 3, v1\nv_lshl_add_u32 v6, v7, 3, v6\nv_add_u32 v6, 16384, v6")
    a("v_bfe_u32 v7, v1, 3, 2\ns_lshl_b32 s3, s65, 1\nv_xor_b32 v7, s3, v7")
    a(f"v_lshl_add_u32 v{vW}, v7, 5, v6\nv_xor_b32 v{vW+1}, 32, v{vW}")
    for i in range(4): a(f"v_add_u32 v{vA+4+i}, {2*SLOT}, v{vA+i}")
    a("s_waitcnt lgkmcnt(0)")
    srd(a, SWS, 26, WS_SIZE); srd(a, SX, 4, 2048*2048); srd(a, 88, 10, 1024*1024*2)
    a(f"s_lshl_b32 s3, s36, 7\ns_lshl_b32 s28, s37, 3\ns_add_u32 s3, s3, s28\ns_lshl_b32 s28, s38, 1\ns_add_u32 s71, s3, s28\nv_lshlrev_b32 v2, 4, v1\nv_mov_b32 v212, {WS_EPO}")
    for i in range(4): a(f"v_mov_b32 v{4+i}, -1")
    a(f"s_lshl_b32 s28, s2, 2\ns_add_u32 s28, s28, s38\ns_mul_i32 s28, s28, 768\ns_add_u32 s28, s28, {WS_FILL-256}\ns_lshl_b32 s3, s37, 4\ns_add_u32 s3, s3, s36\ns_lshl_b32 s3, s3, 2\ns_add_u32 s3, s3, s38\ns_lshl_b32 s3, s3, 8\ns_add_u32 s3, s3, {WS_CSP}")
    a(f"v_cmp_gt_u32 vcc, 16, v1\nv_add_u32 v3, s3, v2\nv_add_u32 v2, s28, v2\nv_cndmask_b32 v2, v2, v3, vcc")
    a(f"buffer_store_dwordx4 v[4:7], v2, s[{SWS}:{SWS+3}], 0 offen sc1\nbuffer_load_dword v212, v212, s[{SWS}:{SWS+3}], 0 offen sc1")
    if STAMPS: a(f"v_mov_b32 v{VST-1}, 0\nv_writelane_b32 v{VST}, s96, 0")
    if 'nocpf' not in EXP:
        a("s_getpc_b64 s[92:93]")
        a.raw("L_pc:")
        a("s_sub_u32 s92, s92, L_pc-fused_kernel\ns_subb_u32 s93, s93, 0\ns_lshr_b32 s3, s2, 3\ns_lshl_b32 s3, s3, 2\ns_add_u32 s3, s3, s38\ns_lshl_b32 s3, s3, 8\nv_lshlrev_b32 v2, 7, v1\nv_add_u32 v2, s3, v2\ns_mov_b64 exec, 3")
        a("global_load_dword v213, v2, s[92:93]\ns_mov_b64 exec, -1")
    for i in range(0,96,2): a(f"v_mov_b64 {R(ACC+i,2)}, 0")
    def reads(sl, t2, fs):
        f=F[fs]; L=[]; b=4 if sl==2 else 0; o=SLOT if sl==1 else 0
        L.append(f"ds_read_b128 {R(f,4)}, v{vA+b+t2} offset:{o}")
        for c6 in range(6):
            for u in range(2):
                L.append(f"ds_read_b64_tr_b16 {R(f+16+4*c6+2*u,2)}, v{vW+b+(c6&1)} offset:{o+(32*t2+4*u)*128+(c6>>1)*8192}")
        for g in range(1,4): L.append(f"ds_read_b128 {R(f+4*g,4)}, v{vA+b+t2} offset:{o+g*2048}")
        return L
    def step(fs, rd, order=None):
        f=F[fs]; i=0
        for g,c6 in (order or [(g,c6) for g in range(4) for c6 in range(6)]):
            d=acc(g,c6)
            if c6<4: mfma(a, d, f+16+4*c6, f+4*g, d)
            else: mfma(a, d, f+4*g, f+16+4*c6, d)
            if rd is not None and i<len(rd): a(rd[i])
            i+=1
            if 'rd2' in EXP and rd is not None and i<len(rd) and i%3==0: a(rd[i]); i+=1
    a(f"s_lshl_b32 s3, s38, 2\ns_add_u32 s3, s3, {L_FLG}\nv_mov_b32 v2, s3\nv_mov_b32 v3, 0\nds_write_b32 v2, v3\nds_write_b32 v2, v3 offset:16")
    a("s_mov_b32 s86, 0\ns_mov_b32 s66, 0\ns_setprio 2\ns_waitcnt lgkmcnt(0)")
    AO=232
    ad = (f"v_and_b32 v2, 15, v1\nv_lshrrev_b32 v3, 4, v1\ns_lshl_b32 s3, s64, 8\ns_add_u32 s3, s3, {L_M}\nv_lshl_add_u32 v{AO}, v2, 2, s3\nv_lshl_add_u32 v{AO+1}, v3, 4, s3\n"
          f"v_lshrrev_b32 v7, 5, v1\nv_lshl_add_u32 v{AO+2}, v7, 6, v{AO}\n"
          f"s_lshl_b32 s3, s65, 7\ns_add_u32 s3, s3, {L_CS}\nv_lshl_add_u32 v{AO+3}, v3, 4, s3\nv_lshl_add_u32 v248, v2, 2, s3\n"
          f"s_lshl_b32 s3, s64, 7\ns_add_u32 s3, s3, {L_SQ}\nv_lshl_add_u32 v249, v3, 4, s3\nv_xor_b32 v253, 128, v249\n"
          f"v_lshrrev_b32 v250, 2, v1\nv_lshlrev_b32 v250, 6, v250\nv_and_b32 v251, 3, v1\nv_lshl_add_u32 v250, v251, 3, v250\ns_lshl_b32 s3, s65, 11\ns_add_u32 s3, s3, {L_PHI}\nv_add_u32 v252, s3, v250\n"
          f"v_bfe_u32 v5, v1, 1, 2\nv_lshlrev_b32 v5, 2, v5\nv_bfe_u32 v4, v1, 3, 1\nv_lshl_add_u32 v5, v4, 1, v5\nv_and_b32 v4, 1, v1\nv_add_u32 v5, v5, v4\nv_xor_b32 v5, v5, v3\n"
          f"s_lshl_b32 s3, s38, 13\ns_add_u32 s3, s3, {L_PHS}\nv_lshl_add_u32 v2, v2, 7, s3\nv_lshl_add_u32 v4, v5, 3, v2\nv_xor_b32 v5, 32, v4\nv_xor_b32 v6, 64, v4\nv_xor_b32 v7, 96, v4\n"
          f"v_bfe_u32 v2, v1, 3, 2\nv_lshlrev_b32 v2, 2, v2\nv_lshrrev_b32 v3, 5, v1\nv_lshl_add_u32 v2, v3, 1, v2\nv_bfe_u32 v3, v1, 2, 1\nv_add_u32 v2, v2, v3\nv_xor_b32 v2, v2, v251\n"
          f"v_lshrrev_b32 v3, 2, v1\nv_lshl_add_u32 v3, v3, 7, s3\nv_lshl_add_u32 v2, v2, 3, v3\ns_lshl_b32 s28, s64, 6\nv_xor_b32 v{vSR[0]}, s28, v2\nv_xor_b32 v{vSR[1]}, 32, v{vSR[0]}\n"
          f"s_lshl_b32 s3, s38, 12\ns_add_u32 s3, s3, {L_VS}\nv_lshlrev_b32 v{vLN}, 4, v1\nv_add_u32 v{vVS}, s3, v{vLN}\n"
          f"s_lshl_b32 s3, s37, 1\ns_add_u32 s67, s3, s65\ns_lshl_b32 s3, s67, 4\ns_add_u32 s3, s3, s36\ns_mul_i32 s3, s3, {KVS}\ns_add_u32 s75, s3, {WS_KVP}\ns_lshl_b32 s3, s64, 11\ns_add_u32 s74, s75, s3\ns_lshl_b32 s3, s64, 6\ns_add_u32 s75, s75, s3\ns_add_u32 s75, s75, 4096\n"
          f"s_lshl_b32 s3, s37, 4\ns_add_u32 s3, s3, s36\ns_lshl_b32 s3, s3, 7\ns_add_u32 s3, s3, {WS_RDY}\ns_cmp_lg_u32 s38, 0\ns_cselect_b32 s76, {WS_SIZE}, s3").split("\n")
    ad = a.capture(lambda: xaddr(a, 236, 237, 238)) + [f"v_xor_b32 v{236+ct}, {32*ct}, v236" for ct in range(1,4)] + ad
    for x in ad: a(x)
    stamp(a,1)
    if 'ln4' not in EXP: ln_code(a)
    a("s_barrier")
    stamp2(a,8)
    for r in reads(0,0,0): a(r)
    for ct in range(4): a(f"ds_read_b64 {R(PX+2*ct,2)}, v{236+ct}")
    a("s_waitcnt lgkmcnt(4)\ns_branch L_cmid")
    a.raw(".p2align 6")
    a("L_cloop:")
    for sl in range(3):
        if sl==opt('lnb',4)%3 and 'ln4' in EXP: a(f"s_cmp_eq_u32 s66, {opt('lnb',4)//3}\ns_cbranch_scc1 L_ln\nL_lnr:")
        a("s_waitcnt lgkmcnt(0)\ns_barrier")
        step(1, reads(sl,0,0))
        a("s_waitcnt lgkmcnt(0)\ns_nop 0")
        if sl==0: a("L_cmid:")
        step(0, reads(sl,1,1)+(["s_add_u32 s66, s66, 1\ns_cmp_lt_u32 s66, 5"] if sl==2 else []))
    a("s_cbranch_scc1 L_cloop")
    xr = [f"ds_read_b64 {R(PX+2*ct,2)}, v{236+ct}" for ct in range(4)]
    r1=[]; r2=[]
    for g in range(4): r1.append(f"ds_read_b32 v{ML[g]}, v{AO} offset:{64*g}")
    for c in range(2): r1.append(f"ds_read_b128 {R(CSK+4*c,4)}, v{AO+3} offset:{256+64*c}")
    for c in range(2): r1.append(f"ds_read_b128 {R(CSQ+4*c,4)}, v{AO+3} offset:{64*c}")
    for ft in range(2):
        for v in range(2): r2.append(f"ds_read_b64_tr_b16 {R(PHI+4*ft+2*v,2)}, v252 offset:{1024*v+32*ft}")
    a("s_nop 0\ns_waitcnt lgkmcnt(0)\ns_barrier")
    step(1, reads(0,0,0)+r1)
    a("s_waitcnt lgkmcnt(8)\ns_nop 0")
    step(0, reads(0,1,1)+r2)
    rd=["s_barrier"]
    for g in (0,2): rd.append(f"ds_read_b128 {R(MV+4*g,4)}, v{AO+1} offset:{64*g}\nds_read_b128 {R(MV+4*g+4,4)}, v{AO+1} offset:{64*g+64}")
    rd.append(f"ds_read_b32 v{CSV[1]}, v248 offset:576\nds_read_b32 v{CSV[0]}, v248 offset:512")
    for g in (0,2): rd.append(f"ds_read_b32 v{CC[g]}, v{AO} offset:{2048+64*g}\nds_read_b32 v{CC[g+1]}, v{AO} offset:{2048+64*g+64}")
    for h in range(2): rd.append(f"ds_read_b32 v{CCP[h]}, v{AO+2} offset:{2048+128*h}\nds_read_b32 v{RLP[h]}, v{AO+2} offset:{1024+128*h}")
    kc=[]
    for g in range(4):
        r=acc(g,2)
        kc+=[f"v_fma_f32 v{r+i}, -v{ML[g]}, v{CSK+i}, v{r+i}" for i in range(8)]
        kc+=[f"v_cvt_pk_bf16_f32 v{r+i}, v{r+2*i}, v{r+2*i+1}" for i in range(4)]
    for i in range(16): rd.append("\n".join(kc[3*i:3*i+3]))
    a("s_waitcnt lgkmcnt(4)")
    step(1, rd, [(g,c6) for cs in ((2,3),(4,5),(0,1)) for g in range(4) for c6 in cs])
    for ks in range(2): a(f"ds_read_b128 {R(SQF+4*ks,4)}, v249 offset:{64*ks}")
    a("s_waitcnt lgkmcnt(2)")
    stamp2(a,24)
    VL='vearly' not in EXP
    def vcorr():
        for g in range(4):
            for dt in range(2):
                for i in (0,2):
                    r=acc(g,4+dt)+i
                    a(f"v_pk_fma_f32 {R(r,2)}, {R(MV+4*g+i,2)}, {R(CSV[dt],2)}, {R(r,2)} op_sel_hi:[1,0,1] neg_lo:[1,0,0] neg_hi:[1,0,0]")
        for ks in range(2):
            for dt in range(2):
                d=acc(2*ks,4+dt); e=acc(2*ks+1,4+dt)
                a(f"v_cvt_pk_bf16_f32 v{d}, v{d}, v{d+1}\nv_cvt_pk_bf16_f32 v{d+1}, v{d+2}, v{d+3}\nv_cvt_pk_bf16_f32 v{d+2}, v{e}, v{e+1}\nv_cvt_pk_bf16_f32 v{d+3}, v{e+2}, v{e+3}")
                if not VL: a(f"ds_write_b128 v{vVS}, {R(d,4)} offset:{2048*ks+1024*dt}")
        for ks in range(2): a(f"ds_read_b128 {R(MV+4*ks,4)}, v253 offset:{64*ks}")
    AF=[232,CSK]; BK=None
    KVt=[144,152,acc(0,2)]
    PA_=128
    def tail(g, pm, Eb):
        for ft in range(2): a(f"ds_write_b64 v{4+2*pm+ft}, {R(Eb+2*ft,2)} offset:{2048*g}")
        if VL and g<2: a(f"ds_write_b128 v{vVS}, {R(acc(2*g,4+pm),4)} offset:{2048*g+1024*pm}")
        if g&1 and pm:
            ks=g>>1
            for ft in range(2):
                for v in range(2): a(f"ds_read_b64_tr_b16 {R(AF[ks]+4*ft+2*v,2)}, v{vSR[ft]} offset:{4096*ks+2048*v}")
    def kvm(k4):
        ks=k4&1; own=k4<2; L=[]
        for dt in range(3):
            for ft in range(2):
                d=KVt[dt]+4*ft
                Bo=(acc(2*ks+(0 if own else 1),4+dt) if dt<2 else (SQF if own else MV)+4*ks)
                L.append(f"v_mfma_f32_16x16x32_bf16 {R(d,4)}, {R((AF[ks] if own else PA_+8*ks)+4*ft,4)}, {R(Bo,4)}, {R(d,4) if k4 else '0'}")
        return L
    k0=kvm(0); k0[0]="s_waitcnt lgkmcnt(0)\ns_nop 0\n"+k0[0]
    CH=opt('ch',2)
    def hook(k):
        if k==CH: a(f"s_mov_b64 exec, 1\nbuffer_store_dword v251, v{vLN}, s[{SWS}:{SWS+3}], s76 offen sc1\ns_mov_b64 exec, -1")
    EP,EM = feature(a, BK, 2, True, mid1=vcorr, tail=tail, fillB=k0, hook=hook)
    stamp(a,34)
    a(f"v_xor_b32 v{vSR[0]}, 0x2000, v{vSR[0]}\nv_xor_b32 v{vSR[1]}, 0x2000, v{vSR[1]}\nv_xor_b32 v{vVS}, 0x1000, v{vVS}\ns_waitcnt lgkmcnt(4)\ns_barrier")
    for ks in range(2):
        for ft in range(2):
            for v in range(2): a(f"ds_read_b64_tr_b16 {R(PA_+8*ks+4*ft+2*v,2)}, v{vSR[ft]} offset:{4096*ks+2048*v}")
        for dt in range(2): a(f"ds_read_b128 {R(acc(2*ks+1,4+dt),4)}, v{vVS} offset:{2048*ks+1024*dt}")
    for k4 in range(1,4):
        a(f"s_waitcnt lgkmcnt({(12,6,0)[k4-1]})")
        for x in kvm(k4): a(x)
    stamp(a,33)
    for ft in range(2 if QX else 0):
        for v in range(2): a(f"ds_read_b64_tr_b16 {R(PHI+4*ft+2*v,2)}, v252 offset:{L_PHQ-L_PHI+1024*v+32*ft}")
    a(f"s_xor_b32 s67, s67, {2*QX}\ns_lshl_b32 s3, s38, 2\ns_add_u32 s3, s3, {L_FLG}\nv_mov_b32 v4, s3\nv_mov_b32 v5, 1")
    for j in range(3):
        b=KVt[j]
        for i in range(4): a(f"v_cvt_pk_bf16_f32 v{b+i}, v{b+2*i}, v{b+2*i+1}")
        if j<2: a(f"buffer_store_dwordx4 {R(b,4)}, v{vLN}, s[{SWS}:{SWS+3}], s74 offen offset:{1024*j} sc1")
    a("s_mov_b32 exec_lo, 0x00010001\ns_mov_b32 exec_hi, 0x00010001")
    a(f"buffer_store_dwordx4 {R(KVt[2],4)}, v1, s[{SWS}:{SWS+3}], s75 offen sc1\ns_mov_b64 exec, -1\nds_write_b32 v4, v5")
    stamp(a,25)
    a("s_setprio 0")
    corrT(a, 0, CSQ, BK)
    a("s_waitcnt lgkmcnt(1)")
    EP,EM = feature(a, BK, 0, False)
    stamp(a,26)
    KF=104; ZF=120
    key_rd(a, 248)
    a("v_lshrrev_b32 v5, 3, v1\nv_lshlrev_b32 v6, 11, v5\nv_bfe_u32 v5, v1, 4, 2\nv_lshlrev_b32 v5, 1, v5\nv_and_b32 v7, 7, v1\nv_xor_b32 v5, v5, v7\nv_lshl_add_u32 v6, v5, 4, v6\ns_lshl_b32 s3, s35, 7\nv_add_u32 v6, s3, v6")
    for e in range(4): a(f"v_add_u32 v{216+e}, {e*15360}, v6")
    a("s_lshl_b32 s72, s38, 12\ns_lshl_b32 s73, s38, 16"); rperm(a); a("s_lshl_b32 s3, s3, 18\ns_or_b32 s73, s73, s3")
    stat3(a, 193, 192)
    a(f"s_mul_i32 s76, s67, {KVS}\ns_add_u32 s76, s76, {WS_KVR}\nv_lshlrev_b32 v5, 4, v1\nv_and_b32 v6, 48, v1\nv_add_u32 v6, 4096, v6")
    a(f"s_lshl_b32 s3, s38, 2\ns_add_u32 s3, s3, {L_FLG}\nv_mov_b32 v3, s3\nL_gw:\nds_read_b32 v2, v3\ns_waitcnt lgkmcnt(0)\nv_readfirstlane_b32 s3, v2\ns_cmp_eq_u32 s3, 3\ns_cbranch_scc1 L_gk\n{LSL}s_branch L_gw\nL_gk:")
    stamp(a,35)
    SG='slate' not in EXP
    if SG: silu_prep(a, PG, PX, 193, 192, 196)
    if opt('h2d',0): a(f"s_sleep {opt('h2d',0)}")
    def ld_h2():
        for j in range(4): a(f"buffer_load_dwordx4 {R(KF+4*j,4)}, v5, s[{SWS}:{SWS+3}], s76 offen offset:{1024*j} sc1")
        for pm in range(2): a(f"buffer_load_dwordx4 {R(ZF+4*pm,4)}, v6, s[{SWS}:{SWS+3}], s76 offen offset:{64*pm} sc1")
    ld_h2()
    key_fin(a, 248)
    a(f"s_lshl_b32 s3, s36, 3\ns_lshl_b32 s28, s64, 2\ns_add_u32 s3, s3, s28\ns_lshl_b32 s3, s3, 5\ns_add_u32 s3, s3, s67\ns_lshl_b32 s77, s3, 10\ns_add_u32 s77, s77, {WS_O}")
    c_wo(a,'hb')
    a(f"s_waitcnt vmcnt({4*len(PLC.get('hb',[]))})")
    stamp(a,36)
    if 'nodup' not in EXP: a(f"s_add_u32 s76, s76, {WS_KV2-WS_KVR}")
    if 'noh2m' not in EXP:
        L=a.capture(ld_h2)
        def rl():
            for j,x in enumerate(L):
                maxu(a, 2, range(KF+4*j,KF+4*j+4))
                a(f"v_cmp_eq_u32 vcc, -1, v2\ns_cbranch_vccz L_hm{j}\ns_mov_b64 exec, vcc\n{x}\ns_mov_b64 exec, -1\nL_hm{j}:")
        checked(a, "L_k7", range(KF,KF+24), rl, sleep=0)
    else: checked(a, "L_k7", range(KF,KF+24), ld_h2)
    a("s_setprio 2")
    c_wo(a,'c2')
    stamp(a,27)
    def om(g):
        N=acc(g,2); L=[]
        for pm,Eb in ((0,EP[g]),(1,EM[g])): L.append(f"v_mfma_f32_16x16x32_bf16 {R(N+8,4)}, {R(ZF+4*pm,4)}, {R(Eb,4)}, {R(N+8,4) if pm else '0'}")
        for dt in range(2):
            for pm,Eb in ((0,EP[g]),(1,EM[g])): L.append(f"v_mfma_f32_16x16x32_bf16 {R(N+4*dt,4)}, {R(KF+8*pm+4*dt,4)}, {R(Eb,4)}, {R(N+4*dt,4) if pm else '0'}")
        return L
    def od(g): N=acc(g,2); return [f"v_add_f32 v{N+8}, 0x358637bd, v{N+8}", f"v_rcp_f32 v{N+8}, v{N+8}"]
    def ov(g, pk):
        N=acc(g,2)
        L=[f"v_pk_mul_f32 {R(N+i,2)}, {R(N+i,2)}, {R(N+8,2)} op_sel_hi:[1,0]" for i in range(0,8,2)] if pk else [f"v_mul_f32 v{N+i}, v{N+i}, v{N+8}" for i in range(8)]
        L+=[f"v_cvt_pk_bf16_f32 v{N+i}, v{N+2*i}, v{N+2*i+1}" for i in range(4)]
        L+=[f"buffer_store_dwordx4 {R(N,4)}, v5, s[{SWS}:{SWS+3}], s77 offen sc1"]+(["s_add_u32 s77, s77, 32768"] if g<3 else [])
        return L
    if 'noopipe' not in EXP:
        for x in om(0): a(x)
        for g in range(1,4):
            M=om(g); V_=od(g-1)+ov(g-1,False)
            for x in M[:2]+zipl(M[2:], V_, 3): a(x)
        for x in od(3)+ov(3,True): a(x)
    else:
        for g in range(4):
            N=acc(g,2)
            for pm,Eb in ((0,EP[g]),(1,EM[g])):
                mfma(a, N+8, ZF+4*pm, Eb, N+8 if pm else None)
                for dt in range(2): mfma(a, N+4*dt, KF+8*pm+4*dt, Eb, N+4*dt if pm else None)
        for g in range(4): a(f"v_add_f32 v{acc(g,2)+8}, 0x358637bd, v{acc(g,2)+8}")
        for g in range(4): a(f"v_rcp_f32 v{acc(g,2)+8}, v{acc(g,2)+8}")
        for g in range(4):
            N=acc(g,2)
            for i in range(0,8,2): a(f"v_pk_mul_f32 {R(N+i,2)}, {R(N+i,2)}, {R(N+8,2)} op_sel_hi:[1,0]")
            for i in range(4): a(f"v_cvt_pk_bf16_f32 v{N+i}, v{N+2*i}, v{N+2*i+1}")
            a(f"buffer_store_dwordx4 {R(N,4)}, v5, s[{SWS}:{SWS+3}], s77 offen sc1")
            if g<3: a("s_add_u32 s77, s77, 32768")
    a(f"v_mov_b32 v2, 7\nds_write_b32 v3, v2\ns_and_b32 s3, s68, 127\ns_lshl_b32 s3, s3, 2\ns_add_u32 s3, s3, {L_M}\nv_mov_b32 v2, s3\nds_read_b32 v250, v2\nds_read_b32 v251, v2 offset:1024")
    stamp(a,28)
    a("s_setprio 0")
    wait7(a, "L_cw")
    c_wo(a,'co')
    if not SG: silu_prep(a, PG, PX, 193, 192, 196)
    if opt('cpd',0): a(f"s_sleep {opt('cpd',0)}")
    stamp(a,29)

def p3(a):
    a("L_p3:")
    a.pad(4)
    D=opt('d3',5)
    PA=8; PB=40; PW=PB+8*D; vW=PW+32; vB=vW+4
    srd(a, SB, 22, 2048*2048)
    a(f"s_lshr_b32 s64, s39, 2\ns_lshl_b32 s3, s34, 2\ns_add_u32 s3, s3, s38\ns_lshl_b32 s3, s3, 16\ns_lshl_b32 s28, s64, {12 if OWN else 14}\ns_add_u32 s3, s3, s28\ns_add_u32 s76, s3, {WS_O}\ns_lshr_b32 s3, s73, 18\ns_lshl_b32 s3, s3, 12\ns_xor_b32 s76, s76, s3")
    a(f"s_lshl_b32 s3, s64, 15\nv_lshlrev_b32 v2, 4, v1\nv_add_u32 v{vB}, s3, v2\nv_xor_b32 v{vB+1}, 0x8000, v{vB}")
    a(f"v_lshrrev_b32 v2, 2, v1\nv_lshlrev_b32 v2, 7, v2\nv_bfe_u32 v3, v1, 3, 2\nv_lshl_add_u32 v2, v3, 5, v2\nv_and_b32 v3, 3, v1\nv_lshl_add_u32 v2, v3, 3, v2\ns_mul_i32 s3, s64, {LC(4)}\nv_add_u32 v{vW}, s3, v2")
    for ct in range(1,4): a(f"v_xor_b32 v{vW+ct}, {32*ct}, v{vW}")
    ROT='prot' in EXP
    vWr=196
    if ROT:
        for k in range(4):
            a(f"s_and_b32 s3, s35, 3\ns_xor_b32 s3, s3, {k}\ns_lshl_b32 s{79+k}, s3, 10\ns_add_u32 s{79+k}, s{79+k}, s76\ns_lshl_b32 s3, s3, 12")
            for ct in range(4): a(f"v_add_u32 v{vWr+4*k+ct}, s3, v{vW+ct}")
    def ldx(j, b, sreg):
        if ROT: a(f"s_add_u32 s{sreg}, s{79+(j&3)}, {(j&~3)*1024}")
        for e in range(2): a(f"buffer_load_dwordx4 {R(b+4*e,4)}, v{vB+e}, s[{SWS}:{SWS+3}], s{sreg} offen offset:{0 if ROT else (j%4)*1024} sc1")
    def ld(j):
        b=PB+8*(j%D)
        if j%4==0 and not ROT: a(f"s_xor_b32 s77, s76, {cmap(j>>2)*4096}")
        ldx(j,b,77)
    def wr(j):
        b=PW+16*(j%2)
        if ROT: return [f"ds_read_b64_tr_b16 {R(b+4*ct+2*v,2)}, v{vWr+4*(j&3)+ct} offset:{(j&~3)*4096+v*2048}" for ct in range(4) for v in range(2)]
        return [f"ds_read_b64_tr_b16 {R(b+4*ct+2*v,2)}, v{vW+ct} offset:{j*4096+v*2048}" for ct in range(4) for v in range(2)]
    for j in range(D-1): ld(j)
    stamp2(a,30)
    a(f"s_lshr_b32 s3, s68, 7\ns_xor_b32 s83, s3, s34\ns_or_b32 s83, s83, s39")
    YL=128; IS=250
    a("v_lshlrev_b32 v222, 4, v1")
    def ld_y():
        for j in range(16):
            if j%4==0: a(f"s_add_u32 s3, s78, {j*1024}")
            a(f"buffer_load_dwordx4 {R(YL+4*j,4)}, v222, s[{SWS}:{SWS+3}], s3 offen offset:{(j%4)*1024} sc1")
    def fix1():
        a(f"L_fx1:\ns_lshl_b32 s78, s35, 14\ns_add_u32 s78, s78, {WS_Y}")
        a(f"v_and_b32 v2, 15, v1\nv_lshrrev_b32 v3, 4, v1\nv_lshl_add_u32 v193, v2, 2, v3\nv_and_b32 v2, 7, v193\nv_lshrrev_b32 v193, 3, v193\nv_lshl_add_u32 v193, v2, 3, v193\nv_lshlrev_b32 v2, 1, v193\ns_lshl_b32 s3, s68, 11\ns_lshl_b32 s28, s35, 7\ns_add_u32 s3, s3, s28\nbuffer_load_ushort v194, v2, s[{SX}:{SX+3}], s3 offen")
        ld_y()
        a("s_branch L_fx1r")
    def fix2():
        a("L_fx2:\ns_and_b32 s3, s70, 0xffff0000\ns_xor_b32 s28, s3, 0x80000000\ns_not_b32 s29, s3\ns_and_b32 s29, s29, 0xffff0000\ns_bitcmp1_b32 s3, 31\ns_cselect_b32 s3, s28, s29")
        a(f"v_mov_b32 v195, s3\nv_mul_f32 v195, 0xbfb8aa3b, v195\nv_exp_f32 v195, v195\nv_add_f32 v195, 1.0, v195\nv_rcp_f32 v195, v195")
        rne(a,195,195)
        checked(a, "L_k6", range(YL,YL+64), ld_y, sleep=4)
        for k in (8,4,2,1):
            for i in range(0,4*k,2): a(f"v_pk_add_f32 {R(YL+i,2)}, {R(YL+i,2)}, {R(YL+4*k+i,2)}")
        for i in range(2): a(f"v_permlane32_swap_b32 v{YL+i}, v{YL+2+i}")
        for i in range(2): a(f"v_add_f32 v{YL+i}, v{YL+i}, v{YL+2+i}")
        a(f"v_permlane16_swap_b32 v{YL}, v{YL+1}\nv_add_f32 v{YL}, v{YL}, v{YL+1}")
        rne(a,YL,YL)
        a(f"v_mul_f32 v{YL}, v{YL}, v195\nv_lshlrev_b32 v194, 16, v194\nv_sub_f32 v194, v194, v{IS}")
        rne(a,YL,YL); rne(a,194,194)
        a(f"v_mul_f32 v194, v194, v{IS+1}")
        rne(a,194,194)
        a(f"v_add_f32 v{YL}, v{YL}, v194")
        rne(a,YL,YL)
        a(f"v_mul_f32 v2, 0xbfb8aa3b, v{YL}\nv_exp_f32 v2, v2\nv_add_f32 v2, 1.0, v2\nv_rcp_f32 v2, v2\nv_mul_f32 v2, v{YL}, v2\nv_lshlrev_b32 v3, 2, v193\nv_add_u32 v3, {LM}, v3\nds_write_b32 v3, v2\ns_branch L_fx2r")
    for r in wr(0): a(r)
    a("s_mov_b32 s29, 0")
    BC=opt('bc',7)
    def chk(j):
        b=PB+8*(j%D)
        return a.capture(lambda: maxu(a, 2, range(b,b+8)))+["v_cmp_eq_u32 vcc, -1, v2"]
    a(f"s_waitcnt vmcnt({2*(D-2)})")
    for x in chk(0): a(x)
    for j in range(16):
        b=PB+8*(j%D); w=PW+16*(j%2)
        a(f"s_cbranch_vccnz L_r{j}\nL_g{j}:")
        if 'pst' in EXP and j%4==0: stamp2(a,40+j//4)
        if a.down and j==opt('jd',4): a("s_cmp_eq_u32 s64, 1\ns_cbranch_scc1 L_dn\nL_dnr:")
        if j==opt('fxj',14): a("s_cmp_eq_u32 s83, 0\ns_cbranch_scc1 L_fx1\nL_fx1r:")
        a("s_waitcnt lgkmcnt(0)")
        if 'bal' in EXP and j in (0,5,9,13): a(f"s_setprio {3-(j//4)}")
        if 'bal2' in EXP and j in (0,8,12,14): a(f"s_setprio {dict(zip((0,8,12,14),(3,2,1,0)))[j]}")
        if BC==3:
            if j==3: a("s_barrier")
        elif j in (opt('bh',3),BC): a(f"s_cmp_eq_u32 s64, {0 if j!=BC else 1}\ns_cbranch_scc1 L_nb{j}\ns_barrier\nL_nb{j}:")
        S=[[] for _ in range(8)]
        if j<15:
            rd=wr(j+1)
            for i in range(4): S[i]=rd[2*i:2*i+2]
            if j+D-1<16: S[4]=a.capture(lambda: ld(j+D-1))
            c=chk(j+1)
            S[5]=[f"s_waitcnt vmcnt({2*min(D-2,14-j)})"]+c[:1]; S[6]=c[1:3]; S[7]=c[3:]
        i=0
        for ct in range(4):
            for e in range(2):
                d=PA+16*e+4*ct
                mfma(a, d, w+4*ct, b+4*e, d if j else None)
                for x in S[i]: a(x)
                i+=1
    stamp2(a,31)
    if STAMPS: a(f"v_writelane_b32 v{VST-1}, s29, 58")
    a("s_cmp_eq_u32 s83, 0\ns_cbranch_scc1 L_fx2\nL_fx2r:")
    a(f"s_lshl_b32 s3, s39, 12\nv_lshlrev_b32 v2, 4, v1\nv_add_u32 v2, s3, v2\nv_xor_b32 v3, 0x4000, v2\ns_xor_b32 s28, s3, 0x4000")
    for ct in range(4): a(f"ds_write_b128 v2, {R(PA+16+4*ct,4)} offset:{1024*ct}")
    XF=40
    for d in range(8): unpack(a, XF+2*d, PX+d)
    a(f"v_and_b32 v4, 15, v1\nv_lshrrev_b32 v5, 4, v1\nv_lshlrev_b32 v6, 1, v4\nv_and_b32 v6, 14, v6\nv_xor_b32 v5, v5, v6\nv_lshl_add_u32 v4, v4, 7, s28\nv_lshl_add_u32 v4, v5, 3, v4")
    a(f"v_lshrrev_b32 v5, 3, v1\nv_and_b32 v6, 7, v1\nv_xor_b32 v7, v6, v5\nv_lshl_add_u32 v7, v7, 4, s28\nv_lshl_add_u32 v7, v5, 7, v7")
    a(f"s_lshl_b32 s3, s34, 7\ns_add_u32 s3, s3, s69\nv_add_u32 v5, s3, v5\nv_lshlrev_b32 v5, 11, v5\nv_lshl_add_u32 v5, v6, 4, v5\ns_lshl_b32 s3, s35, 7\ns_add_u32 s28, s3, 16384")
    a(f"s_lshl_b32 s29, s34, 7\ns_add_u32 s29, s29, s69\ns_andn2_b32 s77, s68, 15\ns_cmp_lg_u32 s29, s77")
    a("s_waitcnt lgkmcnt(0)\ns_barrier")
    a(f"s_cbranch_scc1 L_nov\nv_and_b32 v2, 48, v1\nv_add_u32 v2, {LM}, v2\ns_and_b32 s29, s68, 15\ns_lshl_b32 exec_lo, 0x00010001, s29\ns_mov_b32 exec_hi, exec_lo")
    for ct in range(4): a(f"ds_read_b128 {R(PG+4*ct,4)}, v2 offset:{64*ct}")
    a("s_mov_b64 exec, -1\nL_nov:")
    stamp(a,60)
    for ct in range(4): a(f"ds_read_b128 {R(PA+16+4*ct,4)}, v3 offset:{1024*ct}")
    for ct in range(4):
        a(f"s_waitcnt lgkmcnt({3-ct})")
        for i in (0,2): a(f"v_pk_add_f32 {R(PA+4*ct+i,2)}, {R(PA+4*ct+i,2)}, {R(PA+16+4*ct+i,2)}")
        for i in (0,2): a(f"v_pk_fma_f32 {R(XF+4*ct+i,2)}, {R(PA+4*ct+i,2)}, {R(PG+4*ct+i,2)}, {R(XF+4*ct+i,2)}")
        for i in (0,1): a(f"v_cvt_pk_bf16_f32 v{PA+2*ct+i}, v{XF+4*ct+2*i}, v{XF+4*ct+2*i+1}")
    for ct in range(4):
        if ct: a(f"v_xor_b32 v6, {32*ct}, v4")
        a(f"ds_write_b64 v{6 if ct else 4}, {R(PA+2*ct,2)}")
    for e in range(2): a(f"ds_read_b128 {R(PA+16+4*e,4)}, v7 offset:{1024*e}")
    OM = '' if 'outplain' in EXP else ' nt' if 'outnt' in EXP else ' sc1 nt' if 'outsn' in EXP else ' sc0 sc1' if 'outss' in EXP else ' sc1'
    for e in range(2):
        a(f"s_waitcnt lgkmcnt({1-e})\nbuffer_store_dwordx4 {R(PA+16+4*e,4)}, v5, s[{SB}:{SB+3}], s{28 if e else 3} offen{OM}")
    stamp(a,61)
    if STAMPS: a("s_waitcnt vmcnt(0)")
    stamp(a,32)
    dump(a)
    if LEAK>=0: a("s_memrealtime s[98:99]\ns_waitcnt lgkmcnt(0)\ns_sub_u32 s94, s94, s96\ns_add_u32 s94, s94, s98\nL_lk:\ns_sleep 1\ns_memrealtime s[98:99]\ns_waitcnt lgkmcnt(0)\ns_cmp_lt_u32 s98, s94\ns_cbranch_scc1 L_lk")
    a("L_done:\ns_endpgm")
    if 'ln4' in EXP: ln_code(a)
    fix1(); fix2()
    if a.down:
        a("L_dn:")
        if 'dprio' in EXP: a("s_setprio 3")
        a.down('dprio' not in EXP)
        if 'dprio' in EXP: a("s_setprio 0")
        a("s_branch L_dnr")
    for j in range(16):
        b=PB+8*(j%D)
        a(f"L_r{j}:\ns_add_u32 s29, s29, 1\ns_cmp_ge_u32 s29, {SPIN}\ns_cbranch_scc1 L_g{j}\ns_xor_b32 s3, s76, {cmap(j>>2)*4096}")
        ldx(j,b,3)
        a("s_waitcnt vmcnt(0)")
        for x in chk(j): a(x)
        a(f"s_cbranch_vccnz L_r{j}\ns_branch L_g{j}")

def kern(a):
    kernel_header(a, "fused_kernel")
    a("s_cmp_ge_u32 s2, 256\ns_cbranch_scc1 L_done")
    a("s_load_dwordx16 s[4:19], s[0:1], 0\ns_load_dwordx8 s[20:27], s[0:1], 64")
    if STAMPS or LEAK>=0: a("s_memrealtime s[96:97]\ns_memrealtime s[94:95]")
    a("v_and_b32 v1, 63, v0\nv_lshrrev_b32 v2, 6, v0")
    a("v_readfirstlane_b32 s39, v2")
    a("s_and_b32 s34, s2, 1\ns_lshl_b32 s34, s34, 3\ns_bfe_u32 s3, s2, 0x30003\ns_add_u32 s36, s34, s3")
    a("s_bfe_u32 s37, s2, 0x20001\ns_lshl_b32 s37, s37, 2\ns_lshr_b32 s28, s2, 6\ns_add_u32 s37, s37, s28")
    a("s_and_b32 s80, s37, 12\ns_xor_b32 s80, s80, s34\ns_add_u32 s85, s36, s37\ns_and_b32 s85, s85, 3\ns_or_b32 s35, s80, s85\ns_mov_b32 s34, s36")
    a("s_and_b32 s38, s39, 3")
    a("s_cmp_lt_u32 s39, 4\ns_cbranch_scc1 L_C")
    h_waves(a)
    c_waves(a)
    p3(a)
    return kernel_desc("fused_kernel", 256, 102)

if __name__ == "__main__":
    a=CAsm()
    head = open('/code/%s.s.ref'%NAME).read().split('\n')
    hdr = [l for l in head if l.startswith(';') and '@launch' not in l and 'Override launch' not in l and 'grid=ceil' not in l]
    out='\n'.join(hdr)+"\n; @launch kernel=fused_kernel grid=(256,1,1) block=(512,1,1) lds=163840\n"
    out+='.amdgcn_target "amdgcn-amd-amdhsa--gfx950"\n.text\n'
    d=kern(a)
    if 'noal' not in EXP:
        import align
        a.lines,nw,nn = align.align(a.lines, '.amdgcn_target "amdgcn-amd-amdhsa--gfx950"\n.text\n')
    out+=a.text()+".p2align 8\n.fill 4096, 4, 0xbf800000\n"+'.section .rodata,"a"\n.p2align 6\n'+d
    if 'official' in EXP:
        out = out.replace("; @launch kernel=fused_kernel grid=", "; @launch grid=").replace("fused_kernel", NAME+"_kernel")
    open(sys.argv[1],"w").write(out)
```
